```python
import torch

def _softmax(x, axis=-1):
    return torch.softmax(x, dim=axis)
def _gelu(x):
    return torch.nn.functional.gelu(x, approximate="tanh")
def _silu(x):
    return torch.nn.functional.silu(x)
def _sigmoid(x):
    return torch.sigmoid(x)
def _layernorm(x, axis=-1, eps=1e-5):
    m = x.mean(dim=axis, keepdim=True)
    v = x.var(dim=axis, keepdim=True, unbiased=False)
    return (x - m) / torch.sqrt(v + eps)
def _scatter_add(tgt, idx, src, axis=0):
    return tgt.clone().index_add_(axis, idx, src)
def _segment_sum(src, seg, n):
    out = torch.zeros((n,) + src.shape[1:], dtype=src.dtype)
    return out.index_add_(0, seg, src)
def _pad(x, pw):
    flat = tuple(v for pair in reversed(pw) for v in pair)
    return torch.nn.functional.pad(x, flat)

kernel_name = 'gated_mix__grouped_kv_mqa__linear_kernel_hedgehog__prompt'

def setup_inputs():

    _w = (lambda a: (lambda t: t.to(torch.bfloat16) if t.is_floating_point() else t)(torch.as_tensor(a)))
    def _A_setup():
        B, S, D, H = 1, 2048, 512, 32
        Dh = D // H
        return {
            "x": _w((lambda *s: torch.randn(*s, dtype=torch.bfloat16) * 0.05)(B, S, D)),
            "wq": _w((lambda *s: torch.randn(*s, dtype=torch.bfloat16) * 1.6)(D, H * Dh)),
            "wk": _w((lambda *s: torch.randn(*s, dtype=torch.bfloat16) * 1.6)(D, Dh)),
            "wv": _w((lambda *s: torch.randn(*s, dtype=torch.bfloat16) * 0.05)(D, Dh)),
            "wo": _w((lambda *s: torch.randn(*s, dtype=torch.bfloat16) * 0.05)(H * Dh, D)),
        }
    _A_in = _A_setup()

    def _B_setup():
        B, S, D, H = 1, 2048, 512, 32
        Dh = D // H
        return {
            "x": _w((lambda *s: torch.randn(*s, dtype=torch.bfloat16) * 0.05)(B, S, D)),
            "wqkv": _w((lambda *s: torch.randn(*s, dtype=torch.bfloat16) * 1.6)(D, 3 * D)),
            "w_phi": _w((lambda *s: torch.randn(*s, dtype=torch.bfloat16) * 1.6)(H, Dh, Dh) * (Dh ** -0.5)),
            "wo": _w((lambda *s: torch.randn(*s, dtype=torch.bfloat16) * 0.05)(D, D)),
        }
    _B_in = _B_setup()

    return {
        "A_x": _A_in["x"],
        "A_wq": _A_in["wq"],
        "A_wk": _A_in["wk"],
        "A_wv": _A_in["wv"],
        "A_wo": _A_in["wo"],
        "B_x": _B_in["x"],
        "B_wqkv": _B_in["wqkv"],
        "B_w_phi": _B_in["w_phi"],
        "B_wo": _B_in["wo"],
        "gate_w": _w((lambda *s: torch.randn(*s, dtype=torch.bfloat16) * 0.05)(512) * 16.0),
    }

def reference(A_x, A_wq, A_wk, A_wv, A_wo, B_x, B_wqkv, B_w_phi, B_wo, gate_w):
    def _A_ref(x, wq, wk, wv, wo):
        B, S, D = x.shape
        H = 32
        Dh = D // H
        q = (lambda x, *d: x.permute(*d))((x @ wq).reshape(B, S, H, Dh), 0, 2, 1, 3)
        k = x @ wk
        v = x @ wv
        scores = torch.einsum("bhqd,bkd->bhqk", q, k) * (Dh ** -0.5)
        p = _softmax(scores, axis=-1)
        o = torch.einsum("bhqk,bkd->bhqd", p, v)
        return (lambda x, *d: x.permute(*d))(o, 0, 2, 1, 3).reshape(B, S, H * Dh) @ wo

    def _B_ref(x, wqkv, w_phi, wo):
        B, S, D = x.shape
        H = 32; Dh = D // H
        qkv = (lambda x, *d: x.permute(*d))((x @ wqkv).reshape(B, S, 3, H, Dh), 2, 0, 3, 1, 4)
        q, k, v = qkv[0], qkv[1], qkv[2]
        pq = torch.einsum("bhsd,hdf->bhsf", q, w_phi)
        pk = torch.einsum("bhsd,hdf->bhsf", k, w_phi)
        phi_q = torch.concatenate([_softmax(pq, axis=-1), _softmax(-pq, axis=-1)], axis=-1)
        phi_k = torch.concatenate([_softmax(pk, axis=-1), _softmax(-pk, axis=-1)], axis=-1)
        kv = torch.einsum("bhsf,bhsd->bhfd", phi_k, v)
        z  = torch.einsum("bhsf->bhf", phi_k)
        num = torch.einsum("bhqf,bhfd->bhqd", phi_q, kv)
        den = torch.einsum("bhqf,bhf->bhq", phi_q, z)[..., None] + 1e-6
        o = num / den
        return (lambda x, *d: x.permute(*d))(o, 0, 2, 1, 3).reshape(B, S, D) @ wo

    x = A_x
    g = _sigmoid((x * gate_w).sum(-1, keepdims=True))
    a = _A_ref(x, A_wq, A_wk, A_wv, A_wo)
    b = _B_ref(x, B_wqkv, B_w_phi, B_wo)
    return g * a + (1 - g) * b
```

```python
import re

TRANS = ("v_exp_f32", "v_log_f32", "v_rcp_f32", "v_rsq_f32", "v_sqrt_f32", "v_sin_f32", "v_cos_f32")

def regs_of(op):
    op = op.strip()
    op = op.replace("abs(", "").replace(")", "").replace("|", "")
    if op.startswith("-"): op = op[1:]
    m = re.fullmatch(r"([vs])(\d+)", op)
    if m: return {(m.group(1), int(m.group(2)))}
    m = re.fullmatch(r"([vs])\[(\d+):(\d+)\]", op)
    if m: return {(m.group(1), i) for i in range(int(m.group(2)), int(m.group(3)) + 1)}
    if op in ("vcc", "vcc_lo", "vcc_hi"): return {("x", "vcc")}
    if op in ("exec", "exec_lo", "exec_hi"): return {("x", "exec")}
    if op == "m0": return {("x", "m0")}
    return set()

class Ins:
    def __init__(self, text):
        self.text = text
        t = text.split(";")[0].strip()
        self.label = None; self.mn = None; self.ops = []
        self.dst = set(); self.src = set(); self.srcC = set(); self.srcAB = set(); self.data = set()
        if not t or t.startswith("."):
            self.kind = "dir"; return
        if t.endswith(":"):
            self.kind = "label"; self.label = t[:-1]; return
        parts = t.split(None, 1)
        mn = self.mn = parts[0]
        rest = parts[1] if len(parts) > 1 else ""
        ops = [o.strip() for o in re.split(r",(?![^\[]*\])", rest)] if rest else []
        mods = ""
        if ops:
            sp = ops[-1].split(None, 1)
            ops[-1] = sp[0]
            if len(sp) > 1: mods = sp[1]
        self.ops = ops; self.mods = mods
        R = [regs_of(o) for o in ops]
        U = lambda l: set().union(*l) if l else set()
        if mn.startswith("v_mfma") or mn.startswith("v_smfmac"):
            self.kind = "mfma"
            self.passes = 8 if "32x32" in mn else 4
            self.dst = R[0]
            if mn.startswith("v_mfma"):
                self.srcAB = R[1] | R[2]; self.srcC = R[3]
            else:
                self.srcAB = R[1] | R[2] | R[3]; self.srcC = R[0]
            self.src = self.srcAB | self.srcC
        elif mn.startswith("v_"):
            self.kind = "valu"
            if mn.startswith("v_permlane"):
                self.dst = R[0] | R[1]; self.src = R[0] | R[1]
            elif mn.startswith("v_nop"):
                pass
            else:
                self.dst = R[0]; self.src = U(R[1:])
                if mn.startswith("v_add_co") or mn.startswith("v_addc_co") or mn.startswith("v_sub_co"):
                    self.dst = R[0] | R[1]; self.src = U(R[2:])
                if "fmac" in mn or mn.startswith("v_writelane") or "dot2c" in mn or "_dpp" in mn or "_sdwa" in mn: self.src |= R[0]
                if mn.startswith("v_cmpx"): self.dst |= {("x", "exec")}
        elif mn.startswith("ds_"):
            self.kind = "ds"
            if mn.startswith("ds_read") or "_rtn" in mn or "permute" in mn or "swizzle" in mn:
                self.dst = R[0]; self.src = U(R[1:])
            else:
                self.src = U(R)
        elif mn.startswith("buffer_") or mn.startswith("global_"):
            self.kind = "vmem"
            words = mods.split()
            if "load" in mn and ("lds" in words or "_lds_" in mn):
                self.src = U(R) | {("x", "m0")}; self.ldsdma = True
            elif "load" in mn:
                self.dst = R[0]; self.src = U(R[1:])
            else:
                self.src = U(R)
                if mn.startswith("buffer_store_dwordx4") or mn.startswith("buffer_store_dwordx3"): self.data = R[0]
                if "atomic" in mn and "sc0" in words: self.dst = R[0]
        elif mn.startswith("s_"):
            self.kind = "salu"
            nod = ("s_cmp", "s_waitcnt", "s_branch", "s_cbranch", "s_barrier", "s_nop", "s_setprio", "s_sleep", "s_endpgm", "s_bitcmp", "s_setpc")
            if mn.startswith(nod): self.src = U(R)
            else:
                self.dst = R[0] if R else set(); self.src = U(R[1:])
                if "saveexec" in mn: self.dst |= {("x", "exec")}
        else:
            raise ValueError("unknown instr " + text)
    def ws(self):
        if self.kind in ("dir", "label"): return 0
        if self.mn == "s_nop": return int(self.ops[0], 0) + 1
        return 1

def need(p, c):
    n = 0
    vg = lambda s: {r for r in s if r[0] == "v"}
    sg = lambda s: {r for r in s if r[0] == "s" or r == ("x", "vcc")}
    if p.kind == "valu":
        pv = vg(p.dst); ps = sg(p.dst)
        if c.kind == "mfma" and pv & c.src: n = max(n, 2)
        if c.kind == "valu":
            if p.mn.startswith(TRANS) and not c.mn.startswith(TRANS) and pv & c.src: n = max(n, 1)
            if c.mn.startswith(("v_readlane", "v_readfirstlane")) and pv & c.src: n = max(n, 1)
            if (c.mn.startswith("v_permlane") or "_dpp" in c.mn) and pv & c.src: n = max(n, 2)
            if ps & c.src: n = max(n, 4 if c.mn.startswith(("v_readlane", "v_writelane")) else 2)
            if ("op_sel" in getattr(p, "mods", "") and not p.mn.startswith("v_pk_") or "_sdwa" in p.mn) and pv & (c.src | c.dst): n = max(n, 1)
        if c.kind == "vmem" and ps & c.src: n = max(n, 5)
        if ("x", "exec") in p.dst and c.kind in ("mfma", "valu"): n = max(n, 5)
        if p.mn.startswith(TRANS) and c.kind in ("ds", "vmem") and pv & c.src: n = max(n, 1)
    if p.kind == "mfma":
        big = {8: 12, 4: 8}[p.passes]
        if c.kind == "mfma":
            if p.dst & c.srcAB: n = max(n, big)
            if p.dst & c.srcC:
                if not (p.dst == c.srcC and p.passes == c.passes): n = max(n, {8: 10, 4: 6}[p.passes])
            elif p.dst & c.dst and p.passes != c.passes: n = max(n, big)
        if c.kind == "valu":
            if p.dst & (c.src | c.dst): n = max(n, big)
            if p.srcC & c.dst: n = max(n, {8: 7, 4: 3}[p.passes])
        if c.kind in ("ds", "vmem") and p.dst & (c.src | c.dst): n = max(n, big)
    if p.kind == "salu" and ("x", "m0") in p.dst and getattr(c, "ldsdma", False): n = max(n, 1)
    if p.kind == "vmem" and p.data and c.kind in ("valu", "mfma", "ds", "vmem") and p.data & c.dst: n = max(n, 2)
    return n

class Asm:
    def __init__(self):
        self.lines = []
        self.uid = 0
    def __call__(self, s):
        for l in s.split("\n"):
            l = l.strip()
            if l: self.lines.append(l)
    def lab(self, base):
        self.uid += 1
        return f"L{base}_{self.uid}"
    def finish(self, verbose=False):
        ins = [Ins(l) for l in self.lines]
        def build():
            lab = {x.label: i for i, x in enumerate(ins) if x.kind == "label"}
            pred = [[] for _ in ins]
            for i, x in enumerate(ins):
                fall = True
                if x.kind == "salu":
                    if x.mn in ("s_branch", "s_endpgm", "s_setpc_b64"): fall = False
                    if x.mn == "s_branch" or x.mn.startswith("s_cbranch"):
                        pred[lab[x.ops[0]]].append(i)
                if fall and i + 1 < len(ins): pred[i + 1].append(i)
            return pred
        inserted = []
        pred = build()
        i = 0
        while i < len(ins):
            c = ins[i]
            if c.kind in ("dir", "label", "salu"):
                i += 1; continue
            deficit = 0; why = None
            stack = [(j, 0) for j in pred[i]]
            seen = {}
            while stack:
                j, d = stack.pop()
                if d >= 12 or seen.get(j, 99) <= d: continue
                seen[j] = d
                p = ins[j]
                if p.kind not in ("dir", "label"):
                    k = need(p, c) - d
                    if k > deficit: deficit = k; why = p.text
                for q in pred[j]: stack.append((q, d + p.ws()))
            if deficit > 0:
                ins.insert(i, Ins(f"s_nop {deficit-1}"))
                inserted.append((c.text, why, deficit))
                pred = build()
                i += 1
            i += 1
        self.inserted = inserted
        if verbose:
            for t, w, d in inserted: print(f"nop {d}: [{w}] -> [{t}]")
        out = []
        for x in ins:
            out.append(x.text if x.kind in ("label", "dir") else "    " + x.text)
        return "\n".join(out) + "\n"

def vr(a, n=1): return f"v{a}" if n == 1 else f"v[{a}:{a+n-1}]"
def sr(a, n=1): return f"s{a}" if n == 1 else f"s[{a}:{a+n-1}]"
```

```python
import sys, os
from asmlib import Asm, vr, sr

NAME = "gated_mix__grouped_kv_mqa__linear_kernel_hedgehog__prompt"
DIAG = int(os.environ.get("DIAG", "0"))
FORCE_FB = int(os.environ.get("FORCE_FB", "0"))

X = 0; XS = 1040
Q = 66560
OP = 74752
RING = 107520
LT = 156672
MISC = 160768
WKV = OP; WQ = OP + 16384
GATE = Q; WPHI = Q + 1024
G = MISC; NONCE = MISC + 256; SWBC = MISC + 272; CONS = MISC + 288
LDS_BYTES = 163840
WS_K = 0; WS_V = 0x10000; WS_F = 0x20000; WS_KVF = 0x30000; WS_DIAG = 0x40000
WS_PART = 0x80000; WS_O = 0x400000; WS_SIZE = 0x800000
KVF_STRIDE = 1152
F_KV = 0; F_F3 = 1; F_F2 = 4; F_OB = 8; F_OA = 12
pX, pWQ, pWK, pWV, pWOA, pBX, pWQKV, pWPHI, pWOB, pGATE, pOUT, pDBG, pWS = [4 + 2 * i for i in range(13)]
sX, sWQ, sWKV, sWB, sWOA, sWOB, sWS, sOUT, sDBG, sSM = [32 + 4 * i for i in range(10)]
sW, sRB, sHG, sL, sNON, sBUD, sS, sI, sP = 72, 73, 74, 75, 76, 77, 78, 79, 80
t0, t1, t2, t3, t4, t5 = 81, 82, 83, 84, 85, 86
sJ = 87; sRET = 88
sL2E = 90
sFL = 92
sD0, sD1 = 93, 94
sST = 4
LOG2E = 0x3fb8aa3b
QSCALE = 0x3eb8aa3b

a = Asm()
nst = [0]
def stamp(n):
    if DIAG: a(f"s_memrealtime {sr(sST + 2 * n, 2)}")

def srd(d, p, size):
    a(f"s_mov_b32 s{d}, s{p}\ns_mov_b32 s{d+1}, s{p+1}\ns_mov_b32 s{d+2}, {hex(size)}\ns_mov_b32 s{d+3}, 0x20000")

def budget_retry(loop, done, nap):
    a(f"s_cmp_eq_u32 s{sBUD}, 0\ns_cbranch_scc1 {done}\ns_sub_u32 s{sBUD}, s{sBUD}, 1")
    if nap: a(f"s_sleep {nap}")
    a(f"s_branch {loop}")

def poll_flags(vaddr, vtmp, off=0, nap=2):
    lp, dn = a.lab("pf"), a.lab("pfd")
    a(f"""{lp}:
    buffer_load_dword v{vtmp}, v{vaddr}, {sr(sWS,4)}, 0 offen offset:{off} sc1
    s_waitcnt vmcnt(0)
    v_cmp_ne_u32 vcc, s{sNON}, v{vtmp}
    s_cbranch_vccz {dn}""")
    budget_retry(lp, dn, nap)
    a(f"{dn}:")

def set_flag(idx_sgpr_or_const, vt0, vt1):
    if isinstance(idx_sgpr_or_const, int):
        a(f"v_mov_b32 v{vt0}, {4*idx_sgpr_or_const}")
    else:
        a(f"v_mov_b32 v{vt0}, {idx_sgpr_or_const}")
    a(f"""v_mov_b32 v{vt1}, s{sNON}
    s_mov_b64 exec, 1
    buffer_store_dword v{vt1}, v{vt0}, {sr(sWS,4)}, s{sFL} offen sc1
    s_mov_b64 exec, -1""")

def diag_dump(n):
    if not DIAG: return
    a("s_waitcnt lgkmcnt(0)")
    a(f"s_lshl_b32 s{t0}, s{sL}, 3\ns_add_u32 s{t0}, s{t0}, s{sW}\ns_lshl_b32 s{t0}, s{t0}, 6\ns_add_u32 s{t0}, s{t0}, {WS_DIAG}")
    a("v_mov_b32 v8, 0")
    for i in range(13):
        a(f"v_writelane_b32 v8, s{sST+2*i}, {i}")
    a(f"""v_mbcnt_lo_u32_b32 v9, -1, 0
    v_mbcnt_hi_u32_b32 v9, -1, v9
    v_lshlrev_b32 v9, 2, v9
    s_mov_b64 exec, 0xffff
    buffer_store_dword v8, v9, {sr(sWS,4)}, s{t0} offen
    s_mov_b64 exec, -1""")

a(f"""s_cmp_ge_u32 s2, 256
s_cbranch_scc1 L_exit
s_load_dwordx16 s[4:19], s[0:1], 0
s_load_dwordx8 s[20:27], s[0:1], 64
s_load_dwordx2 s[28:29], s[0:1], 96
v_lshrrev_b32 v1, 6, v0
v_and_b32 v0, 63, v0
v_readfirstlane_b32 s{sW}, v1
s_and_b32 s{t0}, s2, 7
s_lshr_b32 s{t1}, s2, 3
s_lshr_b32 s{t2}, s{t0}, 1
s_lshl_b32 s{t2}, s{t2}, 3
s_lshr_b32 s{t3}, s{t1}, 2
s_add_u32 s{sRB}, s{t2}, s{t3}
s_and_b32 s{t2}, s{t0}, 1
s_lshl_b32 s{t2}, s{t2}, 2
s_and_b32 s{t3}, s{t1}, 3
s_add_u32 s{sHG}, s{t2}, s{t3}
s_lshl_b32 s{sL}, s{sRB}, 3
s_add_u32 s{sL}, s{sL}, s{sHG}
s_lshl_b32 s{sFL}, s{sL}, 7
s_add_u32 s{sFL}, s{sFL}, {WS_F}
s_mov_b32 s{sBUD}, 400000
s_mov_b32 s{sL2E}, {hex(LOG2E)}
s_mov_b32 s{sL2E+1}, {hex(LOG2E)}
s_and_b32 s{sS}, s{sW}, 3
s_lshr_b32 s{sI}, s{sS}, 1
s_and_b32 s{sP}, s{sS}, 1
v_lshlrev_b32 v10, 4, v0
s_waitcnt lgkmcnt(0)""")
srd(sX, pX, 0x200000)
a(f"s_bitcmp1_b32 s{sHG}, 0\ns_cselect_b32 s{sWKV}, s{pWV}, s{pWK}\ns_cselect_b32 s{sWKV+1}, s{pWV+1}, s{pWK+1}\ns_mov_b32 s{sWKV+2}, 0x4000\ns_mov_b32 s{sWKV+3}, 0x20000")
a(f"s_lshr_b32 s{t5}, s{sHG}, 1")
a(f"s_cmp_lg_u32 s{sW}, 4\ns_cbranch_scc1 L_nojobdma")
a(f"""s_mul_i32 s{t0}, s{t5}, {16*XS}
s_lshl_b32 s{t1}, s{sRB}, 16
s_lshl_b32 s{t2}, s{t5}, 14
s_add_u32 s{t1}, s{t1}, s{t2}""")
for r in range(16):
    a(f"s_add_u32 m0, s{t0}, {X + (r//4)*4*XS + (r%4)*16}")
    if r % 4 == 0 and r: a(f"s_add_u32 s{t1}, s{t1}, 4096")
    a(f"buffer_load_dwordx4 v10, {sr(sX,4)}, s{t1} offen offset:{(r%4)*1024} lds")
for n in range(16):
    if n % 4 == 0: a(f"s_mov_b32 m0, {WKV + n*1024}\ns_mov_b32 s{t1}, {n*1024}")
    a(f"buffer_load_dwordx4 v10, {sr(sWKV,4)}, s{t1} offen offset:{(n%4)*1024} lds")
a("L_nojobdma:")
srd(sWQ, pWQ, 0x80000); srd(sWB, pWQKV, 0x180000); srd(sWOA, pWOA, 0x80000); srd(sWOB, pWOB, 0x80000)
srd(sWS, pWS, WS_SIZE); srd(sOUT, pOUT, 0x200000); srd(sDBG, pDBG, 256)
a(f"""v_lshrrev_b32 v11, 3, v0
v_and_b32 v12, 7, v0
v_lshrrev_b32 v13, 2, v0
v_and_b32 v13, 4, v13
v_xor_b32 v12, v12, v13
v_lshlrev_b32 v12, 4, v12
v_lshl_add_u32 v9, v11, 10, v12
v_mul_u32_u24 v8, 3072, v11
v_add_u32 v8, v8, v12""")
a(f"""v_and_b32 v11, 31, v0
s_lshl_b32 s{t0}, s{sI}, 5
v_add_u32 v11, s{t0}, v11
v_mul_u32_u24 v4, {XS}, v11
v_lshrrev_b32 v12, 5, v0
v_lshl_add_u32 v4, v12, 4, v4
v_and_b32 v13, 15, v0
v_lshrrev_b32 v14, 2, v13
v_lshlrev_b32 v14, 7, v14
v_lshrrev_b32 v15, 3, v13
v_xor_b32 v15, s{sP}, v15
v_lshl_add_u32 v14, v15, 6, v14
v_bfe_u32 v15, v0, 4, 1
v_lshl_add_u32 v14, v15, 5, v14
v_and_b32 v15, 3, v0
v_lshl_add_u32 v14, v15, 3, v14
v_lshl_add_u32 v5, v12, 10, v14
v_lshl_add_u32 v6, v12, 9, v14""")
a(f"s_cmp_ge_u32 s{sW}, 4\ns_cbranch_scc1 L_sw")

def xrest(slot_sgpr):
    a(f"""s_add_u32 s{t0}, s{t5}, 1
    s_lshl_b32 s{t0}, s{t0}, 1
    s_add_u32 s{t0}, s{t0}, s{slot_sgpr}
    s_and_b32 s{t0}, s{t0}, 7
    s_lshl_b32 s{t1}, s{sRB}, 16
    s_lshl_b32 s{t2}, s{t0}, 13
    s_add_u32 s{t1}, s{t1}, s{t2}
    s_mul_i32 s{t0}, s{t0}, {8*XS}""")
    for r in range(8):
        a(f"s_add_u32 m0, s{t0}, {X + (r//4)*4*XS + (r%4)*16}")
        if r == 4: a(f"s_add_u32 s{t1}, s{t1}, 4096")
        a(f"buffer_load_dwordx4 v10, {sr(sX,4)}, s{t1} offen offset:{(r%4)*1024} lds")

S0, S1, O_, QR, KR, VR = 12, 28, 44, 60, 64, 128
vIDX, vZ, vQA, vPA, vLA, vCA, vCV = 1, 2, 4, 5, 6, 7, 8
stamp(0)
a("s_setprio 1")
a(f"s_mov_b32 s{t0}, 0x3f803f80\ns_mov_b32 s{t1}, 0x3f803f80")
assert t0 % 2 == 1
a(f"s_mov_b32 s{t2}, 0x3f803f80")
for r in range(VR, 256, 2): a(f"v_mov_b64 v[{r}:{r+1}], s[{t1}:{t2}]")
a("s_barrier")
xrest(sW)
a(f"s_lshl_b32 s{t0}, s{sW}, 10\ns_add_u32 s{t0}, s{t0}, {WQ}\ns_lshl_b32 s{t1}, s{sW}, 13\ns_lshl_b32 s{t2}, s{sHG}, 7\ns_add_u32 s{t1}, s{t1}, s{t2}")
for c in range(16):
    a(f"s_add_u32 m0, s{t0}, {c*4096}")
    if c: a(f"s_add_u32 s{t1}, s{t1}, 32768")
    a(f"buffer_load_dwordx4 v9, {sr(sWQ,4)}, s{t1} offen lds")
a(f"v_add_u32 v5, {WQ}, v5")
def qreads(ks):
    b = KR + 8 * (ks % 8)
    a(f"ds_read_b128 {vr(b,4)}, v4 offset:{ks*32}")
    a(f"ds_read_b64_tr_b16 {vr(b+4,2)}, v5 offset:{ks*2048}")
    a(f"ds_read_b64_tr_b16 {vr(b+6,2)}, v5 offset:{ks*2048+512}")
for (k0, k1, vm) in ((0, 12, 10), (12, 24, 4), (24, 32, 0)):
    a(f"s_waitcnt vmcnt({vm})\ns_barrier")
    if k0 == 0: stamp(1)
    if k0 == 24: stamp(2)
    for ks in range(k0, k0 + 4): qreads(ks)
    for ks in range(k0, k1):
        left = min(k1 - 1, ks + 3) - ks
        a(f"s_waitcnt lgkmcnt({3*left})")
        b = KR + 8 * (ks % 8)
        a(f"v_mfma_f32_32x32x16_bf16 {vr(O_,16)}, {vr(b+4,4)}, {vr(b,4)}, {'0' if ks == 0 else vr(O_,16)}")
        if ks + 4 < k1: qreads(ks + 4)
a(f"s_mov_b32 s{t1}, {hex(QSCALE)}\ns_mov_b32 s{t2}, {hex(QSCALE)}")
a(f"s_lshl_b32 s{t0}, s{sW}, 11\ns_add_u32 s{t0}, s{t0}, {Q}\nv_add_u32 v11, s{t0}, v10")
for r in range(0, 16, 2): a(f"v_pk_mul_f32 {vr(O_+r,2)}, {vr(O_+r,2)}, s[{t1}:{t2}]")
for r in range(8): a(f"v_cvt_pk_bf16_f32 v{S0+r}, v{O_+2*r}, v{O_+2*r+1}")
a(f"ds_write_b128 v11, {vr(S0,4)}\nds_write_b128 v11, {vr(S0+4,4)} offset:1024")
a(f"v_mov_b32 v11, {NONCE}\nds_read_b32 v11, v11")
a("s_waitcnt lgkmcnt(0)\ns_barrier")
stamp(3)
a(f"""v_readfirstlane_b32 s{sNON}, v11
v_add_u32 v{vQA}, {Q}, v10
ds_read_b128 {vr(QR,4)}, v{vQA}
s_lshl_b32 s{t0}, s{sW}, 13
s_add_u32 s{t0}, s{t0}, {WS_F}
v_lshlrev_b32 v11, 7, v0
v_add_u32 v11, s{t0}, v11
s_lshl_b32 s{t0}, s{sW}, 11
s_add_u32 s{t0}, s{t0}, {OP}
v_add_u32 v{vPA}, s{t0}, v10
s_lshl_b32 s{t0}, s{sW}, 8
s_add_u32 s{t0}, s{t0}, {LT}
v_and_b32 v{vLA}, 31, v0
v_lshl_add_u32 v{vLA}, v{vLA}, 2, s{t0}
v_mov_b32 v{vCA}, {CONS}
v_mov_b32 v{vIDX}, 0xdddd
v_mov_b32 v{vZ}, 0
v_mov_b32 v{vZ+1}, 0
v_lshrrev_b32 v9, 5, v0
v_and_b32 v8, 15, v0
v_lshlrev_b32 v8, 4, v8
v_lshl_add_u32 v9, v9, 8, v8
v_add_u32 v9, {WS_V}, v9""")
poll_flags(11, 8, F_KV * 4)
stamp(4)
a(f"s_lshl_b32 s{t0}, s{sW}, 14\ns_mov_b32 s{t1}, 0xffff\ns_mov_b32 s{t2}, 0xffff")
for t in range(16):
    if t % 4 == 0 and t: a(f"s_add_u32 s{t0}, s{t0}, 4096")
    a(f"buffer_load_dwordx4 {vr(KR+4*t,4)}, v10, {sr(sWS,4)}, s{t0} offen offset:{(t%4)*1024} sc1")
    a(f"s_mov_b64 exec, s[{t1}:{t2}]")
    a(f"buffer_load_dwordx4 {vr(VR+8*t,4)}, v9, {sr(sWS,4)}, s{t0} offen offset:{(t%4)*1024} sc1")
    a(f"buffer_load_dwordx4 {vr(VR+8*t+4,4)}, v9, {sr(sWS,4)}, s{t0} offen offset:{(t%4)*1024+512} sc1")
    a("s_mov_b64 exec, -1")
def zero_o(): a(f"v_mfma_f32_32x32x8_bf16 {vr(O_,16)}, {vr(vZ,2)}, {vr(vZ,2)}, 0")
def qk(t, S): a(f"v_mfma_f32_32x32x16_bf16 {vr(S,16)}, {vr(KR+4*t,4)}, {vr(QR,4)}, 0")
def pv(t, s, S): a(f"v_smfmac_f32_32x32x32_bf16 {vr(O_,16)}, {vr(VR+8*t+4*s,4)}, {vr(S+8*s,8)}, v{vIDX}")
def flush():
    lp, dn = a.lab("cw"), a.lab("cwd")
    a(f"""v_cmp_eq_u32 vcc, 0, v{vCV}
    s_cbranch_vccz {dn}
    {lp}:
    ds_read_b32 v{vCV}, v{vCA}
    s_waitcnt lgkmcnt(0)
    v_cmp_eq_u32 vcc, 0, v{vCV}
    s_cbranch_vccz {dn}""")
    budget_retry(lp, dn, 1)
    a(f"""{dn}:
    ds_write_b128 v{vPA}, {vr(O_,4)}
    ds_write_b128 v{vPA}, {vr(O_+4,4)} offset:1024
    ds_write2_b32 v{vLA}, v{O_+8}, v{vQA} offset0:0 offset1:32""")
def apass(first):
    for t in range(16):
        S, Sn = (S0, S1) if t % 2 == 0 else (S1, S0)
        for e in range(16):
            if e == 2 and not (first and t == 0): pv((t - 1) % 16, 1, Sn)
            if e == 5:
                if first and t < 15: a(f"s_waitcnt vmcnt({45 - 3*t - 1})")
                if t == 15: a("s_waitcnt lgkmcnt(0)" if not first else "s_waitcnt vmcnt(0) lgkmcnt(0)")
                qk((t + 1) % 16, Sn)
                if t == 14:
                    a(f"v_add_u32 v{vQA}, 1024, v{vQA}\nds_read_b128 {vr(QR,4)}, v{vQA}\nds_read_b32 v{vCV}, v{vCA}")
            if e == 13 and t == 0 and not first:
                flush(); zero_o()
            if e == 15: pv(t, 0, S)
            a(f"v_exp_f32 v{S+e}, v{S+e}")
        if t == 0 and not first:
            a(f"""s_add_u32 s{sJ}, s{sJ}, 1
            s_cmp_eq_u32 s{sJ}, 4
            s_cselect_b32 s{t0}, -3, 1
            v_lshl_add_u32 v{vPA}, s{t0}, 13, v{vPA}
            v_lshl_add_u32 v{vLA}, s{t0}, 10, v{vLA}
            v_add_u32 v{vCA}, 4, v{vCA}""")
zero_o()
a(f"s_mov_b32 s{sJ}, 0\ns_waitcnt vmcnt(47) lgkmcnt(0)")
qk(0, S0)
stamp(5)
apass(True)
stamp(6)
a(".p2align 6\nL_aloop:")
apass(False)
a(f"s_cmp_lt_u32 s{sJ}, 7\ns_cbranch_scc1 L_aloop")
pv(15, 1, S1)
a("s_nop 9")
flush()
stamp(7)
diag_dump(8)
a("s_endpgm")

a("L_sw:")
stamp(0)
vONE, vSWB, vT = 1, 2, 3
vXA, vWA, vWO, vWOA, vD3, vD1, vL16, vGI, vGO = 4, 5, 6, 7, 8, 9, 10, 11, 12
WPH, PHQ, ACC, AC2, WB0, TMP = 16, 24, 40, 56, 72, 104
a(f"""s_setprio 2
v_mov_b32 v{vONE}, 1
v_mov_b32 v{vSWB}, {SWBC}
v_add_u32 v{vWOA}, {X}, v6
v_add_u32 v{vWA}, {RING}, v5
v_add_u32 v{vWO}, {RING}, v6""")
epoch = [0]
def arrive():
    epoch[0] += 1
    a(f"s_mov_b64 exec, 1\nds_add_u32 v{vSWB}, v{vONE}\ns_mov_b64 exec, -1")
def check(lowprio):
    lp, dn = a.lab("sb"), a.lab("sbd")
    a(f"{lp}:\nds_read_b32 v{vT}, v{vSWB}")
    if lowprio: a("s_setprio 2")
    a(f"s_waitcnt lgkmcnt(0)\nv_readfirstlane_b32 s{t0}, v{vT}")
    if lowprio: a("s_setprio 0")
    a(f"s_cmp_ge_u32 s{t0}, {4*epoch[0]}\ns_cbranch_scc1 {dn}")
    budget_retry(lp, dn, 0)
    a(f"{dn}:")

a(f"s_cmp_lg_u32 s{sS}, 3\ns_cbranch_scc1 L_sw_not3")
a(f"s_cmp_lg_u32 s2, 0\ns_cbranch_scc1 L_sw_nononce")
a(f"""s_memrealtime s[{t1}:{t2}]
v_mov_b32 v13, 0
s_waitcnt lgkmcnt(0)
s_or_b32 s{t1}, s{t1}, 1
v_mov_b32 v14, s{t1}
s_mov_b64 exec, 1
buffer_store_dword v14, v13, {sr(sDBG,4)}, 0 offen sc1
s_mov_b64 exec, -1""")
a("L_sw_nononce:")
a(f"""v_mov_b32 v20, 0
v_mov_b32 v21, 0
v_mov_b32 v22, 0
v_mov_b32 v23, 0
v_add_u32 v13, {LT}, v{vL16}""")
for n in range(4): a(f"ds_write_b128 v13, v[20:23] offset:{n*1024}")
a(f"""v_lshlrev_b32 v13, 2, v0
v_add_u32 v13, {NONCE}, v13
v_cmp_gt_u32 vcc, 12, v0
v_cndmask_b32 v14, 0, v{vONE}, vcc
v_cmp_le_u32 vcc, 8, v0
v_cndmask_b32 v14, 0, v14, vcc
ds_write_b32 v13, v14""")
assert CONS == NONCE + 32
a("s_waitcnt lgkmcnt(0)")
a("L_sw_not3:")
if DIAG:
    pass
a("s_barrier")
a(f"s_cmp_eq_u32 s{sS}, 0\ns_cbranch_scc1 L_sw_job")
a(f"s_cmp_eq_u32 s{sS}, 3\ns_cbranch_scc1 L_sw_small")
a(f"s_add_u32 s{t3}, s{sS}, 3")
xrest(t3)
a("s_branch L_sw_h2")
a("L_sw_small:")
srd(sSM, pGATE, 1024)
a(f"s_mov_b32 m0, {GATE}\ns_nop 0\nbuffer_load_dwordx4 v{vL16}, {sr(sSM,4)}, 0 offen lds")
srd(sSM, pWPHI, 16384)
a(f"s_lshl_b32 s{t0}, s{sHG}, 11\ns_mov_b32 m0, {WPHI}\ns_nop 0")
a(f"buffer_load_dwordx4 v{vL16}, {sr(sSM,4)}, s{t0} offen lds\nbuffer_load_dwordx4 v{vL16}, {sr(sSM,4)}, s{t0} offen offset:1024 lds")
a("s_branch L_sw_h2")
a("L_sw_job:")
JX, JW = TMP, TMP + 64
a(f"""v_and_b32 v13, 15, v0
v_lshrrev_b32 v14, 4, v0
s_lshl_b32 s{t0}, s{t5}, 4
v_add_u32 v15, s{t0}, v13
v_mul_u32_u24 v15, {XS}, v15
v_lshl_add_u32 v15, v14, 4, v15
v_lshlrev_b32 v16, 3, v13
v_lshl_add_u32 v16, v14, 8, v16
v_add_u32 v16, {WKV}, v16""")
a(f"s_bitcmp1_b32 s{sHG}, 0\ns_cbranch_scc1 L_job_v")
def job(isv):
    if not isv:
        a(f"""v_and_b32 v17, 1, v14
        v_lshlrev_b32 v17, 9, v17
        v_lshl_add_u32 v17, v13, 4, v17
        v_lshrrev_b32 v18, 1, v14
        v_lshl_add_u32 v17, v18, 3, v17
        s_lshr_b32 s{t0}, s{t5}, 1
        s_lshl_b32 s{t1}, s{sRB}, 1
        s_add_u32 s{t0}, s{t0}, s{t1}
        s_lshl_b32 s{t0}, s{t0}, 10
        s_and_b32 s{t1}, s{t5}, 1
        s_lshl_b32 s{t1}, s{t1}, 8
        s_add_u32 s{t4}, s{t0}, s{t1}""")
    else:
        a(f"""v_lshrrev_b32 v17, 1, v14
        v_lshlrev_b32 v17, 8, v17
        v_lshl_add_u32 v17, v13, 4, v17
        v_and_b32 v18, 1, v14
        v_lshl_add_u32 v17, v18, 3, v17
        s_lshl_b32 s{t0}, s{sRB}, 2
        s_add_u32 s{t0}, s{t0}, s{t5}
        s_lshl_b32 s{t0}, s{t0}, 9
        s_add_u32 s{t4}, s{t0}, {WS_V}""")
    def grp(gq):
        a(f"s_waitcnt vmcnt({12 - 4*gq})")
        for n in range(4 * gq, 4 * gq + 4):
            a(f"ds_read_b128 {vr(JX+4*n,4)}, v15 offset:{n*64}")
            a(f"ds_read_b64_tr_b16 {vr(JW+4*n,2)}, v16 offset:{n*1024}")
            a(f"ds_read_b64_tr_b16 {vr(JW+4*n+2,2)}, v16 offset:{n*1024+128}")
    def mm(gq):
        for n in range(4 * gq, 4 * gq + 4):
            A, B = (JX, JW) if isv else (JW, JX)
            a(f"v_mfma_f32_16x16x32_bf16 {vr(ACC,4)}, {vr(A+4*n,4)}, {vr(B+4*n,4)}, {'0' if n == 0 else vr(ACC,4)}")
    grp(0)
    for gq in range(4):
        if gq < 3: grp(gq + 1); a("s_waitcnt lgkmcnt(12)")
        else: a("s_waitcnt lgkmcnt(0)")
        mm(gq)
job(False)
a("s_branch L_job_st\nL_job_v:")
job(True)
a("L_job_st:")
lp, dn = a.lab("np"), a.lab("npd")
a(f"""v_cvt_pk_bf16_f32 v18, v{ACC}, v{ACC+1}
v_cvt_pk_bf16_f32 v19, v{ACC+2}, v{ACC+3}
v_mov_b32 v13, 0
buffer_store_dwordx2 v[18:19], v17, {sr(sWS,4)}, s{t4} offen sc1""")
stamp(1)
a(f"""{lp}:
buffer_load_dword v14, v13, {sr(sDBG,4)}, 0 offen sc1
s_waitcnt vmcnt(0)
v_readfirstlane_b32 s{sNON}, v14
s_cmp_lg_u32 s{sNON}, 0
s_cbranch_scc1 {dn}""")
budget_retry(lp, dn, 1)
a(f"{dn}:")
set_flag(F_KV, 13, 15)
a(f"v_mov_b32 v13, {NONCE}\nds_write_b32 v13, v14\ns_waitcnt lgkmcnt(0)")
stamp(2)
a("s_branch L_sw_h2b")
a("L_sw_h2:\ns_waitcnt vmcnt(0)\nL_sw_h2b:\ns_barrier")
GF = TMP
a(f"""v_lshrrev_b32 v14, 4, v0
v_lshlrev_b32 v13, 4, v14
v_add_u32 v13, {GATE}, v13""")
for n in range(16): a(f"ds_read_b128 {vr(GF+4*n,4)}, v13 offset:{n*64}")
a(f"""v_and_b32 v13, 15, v0
v_lshlrev_b32 v13, 3, v13
v_lshrrev_b32 v14, 5, v0
v_lshl_add_u32 v13, v14, 7, v13
s_lshl_b32 s{t0}, s{sP}, 10
s_add_u32 s{t0}, s{t0}, {WPHI}
v_add_u32 v13, s{t0}, v13
s_waitcnt lgkmcnt(8)""")
for hh in range(2):
    a(f"ds_read_b64_tr_b16 {vr(WPH+4*hh,2)}, v13 offset:{hh*512}")
    a(f"ds_read_b64_tr_b16 {vr(WPH+4*hh+2,2)}, v13 offset:{hh*512+256}")
a(f"""v_mov_b32 v14, {NONCE}
ds_read_b32 v14, v14
v_bfe_u32 v13, v0, 4, 1
v_mul_u32_u24 v15, 0x8000, v13
v_lshl_add_u32 v15, v13, 31, v15
s_waitcnt lgkmcnt(0)
v_readfirstlane_b32 s{sNON}, v14""")
for r in range(8): a(f"v_xor_b32 v{WPH+r}, v15, v{WPH+r}")
a("s_barrier\ns_barrier\ns_barrier")
stamp(3)

def dma_stage(c):
    buf = RING + (c % 3) * 16384
    if c < 8:   srdw, vo, base, step = sWB, vD3, c * 64 * 3072, 8 * 3072
    elif c < 12: srdw, vo, base, step = sWB, vD3, (c - 8) * 128 * 3072, 8 * 3072
    else:       srdw, vo, base, step = sWOB, vD1, (c - 12) * 128 * 1024, 8 * 1024
    for n in range(4):
        a(f"s_add_u32 m0, s{sD0}, {buf + n*1024}\ns_add_u32 s{t1}, s{sD1}, {base + n*step}")
        a(f"buffer_load_dwordx4 v{vo}, {sr(srdw,4)}, s{t1} offen lds")
def dma_base(kind):
    a(f"s_lshl_b32 s{t1}, s{sHG}, 7")
    if kind == "kv":
        a(f"s_mul_i32 s{sD1}, s{sP}, {32*3072}\ns_add_u32 s{sD1}, s{sD1}, s{t1}\ns_lshl_b32 s{t1}, s{sI}, 10\ns_add_u32 s{sD1}, s{sD1}, s{t1}\ns_add_u32 s{sD1}, s{sD1}, 1024")
    elif kind == "q":
        a(f"s_mul_i32 s{sD1}, s{sS}, {32*3072}\ns_add_u32 s{sD1}, s{sD1}, s{t1}")
    else:
        a(f"s_lshl_b32 s{sD1}, s{sS}, 15\ns_add_u32 s{sD1}, s{sD1}, s{t1}")
a(f"s_lshl_b32 s{sD0}, s{sS}, 12")
dma_base("kv")
for c in range(3): dma_stage(c)
GX = TMP + 64
a(f"""v_and_b32 v13, 15, v0
v_lshrrev_b32 v14, 4, v0
s_lshl_b32 s{t0}, s{sS}, 4
v_add_u32 v13, s{t0}, v13
v_mul_u32_u24 v15, {XS}, v13
v_lshl_add_u32 v15, v14, 4, v15""")
for n in range(16): a(f"ds_read_b128 {vr(GX+4*n,4)}, v15 offset:{n*64}")
for n in range(16):
    if n % 4 == 0: a(f"s_waitcnt lgkmcnt({12 - n})")
    a(f"v_mfma_f32_16x16x32_bf16 {vr(ACC,4)}, {vr(GF+4*n,4)}, {vr(GX+4*n,4)}, {'0' if n == 0 else vr(ACC,4)}")
a(f"""v_lshlrev_b32 v13, 2, v13
v_add_u32 v13, {G}, v13
v_mul_f32 v14, {hex(LOG2E | 0x80000000)}, v{ACC}
v_exp_f32 v14, v14
v_add_f32 v14, 1.0, v14
v_rcp_f32 v14, v14
ds_write_b32 v13, v14""")

def windows(pairs, fill):
    for n, pr in enumerate(pairs):
        for m in pr: a(m)
        if n < len(fill): fill[n]()

FA = [TMP, TMP + 64]
def rd_x(c, ks0, nks):
    for k in range(nks): a(f"ds_read_b128 {vr(FA[c%2]+4*k,4)}, v{vXA} offset:{(ks0+k)*32}")
def rd_w(dst, vaddr, off, second):
    a(f"ds_read_b64_tr_b16 {vr(dst,2)}, v{vaddr} offset:{off}\nds_read_b64_tr_b16 {vr(dst+2,2)}, v{vaddr} offset:{off+second}")
def rd_stage_w(c, lo, hi):
    for k in range(lo, hi): rd_w(FA[c % 2] + 32 + 4 * k, vWA, (c % 3) * 16384 + k * 2048, 512)

a("s_waitcnt vmcnt(8)")
arrive(); check(False)
a(f"""v_and_b32 v13, 31, v0
v_lshlrev_b32 v13, 2, v13
s_lshl_b32 s{t0}, s{sI}, 7
s_add_u32 s{t1}, s{t0}, {G}
v_add_u32 v14, s{t1}, v13
s_xor_b32 s{t0}, s{t0}, 128
s_add_u32 s{t1}, s{t0}, {G}
v_add_u32 v13, s{t1}, v13
ds_read_b32 v{vGI}, v14
ds_read_b32 v{vGO}, v13""")
rd_x(0, 0, 4); rd_stage_w(0, 0, 8)
stamp(4)
a("s_setprio 0")
for c in range(8):
    a("s_waitcnt lgkmcnt(0)")
    f = FA[c % 2]
    pairs = []
    for k in range(4):
        first = (c == 0 and k == 0)
        pairs.append([f"v_mfma_f32_32x32x16_bf16 {vr(ACC,16)}, {vr(f+32+4*k,4)}, {vr(f+4*k,4)}, {'0' if first else vr(ACC,16)}",
                      f"v_mfma_f32_32x32x16_bf16 {vr(AC2,16)}, {vr(f+4*k,4)}, {vr(f+48+4*k,4)}, {'0' if first else vr(AC2,16)}"])
    def g0():
        a(f"s_waitcnt vmcnt({4 if c < 7 else 0})"); arrive()
        if c < 7: rd_x(c + 1, 4 * (c + 1), 4)
    def g1():
        if c < 7:
            check(True)
            rd_stage_w(c + 1, 0, 3)
    def g2():
        if c < 7: rd_stage_w(c + 1, 3, 8)
    def g3():
        if c == 5: dma_base("q")
        if c < 6: dma_stage(c + 3)
    windows(pairs, [g0, g1, g2, g3])
a("s_setprio 2")
stamp(5)

def features(B, W, out, D, tm):
    m1, m2 = tm, tm + 1
    a(f"v_mfma_f32_32x32x16_bf16 {vr(D,16)}, {vr(W,4)}, {vr(B,4)}, 0")
    for (m, b) in ((m1, D), (m2, D + 8)):
        a(f"v_max3_f32 v{m}, v{b}, v{b+1}, v{b+2}\nv_max3_f32 v{m}, v{m}, v{b+3}, v{b+4}\nv_max3_f32 v{m}, v{m}, v{b+5}, v{b+6}\nv_max_f32 v{m}, v{m}, v{b+7}")
    a(f"""v_permlane32_swap_b32 v{m1}, v{m2}
    v_max_f32 v{m1}, v{m1}, v{m2}
    v_mul_f32 v{m1}, {hex(LOG2E | 0x80000000)}, v{m1}
    v_mov_b32 v{m2}, v{m1}
    v_permlane32_swap_b32 v{m1}, v{m2}""")
    for r in range(0, 16, 2):
        sel = "op_sel_hi:[1,1,0]" if r < 8 else "op_sel:[0,0,1]"
        a(f"v_pk_fma_f32 {vr(D+r,2)}, {vr(D+r,2)}, s[{sL2E}:{sL2E+1}], {vr(m1,2)} {sel}")
    for r in range(16): a(f"v_exp_f32 v{D+r}, v{D+r}")
    for (m, b) in ((m1, D), (m2, D + 8)):
        a(f"""v_pk_add_f32 {vr(tm+2,2)}, {vr(b,2)}, {vr(b+2,2)}
        v_pk_add_f32 {vr(tm+4,2)}, {vr(b+4,2)}, {vr(b+6,2)}
        v_pk_add_f32 {vr(tm+2,2)}, {vr(tm+2,2)}, {vr(tm+4,2)}
        v_add_f32 v{m}, v{tm+2}, v{tm+3}""")
    a(f"""v_permlane32_swap_b32 v{m1}, v{m2}
    v_add_f32 v{m1}, v{m1}, v{m2}
    v_rcp_f32 v{m1}, v{m1}
    v_mov_b32 v{m2}, v{m1}
    v_permlane32_swap_b32 v{m1}, v{m2}""")
    for r in range(0, 16, 2):
        sel = "op_sel_hi:[1,0]" if r < 8 else "op_sel:[0,1]"
        a(f"v_pk_mul_f32 {vr(D+r,2)}, {vr(D+r,2)}, {vr(m1,2)} {sel}")
    for r in range(8): a(f"v_cvt_pk_bf16_f32 v{out+r}, v{D+2*r}, v{D+2*r+1}")

KB, VB, DD, TM, PH = TMP, TMP + 8, TMP + 16, TMP + 32, TMP + 40
SCP = RING
SCV = RING + 16384
for r in range(8): a(f"v_cvt_pk_bf16_f32 v{KB+r}, v{ACC+2*r}, v{ACC+2*r+1}")
for r in range(8): a(f"v_cvt_pk_bf16_f32 v{VB+r}, v{AC2+2*r}, v{AC2+2*r+1}")
a(f"""v_and_b32 v13, 31, v0
v_bfe_u32 v14, v0, 1, 3
v_lshrrev_b32 v15, 5, v0
v_xor_b32 v14, v14, v15
v_lshlrev_b32 v14, 3, v14
v_lshl_add_u32 v13, v13, 6, v14
s_lshl_b32 s{t0}, s{sI}, 11
s_lshl_b32 s{t1}, s{sP}, 13
s_add_u32 s{t0}, s{t0}, s{t1}
s_add_u32 s{t0}, s{t0}, {SCP}
v_add_u32 v13, s{t0}, v13""")
assert SCP % 64 == 0
for aa in range(1, 4): a(f"v_xor_b32 v{TMP+48+aa}, {16*aa}, v13")
for hh in range(2):
    features(KB + 4 * hh, WPH + 4 * hh, PH, DD, TM)
    for aa in range(4):
        va = 13 if aa == 0 else TMP + 48 + aa
        a(f"ds_write_b64 v{va}, {vr(PH+2*aa,2)} offset:{hh*4096}")
check(False)
a(f"""s_lshl_b32 s{t0}, s{sS}, 11
s_add_u32 s{t0}, s{t0}, {SCV}
v_add_u32 v13, s{t0}, v{vL16}
ds_write_b128 v13, {vr(VB,4)}
ds_write_b128 v13, {vr(VB+4,4)} offset:1024""")
arrive()
KA, KBv, KD = TMP, TMP + 16, TMP + 32
a(f"s_mov_b32 s{t1}, 0x3f803f80\ns_mov_b32 s{t2}, 0x3f803f80")
for r in range(0, 16, 2): a(f"v_mov_b64 {vr(KBv+r,2)}, s[{t1}:{t2}]")
a(f"""s_lshl_b32 s{t3}, s{sP}, 1
s_add_u32 s{t3}, s{t3}, s{sI}
v_and_b32 v13, 15, v0
v_lshrrev_b32 v14, 5, v0
v_lshrrev_b32 v15, 2, v13
v_lshl_add_u32 v15, v14, 2, v15
v_lshrrev_b32 v{TMP+48}, 1, v15
v_bfe_u32 v{TMP+49}, v0, 4, 1
v_lshlrev_b32 v{TMP+49}, 2, v{TMP+49}
v_and_b32 v{TMP+50}, 3, v0
v_add_u32 v{TMP+49}, v{TMP+49}, v{TMP+50}
v_xor_b32 v{TMP+48}, v{TMP+48}, v{TMP+49}
v_lshlrev_b32 v{TMP+48}, 3, v{TMP+48}
v_lshl_add_u32 v15, v15, 6, v{TMP+48}
s_lshl_b32 s{t0}, s{t3}, 12
s_add_u32 s{t0}, s{t0}, {SCP}
v_add_u32 v15, s{t0}, v15
v_xor_b32 v{TMP+48}, 32, v15
v_lshlrev_b32 v13, 4, v13
v_lshl_add_u32 v13, v14, 9, v13
s_lshl_b32 s{t0}, s{sP}, 11
s_lshl_b32 s{t1}, s{sI}, 8
s_add_u32 s{t0}, s{t0}, s{t1}
s_add_u32 s{t0}, s{t0}, {SCV}
v_add_u32 v13, s{t0}, v13""")
check(False)
for u in range(4):
    a(f"ds_read_b64_tr_b16 {vr(KA+4*u,2)}, v15 offset:{u*1024}\nds_read_b64_tr_b16 {vr(KA+4*u+2,2)}, v{TMP+48} offset:{u*1024+512}")
a(f"s_mov_b32 exec_lo, 0xffff\ns_mov_b32 exec_hi, 0xffff")
for u in range(4):
    a(f"ds_read_b128 {vr(KBv+4*u,4)}, v13 offset:{(u//2)*4096 + (u%2)*1024}")
a("s_mov_b64 exec, -1")
arrive()
vLI = 13
a(f"""v_and_b32 v13, 31, v0
v_min_u32 v13, 16, v13
v_mad_u32_u24 v13, v14, 17, v13
v_lshlrev_b32 v14, 3, v13
s_lshl_b32 s{t0}, s{sHG}, 2
s_add_u32 s{t0}, s{t0}, s{t3}
s_lshl_b32 s{t0}, s{t0}, 8
s_add_u32 s{t0}, s{t0}, s{sRB}
s_mul_i32 s{t4}, s{t0}, 272
s_add_u32 s{t4}, s{t4}, {WS_PART}
s_waitcnt lgkmcnt(0)""")
for u in range(4):
    a(f"v_mfma_f32_32x32x16_bf16 {vr(KD,16)}, {vr(KA+4*u,4)}, {vr(KBv+4*u,4)}, {'0' if u == 0 else vr(KD,16)}")
a(f"s_mov_b32 exec_lo, 0x1ffff\ns_mov_b32 exec_hi, 0x1ffff")
for e in range(8):
    a(f"buffer_store_dwordx2 {vr(KD+2*e,2)}, v14, {sr(sWS,4)}, s{t4} offen sc1")
    if e < 7: a(f"s_add_u32 s{t4}, s{t4}, {32*272}")
a("s_mov_b64 exec, -1")
check(False)
dma_stage(9); dma_stage(10)
a(f"s_lshl_b32 s{t3}, s{t3}, 2\ns_add_u32 s{t3}, s{t3}, {4*F_F2}")
a("s_waitcnt vmcnt(8)")
rd_x(8, 0, 8); rd_stage_w(8, 0, 8)
set_flag(f"s{t3}", 14, 15)
stamp(6)
a("s_setprio 0")
for c in range(8, 12):
    a("s_waitcnt lgkmcnt(0)")
    f = FA[c % 2]
    mm = [f"v_mfma_f32_32x32x16_bf16 {vr(AC2,16)}, {vr(f+32+4*k,4)}, {vr(f+4*k,4)}, {'0' if (c == 8 and k == 0) else vr(AC2,16)}" for k in range(8)]
    pairs = [mm[2*k:2*k+2] for k in range(4)]
    def g0():
        a(f"s_waitcnt vmcnt({5 if c == 8 else 4})"); arrive()
        if c < 11: rd_x(c + 1, 8 * (c - 7), 8)
    def g1():
        check(True)
        if c < 11: rd_stage_w(c + 1, 0, 3)
        else:
            for k in range(3): rd_w(WB0 + 4 * k, vWO, k * 2048, 1024)
    def g2():
        if c < 11: rd_stage_w(c + 1, 3, 8)
        else:
            for k in range(3, 8): rd_w(WB0 + 4 * k, vWO, k * 2048, 1024)
            arrive()
    def g3():
        if c == 9: dma_base("o")
        if c < 11: dma_stage(c + 3)
    windows(pairs, [g0, g1, g2, g3])
a("s_setprio 2")
stamp(7)
a(f"s_cmp_lg_u32 s{sS}, 0\ns_cbranch_scc1 L_nored1")
a(f"""s_and_b32 s{t3}, s{sRB}, 3
s_lshl_b32 s{t0}, s{sHG}, 7
s_lshl_b32 s{t1}, s{t3}, 2
s_add_u32 s{t0}, s{t0}, s{t1}
s_add_u32 s{t0}, s{t0}, {WS_F + 4*F_F2}
v_and_b32 v14, 31, v0
v_lshlrev_b32 v14, 10, v14
v_add_u32 v14, s{t0}, v14""")
poll_flags(14, vT)
a(f"""s_lshl_b32 s{t0}, s{sHG}, 2
s_add_u32 s{t3}, s{t0}, s{t3}
s_lshl_b32 s{t0}, s{t3}, 3
s_lshr_b32 s{t2}, s{sRB}, 2
s_add_u32 s{t0}, s{t0}, s{t2}
s_mul_i32 s{t0}, s{t0}, {32*272}
s_add_u32 s{t0}, s{t0}, {WS_PART}
v_lshlrev_b32 v14, 3, v{vLI}
s_mov_b32 exec_lo, 0x1ffff
s_mov_b32 exec_hi, 0x1ffff""")
for n in range(32):
    if n and n % 8 == 0: a(f"s_add_u32 s{t0}, s{t0}, {8*272}")
    a(f"buffer_load_dwordx2 {vr(TMP+2*n,2)}, v14, {sr(sWS,4)}, s{t0} offen offset:{(n%8)*272} sc1")
a(f"""s_mul_i32 s{t0}, s{t3}, {KVF_STRIDE}
s_lshr_b32 s{t1}, s{t2}, 2
s_mul_i32 s{t1}, s{t1}, 544
s_add_u32 s{t0}, s{t0}, s{t1}
s_and_b32 s{t1}, s{t2}, 3
s_lshl_b32 s{t1}, s{t1}, 2
s_add_u32 s{t0}, s{t0}, s{t1}
s_add_u32 s{t0}, s{t0}, {WS_KVF}
v_lshlrev_b32 v14, 4, v{vLI}
s_waitcnt vmcnt(0)""")
st = 16
while st >= 1:
    for n in range(st): a(f"v_pk_add_f32 {vr(TMP+2*n,2)}, {vr(TMP+2*n,2)}, {vr(TMP+2*(n+st),2)}")
    st //= 2
a(f"""v_cvt_pk_bf16_f32 v15, v{TMP}, v{TMP+1}
buffer_store_dword v15, v14, {sr(sWS,4)}, s{t0} offen sc1
s_mov_b64 exec, -1
L_nored1:""")
dma_stage(14)
a(f"s_lshl_b32 s{t2}, s{sS}, 14\ns_lshl_b32 s{t3}, s{sS}, 17\ns_lshl_b32 s{t1}, s{sHG}, 7\ns_add_u32 s{t3}, s{t3}, s{t1}")
for n in range(16):
    a(f"s_add_u32 m0, s{t2}, {X + n*1024}\ns_add_u32 s{t1}, s{t3}, {n*8192}")
    a(f"buffer_load_dwordx4 v{vD1}, {sr(sWOA,4)}, s{t1} offen lds")
a(f"s_cmp_lg_u32 s{sS}, 0\ns_cbranch_scc1 L_nored2\ns_waitcnt vmcnt(20)")
set_flag(F_F3, 14, 15)
a("L_nored2:")
check(False)
dma_stage(15)
for r in range(8): a(f"v_cvt_pk_bf16_f32 v{KB+r}, v{AC2+2*r}, v{AC2+2*r+1}")
for hh in range(2): features(KB + 4 * hh, WPH + 4 * hh, PHQ + 8 * hh, DD, TM)
stamp(8)
def call_fin(): a(f"s_call_b64 s[{sRET}:{sRET+1}], L_fin\ns_nop 1")
a(f"s_cmp_eq_u32 s{sI}, 0\ns_cbranch_scc1 L_nofin0")
a(f"s_mov_b32 s{sJ}, s{sP}"); call_fin()
a(f"s_add_u32 s{sJ}, s{sP}, 2"); call_fin()
a("L_nofin0:")
a("s_waitcnt vmcnt(0)")
arrive()
a(f"""s_lshl_b32 s{t0}, s{sHG}, 7
s_add_u32 s{t0}, s{t0}, {WS_F + 4*F_F3}
v_and_b32 v14, 31, v0
v_lshlrev_b32 v14, 10, v14
v_add_u32 v14, s{t0}, v14""")
poll_flags(14, vT)
a(f"""s_lshl_b32 s{t3}, s{sHG}, 2
s_lshl_b32 s{t1}, s{sP}, 1
s_add_u32 s{t3}, s{t3}, s{t1}
s_mul_i32 s{t0}, s{t3}, {KVF_STRIDE}
s_add_u32 s{t0}, s{t0}, {WS_KVF}
v_lshlrev_b32 v14, 4, v{vLI}""")
for hh in range(2):
    for u in range(2):
        a(f"buffer_load_dwordx4 {vr(TMP+8*hh+4*u,4)}, v14, {sr(sWS,4)}, s{t0} offen offset:{hh*KVF_STRIDE + u*544} sc1")
a(f"""s_lshl_b32 s{sD0}, s{sRB}, 1
s_add_u32 s{sD0}, s{sD0}, s{sI}
s_lshl_b32 s{sD0}, s{sD0}, 16
s_add_u32 s{sD0}, s{sD0}, {WS_O}
s_lshl_b32 s{t3}, s{t3}, 10
s_add_u32 s{t3}, s{t3}, s{sD0}
s_add_u32 s{t3}, s{t3}, 32768
v_sub_f32 v15, 1.0, v{vGI}
s_waitcnt vmcnt(0)""")
for hh in range(2):
    D = TMP + 16 + 16 * hh
    a(f"v_mfma_f32_32x32x16_bf16 {vr(D,16)}, {vr(TMP+8*hh,4)}, {vr(PHQ+8*hh,4)}, 0")
    a(f"v_mfma_f32_32x32x16_bf16 {vr(D,16)}, {vr(TMP+8*hh+4,4)}, {vr(PHQ+8*hh+4,4)}, {vr(D,16)}")
for hh in range(2):
    D = TMP + 16 + 16 * hh
    a(f"v_add_f32 v{D+8}, 0x358637bd, v{D+8}\nv_rcp_f32 v{D+8}, v{D+8}\nv_mul_f32 v{D+8}, v{D+8}, v15")
    for r in range(0, 8, 2): a(f"v_pk_mul_f32 {vr(D+r,2)}, {vr(D+r,2)}, {vr(D+8,2)} op_sel_hi:[1,0]")
    for r in range(4): a(f"v_cvt_pk_bf16_f32 v{D+12+r}, v{D+2*r}, v{D+2*r+1}")
    a(f"buffer_store_dwordx4 {vr(D+12,4)}, v{vL16}, {sr(sWS,4)}, s{t3} offen offset:{hh*1024} sc1")
a(f"s_lshl_b32 s{t3}, s{sS}, 2\ns_add_u32 s{t3}, s{t3}, {4*F_OB}\ns_waitcnt vmcnt(0)")
set_flag(f"s{t3}", 14, 15)
check(False)
stamp(9)
vPF = 13
a(f"""s_lshl_b32 s{t0}, s{sRB}, 10
s_add_u32 s{t0}, s{t0}, {WS_F}
v_and_b32 v{vPF}, 7, v0
v_lshlrev_b32 v{vPF}, 7, v{vPF}
v_add_u32 v{vPF}, s{t0}, v{vPF}""")

OF = [TMP, TMP + 32]; WF = [TMP + 64, TMP + 96]
def proj(batches, first):
    def loads(b):
        last = None
        for k, (ro, _) in enumerate(batches[b]):
            hi, lo = ro & ~4095, ro & 4095
            if hi != last: a(f"s_add_u32 s{t1}, s{sD0}, {hi}"); last = hi
            a(f"buffer_load_dwordx4 {vr(OF[b%2]+4*k,4)}, v{vL16}, {sr(sWS,4)}, s{t1} offen offset:{lo} sc1")
    def wreads(b, lo, hi):
        for k, (_, w) in list(enumerate(batches[b]))[lo:hi]:
            if w[0] == "lds": rd_w(WF[b % 2] + 4 * k, w[1], w[2], 1024)
    loads(0); wreads(0, 0, 8)
    if len(batches) > 1: loads(1)
    a("s_setprio 0")
    for b in range(len(batches)):
        more = b + 1 < len(batches)
        a(f"s_waitcnt vmcnt({8 if more else 0}) lgkmcnt(0)")
        mm = []
        for k, (_, w) in enumerate(batches[b]):
            wr = WF[b % 2] + 4 * k if w[0] == "lds" else w[1]
            mm.append(f"v_mfma_f32_32x32x16_bf16 {vr(ACC,16)}, {vr(wr,4)}, {vr(OF[b%2]+4*k,4)}, {'0' if (first and b == 0 and k == 0) else vr(ACC,16)}")
        fill = []
        if more: fill = [lambda: wreads(b + 1, 0, 4), lambda: wreads(b + 1, 4, 8), lambda: None,
                         (lambda: loads(b + 2)) if b + 2 < len(batches) else (lambda: None)]
        windows([mm[2*k:2*k+2] for k in range(4)], fill)
    a("s_setprio 2")
def bpart(first):
    a(f"""v_bfe_u32 v14, v0, 3, 1
    s_lshl_b32 s{t0}, s{sI}, 3
    v_lshl_add_u32 v14, v14, 2, v{vPF}
    v_add_u32 v14, s{t0}, v14""")
    poll_flags(14, vT, 4 * F_OB)
    bs = []
    for b in range(4):
        bs.append([(32768 + (8*b+k) * 1024, ("reg", WB0 + 4*k) if b == 0 else ("lds", vWO, ((12+b) % 3) * 16384 + k * 2048)) for k in range(8)])
    proj(bs, first)
def store_out():
    a(f"""v_and_b32 v14, 31, v0
    v_lshlrev_b32 v14, 10, v14
    v_lshrrev_b32 v15, 5, v0
    v_lshl_add_u32 v14, v15, 4, v14
    s_lshl_b32 s{t0}, s{sRB}, 16
    s_lshl_b32 s{t1}, s{sI}, 15
    s_add_u32 s{t0}, s{t0}, s{t1}
    s_lshl_b32 s{t1}, s{sHG}, 7
    s_add_u32 s{t0}, s{t0}, s{t1}
    s_lshl_b32 s{t1}, s{sP}, 6
    s_add_u32 s{t0}, s{t0}, s{t1}""")
    for r in range(8): a(f"v_cvt_pk_bf16_f32 v{TMP+r}, v{ACC+2*r}, v{ACC+2*r+1}")
    for kk in range(2):
        b = TMP + 4 * kk
        a(f"v_permlane32_swap_b32 v{b}, v{b+2}\nv_permlane32_swap_b32 v{b+1}, v{b+3}")
        a(f"buffer_store_dwordx4 {vr(b,4)}, v14, {sr(sOUT,4)}, s{t0} offen offset:{kk*32}")

a(f"s_cmp_eq_u32 s{sI}, 1\ns_cbranch_scc1 L_half1")
a(f"v_bfe_u32 v14, v0, 3, 2\nv_lshl_add_u32 v14, v14, 2, v{vPF}")
poll_flags(14, vT, 4 * F_OA)
proj([[((8*b+k) * 1024, ("lds", vWOA, (8*b+k) * 2048)) for k in range(8)] for b in range(4)], True)
stamp(10)
a(f"s_add_u32 s{sJ}, s{sP}, 4"); call_fin()
bpart(False)
store_out()
stamp(11)
a(f"s_add_u32 s{sJ}, s{sP}, 6"); call_fin()
stamp(12)
diag_dump(13)
a("s_endpgm")
a("L_half1:")
bpart(True)
stamp(10)
for j in range(4, 8):
    poll_flags(vPF, vT, 4 * (F_OA + j), nap=1)
    if j == 7: stamp(11)
    proj([[((4*k + j - 4) * 1024, ("lds", vWOA, (4*k + j - 4) * 2048)) for k in range(8)]], False)
store_out()
stamp(12)
diag_dump(13)
a("L_exit:\ns_endpgm")

FO = TMP
FL = TMP + 32
a("L_fin:\ns_nop 1")
lp, dn = a.lab("fw"), a.lab("fwd")
a(f"""s_and_b32 s{t2}, s{sJ}, 3
s_lshl_b32 s{t0}, s{t2}, 10
s_add_u32 s{t0}, s{t0}, {LT}
v_and_b32 v14, 3, v0
v_lshlrev_b32 v14, 8, v14
v_add_u32 v14, s{t0}, v14
v_and_b32 v15, 31, v0
v_lshl_add_u32 v15, v15, 2, s{t0}
s_lshl_b32 s{t1}, s{sJ}, 10
s_add_u32 s{t1}, s{t1}, {Q + 1024}
s_lshl_b32 s{t2}, s{t2}, 13
s_add_u32 s{t2}, s{t2}, {OP}
v_add_u32 v{FL+4}, s{t2}, v{vL16}
{lp}:
ds_read_b32 v{vT}, v14 offset:128
s_waitcnt lgkmcnt(0)
v_cmp_gt_u32 vcc, s{t1}, v{vT}
s_cbranch_vccz {dn}""")
budget_retry(lp, dn, 1)
a(f"{dn}:")
for w in range(4):
    a(f"ds_read_b128 {vr(FO+8*w,4)}, v{FL+4} offset:{w*2048}\nds_read_b128 {vr(FO+8*w+4,4)}, v{FL+4} offset:{w*2048+1024}\nds_read_b32 v{FL+w}, v15 offset:{w*256}")
a(f"""s_lshl_b32 s{t0}, s{sJ}, 2
s_add_u32 s{t0}, s{t0}, {CONS + 16}
v_mov_b32 v14, s{t0}
ds_write_b32 v14, v{vONE}
s_lshr_b32 s{t0}, s{sJ}, 2
s_lshl_b32 s{t2}, s{sRB}, 1
s_add_u32 s{t0}, s{t0}, s{t2}
s_lshl_b32 s{t0}, s{t0}, 6
s_lshl_b32 s{t2}, s{sHG}, 2
s_add_u32 s{t0}, s{t0}, s{t2}
s_and_b32 s{t2}, s{sJ}, 3
s_add_u32 s{t0}, s{t0}, s{t2}
s_lshl_b32 s{t4}, s{t0}, 10
s_add_u32 s{t4}, s{t4}, {WS_O}
s_waitcnt lgkmcnt(0)""")
for r in range(0, 8, 2):
    a(f"v_pk_add_f32 {vr(FO+r,2)}, {vr(FO+r,2)}, {vr(FO+8+r,2)}\nv_pk_add_f32 {vr(FO+16+r,2)}, {vr(FO+16+r,2)}, {vr(FO+24+r,2)}")
a(f"v_pk_add_f32 {vr(FL,2)}, {vr(FL,2)}, {vr(FL+2,2)}")
for r in range(0, 8, 2): a(f"v_pk_add_f32 {vr(FO+r,2)}, {vr(FO+r,2)}, {vr(FO+16+r,2)}")
a(f"v_add_f32 v{FO+8}, v{FL}, v{FL+1}")
a(f"""v_pk_mul_f32 {vr(FO+10,2)}, {vr(FO,2)}, 0 op_sel_hi:[1,0]
v_pk_fma_f32 {vr(FO+10,2)}, {vr(FO+2,2)}, 0, {vr(FO+10,2)} op_sel_hi:[1,0,1]
v_pk_fma_f32 {vr(FO+10,2)}, {vr(FO+4,2)}, 0, {vr(FO+10,2)} op_sel_hi:[1,0,1]
v_pk_fma_f32 {vr(FO+10,2)}, {vr(FO+6,2)}, 0, {vr(FO+10,2)} op_sel_hi:[1,0,1]
v_add_f32 v{FO+10}, v{FO+10}, v{FO+11}
v_add_f32 v{FO+10}, v{FO+10}, v{FO+8}
v_cmp_nle_f32 vcc, {hex((127-40)<<23)}, v{FO+10}
s_cbranch_vccnz L_fb
v_cmp_nge_f32 vcc, {hex((127+60)<<23)}, v{FO+10}
s_cbranch_vccnz L_fb""")
if FORCE_FB: a("s_branch L_fb")
a(f"""L_fin_norm:
v_rcp_f32 v{FO+8}, v{FO+8}
v_mul_f32 v{FO+8}, v{FO+8}, v{vGO}""")
for r in range(0, 8, 2): a(f"v_pk_mul_f32 {vr(FO+r,2)}, {vr(FO+r,2)}, {vr(FO+8,2)} op_sel_hi:[1,0]")
for r in range(4): a(f"v_cvt_pk_bf16_f32 v{FO+12+r}, v{FO+2*r}, v{FO+2*r+1}")
a(f"""buffer_store_dwordx4 {vr(FO+12,4)}, v{vL16}, {sr(sWS,4)}, s{t4} offen sc1
s_lshl_b32 s{t3}, s{sJ}, 2
s_add_u32 s{t3}, s{t3}, {4*F_OA}
s_waitcnt vmcnt(0)""")
set_flag(f"s{t3}", 14, 15)
a(f"s_setpc_b64 s[{sRET}:{sRET+1}]")
BS, BC, BK, BV, BQ, BM = TMP + 16, TMP + 32, TMP + 48, TMP + 52, TMP + 60, TMP + 64
a(f"""L_fb:
s_sub_u32 s{t1}, s{t1}, 1024
v_add_u32 v14, s{t1}, v{vL16}
ds_read_b128 {vr(BQ,4)}, v14
v_mov_b32 v{BM}, 0xff800000
s_mov_b32 s{t0}, 0
s_waitcnt lgkmcnt(0)
L_fb1:
buffer_load_dwordx4 {vr(BK,4)}, v{vL16}, {sr(sWS,4)}, s{t0} offen sc1
s_waitcnt vmcnt(0)
v_mfma_f32_32x32x16_bf16 {vr(BS,16)}, {vr(BK,4)}, {vr(BQ,4)}, 0""")
for r in range(0, 16, 2): a(f"v_max3_f32 v{BM}, v{BM}, v{BS+r}, v{BS+r+1}")
a(f"""s_add_u32 s{t0}, s{t0}, 1024
s_cmp_lt_u32 s{t0}, 65536
s_cbranch_scc1 L_fb1
v_mov_b32 v{BM+1}, v{BM}
v_permlane32_swap_b32 v{BM}, v{BM+1}
v_max_f32 v{BM}, v{BM}, v{BM+1}""")
for r in range(16): a(f"v_sub_f32 v{BC+r}, 0, v{BM}\nv_mov_b32 v{FO+r}, 0")
for r in range(8): a(f"v_mov_b32 v{BV+r}, 0x3f803f80")
a(f"""v_lshrrev_b32 v14, 5, v0
v_and_b32 v15, 15, v0
v_lshlrev_b32 v15, 4, v15
v_lshl_add_u32 v14, v14, 8, v15
v_add_u32 v14, {WS_V}, v14
v_mov_b32 v15, 0xdddd
s_mov_b32 s{t0}, 0
L_fb2:
buffer_load_dwordx4 {vr(BK,4)}, v{vL16}, {sr(sWS,4)}, s{t0} offen sc1
s_mov_b32 exec_lo, 0xffff
s_mov_b32 exec_hi, 0xffff
buffer_load_dwordx4 {vr(BV,4)}, v14, {sr(sWS,4)}, s{t0} offen sc1
buffer_load_dwordx4 {vr(BV+4,4)}, v14, {sr(sWS,4)}, s{t0} offen offset:512 sc1
s_mov_b64 exec, -1
s_waitcnt vmcnt(0)
v_mfma_f32_32x32x16_bf16 {vr(BS,16)}, {vr(BK,4)}, {vr(BQ,4)}, {vr(BC,16)}""")
for r in range(16): a(f"v_exp_f32 v{BS+r}, v{BS+r}")
a(f"""v_smfmac_f32_32x32x32_bf16 {vr(FO,16)}, {vr(BV,4)}, {vr(BS,8)}, v15
v_smfmac_f32_32x32x32_bf16 {vr(FO,16)}, {vr(BV+4,4)}, {vr(BS+8,8)}, v15
s_add_u32 s{t0}, s{t0}, 1024
s_cmp_lt_u32 s{t0}, 65536
s_cbranch_scc1 L_fb2
s_nop 9
s_branch L_fin_norm""")

body = a.finish(verbose=bool(os.environ.get("VERBOSE")))
ref = open("cdna_kernels/" + NAME + ".s.ref").read().split("\n")
hdr = [l for l in ref if l.startswith(";") and "@launch" not in l and "Override" not in l and "grid=ceil" not in l]
out = "\n".join(hdr) + f"""
; @launch grid=(256,1,1) block=(512,1,1) lds={LDS_BYTES}
.amdgcn_target "amdgcn-amd-amdhsa--gfx950"
.text
.globl {NAME}_kernel
.p2align 8
.type {NAME}_kernel,@function
{NAME}_kernel:
{body}.section .rodata,"a"
.p2align 6
.amdhsa_kernel {NAME}_kernel
  .amdhsa_next_free_vgpr 256
  .amdhsa_next_free_sgpr 102
  .amdhsa_accum_offset 256
  .amdhsa_group_segment_fixed_size 0
  .amdhsa_kernarg_size 104
  .amdhsa_user_sgpr_count 2
  .amdhsa_user_sgpr_kernarg_segment_ptr 1
  .amdhsa_system_sgpr_workgroup_id_x 1
.end_amdhsa_kernel
"""
dst = sys.argv[1] if len(sys.argv) > 1 else "cdna_kernels/" + NAME + ".s"
open(dst, "w").write(out)
print("wrote", dst, len(a.lines), "lines,", len(a.inserted), "nops inserted")
```

```python
import sys, os
from asmlib import Asm, vr, sr

NAME = "gated_mix__grouped_kv_mqa__linear_kernel_hedgehog__prompt"
DIAG = int(os.environ.get("DIAG", "0"))
FORCE_FB = int(os.environ.get("FORCE_FB", "0"))
TOUCH = int(os.environ.get("TOUCH", "7"))

X = 0; XS = 1040
Q = 66560
OP = 74752
RING = 107520
LT = 156672
MISC = 160768
WKV = OP; WQ = OP + 16384
GATE = Q; WPHI = Q + 1024
G = MISC; NONCE = MISC + 256; SWBC = MISC + 272; CONS = MISC + 288
LDS_BYTES = 163840
WS_K = 0; WS_V = 0x10000; WS_F = 0x20000; WS_KVF = 0x30000; WS_DIAG = 0x40000
WS_PART = 0x80000; WS_O = 0x400000; WS_SIZE = 0x800000
KVF_STRIDE = 1152
F_KV = 0; F_F3 = 1; F_F2 = 4; F_OB = 8; F_OA = 12
pX, pWQ, pWK, pWV, pWOA, pBX, pWQKV, pWPHI, pWOB, pGATE, pOUT, pDBG, pWS = [4 + 2 * i for i in range(13)]
sX, sWQ, sWKV, sWB, sWOA, sWOB, sWS, sOUT, sDBG, sSM = [32 + 4 * i for i in range(10)]
sW, sRB, sHG, sL, sNON, sBUD, sS, sI, sP = 72, 73, 74, 75, 76, 77, 78, 79, 80
t0, t1, t2, t3, t4, t5 = 81, 82, 83, 84, 85, 86
sJ = 87; sRET = 88
sL2E = 90
sFL = 92
sD0, sD1 = 93, 94
sST = 4
LOG2E = 0x3fb8aa3b
QSCALE = 0x3eb8aa3b

a = Asm()
nst = [0]
def stamp(n):
    if DIAG: a(f"s_memrealtime {sr(sST + 2 * n, 2)}")

def srd(d, p, size):
    a(f"s_mov_b32 s{d}, s{p}\ns_mov_b32 s{d+1}, s{p+1}\ns_mov_b32 s{d+2}, {hex(size)}\ns_mov_b32 s{d+3}, 0x20000")

def budget_retry(loop, done, nap):
    a(f"s_cmp_eq_u32 s{sBUD}, 0\ns_cbranch_scc1 {done}\ns_sub_u32 s{sBUD}, s{sBUD}, 1")
    if nap: a(f"s_sleep {nap}")
    a(f"s_branch {loop}")

def poll_flags(vaddr, vtmp, off=0, nap=2):
    lp, dn = a.lab("pf"), a.lab("pfd")
    a(f"""{lp}:
    buffer_load_dword v{vtmp}, v{vaddr}, {sr(sWS,4)}, 0 offen offset:{off} sc1
    s_waitcnt vmcnt(0)
    v_cmp_ne_u32 vcc, s{sNON}, v{vtmp}
    s_cbranch_vccz {dn}""")
    budget_retry(lp, dn, nap)
    a(f"{dn}:")

def set_flag(idx_sgpr_or_const, vt0, vt1):
    if isinstance(idx_sgpr_or_const, int):
        a(f"v_mov_b32 v{vt0}, {4*idx_sgpr_or_const}")
    else:
        a(f"v_mov_b32 v{vt0}, {idx_sgpr_or_const}")
    a(f"""v_mov_b32 v{vt1}, s{sNON}
    s_mov_b64 exec, 1
    buffer_store_dword v{vt1}, v{vt0}, {sr(sWS,4)}, s{sFL} offen sc1
    s_mov_b64 exec, -1""")

def diag_dump(n):
    if not DIAG: return
    a("s_waitcnt lgkmcnt(0)")
    a(f"s_lshl_b32 s{t0}, s{sL}, 3\ns_add_u32 s{t0}, s{t0}, s{sW}\ns_lshl_b32 s{t0}, s{t0}, 6\ns_add_u32 s{t0}, s{t0}, {WS_DIAG}")
    a("v_mov_b32 v8, 0")
    for i in range(13):
        a(f"v_writelane_b32 v8, s{sST+2*i}, {i}")
    a(f"""v_mbcnt_lo_u32_b32 v9, -1, 0
    v_mbcnt_hi_u32_b32 v9, -1, v9
    v_lshlrev_b32 v9, 2, v9
    s_mov_b64 exec, 0xffff
    buffer_store_dword v8, v9, {sr(sWS,4)}, s{t0} offen
    s_mov_b64 exec, -1""")

a(f"""s_cmp_ge_u32 s2, 256
s_cbranch_scc1 L_exit
s_load_dwordx16 s[4:19], s[0:1], 0
s_load_dwordx8 s[20:27], s[0:1], 64
s_load_dwordx2 s[28:29], s[0:1], 96
v_lshrrev_b32 v1, 6, v0
v_and_b32 v0, 63, v0
v_readfirstlane_b32 s{sW}, v1
s_and_b32 s{t0}, s2, 7
s_lshr_b32 s{t1}, s2, 3
s_lshr_b32 s{t2}, s{t0}, 1
s_lshl_b32 s{t2}, s{t2}, 3
s_lshr_b32 s{t3}, s{t1}, 2
s_add_u32 s{sRB}, s{t2}, s{t3}
s_and_b32 s{t2}, s{t0}, 1
s_lshl_b32 s{t2}, s{t2}, 2
s_and_b32 s{t3}, s{t1}, 3
s_add_u32 s{sHG}, s{t2}, s{t3}
s_lshl_b32 s{sL}, s{sRB}, 3
s_add_u32 s{sL}, s{sL}, s{sHG}
s_lshl_b32 s{sFL}, s{sL}, 7
s_add_u32 s{sFL}, s{sFL}, {WS_F}
s_mov_b32 s{sBUD}, 400000
s_mov_b32 s{sL2E}, {hex(LOG2E)}
s_mov_b32 s{sL2E+1}, {hex(LOG2E)}
s_and_b32 s{sS}, s{sW}, 3
s_lshr_b32 s{sI}, s{sS}, 1
s_and_b32 s{sP}, s{sS}, 1
v_lshlrev_b32 v10, 4, v0
s_waitcnt lgkmcnt(0)""")
srd(sX, pX, 0x200000)
a(f"s_bitcmp1_b32 s{sHG}, 2\ns_cselect_b32 s{sWKV}, s{pWV}, s{pWK}\ns_cselect_b32 s{sWKV+1}, s{pWV+1}, s{pWK+1}\ns_mov_b32 s{sWKV+2}, 0x4000\ns_mov_b32 s{sWKV+3}, 0x20000")
a(f"s_and_b32 s{t5}, s{sHG}, 3")
a(f"s_cmp_lg_u32 s{sW}, 4\ns_cbranch_scc1 L_nojobdma")
a(f"""s_mul_i32 s{t0}, s{t5}, {16*XS}
s_lshl_b32 s{t1}, s{sRB}, 16
s_lshl_b32 s{t2}, s{t5}, 14
s_add_u32 s{t1}, s{t1}, s{t2}""")
for r in range(16):
    a(f"s_add_u32 m0, s{t0}, {X + (r//4)*4*XS + (r%4)*16}")
    if r % 4 == 0 and r: a(f"s_add_u32 s{t1}, s{t1}, 4096")
    a(f"buffer_load_dwordx4 v10, {sr(sX,4)}, s{t1} offen offset:{(r%4)*1024} lds")
for n in range(16):
    if n % 4 == 0: a(f"s_mov_b32 m0, {WKV + n*1024}\ns_mov_b32 s{t1}, {n*1024}")
    a(f"buffer_load_dwordx4 v10, {sr(sWKV,4)}, s{t1} offen offset:{(n%4)*1024} lds")
NT0 = 0
if TOUCH & 1:
    srd(sWQ, pWQ, 0x80000)
    a(f"""s_and_b32 s{t0}, s{sRB}, 7
    s_lshl_b32 s{t0}, s{t0}, 16
    s_lshl_b32 s{t1}, s{sHG}, 7
    s_add_u32 s{t0}, s{t0}, s{t1}
    v_lshlrev_b32 v11, 10, v0
    buffer_load_dword v{250}, v11, {sr(sWQ,4)}, s{t0} offen""")
    NT0 += 1
if TOUCH & 2:
    a(f"""s_getpc_b64 s[{sSM}:{sSM+1}]
    s_mov_b32 s{sSM+2}, CODE_END - .
    s_mov_b32 s{sSM+3}, 0x20000
    s_lshl_b32 s{t0}, s{t5}, 13
    v_lshlrev_b32 v11, 7, v0
    buffer_load_dword v{251}, v11, {sr(sSM,4)}, s{t0} offen""")
    NT0 += 1
a("L_nojobdma:")
srd(sWQ, pWQ, 0x80000); srd(sWB, pWQKV, 0x180000); srd(sWOA, pWOA, 0x80000); srd(sWOB, pWOB, 0x80000)
srd(sWS, pWS, WS_SIZE); srd(sOUT, pOUT, 0x200000); srd(sDBG, pDBG, 256)
a(f"""v_lshrrev_b32 v11, 3, v0
v_and_b32 v12, 7, v0
v_lshrrev_b32 v13, 2, v0
v_and_b32 v13, 4, v13
v_xor_b32 v12, v12, v13
v_lshlrev_b32 v12, 4, v12
v_lshl_add_u32 v9, v11, 10, v12
v_mul_u32_u24 v8, 3072, v11
v_add_u32 v8, v8, v12""")
a(f"""v_and_b32 v11, 31, v0
s_lshl_b32 s{t0}, s{sI}, 5
v_add_u32 v11, s{t0}, v11
v_mul_u32_u24 v4, {XS}, v11
v_lshrrev_b32 v12, 5, v0
v_lshl_add_u32 v4, v12, 4, v4
v_and_b32 v13, 15, v0
v_lshrrev_b32 v14, 2, v13
v_lshlrev_b32 v14, 7, v14
v_lshrrev_b32 v15, 3, v13
v_xor_b32 v15, s{sP}, v15
v_lshl_add_u32 v14, v15, 6, v14
v_bfe_u32 v15, v0, 4, 1
v_lshl_add_u32 v14, v15, 5, v14
v_and_b32 v15, 3, v0
v_lshl_add_u32 v14, v15, 3, v14
v_lshl_add_u32 v5, v12, 10, v14
v_lshl_add_u32 v6, v12, 9, v14""")
a(f"s_cmp_ge_u32 s{sW}, 4\ns_cbranch_scc1 L_sw")

def xrest(slot_sgpr):
    a(f"""s_add_u32 s{t0}, s{t5}, 1
    s_lshl_b32 s{t0}, s{t0}, 1
    s_add_u32 s{t0}, s{t0}, s{slot_sgpr}
    s_and_b32 s{t0}, s{t0}, 7
    s_lshl_b32 s{t1}, s{sRB}, 16
    s_lshl_b32 s{t2}, s{t0}, 13
    s_add_u32 s{t1}, s{t1}, s{t2}
    s_mul_i32 s{t0}, s{t0}, {8*XS}""")
    for r in range(8):
        a(f"s_add_u32 m0, s{t0}, {X + (r//4)*4*XS + (r%4)*16}")
        if r == 4: a(f"s_add_u32 s{t1}, s{t1}, 4096")
        a(f"buffer_load_dwordx4 v10, {sr(sX,4)}, s{t1} offen offset:{(r%4)*1024} lds")

S0, S1, O_, QR, KR, VR = 12, 28, 44, 60, 64, 128
vIDX, vZ, vQA, vPA, vLA, vCA, vCV = 1, 2, 4, 5, 6, 7, 8
stamp(0)
a("s_setprio 1")
a(f"s_mov_b32 s{t0}, 0x3f803f80\ns_mov_b32 s{t1}, 0x3f803f80")
assert t0 % 2 == 1
a(f"s_mov_b32 s{t2}, 0x3f803f80")
for r in range(VR, 256, 2): a(f"v_mov_b64 v[{r}:{r+1}], s[{t1}:{t2}]")
a("s_barrier")
xrest(sW)
a(f"s_lshl_b32 s{t0}, s{sW}, 10\ns_add_u32 s{t0}, s{t0}, {WQ}\ns_lshl_b32 s{t1}, s{sW}, 13\ns_lshl_b32 s{t2}, s{sHG}, 7\ns_add_u32 s{t1}, s{t1}, s{t2}")
for c in range(16):
    a(f"s_add_u32 m0, s{t0}, {c*4096}")
    if c: a(f"s_add_u32 s{t1}, s{t1}, 32768")
    a(f"buffer_load_dwordx4 v9, {sr(sWQ,4)}, s{t1} offen lds")
NT1 = 0
if TOUCH & 4:
    NT1 = 1
    a(f"""s_lshl_b32 s{t1}, s{sHG}, 7
    v_and_b32 v11, 15, v0
    s_cmp_ge_u32 s{sW}, 2
    s_cbranch_scc1 L_tw_o
    s_mul_i32 s{t0}, s{sRB}, {16*3072}
    s_add_u32 s{t0}, s{t0}, s{t1}
    s_lshl_b32 s{t1}, s{sW}, 11
    s_add_u32 s{t0}, s{t0}, s{t1}
    v_mul_u32_u24 v11, 3072, v11
    v_bfe_u32 v12, v0, 4, 1
    v_lshl_add_u32 v11, v12, 10, v11
    s_cmp_eq_u32 s{sW}, 0
    s_cselect_b32 exec_lo, -1, 0xffff
    s_mov_b32 exec_hi, 0
    buffer_load_dword v8, v11, {sr(sWB,4)}, s{t0} offen
    s_branch L_tw_e
    L_tw_o:
    s_lshl_b32 s{t0}, s{sRB}, 14
    s_add_u32 s{t0}, s{t0}, s{t1}
    v_lshlrev_b32 v11, 10, v11
    s_mov_b64 exec, 0xffff
    s_cmp_eq_u32 s{sW}, 2
    s_cbranch_scc1 L_tw_a
    buffer_load_dword v8, v11, {sr(sWOB,4)}, s{t0} offen
    s_branch L_tw_e
    L_tw_a:
    buffer_load_dword v8, v11, {sr(sWOA,4)}, s{t0} offen
    L_tw_e:
    s_mov_b64 exec, -1""")
if TOUCH & 8:
    NT1 = 2
    a(f"""s_lshl_b32 s{t1}, s{sHG}, 7
    s_cmp_eq_u32 s{sW}, 3
    s_cbranch_scc1 L_tw_o
    s_and_b32 s{t0}, s{sRB}, 7
    s_mul_i32 s{t0}, s{t0}, {64*3072}
    s_add_u32 s{t0}, s{t0}, s{t1}
    s_lshl_b32 s{t1}, s{sW}, 10
    s_add_u32 s{t0}, s{t0}, s{t1}
    v_mul_u32_u24 v11, 3072, v0
    buffer_load_dword v8, v11, {sr(sWB,4)}, s{t0} offen
    s_mov_b64 exec, 1
    buffer_load_dword v8, v11, {sr(sWB,4)}, s{t0} offen
    s_branch L_tw_e
    L_tw_o:
    s_lshl_b32 s{t0}, s{sRB}, 14
    s_add_u32 s{t0}, s{t0}, s{t1}
    v_lshlrev_b32 v11, 10, v0
    s_mov_b64 exec, 0xffff
    buffer_load_dword v8, v11, {sr(sWOB,4)}, s{t0} offen
    buffer_load_dword v8, v11, {sr(sWOA,4)}, s{t0} offen
    L_tw_e:
    s_mov_b64 exec, -1""")
a(f"v_add_u32 v5, {WQ}, v5")
def qreads(ks):
    b = KR + 8 * (ks % 8)
    a(f"ds_read_b128 {vr(b,4)}, v4 offset:{ks*32}")
    a(f"ds_read_b64_tr_b16 {vr(b+4,2)}, v5 offset:{ks*2048}")
    a(f"ds_read_b64_tr_b16 {vr(b+6,2)}, v5 offset:{ks*2048+512}")
for (k0, k1, vm) in ((0, 12, 10), (12, 24, 4), (24, 32, 0)):
    a(f"s_waitcnt vmcnt({vm + NT1})\ns_barrier")
    if k0 == 0: stamp(1)
    if k0 == 24: stamp(2)
    for ks in range(k0, k0 + 4): qreads(ks)
    for ks in range(k0, k1):
        left = min(k1 - 1, ks + 3) - ks
        a(f"s_waitcnt lgkmcnt({3*left})")
        b = KR + 8 * (ks % 8)
        a(f"v_mfma_f32_32x32x16_bf16 {vr(O_,16)}, {vr(b+4,4)}, {vr(b,4)}, {'0' if ks == 0 else vr(O_,16)}")
        if ks + 4 < k1: qreads(ks + 4)
a(f"s_mov_b32 s{t1}, {hex(QSCALE)}\ns_mov_b32 s{t2}, {hex(QSCALE)}")
a(f"s_lshl_b32 s{t0}, s{sW}, 11\ns_add_u32 s{t0}, s{t0}, {Q}\nv_add_u32 v11, s{t0}, v10")
for r in range(0, 16, 2): a(f"v_pk_mul_f32 {vr(O_+r,2)}, {vr(O_+r,2)}, s[{t1}:{t2}]")
for r in range(8): a(f"v_cvt_pk_bf16_f32 v{S0+r}, v{O_+2*r}, v{O_+2*r+1}")
a(f"ds_write_b128 v11, {vr(S0,4)}\nds_write_b128 v11, {vr(S0+4,4)} offset:1024")
a(f"v_mov_b32 v11, {NONCE}\nds_read_b32 v11, v11")
a("s_waitcnt lgkmcnt(0)\ns_barrier")
stamp(3)
a(f"""v_readfirstlane_b32 s{sNON}, v11
v_add_u32 v{vQA}, {Q}, v10
ds_read_b128 {vr(QR,4)}, v{vQA}
s_lshl_b32 s{t0}, s{sW}, 13
s_add_u32 s{t0}, s{t0}, {WS_F}
v_lshlrev_b32 v11, 7, v0
v_add_u32 v11, s{t0}, v11
s_lshl_b32 s{t0}, s{sW}, 11
s_add_u32 s{t0}, s{t0}, {OP}
v_add_u32 v{vPA}, s{t0}, v10
s_lshl_b32 s{t0}, s{sW}, 8
s_add_u32 s{t0}, s{t0}, {LT}
v_and_b32 v{vLA}, 31, v0
v_lshl_add_u32 v{vLA}, v{vLA}, 2, s{t0}
v_mov_b32 v{vCA}, {CONS}
v_mov_b32 v{vIDX}, 0xdddd
v_mov_b32 v{vZ}, 0
v_mov_b32 v{vZ+1}, 0
v_lshrrev_b32 v9, 5, v0
v_and_b32 v{S1}, 15, v0
v_lshlrev_b32 v{S1}, 4, v{S1}
v_lshl_add_u32 v9, v9, 8, v{S1}
v_add_u32 v9, {WS_V}, v9""")
poll_flags(11, 8, F_KV * 4)
stamp(4)
a(f"s_lshl_b32 s{t0}, s{sW}, 14\ns_mov_b32 s{t1}, 0xffff\ns_mov_b32 s{t2}, 0xffff")
PRE = 4
def kvload(t):
    if t % 4 == 0 and t: a(f"s_add_u32 s{t0}, s{t0}, 4096")
    a(f"buffer_load_dwordx4 {vr(KR+4*t,4)}, v10, {sr(sWS,4)}, s{t0} offen offset:{(t%4)*1024} sc1")
    a(f"s_mov_b64 exec, s[{t1}:{t2}]")
    a(f"buffer_load_dwordx4 {vr(VR+8*t,4)}, v9, {sr(sWS,4)}, s{t0} offen offset:{(t%4)*1024} sc1")
    a(f"buffer_load_dwordx4 {vr(VR+8*t+4,4)}, v9, {sr(sWS,4)}, s{t0} offen offset:{(t%4)*1024+512} sc1")
    a("s_mov_b64 exec, -1")
for t in range(PRE): kvload(t)
def zero_o(): a(f"v_mfma_f32_32x32x8_bf16 {vr(O_,16)}, {vr(vZ,2)}, {vr(vZ,2)}, 0")
def qk(t, S): a(f"v_mfma_f32_32x32x16_bf16 {vr(S,16)}, {vr(KR+4*t,4)}, {vr(QR,4)}, 0")
def pv(t, s, S): a(f"v_smfmac_f32_32x32x32_bf16 {vr(O_,16)}, {vr(VR+8*t+4*s,4)}, {vr(S+8*s,8)}, v{vIDX}")
def flush():
    lp, dn = a.lab("cw"), a.lab("cwd")
    a(f"""v_cmp_eq_u32 vcc, 0, v{vCV}
    s_cbranch_vccz {dn}
    {lp}:
    ds_read_b32 v{vCV}, v{vCA}
    s_waitcnt lgkmcnt(0)
    v_cmp_eq_u32 vcc, 0, v{vCV}
    s_cbranch_vccz {dn}""")
    budget_retry(lp, dn, 1)
    a(f"""{dn}:
    ds_write_b128 v{vPA}, {vr(O_,4)}
    ds_write_b128 v{vPA}, {vr(O_+4,4)} offset:1024
    ds_write2_b32 v{vLA}, v{O_+8}, v{vQA} offset0:0 offset1:32""")
def apass(first):
    for t in range(16):
        S, Sn = (S0, S1) if t % 2 == 0 else (S1, S0)
        for e in range(16):
            if e == 2 and not (first and t == 0): pv((t - 1) % 16, 1, Sn)
            if e == 5:
                if first and t < 15: a(f"s_waitcnt vmcnt({2 + 3*(min(t + PRE - 1, 15) - (t + 1))})")
                if t == 15: a("s_waitcnt lgkmcnt(0)" if not first else "s_waitcnt vmcnt(0) lgkmcnt(0)")
                qk((t + 1) % 16, Sn)
                if t == 14:
                    a(f"v_add_u32 v{vQA}, 1024, v{vQA}\nds_read_b128 {vr(QR,4)}, v{vQA}\nds_read_b32 v{vCV}, v{vCA}")
            if e == 8 and first and t + PRE < 16: kvload(t + PRE)
            if e == 13 and t == 0 and not first:
                flush(); zero_o()
            if e == 15: pv(t, 0, S)
            a(f"v_exp_f32 v{S+e}, v{S+e}")
        if t == 0 and not first:
            a(f"""s_add_u32 s{sJ}, s{sJ}, 1
            s_cmp_eq_u32 s{sJ}, 4
            s_cselect_b32 s{t0}, -3, 1
            v_lshl_add_u32 v{vPA}, s{t0}, 13, v{vPA}
            v_lshl_add_u32 v{vLA}, s{t0}, 10, v{vLA}
            v_add_u32 v{vCA}, 4, v{vCA}""")
zero_o()
a(f"s_mov_b32 s{sJ}, 0\ns_waitcnt vmcnt({3*PRE-1}) lgkmcnt(0)")
qk(0, S0)
stamp(5)
apass(True)
stamp(6)
a(".p2align 6\nL_aloop:")
apass(False)
a(f"s_cmp_lt_u32 s{sJ}, 7\ns_cbranch_scc1 L_aloop")
pv(15, 1, S1)
a("s_nop 9")
flush()
stamp(7)
diag_dump(8)
a("s_endpgm")

a("L_sw:")
stamp(0)
vONE, vSWB, vT = 1, 2, 3
vXA, vWA, vWO, vWOA, vD3, vD1, vL16, vGI, vGO = 4, 5, 6, 7, 8, 9, 10, 11, 12
WPH, PHQ, ACC, AC2, WB0, TMP = 16, 24, 40, 56, 72, 104
a(f"""s_setprio 2
v_mov_b32 v{vONE}, 1
v_mov_b32 v{vSWB}, {SWBC}
v_add_u32 v{vWOA}, {X}, v6
v_add_u32 v{vWA}, {RING}, v5
v_add_u32 v{vWO}, {RING}, v6""")
epoch = [0]
def arrive():
    epoch[0] += 1
    a(f"s_mov_b64 exec, 1\nds_add_u32 v{vSWB}, v{vONE}\ns_mov_b64 exec, -1")
def check(lowprio):
    lp, dn = a.lab("sb"), a.lab("sbd")
    a(f"{lp}:\nds_read_b32 v{vT}, v{vSWB}")
    if lowprio: a("s_setprio 2")
    a(f"s_waitcnt lgkmcnt(0)\nv_readfirstlane_b32 s{t0}, v{vT}")
    if lowprio: a("s_setprio 0")
    a(f"s_cmp_ge_u32 s{t0}, {4*epoch[0]}\ns_cbranch_scc1 {dn}")
    budget_retry(lp, dn, 0)
    a(f"{dn}:")

a(f"s_cmp_lg_u32 s{sS}, 3\ns_cbranch_scc1 L_sw_not3")
a(f"s_cmp_lg_u32 s2, 0\ns_cbranch_scc1 L_sw_nononce")
a(f"""s_memrealtime s[{t1}:{t2}]
v_mov_b32 v13, 0
s_waitcnt lgkmcnt(0)
s_or_b32 s{t1}, s{t1}, 1
v_mov_b32 v14, s{t1}
s_mov_b64 exec, 1
buffer_store_dword v14, v13, {sr(sDBG,4)}, 0 offen sc1
s_mov_b64 exec, -1""")
a("L_sw_nononce:")
a(f"""v_mov_b32 v20, 0
v_mov_b32 v21, 0
v_mov_b32 v22, 0
v_mov_b32 v23, 0
v_add_u32 v13, {LT}, v{vL16}""")
for n in range(4): a(f"ds_write_b128 v13, v[20:23] offset:{n*1024}")
a(f"""v_lshlrev_b32 v13, 2, v0
v_add_u32 v13, {NONCE}, v13
v_cmp_gt_u32 vcc, 12, v0
v_cndmask_b32 v14, 0, v{vONE}, vcc
v_cmp_le_u32 vcc, 8, v0
v_cndmask_b32 v14, 0, v14, vcc
ds_write_b32 v13, v14""")
assert CONS == NONCE + 32
a("s_waitcnt lgkmcnt(0)")
a("L_sw_not3:")
if DIAG:
    pass
a("s_barrier")
a(f"s_cmp_eq_u32 s{sS}, 0\ns_cbranch_scc1 L_sw_job")
a(f"s_cmp_eq_u32 s{sS}, 3\ns_cbranch_scc1 L_sw_small")
a(f"s_add_u32 s{t3}, s{sS}, 3")
xrest(t3)
a("s_branch L_sw_h2")
a("L_sw_small:")
srd(sSM, pGATE, 1024)
a(f"s_mov_b32 m0, {GATE}\ns_nop 0\nbuffer_load_dwordx4 v{vL16}, {sr(sSM,4)}, 0 offen lds")
srd(sSM, pWPHI, 16384)
a(f"s_lshl_b32 s{t0}, s{sHG}, 11\ns_mov_b32 m0, {WPHI}\ns_nop 0")
a(f"buffer_load_dwordx4 v{vL16}, {sr(sSM,4)}, s{t0} offen lds\nbuffer_load_dwordx4 v{vL16}, {sr(sSM,4)}, s{t0} offen offset:1024 lds")
a("s_branch L_sw_h2")
a("L_sw_job:")
JX, JW = TMP, TMP + 64
a(f"""v_and_b32 v13, 15, v0
v_lshrrev_b32 v14, 4, v0
s_lshl_b32 s{t0}, s{t5}, 4
v_add_u32 v15, s{t0}, v13
v_mul_u32_u24 v15, {XS}, v15
v_lshl_add_u32 v15, v14, 4, v15
v_lshlrev_b32 v16, 3, v13
v_lshl_add_u32 v16, v14, 8, v16
v_add_u32 v16, {WKV}, v16""")
a(f"s_bitcmp1_b32 s{sHG}, 2\ns_cbranch_scc1 L_job_v")
def job(isv):
    if not isv:
        a(f"""v_and_b32 v17, 1, v14
        v_lshlrev_b32 v17, 9, v17
        v_lshl_add_u32 v17, v13, 4, v17
        v_lshrrev_b32 v18, 1, v14
        v_lshl_add_u32 v17, v18, 3, v17
        s_lshr_b32 s{t0}, s{t5}, 1
        s_lshl_b32 s{t1}, s{sRB}, 1
        s_add_u32 s{t0}, s{t0}, s{t1}
        s_lshl_b32 s{t0}, s{t0}, 10
        s_and_b32 s{t1}, s{t5}, 1
        s_lshl_b32 s{t1}, s{t1}, 8
        s_add_u32 s{t4}, s{t0}, s{t1}""")
    else:
        a(f"""v_lshrrev_b32 v17, 1, v14
        v_lshlrev_b32 v17, 8, v17
        v_lshl_add_u32 v17, v13, 4, v17
        v_and_b32 v18, 1, v14
        v_lshl_add_u32 v17, v18, 3, v17
        s_lshl_b32 s{t0}, s{sRB}, 2
        s_add_u32 s{t0}, s{t0}, s{t5}
        s_lshl_b32 s{t0}, s{t0}, 9
        s_add_u32 s{t4}, s{t0}, {WS_V}""")
    def grp(gq):
        a(f"s_waitcnt vmcnt({12 - 4*gq + NT0})")
        for n in range(4 * gq, 4 * gq + 4):
            a(f"ds_read_b128 {vr(JX+4*n,4)}, v15 offset:{n*64}")
            a(f"ds_read_b64_tr_b16 {vr(JW+4*n,2)}, v16 offset:{n*1024}")
            a(f"ds_read_b64_tr_b16 {vr(JW+4*n+2,2)}, v16 offset:{n*1024+128}")
    def mm(gq):
        for n in range(4 * gq, 4 * gq + 4):
            A, B = (JX, JW) if isv else (JW, JX)
            a(f"v_mfma_f32_16x16x32_bf16 {vr(ACC,4)}, {vr(A+4*n,4)}, {vr(B+4*n,4)}, {'0' if n == 0 else vr(ACC,4)}")
    grp(0)
    for gq in range(4):
        if gq < 3: grp(gq + 1); a("s_waitcnt lgkmcnt(12)")
        else: a("s_waitcnt lgkmcnt(0)")
        mm(gq)
job(False)
a("s_branch L_job_st\nL_job_v:")
job(True)
a("L_job_st:")
lp, dn = a.lab("np"), a.lab("npd")
a(f"""v_cvt_pk_bf16_f32 v18, v{ACC}, v{ACC+1}
v_cvt_pk_bf16_f32 v19, v{ACC+2}, v{ACC+3}
v_mov_b32 v13, 0
buffer_store_dwordx2 v[18:19], v17, {sr(sWS,4)}, s{t4} offen sc1""")
stamp(1)
a(f"""{lp}:
buffer_load_dword v14, v13, {sr(sDBG,4)}, 0 offen sc1
s_waitcnt vmcnt(0)
v_readfirstlane_b32 s{sNON}, v14
s_cmp_lg_u32 s{sNON}, 0
s_cbranch_scc1 {dn}""")
budget_retry(lp, dn, 1)
a(f"{dn}:")
set_flag(F_KV, 13, 15)
a(f"v_mov_b32 v13, {NONCE}\nds_write_b32 v13, v14\ns_waitcnt lgkmcnt(0)")
stamp(2)
a("s_branch L_sw_h2b")
a("L_sw_h2:\ns_waitcnt vmcnt(0)\nL_sw_h2b:\ns_barrier")
GF = TMP
a(f"""v_lshrrev_b32 v14, 4, v0
v_lshlrev_b32 v13, 4, v14
v_add_u32 v13, {GATE}, v13""")
for n in range(16): a(f"ds_read_b128 {vr(GF+4*n,4)}, v13 offset:{n*64}")
a(f"""v_and_b32 v13, 15, v0
v_lshlrev_b32 v13, 3, v13
v_lshrrev_b32 v14, 5, v0
v_lshl_add_u32 v13, v14, 7, v13
s_lshl_b32 s{t0}, s{sP}, 10
s_add_u32 s{t0}, s{t0}, {WPHI}
v_add_u32 v13, s{t0}, v13
s_waitcnt lgkmcnt(8)""")
for hh in range(2):
    a(f"ds_read_b64_tr_b16 {vr(WPH+4*hh,2)}, v13 offset:{hh*512}")
    a(f"ds_read_b64_tr_b16 {vr(WPH+4*hh+2,2)}, v13 offset:{hh*512+256}")
a(f"""v_mov_b32 v14, {NONCE}
ds_read_b32 v14, v14
v_bfe_u32 v13, v0, 4, 1
v_mul_u32_u24 v15, 0x8000, v13
v_lshl_add_u32 v15, v13, 31, v15
s_waitcnt lgkmcnt(0)
v_readfirstlane_b32 s{sNON}, v14""")
for r in range(8): a(f"v_xor_b32 v{WPH+r}, v15, v{WPH+r}")
a("s_barrier\ns_barrier\ns_barrier")
stamp(3)

def dma_stage(c):
    buf = RING + (c % 3) * 16384
    if c < 8:   srdw, vo, base, step = sWB, vD3, c * 64 * 3072, 8 * 3072
    elif c < 12: srdw, vo, base, step = sWB, vD3, (c - 8) * 128 * 3072, 8 * 3072
    else:       srdw, vo, base, step = sWOB, vD1, (c - 12) * 128 * 1024, 8 * 1024
    for n in range(4):
        a(f"s_add_u32 m0, s{sD0}, {buf + n*1024}\ns_add_u32 s{t1}, s{sD1}, {base + n*step}")
        a(f"buffer_load_dwordx4 v{vo}, {sr(srdw,4)}, s{t1} offen lds")
def dma_base(kind):
    a(f"s_lshl_b32 s{t1}, s{sHG}, 7")
    if kind == "kv":
        a(f"s_mul_i32 s{sD1}, s{sP}, {32*3072}\ns_add_u32 s{sD1}, s{sD1}, s{t1}\ns_lshl_b32 s{t1}, s{sI}, 10\ns_add_u32 s{sD1}, s{sD1}, s{t1}\ns_add_u32 s{sD1}, s{sD1}, 1024")
    elif kind == "q":
        a(f"s_mul_i32 s{sD1}, s{sS}, {32*3072}\ns_add_u32 s{sD1}, s{sD1}, s{t1}")
    else:
        a(f"s_lshl_b32 s{sD1}, s{sS}, 15\ns_add_u32 s{sD1}, s{sD1}, s{t1}")
a(f"s_lshl_b32 s{sD0}, s{sS}, 12")
dma_base("kv")
for c in range(3): dma_stage(c)
GX = TMP + 64
a(f"""v_and_b32 v13, 15, v0
v_lshrrev_b32 v14, 4, v0
s_lshl_b32 s{t0}, s{sS}, 4
v_add_u32 v13, s{t0}, v13
v_mul_u32_u24 v15, {XS}, v13
v_lshl_add_u32 v15, v14, 4, v15""")
for n in range(16): a(f"ds_read_b128 {vr(GX+4*n,4)}, v15 offset:{n*64}")
for n in range(16):
    if n % 4 == 0: a(f"s_waitcnt lgkmcnt({12 - n})")
    a(f"v_mfma_f32_16x16x32_bf16 {vr(ACC,4)}, {vr(GF+4*n,4)}, {vr(GX+4*n,4)}, {'0' if n == 0 else vr(ACC,4)}")
a(f"""v_lshlrev_b32 v13, 2, v13
v_add_u32 v13, {G}, v13
v_mul_f32 v14, {hex(LOG2E | 0x80000000)}, v{ACC}
v_exp_f32 v14, v14
v_add_f32 v14, 1.0, v14
v_rcp_f32 v14, v14
ds_write_b32 v13, v14""")

def windows(pairs, fill):
    for n, pr in enumerate(pairs):
        for m in pr: a(m)
        if n < len(fill): fill[n]()

FA = [TMP, TMP + 64]
def rd_x(c, ks0, nks):
    for k in range(nks): a(f"ds_read_b128 {vr(FA[c%2]+4*k,4)}, v{vXA} offset:{(ks0+k)*32}")
def rd_w(dst, vaddr, off, second):
    a(f"ds_read_b64_tr_b16 {vr(dst,2)}, v{vaddr} offset:{off}\nds_read_b64_tr_b16 {vr(dst+2,2)}, v{vaddr} offset:{off+second}")
def rd_stage_w(c, lo, hi):
    for k in range(lo, hi): rd_w(FA[c % 2] + 32 + 4 * k, vWA, (c % 3) * 16384 + k * 2048, 512)

a("s_waitcnt vmcnt(8)")
arrive(); check(False)
a(f"""v_and_b32 v13, 31, v0
v_lshlrev_b32 v13, 2, v13
s_lshl_b32 s{t0}, s{sI}, 7
s_add_u32 s{t1}, s{t0}, {G}
v_add_u32 v14, s{t1}, v13
s_xor_b32 s{t0}, s{t0}, 128
s_add_u32 s{t1}, s{t0}, {G}
v_add_u32 v13, s{t1}, v13
ds_read_b32 v{vGI}, v14
ds_read_b32 v{vGO}, v13""")
rd_x(0, 0, 4); rd_stage_w(0, 0, 8)
stamp(4)
a("s_setprio 0")
for c in range(8):
    a("s_waitcnt lgkmcnt(0)")
    f = FA[c % 2]
    pairs = []
    for k in range(4):
        first = (c == 0 and k == 0)
        pairs.append([f"v_mfma_f32_32x32x16_bf16 {vr(ACC,16)}, {vr(f+32+4*k,4)}, {vr(f+4*k,4)}, {'0' if first else vr(ACC,16)}",
                      f"v_mfma_f32_32x32x16_bf16 {vr(AC2,16)}, {vr(f+4*k,4)}, {vr(f+48+4*k,4)}, {'0' if first else vr(AC2,16)}"])
    def g0():
        a(f"s_waitcnt vmcnt({4 if c < 7 else 0})"); arrive()
        if c < 7: rd_x(c + 1, 4 * (c + 1), 4)
    def g1():
        if c < 7:
            check(True)
            rd_stage_w(c + 1, 0, 3)
    def g2():
        if c < 7: rd_stage_w(c + 1, 3, 8)
    def g3():
        if c == 5: dma_base("q")
        if c < 6: dma_stage(c + 3)
    windows(pairs, [g0, g1, g2, g3])
a("s_setprio 2")
stamp(5)

def features(B, W, out, D, tm):
    m1, m2 = tm, tm + 1
    a(f"v_mfma_f32_32x32x16_bf16 {vr(D,16)}, {vr(W,4)}, {vr(B,4)}, 0")
    for (m, b) in ((m1, D), (m2, D + 8)):
        a(f"v_max3_f32 v{m}, v{b}, v{b+1}, v{b+2}\nv_max3_f32 v{m}, v{m}, v{b+3}, v{b+4}\nv_max3_f32 v{m}, v{m}, v{b+5}, v{b+6}\nv_max_f32 v{m}, v{m}, v{b+7}")
    a(f"""v_permlane32_swap_b32 v{m1}, v{m2}
    v_max_f32 v{m1}, v{m1}, v{m2}
    v_mul_f32 v{m1}, {hex(LOG2E | 0x80000000)}, v{m1}
    v_mov_b32 v{m2}, v{m1}
    v_permlane32_swap_b32 v{m1}, v{m2}""")
    for r in range(0, 16, 2):
        sel = "op_sel_hi:[1,1,0]" if r < 8 else "op_sel:[0,0,1]"
        a(f"v_pk_fma_f32 {vr(D+r,2)}, {vr(D+r,2)}, s[{sL2E}:{sL2E+1}], {vr(m1,2)} {sel}")
    for r in range(16): a(f"v_exp_f32 v{D+r}, v{D+r}")
    for (m, b) in ((m1, D), (m2, D + 8)):
        a(f"""v_pk_add_f32 {vr(tm+2,2)}, {vr(b,2)}, {vr(b+2,2)}
        v_pk_add_f32 {vr(tm+4,2)}, {vr(b+4,2)}, {vr(b+6,2)}
        v_pk_add_f32 {vr(tm+2,2)}, {vr(tm+2,2)}, {vr(tm+4,2)}
        v_add_f32 v{m}, v{tm+2}, v{tm+3}""")
    a(f"""v_permlane32_swap_b32 v{m1}, v{m2}
    v_add_f32 v{m1}, v{m1}, v{m2}
    v_rcp_f32 v{m1}, v{m1}
    v_mov_b32 v{m2}, v{m1}
    v_permlane32_swap_b32 v{m1}, v{m2}""")
    for r in range(0, 16, 2):
        sel = "op_sel_hi:[1,0]" if r < 8 else "op_sel:[0,1]"
        a(f"v_pk_mul_f32 {vr(D+r,2)}, {vr(D+r,2)}, {vr(m1,2)} {sel}")
    for r in range(8): a(f"v_cvt_pk_bf16_f32 v{out+r}, v{D+2*r}, v{D+2*r+1}")

KB, VB, DD, TM, PH = TMP, TMP + 8, TMP + 16, TMP + 32, TMP + 40
SCP = RING
SCV = RING + 16384
for r in range(8): a(f"v_cvt_pk_bf16_f32 v{KB+r}, v{ACC+2*r}, v{ACC+2*r+1}")
for r in range(8): a(f"v_cvt_pk_bf16_f32 v{VB+r}, v{AC2+2*r}, v{AC2+2*r+1}")
a(f"""v_and_b32 v13, 31, v0
v_bfe_u32 v14, v0, 1, 3
v_lshrrev_b32 v15, 5, v0
v_xor_b32 v14, v14, v15
v_lshlrev_b32 v14, 3, v14
v_lshl_add_u32 v13, v13, 6, v14
s_lshl_b32 s{t0}, s{sI}, 11
s_lshl_b32 s{t1}, s{sP}, 13
s_add_u32 s{t0}, s{t0}, s{t1}
s_add_u32 s{t0}, s{t0}, {SCP}
v_add_u32 v13, s{t0}, v13""")
assert SCP % 64 == 0
for aa in range(1, 4): a(f"v_xor_b32 v{TMP+48+aa}, {16*aa}, v13")
for hh in range(2):
    features(KB + 4 * hh, WPH + 4 * hh, PH, DD, TM)
    for aa in range(4):
        va = 13 if aa == 0 else TMP + 48 + aa
        a(f"ds_write_b64 v{va}, {vr(PH+2*aa,2)} offset:{hh*4096}")
check(False)
a(f"""s_lshl_b32 s{t0}, s{sS}, 11
s_add_u32 s{t0}, s{t0}, {SCV}
v_add_u32 v13, s{t0}, v{vL16}
ds_write_b128 v13, {vr(VB,4)}
ds_write_b128 v13, {vr(VB+4,4)} offset:1024""")
arrive()
KA, KBv, KD = TMP, TMP + 16, TMP + 32
a(f"s_mov_b32 s{t1}, 0x3f803f80\ns_mov_b32 s{t2}, 0x3f803f80")
for r in range(0, 16, 2): a(f"v_mov_b64 {vr(KBv+r,2)}, s[{t1}:{t2}]")
a(f"""s_lshl_b32 s{t3}, s{sP}, 1
s_add_u32 s{t3}, s{t3}, s{sI}
v_and_b32 v13, 15, v0
v_lshrrev_b32 v14, 5, v0
v_lshrrev_b32 v15, 2, v13
v_lshl_add_u32 v15, v14, 2, v15
v_lshrrev_b32 v{TMP+48}, 1, v15
v_bfe_u32 v{TMP+49}, v0, 4, 1
v_lshlrev_b32 v{TMP+49}, 2, v{TMP+49}
v_and_b32 v{TMP+50}, 3, v0
v_add_u32 v{TMP+49}, v{TMP+49}, v{TMP+50}
v_xor_b32 v{TMP+48}, v{TMP+48}, v{TMP+49}
v_lshlrev_b32 v{TMP+48}, 3, v{TMP+48}
v_lshl_add_u32 v15, v15, 6, v{TMP+48}
s_lshl_b32 s{t0}, s{t3}, 12
s_add_u32 s{t0}, s{t0}, {SCP}
v_add_u32 v15, s{t0}, v15
v_xor_b32 v{TMP+48}, 32, v15
v_lshlrev_b32 v13, 4, v13
v_lshl_add_u32 v13, v14, 9, v13
s_lshl_b32 s{t0}, s{sP}, 11
s_lshl_b32 s{t1}, s{sI}, 8
s_add_u32 s{t0}, s{t0}, s{t1}
s_add_u32 s{t0}, s{t0}, {SCV}
v_add_u32 v13, s{t0}, v13""")
check(False)
for u in range(4):
    a(f"ds_read_b64_tr_b16 {vr(KA+4*u,2)}, v15 offset:{u*1024}\nds_read_b64_tr_b16 {vr(KA+4*u+2,2)}, v{TMP+48} offset:{u*1024+512}")
a(f"s_mov_b32 exec_lo, 0xffff\ns_mov_b32 exec_hi, 0xffff")
for u in range(4):
    a(f"ds_read_b128 {vr(KBv+4*u,4)}, v13 offset:{(u//2)*4096 + (u%2)*1024}")
a("s_mov_b64 exec, -1")
arrive()
vLI = 13
a(f"""v_and_b32 v13, 31, v0
v_min_u32 v13, 16, v13
v_mad_u32_u24 v13, v14, 17, v13
v_lshlrev_b32 v14, 3, v13
s_lshl_b32 s{t0}, s{sHG}, 2
s_add_u32 s{t0}, s{t0}, s{t3}
s_lshl_b32 s{t0}, s{t0}, 8
s_add_u32 s{t0}, s{t0}, s{sRB}
s_mul_i32 s{t4}, s{t0}, 272
s_add_u32 s{t4}, s{t4}, {WS_PART}
s_waitcnt lgkmcnt(0)""")
for u in range(4):
    a(f"v_mfma_f32_32x32x16_bf16 {vr(KD,16)}, {vr(KA+4*u,4)}, {vr(KBv+4*u,4)}, {'0' if u == 0 else vr(KD,16)}")
a(f"s_mov_b32 exec_lo, 0x1ffff\ns_mov_b32 exec_hi, 0x1ffff")
for e in range(8):
    a(f"buffer_store_dwordx2 {vr(KD+2*e,2)}, v14, {sr(sWS,4)}, s{t4} offen sc1")
    if e < 7: a(f"s_add_u32 s{t4}, s{t4}, {32*272}")
a("s_mov_b64 exec, -1")
check(False)
dma_stage(9); dma_stage(10)
a(f"s_lshl_b32 s{t3}, s{t3}, 2\ns_add_u32 s{t3}, s{t3}, {4*F_F2}")
a("s_waitcnt vmcnt(8)")
rd_x(8, 0, 8); rd_stage_w(8, 0, 8)
set_flag(f"s{t3}", 14, 15)
stamp(6)
a("s_setprio 0")
for c in range(8, 12):
    a("s_waitcnt lgkmcnt(0)")
    f = FA[c % 2]
    mm = [f"v_mfma_f32_32x32x16_bf16 {vr(AC2,16)}, {vr(f+32+4*k,4)}, {vr(f+4*k,4)}, {'0' if (c == 8 and k == 0) else vr(AC2,16)}" for k in range(8)]
    pairs = [mm[2*k:2*k+2] for k in range(4)]
    def g0():
        a(f"s_waitcnt vmcnt({5 if c == 8 else 4})"); arrive()
        if c < 11: rd_x(c + 1, 8 * (c - 7), 8)
    def g1():
        check(True)
        if c < 11: rd_stage_w(c + 1, 0, 3)
        else:
            for k in range(3): rd_w(WB0 + 4 * k, vWO, k * 2048, 1024)
    def g2():
        if c < 11: rd_stage_w(c + 1, 3, 8)
        else:
            for k in range(3, 8): rd_w(WB0 + 4 * k, vWO, k * 2048, 1024)
            arrive()
    def g3():
        if c == 9: dma_base("o")
        if c < 11: dma_stage(c + 3)
    windows(pairs, [g0, g1, g2, g3])
a("s_setprio 2")
stamp(7)
a(f"s_cmp_lg_u32 s{sS}, 0\ns_cbranch_scc1 L_nored1")
a(f"""s_and_b32 s{t3}, s{sRB}, 3
s_lshl_b32 s{t0}, s{sHG}, 7
s_lshl_b32 s{t1}, s{t3}, 2
s_add_u32 s{t0}, s{t0}, s{t1}
s_add_u32 s{t0}, s{t0}, {WS_F + 4*F_F2}
v_and_b32 v14, 31, v0
v_lshlrev_b32 v14, 10, v14
v_add_u32 v14, s{t0}, v14""")
poll_flags(14, vT)
a(f"""s_lshl_b32 s{t0}, s{sHG}, 2
s_add_u32 s{t3}, s{t0}, s{t3}
s_lshl_b32 s{t0}, s{t3}, 3
s_lshr_b32 s{t2}, s{sRB}, 2
s_add_u32 s{t0}, s{t0}, s{t2}
s_mul_i32 s{t0}, s{t0}, {32*272}
s_add_u32 s{t0}, s{t0}, {WS_PART}
v_lshlrev_b32 v14, 3, v{vLI}
s_mov_b32 exec_lo, 0x1ffff
s_mov_b32 exec_hi, 0x1ffff""")
for n in range(32):
    if n and n % 8 == 0: a(f"s_add_u32 s{t0}, s{t0}, {8*272}")
    a(f"buffer_load_dwordx2 {vr(TMP+2*n,2)}, v14, {sr(sWS,4)}, s{t0} offen offset:{(n%8)*272} sc1")
a(f"""s_mul_i32 s{t0}, s{t3}, {KVF_STRIDE}
s_lshr_b32 s{t1}, s{t2}, 2
s_mul_i32 s{t1}, s{t1}, 544
s_add_u32 s{t0}, s{t0}, s{t1}
s_and_b32 s{t1}, s{t2}, 3
s_lshl_b32 s{t1}, s{t1}, 2
s_add_u32 s{t0}, s{t0}, s{t1}
s_add_u32 s{t0}, s{t0}, {WS_KVF}
v_lshlrev_b32 v14, 4, v{vLI}
s_waitcnt vmcnt(0)""")
st = 16
while st >= 1:
    for n in range(st): a(f"v_pk_add_f32 {vr(TMP+2*n,2)}, {vr(TMP+2*n,2)}, {vr(TMP+2*(n+st),2)}")
    st //= 2
a(f"""v_cvt_pk_bf16_f32 v15, v{TMP}, v{TMP+1}
buffer_store_dword v15, v14, {sr(sWS,4)}, s{t0} offen sc1
s_mov_b64 exec, -1
L_nored1:""")
dma_stage(14)
a(f"s_lshl_b32 s{t2}, s{sS}, 14\ns_lshl_b32 s{t3}, s{sS}, 17\ns_lshl_b32 s{t1}, s{sHG}, 7\ns_add_u32 s{t3}, s{t3}, s{t1}")
for n in range(16):
    a(f"s_add_u32 m0, s{t2}, {X + n*1024}\ns_add_u32 s{t1}, s{t3}, {n*8192}")
    a(f"buffer_load_dwordx4 v{vD1}, {sr(sWOA,4)}, s{t1} offen lds")
a(f"s_cmp_lg_u32 s{sS}, 0\ns_cbranch_scc1 L_nored2\ns_waitcnt vmcnt(20)")
set_flag(F_F3, 14, 15)
a("L_nored2:")
check(False)
dma_stage(15)
for r in range(8): a(f"v_cvt_pk_bf16_f32 v{KB+r}, v{AC2+2*r}, v{AC2+2*r+1}")
for hh in range(2): features(KB + 4 * hh, WPH + 4 * hh, PHQ + 8 * hh, DD, TM)
stamp(8)
def call_fin(): a(f"s_call_b64 s[{sRET}:{sRET+1}], L_fin\ns_nop 1")
a(f"s_cmp_eq_u32 s{sI}, 0\ns_cbranch_scc1 L_nofin0")
a(f"s_mov_b32 s{sJ}, s{sP}"); call_fin()
a(f"s_add_u32 s{sJ}, s{sP}, 2"); call_fin()
a("L_nofin0:")
a("s_waitcnt vmcnt(0)")
arrive()
a(f"""s_lshl_b32 s{t0}, s{sHG}, 7
s_add_u32 s{t0}, s{t0}, {WS_F + 4*F_F3}
v_and_b32 v14, 31, v0
v_lshlrev_b32 v14, 10, v14
v_add_u32 v14, s{t0}, v14""")
poll_flags(14, vT)
a(f"""s_lshl_b32 s{t3}, s{sHG}, 2
s_lshl_b32 s{t1}, s{sP}, 1
s_add_u32 s{t3}, s{t3}, s{t1}
s_mul_i32 s{t0}, s{t3}, {KVF_STRIDE}
s_add_u32 s{t0}, s{t0}, {WS_KVF}
v_lshlrev_b32 v14, 4, v{vLI}""")
for hh in range(2):
    for u in range(2):
        a(f"buffer_load_dwordx4 {vr(TMP+8*hh+4*u,4)}, v14, {sr(sWS,4)}, s{t0} offen offset:{hh*KVF_STRIDE + u*544} sc1")
a(f"""s_lshl_b32 s{sD0}, s{sRB}, 1
s_add_u32 s{sD0}, s{sD0}, s{sI}
s_lshl_b32 s{sD0}, s{sD0}, 16
s_add_u32 s{sD0}, s{sD0}, {WS_O}
s_lshl_b32 s{t3}, s{t3}, 10
s_add_u32 s{t3}, s{t3}, s{sD0}
s_add_u32 s{t3}, s{t3}, 32768
v_sub_f32 v15, 1.0, v{vGI}
s_waitcnt vmcnt(0)""")
for hh in range(2):
    D = TMP + 16 + 16 * hh
    a(f"v_mfma_f32_32x32x16_bf16 {vr(D,16)}, {vr(TMP+8*hh,4)}, {vr(PHQ+8*hh,4)}, 0")
    a(f"v_mfma_f32_32x32x16_bf16 {vr(D,16)}, {vr(TMP+8*hh+4,4)}, {vr(PHQ+8*hh+4,4)}, {vr(D,16)}")
for hh in range(2):
    D = TMP + 16 + 16 * hh
    a(f"v_add_f32 v{D+8}, 0x358637bd, v{D+8}\nv_rcp_f32 v{D+8}, v{D+8}\nv_mul_f32 v{D+8}, v{D+8}, v15")
    for r in range(0, 8, 2): a(f"v_pk_mul_f32 {vr(D+r,2)}, {vr(D+r,2)}, {vr(D+8,2)} op_sel_hi:[1,0]")
    for r in range(4): a(f"v_cvt_pk_bf16_f32 v{D+12+r}, v{D+2*r}, v{D+2*r+1}")
    a(f"buffer_store_dwordx4 {vr(D+12,4)}, v{vL16}, {sr(sWS,4)}, s{t3} offen offset:{hh*1024} sc1")
a(f"s_lshl_b32 s{t3}, s{sS}, 2\ns_add_u32 s{t3}, s{t3}, {4*F_OB}\ns_waitcnt vmcnt(0)")
set_flag(f"s{t3}", 14, 15)
check(False)
stamp(9)
vPF = 13
a(f"""s_lshl_b32 s{t0}, s{sRB}, 10
s_add_u32 s{t0}, s{t0}, {WS_F}
v_and_b32 v{vPF}, 7, v0
v_lshlrev_b32 v{vPF}, 7, v{vPF}
v_add_u32 v{vPF}, s{t0}, v{vPF}""")

OF = [TMP, TMP + 32]; WF = [TMP + 64, TMP + 96]
def proj(batches, first):
    def loads(b):
        last = None
        for k, (ro, _) in enumerate(batches[b]):
            hi, lo = ro & ~4095, ro & 4095
            if hi != last: a(f"s_add_u32 s{t1}, s{sD0}, {hi}"); last = hi
            a(f"buffer_load_dwordx4 {vr(OF[b%2]+4*k,4)}, v{vL16}, {sr(sWS,4)}, s{t1} offen offset:{lo} sc1")
    def wreads(b, lo, hi):
        for k, (_, w) in list(enumerate(batches[b]))[lo:hi]:
            if w[0] == "lds": rd_w(WF[b % 2] + 4 * k, w[1], w[2], 1024)
    loads(0); wreads(0, 0, 8)
    if len(batches) > 1: loads(1)
    a("s_setprio 0")
    for b in range(len(batches)):
        more = b + 1 < len(batches)
        a(f"s_waitcnt vmcnt({8 if more else 0}) lgkmcnt(0)")
        mm = []
        for k, (_, w) in enumerate(batches[b]):
            wr = WF[b % 2] + 4 * k if w[0] == "lds" else w[1]
            mm.append(f"v_mfma_f32_32x32x16_bf16 {vr(ACC,16)}, {vr(wr,4)}, {vr(OF[b%2]+4*k,4)}, {'0' if (first and b == 0 and k == 0) else vr(ACC,16)}")
        fill = []
        if more: fill = [lambda: wreads(b + 1, 0, 4), lambda: wreads(b + 1, 4, 8), lambda: None,
                         (lambda: loads(b + 2)) if b + 2 < len(batches) else (lambda: None)]
        windows([mm[2*k:2*k+2] for k in range(4)], fill)
    a("s_setprio 2")
def bpart(first):
    a(f"""v_bfe_u32 v14, v0, 3, 1
    s_lshl_b32 s{t0}, s{sI}, 3
    v_lshl_add_u32 v14, v14, 2, v{vPF}
    v_add_u32 v14, s{t0}, v14""")
    poll_flags(14, vT, 4 * F_OB)
    bs = []
    for b in range(4):
        bs.append([(32768 + (8*b+k) * 1024, ("reg", WB0 + 4*k) if b == 0 else ("lds", vWO, ((12+b) % 3) * 16384 + k * 2048)) for k in range(8)])
    proj(bs, first)
def store_out():
    a(f"""v_and_b32 v14, 31, v0
    v_lshlrev_b32 v14, 10, v14
    v_lshrrev_b32 v15, 5, v0
    v_lshl_add_u32 v14, v15, 4, v14
    s_lshl_b32 s{t0}, s{sRB}, 16
    s_lshl_b32 s{t1}, s{sI}, 15
    s_add_u32 s{t0}, s{t0}, s{t1}
    s_lshl_b32 s{t1}, s{sHG}, 7
    s_add_u32 s{t0}, s{t0}, s{t1}
    s_lshl_b32 s{t1}, s{sP}, 6
    s_add_u32 s{t0}, s{t0}, s{t1}""")
    for r in range(8): a(f"v_cvt_pk_bf16_f32 v{TMP+r}, v{ACC+2*r}, v{ACC+2*r+1}")
    for kk in range(2):
        b = TMP + 4 * kk
        a(f"v_permlane32_swap_b32 v{b}, v{b+2}\nv_permlane32_swap_b32 v{b+1}, v{b+3}")
        a(f"buffer_store_dwordx4 {vr(b,4)}, v14, {sr(sOUT,4)}, s{t0} offen offset:{kk*32}")

a(f"s_cmp_eq_u32 s{sI}, 1\ns_cbranch_scc1 L_half1")
a(f"v_bfe_u32 v14, v0, 3, 2\nv_lshl_add_u32 v14, v14, 2, v{vPF}")
poll_flags(14, vT, 4 * F_OA)
proj([[((8*b+k) * 1024, ("lds", vWOA, (8*b+k) * 2048)) for k in range(8)] for b in range(4)], True)
stamp(10)
a(f"s_add_u32 s{sJ}, s{sP}, 4"); call_fin()
bpart(False)
store_out()
stamp(11)
a(f"s_add_u32 s{sJ}, s{sP}, 6"); call_fin()
stamp(12)
diag_dump(13)
a("s_endpgm")
a("L_half1:")
bpart(True)
stamp(10)
for j in range(4, 8):
    poll_flags(vPF, vT, 4 * (F_OA + j), nap=1)
    if j == 7: stamp(11)
    proj([[((4*k + j - 4) * 1024, ("lds", vWOA, (4*k + j - 4) * 2048)) for k in range(8)]], False)
store_out()
stamp(12)
diag_dump(13)
a("L_exit:\ns_endpgm")

FO = TMP
FL = TMP + 32
a("L_fin:\ns_nop 1")
lp, dn = a.lab("fw"), a.lab("fwd")
a(f"""s_and_b32 s{t2}, s{sJ}, 3
s_lshl_b32 s{t0}, s{t2}, 10
s_add_u32 s{t0}, s{t0}, {LT}
v_and_b32 v14, 3, v0
v_lshlrev_b32 v14, 8, v14
v_add_u32 v14, s{t0}, v14
v_and_b32 v15, 31, v0
v_lshl_add_u32 v15, v15, 2, s{t0}
s_lshl_b32 s{t1}, s{sJ}, 10
s_add_u32 s{t1}, s{t1}, {Q + 1024}
s_lshl_b32 s{t2}, s{t2}, 13
s_add_u32 s{t2}, s{t2}, {OP}
v_add_u32 v{FL+4}, s{t2}, v{vL16}
{lp}:
ds_read_b32 v{vT}, v14 offset:128
s_waitcnt lgkmcnt(0)
v_cmp_gt_u32 vcc, s{t1}, v{vT}
s_cbranch_vccz {dn}""")
budget_retry(lp, dn, 1)
a(f"{dn}:")
for w in range(4):
    a(f"ds_read_b128 {vr(FO+8*w,4)}, v{FL+4} offset:{w*2048}\nds_read_b128 {vr(FO+8*w+4,4)}, v{FL+4} offset:{w*2048+1024}\nds_read_b32 v{FL+w}, v15 offset:{w*256}")
a(f"""s_lshl_b32 s{t0}, s{sJ}, 2
s_add_u32 s{t0}, s{t0}, {CONS + 16}
v_mov_b32 v14, s{t0}
ds_write_b32 v14, v{vONE}
s_lshr_b32 s{t0}, s{sJ}, 2
s_lshl_b32 s{t2}, s{sRB}, 1
s_add_u32 s{t0}, s{t0}, s{t2}
s_lshl_b32 s{t0}, s{t0}, 6
s_lshl_b32 s{t2}, s{sHG}, 2
s_add_u32 s{t0}, s{t0}, s{t2}
s_and_b32 s{t2}, s{sJ}, 3
s_add_u32 s{t0}, s{t0}, s{t2}
s_lshl_b32 s{t4}, s{t0}, 10
s_add_u32 s{t4}, s{t4}, {WS_O}
s_waitcnt lgkmcnt(0)""")
for r in range(0, 8, 2):
    a(f"v_pk_add_f32 {vr(FO+r,2)}, {vr(FO+r,2)}, {vr(FO+8+r,2)}\nv_pk_add_f32 {vr(FO+16+r,2)}, {vr(FO+16+r,2)}, {vr(FO+24+r,2)}")
a(f"v_pk_add_f32 {vr(FL,2)}, {vr(FL,2)}, {vr(FL+2,2)}")
for r in range(0, 8, 2): a(f"v_pk_add_f32 {vr(FO+r,2)}, {vr(FO+r,2)}, {vr(FO+16+r,2)}")
a(f"v_add_f32 v{FO+8}, v{FL}, v{FL+1}")
a(f"""v_pk_mul_f32 {vr(FO+10,2)}, {vr(FO,2)}, 0 op_sel_hi:[1,0]
v_pk_fma_f32 {vr(FO+10,2)}, {vr(FO+2,2)}, 0, {vr(FO+10,2)} op_sel_hi:[1,0,1]
v_pk_fma_f32 {vr(FO+10,2)}, {vr(FO+4,2)}, 0, {vr(FO+10,2)} op_sel_hi:[1,0,1]
v_pk_fma_f32 {vr(FO+10,2)}, {vr(FO+6,2)}, 0, {vr(FO+10,2)} op_sel_hi:[1,0,1]
v_add_f32 v{FO+10}, v{FO+10}, v{FO+11}
v_add_f32 v{FO+10}, v{FO+10}, v{FO+8}
v_cmp_nle_f32 vcc, {hex((127-40)<<23)}, v{FO+10}
s_cbranch_vccnz L_fb
v_cmp_nge_f32 vcc, {hex((127+60)<<23)}, v{FO+10}
s_cbranch_vccnz L_fb""")
if FORCE_FB: a("s_branch L_fb")
a(f"""L_fin_norm:
v_rcp_f32 v{FO+8}, v{FO+8}
v_mul_f32 v{FO+8}, v{FO+8}, v{vGO}""")
for r in range(0, 8, 2): a(f"v_pk_mul_f32 {vr(FO+r,2)}, {vr(FO+r,2)}, {vr(FO+8,2)} op_sel_hi:[1,0]")
for r in range(4): a(f"v_cvt_pk_bf16_f32 v{FO+12+r}, v{FO+2*r}, v{FO+2*r+1}")
a(f"""buffer_store_dwordx4 {vr(FO+12,4)}, v{vL16}, {sr(sWS,4)}, s{t4} offen sc1
s_lshl_b32 s{t3}, s{sJ}, 2
s_add_u32 s{t3}, s{t3}, {4*F_OA}
s_waitcnt vmcnt(0)""")
set_flag(f"s{t3}", 14, 15)
a(f"s_setpc_b64 s[{sRET}:{sRET+1}]")
BS, BC, BK, BV, BQ, BM = TMP + 16, TMP + 32, TMP + 48, TMP + 52, TMP + 60, TMP + 64
a(f"""L_fb:
s_sub_u32 s{t1}, s{t1}, 1024
v_add_u32 v14, s{t1}, v{vL16}
ds_read_b128 {vr(BQ,4)}, v14
v_mov_b32 v{BM}, 0xff800000
s_mov_b32 s{t0}, 0
s_waitcnt lgkmcnt(0)
L_fb1:
buffer_load_dwordx4 {vr(BK,4)}, v{vL16}, {sr(sWS,4)}, s{t0} offen sc1
s_waitcnt vmcnt(0)
v_mfma_f32_32x32x16_bf16 {vr(BS,16)}, {vr(BK,4)}, {vr(BQ,4)}, 0""")
for r in range(0, 16, 2): a(f"v_max3_f32 v{BM}, v{BM}, v{BS+r}, v{BS+r+1}")
a(f"""s_add_u32 s{t0}, s{t0}, 1024
s_cmp_lt_u32 s{t0}, 65536
s_cbranch_scc1 L_fb1
v_mov_b32 v{BM+1}, v{BM}
v_permlane32_swap_b32 v{BM}, v{BM+1}
v_max_f32 v{BM}, v{BM}, v{BM+1}""")
for r in range(16): a(f"v_sub_f32 v{BC+r}, 0, v{BM}\nv_mov_b32 v{FO+r}, 0")
for r in range(8): a(f"v_mov_b32 v{BV+r}, 0x3f803f80")
a(f"""v_lshrrev_b32 v14, 5, v0
v_and_b32 v15, 15, v0
v_lshlrev_b32 v15, 4, v15
v_lshl_add_u32 v14, v14, 8, v15
v_add_u32 v14, {WS_V}, v14
v_mov_b32 v15, 0xdddd
s_mov_b32 s{t0}, 0
L_fb2:
buffer_load_dwordx4 {vr(BK,4)}, v{vL16}, {sr(sWS,4)}, s{t0} offen sc1
s_mov_b32 exec_lo, 0xffff
s_mov_b32 exec_hi, 0xffff
buffer_load_dwordx4 {vr(BV,4)}, v14, {sr(sWS,4)}, s{t0} offen sc1
buffer_load_dwordx4 {vr(BV+4,4)}, v14, {sr(sWS,4)}, s{t0} offen offset:512 sc1
s_mov_b64 exec, -1
s_waitcnt vmcnt(0)
v_mfma_f32_32x32x16_bf16 {vr(BS,16)}, {vr(BK,4)}, {vr(BQ,4)}, {vr(BC,16)}""")
for r in range(16): a(f"v_exp_f32 v{BS+r}, v{BS+r}")
a(f"""v_smfmac_f32_32x32x32_bf16 {vr(FO,16)}, {vr(BV,4)}, {vr(BS,8)}, v15
v_smfmac_f32_32x32x32_bf16 {vr(FO,16)}, {vr(BV+4,4)}, {vr(BS+8,8)}, v15
s_add_u32 s{t0}, s{t0}, 1024
s_cmp_lt_u32 s{t0}, 65536
s_cbranch_scc1 L_fb2
s_nop 9
s_branch L_fin_norm
CODE_END:""")

body = a.finish(verbose=bool(os.environ.get("VERBOSE")))
ref = open("cdna_kernels/" + NAME + ".s.ref").read().split("\n")
hdr = [l for l in ref if l.startswith(";") and "@launch" not in l and "Override" not in l and "grid=ceil" not in l]
out = "\n".join(hdr) + f"""
; @launch grid=(256,1,1) block=(512,1,1) lds={LDS_BYTES}
.amdgcn_target "amdgcn-amd-amdhsa--gfx950"
.text
.globl {NAME}_kernel
.p2align 8
.type {NAME}_kernel,@function
{NAME}_kernel:
{body}.section .rodata,"a"
.p2align 6
.amdhsa_kernel {NAME}_kernel
  .amdhsa_next_free_vgpr 256
  .amdhsa_next_free_sgpr 102
  .amdhsa_accum_offset 256
  .amdhsa_group_segment_fixed_size 0
  .amdhsa_kernarg_size 104
  .amdhsa_user_sgpr_count 2
  .amdhsa_user_sgpr_kernarg_segment_ptr 1
  .amdhsa_system_sgpr_workgroup_id_x 1
.end_amdhsa_kernel
"""
dst = sys.argv[1] if len(sys.argv) > 1 else "cdna_kernels/" + NAME + ".s"
open(dst, "w").write(out)
print("wrote", dst, len(a.lines), "lines,", len(a.inserted), "nops inserted")
```

```python
import sys, os
from asmlib import Asm, vr, sr

NAME = "gated_mix__grouped_kv_mqa__linear_kernel_hedgehog__prompt"
DIAG = int(os.environ.get("DIAG", "0"))
FORCE_FB = int(os.environ.get("FORCE_FB", "0"))
TOUCH = int(os.environ.get("TOUCH", "7"))
ZROWS = int(os.environ.get("ZROWS", "1"))
NOB = int(os.environ.get("NOB", "0"))
PRE = int(os.environ.get("PRE", "4"))

X = 0; XS = 1040
Q = 66560
OP = 74752
RING = 107520
LT = 156672
MISC = 160768
WKV = OP; WQ = OP + 16384
GATE = Q; WPHI = Q + 1024
G = MISC; NONCE = MISC + 256; SWBC = MISC + 272; CONS = MISC + 288
LDS_BYTES = 163840
WS_K = 0; WS_V = 0x10000; WS_F = 0x20000; WS_KVF = 0x30000; WS_DIAG = 0x40000
WS_PART = 0x80000; WS_O = 0x400000; WS_SIZE = 0x800000
KVF_STRIDE = 1152
F_KV = 0; F_F3 = 1; F_F2 = 4; F_OB = 8; F_OA = 12
pX, pWQ, pWK, pWV, pWOA, pBX, pWQKV, pWPHI, pWOB, pGATE, pOUT, pDBG, pWS = [4 + 2 * i for i in range(13)]
sX, sWQ, sWKV, sWB, sWOA, sWOB, sWS, sOUT, sDBG, sSM = [32 + 4 * i for i in range(10)]
sW, sRB, sHG, sL, sNON, sBUD, sS, sI, sP = 72, 73, 74, 75, 76, 77, 78, 79, 80
t0, t1, t2, t3, t4, t5 = 81, 82, 83, 84, 85, 86
sJ = 87; sRET = 88
sL2E = 90
sFL = 92
sD0, sD1 = 93, 94
sST = 4
LOG2E = 0x3fb8aa3b
QSCALE = 0x3eb8aa3b

a = Asm()
nst = [0]
def stamp(n):
    if DIAG: a(f"s_memrealtime {sr(sST + 2 * n, 2)}")

def srd(d, p, size):
    a(f"s_mov_b32 s{d}, s{p}\ns_mov_b32 s{d+1}, s{p+1}\ns_mov_b32 s{d+2}, {hex(size)}\ns_mov_b32 s{d+3}, 0x20000")

def budget_retry(loop, done, nap):
    a(f"s_cmp_eq_u32 s{sBUD}, 0\ns_cbranch_scc1 {done}\ns_sub_u32 s{sBUD}, s{sBUD}, 1")
    if nap: a(f"s_sleep {nap}")
    a(f"s_branch {loop}")

def poll_flags(vaddr, vtmp, off=0, nap=2):
    lp, dn = a.lab("pf"), a.lab("pfd")
    a(f"""{lp}:
    buffer_load_dword v{vtmp}, v{vaddr}, {sr(sWS,4)}, 0 offen offset:{off} sc1
    s_waitcnt vmcnt(0)
    v_cmp_ne_u32 vcc, s{sNON}, v{vtmp}
    s_cbranch_vccz {dn}""")
    budget_retry(lp, dn, nap)
    a(f"{dn}:")

def set_flag(idx_sgpr_or_const, vt0, vt1):
    if isinstance(idx_sgpr_or_const, int):
        a(f"v_mov_b32 v{vt0}, {4*idx_sgpr_or_const}")
    else:
        a(f"v_mov_b32 v{vt0}, {idx_sgpr_or_const}")
    a(f"""v_mov_b32 v{vt1}, s{sNON}
    s_mov_b64 exec, 1
    buffer_store_dword v{vt1}, v{vt0}, {sr(sWS,4)}, s{sFL} offen sc1
    s_mov_b64 exec, -1""")

def diag_dump(n):
    if not DIAG: return
    a("s_waitcnt lgkmcnt(0)")
    a(f"s_lshl_b32 s{t0}, s{sL}, 3\ns_add_u32 s{t0}, s{t0}, s{sW}\ns_lshl_b32 s{t0}, s{t0}, 6\ns_add_u32 s{t0}, s{t0}, {WS_DIAG}")
    a("v_mov_b32 v8, 0")
    for i in range(14):
        a(f"v_writelane_b32 v8, s{sST+2*i}, {i}")
    a(f"""v_mbcnt_lo_u32_b32 v9, -1, 0
    v_mbcnt_hi_u32_b32 v9, -1, v9
    v_lshlrev_b32 v9, 2, v9
    s_mov_b64 exec, 0xffff
    buffer_store_dword v8, v9, {sr(sWS,4)}, s{t0} offen
    s_mov_b64 exec, -1""")
    if DIAG == 2:
        l = a.lab("dd")
        aw = (n == 8)
        a(f"""s_cmp_lg_u32 s{sW}, {0 if aw else 6}
        s_cbranch_scc1 {l}
        v_subrev_u32 v8, s{sNON}, v8
        v_max_i32 v8, 0, v8
        s_mov_b64 exec, {hex(0xfe) if aw else hex(0x1fe0)}
        buffer_atomic_umax v8, v9, {sr(sDBG,4)}, 0 offen offset:{0 if aw else 12} sc1
        s_mov_b64 exec, -1
        {l}:""")

a(f"""s_cmp_ge_u32 s2, 256
s_cbranch_scc1 L_exit
s_load_dwordx16 s[4:19], s[0:1], 0
s_load_dwordx8 s[20:27], s[0:1], 64
s_load_dwordx2 s[28:29], s[0:1], 96
v_lshrrev_b32 v1, 6, v0
v_and_b32 v0, 63, v0
v_readfirstlane_b32 s{sW}, v1
s_and_b32 s{t0}, s2, 7
s_lshr_b32 s{t1}, s2, 3
s_lshr_b32 s{t2}, s{t0}, 1
s_lshl_b32 s{t2}, s{t2}, 3
s_lshr_b32 s{t3}, s{t1}, 2
s_add_u32 s{sRB}, s{t2}, s{t3}
s_and_b32 s{t2}, s{t0}, 1
s_lshl_b32 s{t2}, s{t2}, 2
s_and_b32 s{t3}, s{t1}, 3
s_add_u32 s{sHG}, s{t2}, s{t3}
s_lshl_b32 s{sL}, s{sRB}, 3
s_add_u32 s{sL}, s{sL}, s{sHG}
s_lshl_b32 s{sFL}, s{sL}, 7
s_add_u32 s{sFL}, s{sFL}, {WS_F}
s_mov_b32 s{sBUD}, 400000
s_mov_b32 s{sL2E}, {hex(LOG2E)}
s_mov_b32 s{sL2E+1}, {hex(LOG2E)}
s_and_b32 s{sS}, s{sW}, 3
s_lshr_b32 s{sI}, s{sS}, 1
s_and_b32 s{sP}, s{sS}, 1
v_lshlrev_b32 v10, 4, v0
s_waitcnt lgkmcnt(0)""")
srd(sX, pX, 0x200000)
a(f"s_bitcmp1_b32 s{sHG}, 2\ns_cselect_b32 s{sWKV}, s{pWV}, s{pWK}\ns_cselect_b32 s{sWKV+1}, s{pWV+1}, s{pWK+1}\ns_mov_b32 s{sWKV+2}, 0x4000\ns_mov_b32 s{sWKV+3}, 0x20000")
a(f"s_and_b32 s{t5}, s{sHG}, 3")
a(f"s_cmp_lg_u32 s{sW}, 4\ns_cbranch_scc1 L_nojobdma")
a(f"""s_mul_i32 s{t0}, s{t5}, {16*XS}
s_lshl_b32 s{t1}, s{sRB}, 16
s_lshl_b32 s{t2}, s{t5}, 14
s_add_u32 s{t1}, s{t1}, s{t2}""")
for r in range(16):
    a(f"s_add_u32 m0, s{t0}, {X + (r//4)*4*XS + (r%4)*16}")
    if r % 4 == 0 and r: a(f"s_add_u32 s{t1}, s{t1}, 4096")
    a(f"buffer_load_dwordx4 v10, {sr(sX,4)}, s{t1} offen offset:{(r%4)*1024} lds")
for n in range(16):
    if n % 4 == 0: a(f"s_mov_b32 m0, {WKV + n*1024}\ns_mov_b32 s{t1}, {n*1024}")
    a(f"buffer_load_dwordx4 v10, {sr(sWKV,4)}, s{t1} offen offset:{(n%4)*1024} lds")
NT0 = 0
if TOUCH & 1:
    srd(sWQ, pWQ, 0x80000)
    a(f"""s_and_b32 s{t0}, s{sRB}, 7
    s_lshl_b32 s{t0}, s{t0}, 16
    s_lshl_b32 s{t1}, s{sHG}, 7
    s_add_u32 s{t0}, s{t0}, s{t1}
    v_lshlrev_b32 v11, 10, v0
    buffer_load_dword v{250}, v11, {sr(sWQ,4)}, s{t0} offen""")
    NT0 += 1
if TOUCH & 2:
    a(f"""s_getpc_b64 s[{sSM}:{sSM+1}]
    s_mov_b32 s{sSM+2}, CODE_END - .
    s_mov_b32 s{sSM+3}, 0x20000
    s_lshl_b32 s{t0}, s{t5}, 13
    v_lshlrev_b32 v11, 7, v0
    buffer_load_dword v{251}, v11, {sr(sSM,4)}, s{t0} offen""")
    NT0 += 1
a("L_nojobdma:")
srd(sWQ, pWQ, 0x80000); srd(sWB, pWQKV, 0x180000); srd(sWOA, pWOA, 0x80000); srd(sWOB, pWOB, 0x80000)
srd(sWS, pWS, WS_SIZE); srd(sOUT, pOUT, 0x200000); srd(sDBG, pDBG, 256)
a(f"""v_lshrrev_b32 v11, 3, v0
v_and_b32 v12, 7, v0
v_lshrrev_b32 v13, 2, v0
v_and_b32 v13, 4, v13
v_xor_b32 v12, v12, v13
v_lshlrev_b32 v12, 4, v12
v_lshl_add_u32 v9, v11, 10, v12
v_mul_u32_u24 v8, 3072, v11
v_add_u32 v8, v8, v12""")
a(f"""v_and_b32 v11, 31, v0
s_lshl_b32 s{t0}, s{sI}, 5
v_add_u32 v11, s{t0}, v11
v_mul_u32_u24 v4, {XS}, v11
v_lshrrev_b32 v12, 5, v0
v_lshl_add_u32 v4, v12, 4, v4
v_and_b32 v13, 15, v0
v_lshrrev_b32 v14, 2, v13
v_lshlrev_b32 v14, 7, v14
v_lshrrev_b32 v15, 3, v13
v_xor_b32 v15, s{sP}, v15
v_lshl_add_u32 v14, v15, 6, v14
v_bfe_u32 v15, v0, 4, 1
v_lshl_add_u32 v14, v15, 5, v14
v_and_b32 v15, 3, v0
v_lshl_add_u32 v14, v15, 3, v14
v_lshl_add_u32 v5, v12, 10, v14
v_lshl_add_u32 v6, v12, 9, v14""")
a(f"s_cmp_ge_u32 s{sW}, 4\ns_cbranch_scc1 L_sw")

def xrest(slot_sgpr):
    a(f"""s_add_u32 s{t0}, s{t5}, 1
    s_lshl_b32 s{t0}, s{t0}, 1
    s_add_u32 s{t0}, s{t0}, s{slot_sgpr}
    s_and_b32 s{t0}, s{t0}, 7
    s_lshl_b32 s{t1}, s{sRB}, 16
    s_lshl_b32 s{t2}, s{t0}, 13
    s_add_u32 s{t1}, s{t1}, s{t2}
    s_mul_i32 s{t0}, s{t0}, {8*XS}""")
    for r in range(8):
        a(f"s_add_u32 m0, s{t0}, {X + (r//4)*4*XS + (r%4)*16}")
        if r == 4: a(f"s_add_u32 s{t1}, s{t1}, 4096")
        a(f"buffer_load_dwordx4 v10, {sr(sX,4)}, s{t1} offen offset:{(r%4)*1024} lds")

S0, S1, O_, QR, KR, VR = 12, 28, 44, 60, 64, 128
vIDX, vZ, vQA, vPA, vLA, vCA, vCV = 1, 2, 4, 5, 6, 7, 8
stamp(0)
a("s_setprio 1")
a(f"s_mov_b32 s{t0}, 0x3f803f80\ns_mov_b32 s{t1}, 0x3f803f80")
assert t0 % 2 == 1
a(f"s_mov_b32 s{t2}, 0x3f803f80")
if ZROWS:
    a(f"""v_and_b32 v12, 27, v0
    v_cmp_eq_u32 vcc, 16, v12
    v_mov_b32 v13, s{t1}
    v_cndmask_b32 v12, 0, v13, vcc
    v_mov_b32 v13, v12""")
    for r in range(VR, 256, 2): a(f"v_mov_b64 v[{r}:{r+1}], v[12:13]")
else:
    for r in range(VR, 256, 2): a(f"v_mov_b64 v[{r}:{r+1}], s[{t1}:{t2}]")
a("s_barrier")
xrest(sW)
a(f"s_lshl_b32 s{t0}, s{sW}, 10\ns_add_u32 s{t0}, s{t0}, {WQ}\ns_lshl_b32 s{t1}, s{sW}, 13\ns_lshl_b32 s{t2}, s{sHG}, 7\ns_add_u32 s{t1}, s{t1}, s{t2}")
for c in range(16):
    a(f"s_add_u32 m0, s{t0}, {c*4096}")
    if c: a(f"s_add_u32 s{t1}, s{t1}, 32768")
    a(f"buffer_load_dwordx4 v9, {sr(sWQ,4)}, s{t1} offen lds")
NT1 = 0
if TOUCH & 4:
    NT1 = 1
    a(f"""s_lshl_b32 s{t1}, s{sHG}, 7
    v_and_b32 v11, 15, v0
    s_cmp_ge_u32 s{sW}, 2
    s_cbranch_scc1 L_tw_o
    s_mul_i32 s{t0}, s{sRB}, {16*3072}
    s_add_u32 s{t0}, s{t0}, s{t1}
    s_lshl_b32 s{t1}, s{sW}, 11
    s_add_u32 s{t0}, s{t0}, s{t1}
    v_mul_u32_u24 v11, 3072, v11
    v_bfe_u32 v12, v0, 4, 1
    v_lshl_add_u32 v11, v12, 10, v11
    s_cmp_eq_u32 s{sW}, 0
    s_cselect_b32 exec_lo, -1, 0xffff
    s_mov_b32 exec_hi, 0
    buffer_load_dword v8, v11, {sr(sWB,4)}, s{t0} offen
    s_branch L_tw_e
    L_tw_o:
    s_lshl_b32 s{t0}, s{sRB}, 14
    s_add_u32 s{t0}, s{t0}, s{t1}
    v_lshlrev_b32 v11, 10, v11
    s_mov_b64 exec, 0xffff
    s_cmp_eq_u32 s{sW}, 2
    s_cbranch_scc1 L_tw_a
    buffer_load_dword v8, v11, {sr(sWOB,4)}, s{t0} offen
    s_branch L_tw_e
    L_tw_a:
    buffer_load_dword v8, v11, {sr(sWOA,4)}, s{t0} offen
    L_tw_e:
    s_mov_b64 exec, -1""")
if TOUCH & 8:
    NT1 = 2
    a(f"""s_lshl_b32 s{t1}, s{sHG}, 7
    s_cmp_eq_u32 s{sW}, 3
    s_cbranch_scc1 L_tw_o
    s_and_b32 s{t0}, s{sRB}, 7
    s_mul_i32 s{t0}, s{t0}, {64*3072}
    s_add_u32 s{t0}, s{t0}, s{t1}
    s_lshl_b32 s{t1}, s{sW}, 10
    s_add_u32 s{t0}, s{t0}, s{t1}
    v_mul_u32_u24 v11, 3072, v0
    buffer_load_dword v8, v11, {sr(sWB,4)}, s{t0} offen
    s_mov_b64 exec, 1
    buffer_load_dword v8, v11, {sr(sWB,4)}, s{t0} offen
    s_branch L_tw_e
    L_tw_o:
    s_lshl_b32 s{t0}, s{sRB}, 14
    s_add_u32 s{t0}, s{t0}, s{t1}
    v_lshlrev_b32 v11, 10, v0
    s_mov_b64 exec, 0xffff
    buffer_load_dword v8, v11, {sr(sWOB,4)}, s{t0} offen
    buffer_load_dword v8, v11, {sr(sWOA,4)}, s{t0} offen
    L_tw_e:
    s_mov_b64 exec, -1""")
a(f"v_add_u32 v5, {WQ}, v5")
def qreads(ks):
    b = KR + 8 * (ks % 8)
    a(f"ds_read_b128 {vr(b,4)}, v4 offset:{ks*32}")
    a(f"ds_read_b64_tr_b16 {vr(b+4,2)}, v5 offset:{ks*2048}")
    a(f"ds_read_b64_tr_b16 {vr(b+6,2)}, v5 offset:{ks*2048+512}")
for (k0, k1, vm) in ((0, 12, 10), (12, 24, 4), (24, 32, 0)):
    a(f"s_waitcnt vmcnt({vm + NT1})\ns_barrier")
    if k0 == 0: stamp(1)
    if k0 == 24: stamp(2)
    for ks in range(k0, k0 + 4): qreads(ks)
    for ks in range(k0, k1):
        left = min(k1 - 1, ks + 3) - ks
        a(f"s_waitcnt lgkmcnt({3*left})")
        b = KR + 8 * (ks % 8)
        a(f"v_mfma_f32_32x32x16_bf16 {vr(O_,16)}, {vr(b+4,4)}, {vr(b,4)}, {'0' if ks == 0 else vr(O_,16)}")
        if ks + 4 < k1: qreads(ks + 4)
a(f"s_mov_b32 s{t1}, {hex(QSCALE)}\ns_mov_b32 s{t2}, {hex(QSCALE)}")
a(f"s_lshl_b32 s{t0}, s{sW}, 11\ns_add_u32 s{t0}, s{t0}, {Q}\nv_add_u32 v11, s{t0}, v10")
for r in range(0, 16, 2): a(f"v_pk_mul_f32 {vr(O_+r,2)}, {vr(O_+r,2)}, s[{t1}:{t2}]")
for r in range(8): a(f"v_cvt_pk_bf16_f32 v{S0+r}, v{O_+2*r}, v{O_+2*r+1}")
a(f"ds_write_b128 v11, {vr(S0,4)}\nds_write_b128 v11, {vr(S0+4,4)} offset:1024")
a(f"v_mov_b32 v11, {NONCE}\nds_read_b32 v11, v11")
a("s_waitcnt lgkmcnt(0)\ns_barrier")
stamp(3)
a(f"""v_readfirstlane_b32 s{sNON}, v11
v_add_u32 v{vQA}, {Q}, v10
ds_read_b128 {vr(QR,4)}, v{vQA}
s_lshl_b32 s{t0}, s{sW}, 13
s_add_u32 s{t0}, s{t0}, {WS_F}
v_lshlrev_b32 v11, 7, v0
v_add_u32 v11, s{t0}, v11
s_lshl_b32 s{t0}, s{sW}, 11
s_add_u32 s{t0}, s{t0}, {OP}
v_add_u32 v{vPA}, s{t0}, v10
s_lshl_b32 s{t0}, s{sW}, 8
s_add_u32 s{t0}, s{t0}, {LT}
v_and_b32 v{vLA}, 31, v0
v_lshl_add_u32 v{vLA}, v{vLA}, 2, s{t0}
v_mov_b32 v{vCA}, {CONS}
v_mov_b32 v{vIDX}, 0xdddd
v_mov_b32 v{vZ}, 0
v_mov_b32 v{vZ+1}, 0
v_lshrrev_b32 v9, 5, v0
v_and_b32 v{S1}, 15, v0
v_lshlrev_b32 v{S1}, 4, v{S1}
v_lshl_add_u32 v9, v9, 8, v{S1}
v_add_u32 v9, {WS_V}, v9""")
poll_flags(11, 8, F_KV * 4)
stamp(4)
a(f"s_lshl_b32 s{t0}, s{sW}, 14\ns_mov_b32 s{t1}, 0xffff\ns_mov_b32 s{t2}, 0xffff")
def kvload(t):
    if t % 4 == 0 and t: a(f"s_add_u32 s{t0}, s{t0}, 4096")
    a(f"buffer_load_dwordx4 {vr(KR+4*t,4)}, v10, {sr(sWS,4)}, s{t0} offen offset:{(t%4)*1024} sc1")
    a(f"s_mov_b64 exec, s[{t1}:{t2}]")
    a(f"buffer_load_dwordx4 {vr(VR+8*t,4)}, v9, {sr(sWS,4)}, s{t0} offen offset:{(t%4)*1024} sc1")
    a(f"buffer_load_dwordx4 {vr(VR+8*t+4,4)}, v9, {sr(sWS,4)}, s{t0} offen offset:{(t%4)*1024+512} sc1")
    a("s_mov_b64 exec, -1")
for t in range(PRE): kvload(t)
def zero_o(): a(f"v_mfma_f32_32x32x8_bf16 {vr(O_,16)}, {vr(vZ,2)}, {vr(vZ,2)}, 0")
def qk(t, S): a(f"v_mfma_f32_32x32x16_bf16 {vr(S,16)}, {vr(KR+4*t,4)}, {vr(QR,4)}, 0")
def pv(t, s, S): a(f"v_smfmac_f32_32x32x32_bf16 {vr(O_,16)}, {vr(VR+8*t+4*s,4)}, {vr(S+8*s,8)}, v{vIDX}")
def flush():
    lp, dn = a.lab("cw"), a.lab("cwd")
    a(f"""v_cmp_eq_u32 vcc, 0, v{vCV}
    s_cbranch_vccz {dn}
    {lp}:
    ds_read_b32 v{vCV}, v{vCA}
    s_waitcnt lgkmcnt(0)
    v_cmp_eq_u32 vcc, 0, v{vCV}
    s_cbranch_vccz {dn}""")
    budget_retry(lp, dn, 1)
    a(f"""{dn}:
    ds_write_b128 v{vPA}, {vr(O_,4)}
    ds_write_b128 v{vPA}, {vr(O_+4,4)} offset:1024
    ds_write2_b32 v{vLA}, v{O_+8}, v{vQA} offset0:0 offset1:32""")
def apass(first):
    for t in range(16):
        S, Sn = (S0, S1) if t % 2 == 0 else (S1, S0)
        for e in range(16):
            if e == 2 and not (first and t == 0): pv((t - 1) % 16, 1, Sn)
            if e == 5:
                if first and t < 15: a(f"s_waitcnt vmcnt({2 + 3*(min(t + PRE - 1, 15) - (t + 1))})")
                if t == 15: a("s_waitcnt lgkmcnt(0)" if not first else "s_waitcnt vmcnt(0) lgkmcnt(0)")
                qk((t + 1) % 16, Sn)
                if t == 14:
                    a(f"v_add_u32 v{vQA}, 1024, v{vQA}\nds_read_b128 {vr(QR,4)}, v{vQA}\nds_read_b32 v{vCV}, v{vCA}")
            if e == 8 and first and t + PRE < 16: kvload(t + PRE)
            if e == 13 and t == 0 and not first:
                flush(); zero_o()
            if e == 15: pv(t, 0, S)
            a(f"v_exp_f32 v{S+e}, v{S+e}")
        if t == 0 and not first:
            a(f"""s_add_u32 s{sJ}, s{sJ}, 1
            s_cmp_eq_u32 s{sJ}, 4
            s_cselect_b32 s{t0}, -3, 1
            v_lshl_add_u32 v{vPA}, s{t0}, 13, v{vPA}
            v_lshl_add_u32 v{vLA}, s{t0}, 10, v{vLA}
            v_add_u32 v{vCA}, 4, v{vCA}""")
zero_o()
a(f"s_mov_b32 s{sJ}, 0\ns_waitcnt vmcnt({3*PRE-1}) lgkmcnt(0)")
qk(0, S0)
stamp(5)
apass(True)
stamp(6)
if DIAG: a("s_memtime s[96:97]")
a(".p2align 6\nL_aloop:")
apass(False)
if DIAG:
    for n in range(1, 6):
        l = a.lab("st")
        a(f"s_cmp_lg_u32 s{sJ}, {n}\ns_cbranch_scc1 {l}"); stamp(7 + n); a(f"{l}:")
a(f"s_cmp_lt_u32 s{sJ}, 7\ns_cbranch_scc1 L_aloop")
pv(15, 1, S1)
a("s_nop 9")
flush()
stamp(7)
if DIAG: a("s_memtime s[98:99]\ns_waitcnt lgkmcnt(0)\ns_sub_u32 s30, s98, s96")
diag_dump(8)
a("s_endpgm")

a("L_sw:")
stamp(0)
vONE, vSWB, vT = 1, 2, 3
vXA, vWA, vWO, vWOA, vD3, vD1, vL16, vGI, vGO = 4, 5, 6, 7, 8, 9, 10, 11, 12
WPH, PHQ, ACC, AC2, WB0, TMP = 16, 24, 40, 56, 72, 104
a(f"""s_setprio 2
v_mov_b32 v{vONE}, 1
v_mov_b32 v{vSWB}, {SWBC}
v_add_u32 v{vWOA}, {X}, v6
v_add_u32 v{vWA}, {RING}, v5
v_add_u32 v{vWO}, {RING}, v6""")
epoch = [0]
def arrive():
    epoch[0] += 1
    a(f"s_mov_b64 exec, 1\nds_add_u32 v{vSWB}, v{vONE}\ns_mov_b64 exec, -1")
def check(lowprio):
    lp, dn = a.lab("sb"), a.lab("sbd")
    a(f"{lp}:\nds_read_b32 v{vT}, v{vSWB}")
    if lowprio: a("s_setprio 2")
    a(f"s_waitcnt lgkmcnt(0)\nv_readfirstlane_b32 s{t0}, v{vT}")
    if lowprio: a("s_setprio 0")
    a(f"s_cmp_ge_u32 s{t0}, {4*epoch[0]}\ns_cbranch_scc1 {dn}")
    budget_retry(lp, dn, 0)
    a(f"{dn}:")

a(f"s_cmp_lg_u32 s{sS}, 3\ns_cbranch_scc1 L_sw_not3")
a(f"s_cmp_lg_u32 s2, 0\ns_cbranch_scc1 L_sw_nononce")
a(f"""s_memrealtime s[{t1}:{t2}]
v_mov_b32 v13, 0
s_waitcnt lgkmcnt(0)
s_or_b32 s{t1}, s{t1}, 1
v_mov_b32 v14, s{t1}
s_mov_b64 exec, 1
buffer_store_dword v14, v13, {sr(sDBG,4)}, 0 offen sc1
s_mov_b64 exec, -1""")
a("L_sw_nononce:")
a(f"""v_mov_b32 v20, 0
v_mov_b32 v21, 0
v_mov_b32 v22, 0
v_mov_b32 v23, 0
v_add_u32 v13, {LT}, v{vL16}""")
for n in range(4): a(f"ds_write_b128 v13, v[20:23] offset:{n*1024}")
a(f"""v_lshlrev_b32 v13, 2, v0
v_add_u32 v13, {NONCE}, v13
v_cmp_gt_u32 vcc, 12, v0
v_cndmask_b32 v14, 0, v{vONE}, vcc
v_cmp_le_u32 vcc, 8, v0
v_cndmask_b32 v14, 0, v14, vcc
ds_write_b32 v13, v14""")
assert CONS == NONCE + 32
a("s_waitcnt lgkmcnt(0)")
a("L_sw_not3:")
if DIAG:
    pass
a("s_barrier")
a(f"s_cmp_eq_u32 s{sS}, 0\ns_cbranch_scc1 L_sw_job")
a(f"s_cmp_eq_u32 s{sS}, 3\ns_cbranch_scc1 L_sw_small")
a(f"s_add_u32 s{t3}, s{sS}, 3")
xrest(t3)
a("s_branch L_sw_h2")
a("L_sw_small:")
srd(sSM, pGATE, 1024)
a(f"s_mov_b32 m0, {GATE}\ns_nop 0\nbuffer_load_dwordx4 v{vL16}, {sr(sSM,4)}, 0 offen lds")
srd(sSM, pWPHI, 16384)
a(f"s_lshl_b32 s{t0}, s{sHG}, 11\ns_mov_b32 m0, {WPHI}\ns_nop 0")
a(f"buffer_load_dwordx4 v{vL16}, {sr(sSM,4)}, s{t0} offen lds\nbuffer_load_dwordx4 v{vL16}, {sr(sSM,4)}, s{t0} offen offset:1024 lds")
a("s_branch L_sw_h2")
a("L_sw_job:")
JX, JW = TMP, TMP + 64
a(f"""v_and_b32 v13, 15, v0
v_lshrrev_b32 v14, 4, v0
s_lshl_b32 s{t0}, s{t5}, 4
v_add_u32 v15, s{t0}, v13
v_mul_u32_u24 v15, {XS}, v15
v_lshl_add_u32 v15, v14, 4, v15
v_lshlrev_b32 v16, 3, v13
v_lshl_add_u32 v16, v14, 8, v16
v_add_u32 v16, {WKV}, v16""")
a(f"s_bitcmp1_b32 s{sHG}, 2\ns_cbranch_scc1 L_job_v")
def job(isv):
    if not isv:
        a(f"""v_and_b32 v17, 1, v14
        v_lshlrev_b32 v17, 9, v17
        v_lshl_add_u32 v17, v13, 4, v17
        v_lshrrev_b32 v18, 1, v14
        v_lshl_add_u32 v17, v18, 3, v17
        s_lshr_b32 s{t0}, s{t5}, 1
        s_lshl_b32 s{t1}, s{sRB}, 1
        s_add_u32 s{t0}, s{t0}, s{t1}
        s_lshl_b32 s{t0}, s{t0}, 10
        s_and_b32 s{t1}, s{t5}, 1
        s_lshl_b32 s{t1}, s{t1}, 8
        s_add_u32 s{t4}, s{t0}, s{t1}""")
    else:
        a(f"""v_lshrrev_b32 v17, 1, v14
        v_lshlrev_b32 v17, 8, v17
        v_lshl_add_u32 v17, v13, 4, v17
        v_and_b32 v18, 1, v14
        v_lshl_add_u32 v17, v18, 3, v17
        s_lshl_b32 s{t0}, s{sRB}, 2
        s_add_u32 s{t0}, s{t0}, s{t5}
        s_lshl_b32 s{t0}, s{t0}, 9
        s_add_u32 s{t4}, s{t0}, {WS_V}""")
    def grp(gq):
        a(f"s_waitcnt vmcnt({12 - 4*gq + NT0})")
        for n in range(4 * gq, 4 * gq + 4):
            a(f"ds_read_b128 {vr(JX+4*n,4)}, v15 offset:{n*64}")
            a(f"ds_read_b64_tr_b16 {vr(JW+4*n,2)}, v16 offset:{n*1024}")
            a(f"ds_read_b64_tr_b16 {vr(JW+4*n+2,2)}, v16 offset:{n*1024+128}")
    def mm(gq):
        for n in range(4 * gq, 4 * gq + 4):
            A, B = (JX, JW) if isv else (JW, JX)
            a(f"v_mfma_f32_16x16x32_bf16 {vr(ACC,4)}, {vr(A+4*n,4)}, {vr(B+4*n,4)}, {'0' if n == 0 else vr(ACC,4)}")
    grp(0)
    for gq in range(4):
        if gq < 3: grp(gq + 1); a("s_waitcnt lgkmcnt(12)")
        else: a("s_waitcnt lgkmcnt(0)")
        mm(gq)
job(False)
a("s_branch L_job_st\nL_job_v:")
job(True)
a("L_job_st:")
lp, dn = a.lab("np"), a.lab("npd")
a(f"""v_cvt_pk_bf16_f32 v18, v{ACC}, v{ACC+1}
v_cvt_pk_bf16_f32 v19, v{ACC+2}, v{ACC+3}
v_mov_b32 v13, 0
buffer_store_dwordx2 v[18:19], v17, {sr(sWS,4)}, s{t4} offen sc1""")
stamp(1)
a(f"""{lp}:
buffer_load_dword v14, v13, {sr(sDBG,4)}, 0 offen sc1
s_waitcnt vmcnt(0)
v_readfirstlane_b32 s{sNON}, v14
s_cmp_lg_u32 s{sNON}, 0
s_cbranch_scc1 {dn}""")
budget_retry(lp, dn, 1)
a(f"{dn}:")
set_flag(F_KV, 13, 15)
a(f"v_mov_b32 v13, {NONCE}\nds_write_b32 v13, v14\ns_waitcnt lgkmcnt(0)")
stamp(2)
a("s_branch L_sw_h2b")
a("L_sw_h2:\ns_waitcnt vmcnt(0)\nL_sw_h2b:\ns_barrier")
GF = TMP
a(f"""v_lshrrev_b32 v14, 4, v0
v_lshlrev_b32 v13, 4, v14
v_add_u32 v13, {GATE}, v13""")
for n in range(16): a(f"ds_read_b128 {vr(GF+4*n,4)}, v13 offset:{n*64}")
a(f"""v_and_b32 v13, 15, v0
v_lshlrev_b32 v13, 3, v13
v_lshrrev_b32 v14, 5, v0
v_lshl_add_u32 v13, v14, 7, v13
s_lshl_b32 s{t0}, s{sP}, 10
s_add_u32 s{t0}, s{t0}, {WPHI}
v_add_u32 v13, s{t0}, v13
s_waitcnt lgkmcnt(8)""")
for hh in range(2):
    a(f"ds_read_b64_tr_b16 {vr(WPH+4*hh,2)}, v13 offset:{hh*512}")
    a(f"ds_read_b64_tr_b16 {vr(WPH+4*hh+2,2)}, v13 offset:{hh*512+256}")
a(f"""v_mov_b32 v14, {NONCE}
ds_read_b32 v14, v14
v_bfe_u32 v13, v0, 4, 1
v_mul_u32_u24 v15, 0x8000, v13
v_lshl_add_u32 v15, v13, 31, v15
s_waitcnt lgkmcnt(0)
v_readfirstlane_b32 s{sNON}, v14""")
for r in range(8): a(f"v_xor_b32 v{WPH+r}, v15, v{WPH+r}")
a("s_barrier\ns_barrier\ns_barrier")
stamp(3)

def dma_stage(c):
    buf = RING + (c % 3) * 16384
    if c < 8:   srdw, vo, base, step = sWB, vD3, c * 64 * 3072, 8 * 3072
    elif c < 12: srdw, vo, base, step = sWB, vD3, (c - 8) * 128 * 3072, 8 * 3072
    else:       srdw, vo, base, step = sWOB, vD1, (c - 12) * 128 * 1024, 8 * 1024
    for n in range(4):
        a(f"s_add_u32 m0, s{sD0}, {buf + n*1024}\ns_add_u32 s{t1}, s{sD1}, {base + n*step}")
        a(f"buffer_load_dwordx4 v{vo}, {sr(srdw,4)}, s{t1} offen lds")
def dma_base(kind):
    a(f"s_lshl_b32 s{t1}, s{sHG}, 7")
    if kind == "kv":
        a(f"s_mul_i32 s{sD1}, s{sP}, {32*3072}\ns_add_u32 s{sD1}, s{sD1}, s{t1}\ns_lshl_b32 s{t1}, s{sI}, 10\ns_add_u32 s{sD1}, s{sD1}, s{t1}\ns_add_u32 s{sD1}, s{sD1}, 1024")
    elif kind == "q":
        a(f"s_mul_i32 s{sD1}, s{sS}, {32*3072}\ns_add_u32 s{sD1}, s{sD1}, s{t1}")
    else:
        a(f"s_lshl_b32 s{sD1}, s{sS}, 15\ns_add_u32 s{sD1}, s{sD1}, s{t1}")
if NOB:
    a(f"s_mov_b32 s{sJ}, s{sS}\ns_call_b64 s[{sRET}:{sRET+1}], L_fin")
    stamp(4)
    a(f"s_add_u32 s{sJ}, s{sS}, 4\ns_call_b64 s[{sRET}:{sRET+1}], L_fin")
    stamp(5)
    diag_dump(13)
    a("s_endpgm")
a(f"s_lshl_b32 s{sD0}, s{sS}, 12")
dma_base("kv")
for c in range(3): dma_stage(c)
GX = TMP + 64
a(f"""v_and_b32 v13, 15, v0
v_lshrrev_b32 v14, 4, v0
s_lshl_b32 s{t0}, s{sS}, 4
v_add_u32 v13, s{t0}, v13
v_mul_u32_u24 v15, {XS}, v13
v_lshl_add_u32 v15, v14, 4, v15""")
for n in range(16): a(f"ds_read_b128 {vr(GX+4*n,4)}, v15 offset:{n*64}")
for n in range(16):
    if n % 4 == 0: a(f"s_waitcnt lgkmcnt({12 - n})")
    a(f"v_mfma_f32_16x16x32_bf16 {vr(ACC,4)}, {vr(GF+4*n,4)}, {vr(GX+4*n,4)}, {'0' if n == 0 else vr(ACC,4)}")
a(f"""v_lshlrev_b32 v13, 2, v13
v_add_u32 v13, {G}, v13
v_mul_f32 v14, {hex(LOG2E | 0x80000000)}, v{ACC}
v_exp_f32 v14, v14
v_add_f32 v14, 1.0, v14
v_rcp_f32 v14, v14
ds_write_b32 v13, v14""")

def windows(pairs, fill):
    for n, pr in enumerate(pairs):
        for m in pr: a(m)
        if n < len(fill): fill[n]()

FA = [TMP, TMP + 64]
def rd_x(c, ks0, nks):
    for k in range(nks): a(f"ds_read_b128 {vr(FA[c%2]+4*k,4)}, v{vXA} offset:{(ks0+k)*32}")
def rd_w(dst, vaddr, off, second):
    a(f"ds_read_b64_tr_b16 {vr(dst,2)}, v{vaddr} offset:{off}\nds_read_b64_tr_b16 {vr(dst+2,2)}, v{vaddr} offset:{off+second}")
def rd_stage_w(c, lo, hi):
    for k in range(lo, hi): rd_w(FA[c % 2] + 32 + 4 * k, vWA, (c % 3) * 16384 + k * 2048, 512)

a("s_waitcnt vmcnt(8)")
arrive(); check(False)
a(f"""v_and_b32 v13, 31, v0
v_lshlrev_b32 v13, 2, v13
s_lshl_b32 s{t0}, s{sI}, 7
s_add_u32 s{t1}, s{t0}, {G}
v_add_u32 v14, s{t1}, v13
s_xor_b32 s{t0}, s{t0}, 128
s_add_u32 s{t1}, s{t0}, {G}
v_add_u32 v13, s{t1}, v13
ds_read_b32 v{vGI}, v14
ds_read_b32 v{vGO}, v13""")
rd_x(0, 0, 4); rd_stage_w(0, 0, 8)
stamp(4)
a("s_setprio 0")
for c in range(8):
    a("s_waitcnt lgkmcnt(0)")
    f = FA[c % 2]
    pairs = []
    for k in range(4):
        first = (c == 0 and k == 0)
        pairs.append([f"v_mfma_f32_32x32x16_bf16 {vr(ACC,16)}, {vr(f+32+4*k,4)}, {vr(f+4*k,4)}, {'0' if first else vr(ACC,16)}",
                      f"v_mfma_f32_32x32x16_bf16 {vr(AC2,16)}, {vr(f+4*k,4)}, {vr(f+48+4*k,4)}, {'0' if first else vr(AC2,16)}"])
    def g0():
        a(f"s_waitcnt vmcnt({4 if c < 7 else 0})"); arrive()
        if c < 7: rd_x(c + 1, 4 * (c + 1), 4)
    def g1():
        if c < 7:
            check(True)
            rd_stage_w(c + 1, 0, 3)
    def g2():
        if c < 7: rd_stage_w(c + 1, 3, 8)
    def g3():
        if c == 5: dma_base("q")
        if c < 6: dma_stage(c + 3)
    windows(pairs, [g0, g1, g2, g3])
a("s_setprio 2")
stamp(5)

def features(B, W, out, D, tm):
    m1, m2 = tm, tm + 1
    a(f"v_mfma_f32_32x32x16_bf16 {vr(D,16)}, {vr(W,4)}, {vr(B,4)}, 0")
    for (m, b) in ((m1, D), (m2, D + 8)):
        a(f"v_max3_f32 v{m}, v{b}, v{b+1}, v{b+2}\nv_max3_f32 v{m}, v{m}, v{b+3}, v{b+4}\nv_max3_f32 v{m}, v{m}, v{b+5}, v{b+6}\nv_max_f32 v{m}, v{m}, v{b+7}")
    a(f"""v_permlane32_swap_b32 v{m1}, v{m2}
    v_max_f32 v{m1}, v{m1}, v{m2}
    v_mul_f32 v{m1}, {hex(LOG2E | 0x80000000)}, v{m1}
    v_mov_b32 v{m2}, v{m1}
    v_permlane32_swap_b32 v{m1}, v{m2}""")
    for r in range(0, 16, 2):
        sel = "op_sel_hi:[1,1,0]" if r < 8 else "op_sel:[0,0,1]"
        a(f"v_pk_fma_f32 {vr(D+r,2)}, {vr(D+r,2)}, s[{sL2E}:{sL2E+1}], {vr(m1,2)} {sel}")
    for r in range(16): a(f"v_exp_f32 v{D+r}, v{D+r}")
    for (m, b) in ((m1, D), (m2, D + 8)):
        a(f"""v_pk_add_f32 {vr(tm+2,2)}, {vr(b,2)}, {vr(b+2,2)}
        v_pk_add_f32 {vr(tm+4,2)}, {vr(b+4,2)}, {vr(b+6,2)}
        v_pk_add_f32 {vr(tm+2,2)}, {vr(tm+2,2)}, {vr(tm+4,2)}
        v_add_f32 v{m}, v{tm+2}, v{tm+3}""")
    a(f"""v_permlane32_swap_b32 v{m1}, v{m2}
    v_add_f32 v{m1}, v{m1}, v{m2}
    v_rcp_f32 v{m1}, v{m1}
    v_mov_b32 v{m2}, v{m1}
    v_permlane32_swap_b32 v{m1}, v{m2}""")
    for r in range(0, 16, 2):
        sel = "op_sel_hi:[1,0]" if r < 8 else "op_sel:[0,1]"
        a(f"v_pk_mul_f32 {vr(D+r,2)}, {vr(D+r,2)}, {vr(m1,2)} {sel}")
    for r in range(8): a(f"v_cvt_pk_bf16_f32 v{out+r}, v{D+2*r}, v{D+2*r+1}")

KB, VB, DD, TM, PH = TMP, TMP + 8, TMP + 16, TMP + 32, TMP + 40
SCP = RING
SCV = RING + 16384
for r in range(8): a(f"v_cvt_pk_bf16_f32 v{KB+r}, v{ACC+2*r}, v{ACC+2*r+1}")
for r in range(8): a(f"v_cvt_pk_bf16_f32 v{VB+r}, v{AC2+2*r}, v{AC2+2*r+1}")
a(f"""v_and_b32 v13, 31, v0
v_bfe_u32 v14, v0, 1, 3
v_lshrrev_b32 v15, 5, v0
v_xor_b32 v14, v14, v15
v_lshlrev_b32 v14, 3, v14
v_lshl_add_u32 v13, v13, 6, v14
s_lshl_b32 s{t0}, s{sI}, 11
s_lshl_b32 s{t1}, s{sP}, 13
s_add_u32 s{t0}, s{t0}, s{t1}
s_add_u32 s{t0}, s{t0}, {SCP}
v_add_u32 v13, s{t0}, v13""")
assert SCP % 64 == 0
for aa in range(1, 4): a(f"v_xor_b32 v{TMP+48+aa}, {16*aa}, v13")
for hh in range(2):
    features(KB + 4 * hh, WPH + 4 * hh, PH, DD, TM)
    for aa in range(4):
        va = 13 if aa == 0 else TMP + 48 + aa
        a(f"ds_write_b64 v{va}, {vr(PH+2*aa,2)} offset:{hh*4096}")
check(False)
a(f"""s_lshl_b32 s{t0}, s{sS}, 11
s_add_u32 s{t0}, s{t0}, {SCV}
v_add_u32 v13, s{t0}, v{vL16}
ds_write_b128 v13, {vr(VB,4)}
ds_write_b128 v13, {vr(VB+4,4)} offset:1024""")
arrive()
KA, KBv, KD = TMP, TMP + 16, TMP + 32
a(f"s_mov_b32 s{t1}, 0x3f803f80\ns_mov_b32 s{t2}, 0x3f803f80")
for r in range(0, 16, 2): a(f"v_mov_b64 {vr(KBv+r,2)}, s[{t1}:{t2}]")
a(f"""s_lshl_b32 s{t3}, s{sP}, 1
s_add_u32 s{t3}, s{t3}, s{sI}
v_and_b32 v13, 15, v0
v_lshrrev_b32 v14, 5, v0
v_lshrrev_b32 v15, 2, v13
v_lshl_add_u32 v15, v14, 2, v15
v_lshrrev_b32 v{TMP+48}, 1, v15
v_bfe_u32 v{TMP+49}, v0, 4, 1
v_lshlrev_b32 v{TMP+49}, 2, v{TMP+49}
v_and_b32 v{TMP+50}, 3, v0
v_add_u32 v{TMP+49}, v{TMP+49}, v{TMP+50}
v_xor_b32 v{TMP+48}, v{TMP+48}, v{TMP+49}
v_lshlrev_b32 v{TMP+48}, 3, v{TMP+48}
v_lshl_add_u32 v15, v15, 6, v{TMP+48}
s_lshl_b32 s{t0}, s{t3}, 12
s_add_u32 s{t0}, s{t0}, {SCP}
v_add_u32 v15, s{t0}, v15
v_xor_b32 v{TMP+48}, 32, v15
v_lshlrev_b32 v13, 4, v13
v_lshl_add_u32 v13, v14, 9, v13
s_lshl_b32 s{t0}, s{sP}, 11
s_lshl_b32 s{t1}, s{sI}, 8
s_add_u32 s{t0}, s{t0}, s{t1}
s_add_u32 s{t0}, s{t0}, {SCV}
v_add_u32 v13, s{t0}, v13""")
check(False)
for u in range(4):
    a(f"ds_read_b64_tr_b16 {vr(KA+4*u,2)}, v15 offset:{u*1024}\nds_read_b64_tr_b16 {vr(KA+4*u+2,2)}, v{TMP+48} offset:{u*1024+512}")
a(f"s_mov_b32 exec_lo, 0xffff\ns_mov_b32 exec_hi, 0xffff")
for u in range(4):
    a(f"ds_read_b128 {vr(KBv+4*u,4)}, v13 offset:{(u//2)*4096 + (u%2)*1024}")
a("s_mov_b64 exec, -1")
arrive()
vLI = 13
a(f"""v_and_b32 v13, 31, v0
v_min_u32 v13, 16, v13
v_mad_u32_u24 v13, v14, 17, v13
v_lshlrev_b32 v14, 3, v13
s_lshl_b32 s{t0}, s{sHG}, 2
s_add_u32 s{t0}, s{t0}, s{t3}
s_lshl_b32 s{t0}, s{t0}, 8
s_add_u32 s{t0}, s{t0}, s{sRB}
s_mul_i32 s{t4}, s{t0}, 272
s_add_u32 s{t4}, s{t4}, {WS_PART}
s_waitcnt lgkmcnt(0)""")
for u in range(4):
    a(f"v_mfma_f32_32x32x16_bf16 {vr(KD,16)}, {vr(KA+4*u,4)}, {vr(KBv+4*u,4)}, {'0' if u == 0 else vr(KD,16)}")
a(f"s_mov_b32 exec_lo, 0x1ffff\ns_mov_b32 exec_hi, 0x1ffff")
for e in range(8):
    a(f"buffer_store_dwordx2 {vr(KD+2*e,2)}, v14, {sr(sWS,4)}, s{t4} offen sc1")
    if e < 7: a(f"s_add_u32 s{t4}, s{t4}, {32*272}")
a("s_mov_b64 exec, -1")
check(False)
dma_stage(9); dma_stage(10)
a(f"s_lshl_b32 s{t3}, s{t3}, 2\ns_add_u32 s{t3}, s{t3}, {4*F_F2}")
a("s_waitcnt vmcnt(8)")
rd_x(8, 0, 8); rd_stage_w(8, 0, 8)
set_flag(f"s{t3}", 14, 15)
stamp(6)
a("s_setprio 0")
for c in range(8, 12):
    a("s_waitcnt lgkmcnt(0)")
    f = FA[c % 2]
    mm = [f"v_mfma_f32_32x32x16_bf16 {vr(AC2,16)}, {vr(f+32+4*k,4)}, {vr(f+4*k,4)}, {'0' if (c == 8 and k == 0) else vr(AC2,16)}" for k in range(8)]
    pairs = [mm[2*k:2*k+2] for k in range(4)]
    def g0():
        a(f"s_waitcnt vmcnt({5 if c == 8 else 4})"); arrive()
        if c < 11: rd_x(c + 1, 8 * (c - 7), 8)
    def g1():
        check(True)
        if c < 11: rd_stage_w(c + 1, 0, 3)
        else:
            for k in range(3): rd_w(WB0 + 4 * k, vWO, k * 2048, 1024)
    def g2():
        if c < 11: rd_stage_w(c + 1, 3, 8)
        else:
            for k in range(3, 8): rd_w(WB0 + 4 * k, vWO, k * 2048, 1024)
            arrive()
    def g3():
        if c == 9: dma_base("o")
        if c < 11: dma_stage(c + 3)
    windows(pairs, [g0, g1, g2, g3])
a("s_setprio 2")
stamp(7)
a(f"s_cmp_lg_u32 s{sS}, 0\ns_cbranch_scc1 L_nored1")
a(f"""s_and_b32 s{t3}, s{sRB}, 3
s_lshl_b32 s{t0}, s{sHG}, 7
s_lshl_b32 s{t1}, s{t3}, 2
s_add_u32 s{t0}, s{t0}, s{t1}
s_add_u32 s{t0}, s{t0}, {WS_F + 4*F_F2}
v_and_b32 v14, 31, v0
v_lshlrev_b32 v14, 10, v14
v_add_u32 v14, s{t0}, v14""")
poll_flags(14, vT)
a(f"""s_lshl_b32 s{t0}, s{sHG}, 2
s_add_u32 s{t3}, s{t0}, s{t3}
s_lshl_b32 s{t0}, s{t3}, 3
s_lshr_b32 s{t2}, s{sRB}, 2
s_add_u32 s{t0}, s{t0}, s{t2}
s_mul_i32 s{t0}, s{t0}, {32*272}
s_add_u32 s{t0}, s{t0}, {WS_PART}
v_lshlrev_b32 v14, 3, v{vLI}
s_mov_b32 exec_lo, 0x1ffff
s_mov_b32 exec_hi, 0x1ffff""")
for n in range(32):
    if n and n % 8 == 0: a(f"s_add_u32 s{t0}, s{t0}, {8*272}")
    a(f"buffer_load_dwordx2 {vr(TMP+2*n,2)}, v14, {sr(sWS,4)}, s{t0} offen offset:{(n%8)*272} sc1")
a(f"""s_mul_i32 s{t0}, s{t3}, {KVF_STRIDE}
s_lshr_b32 s{t1}, s{t2}, 2
s_mul_i32 s{t1}, s{t1}, 544
s_add_u32 s{t0}, s{t0}, s{t1}
s_and_b32 s{t1}, s{t2}, 3
s_lshl_b32 s{t1}, s{t1}, 2
s_add_u32 s{t0}, s{t0}, s{t1}
s_add_u32 s{t0}, s{t0}, {WS_KVF}
v_lshlrev_b32 v14, 4, v{vLI}
s_waitcnt vmcnt(0)""")
st = 16
while st >= 1:
    for n in range(st): a(f"v_pk_add_f32 {vr(TMP+2*n,2)}, {vr(TMP+2*n,2)}, {vr(TMP+2*(n+st),2)}")
    st //= 2
a(f"""v_cvt_pk_bf16_f32 v15, v{TMP}, v{TMP+1}
buffer_store_dword v15, v14, {sr(sWS,4)}, s{t0} offen sc1
s_mov_b64 exec, -1
L_nored1:""")
dma_stage(14)
a(f"s_lshl_b32 s{t2}, s{sS}, 14\ns_lshl_b32 s{t3}, s{sS}, 17\ns_lshl_b32 s{t1}, s{sHG}, 7\ns_add_u32 s{t3}, s{t3}, s{t1}")
for n in range(16):
    a(f"s_add_u32 m0, s{t2}, {X + n*1024}\ns_add_u32 s{t1}, s{t3}, {n*8192}")
    a(f"buffer_load_dwordx4 v{vD1}, {sr(sWOA,4)}, s{t1} offen lds")
a(f"s_cmp_lg_u32 s{sS}, 0\ns_cbranch_scc1 L_nored2\ns_waitcnt vmcnt(20)")
set_flag(F_F3, 14, 15)
a("L_nored2:")
check(False)
dma_stage(15)
for r in range(8): a(f"v_cvt_pk_bf16_f32 v{KB+r}, v{AC2+2*r}, v{AC2+2*r+1}")
for hh in range(2): features(KB + 4 * hh, WPH + 4 * hh, PHQ + 8 * hh, DD, TM)
stamp(8)
def call_fin(): a(f"s_call_b64 s[{sRET}:{sRET+1}], L_fin\ns_nop 1")
a(f"s_cmp_eq_u32 s{sI}, 0\ns_cbranch_scc1 L_nofin0")
a(f"s_mov_b32 s{sJ}, s{sP}"); call_fin()
a(f"s_add_u32 s{sJ}, s{sP}, 2"); call_fin()
a("L_nofin0:")
a("s_waitcnt vmcnt(0)")
arrive()
a(f"""s_lshl_b32 s{t0}, s{sHG}, 7
s_add_u32 s{t0}, s{t0}, {WS_F + 4*F_F3}
v_and_b32 v14, 31, v0
v_lshlrev_b32 v14, 10, v14
v_add_u32 v14, s{t0}, v14""")
poll_flags(14, vT)
a(f"""s_lshl_b32 s{t3}, s{sHG}, 2
s_lshl_b32 s{t1}, s{sP}, 1
s_add_u32 s{t3}, s{t3}, s{t1}
s_mul_i32 s{t0}, s{t3}, {KVF_STRIDE}
s_add_u32 s{t0}, s{t0}, {WS_KVF}
v_lshlrev_b32 v14, 4, v{vLI}""")
for hh in range(2):
    for u in range(2):
        a(f"buffer_load_dwordx4 {vr(TMP+8*hh+4*u,4)}, v14, {sr(sWS,4)}, s{t0} offen offset:{hh*KVF_STRIDE + u*544} sc1")
a(f"""s_lshl_b32 s{sD0}, s{sRB}, 1
s_add_u32 s{sD0}, s{sD0}, s{sI}
s_lshl_b32 s{sD0}, s{sD0}, 16
s_add_u32 s{sD0}, s{sD0}, {WS_O}
s_lshl_b32 s{t3}, s{t3}, 10
s_add_u32 s{t3}, s{t3}, s{sD0}
s_add_u32 s{t3}, s{t3}, 32768
v_sub_f32 v15, 1.0, v{vGI}
s_waitcnt vmcnt(0)""")
for hh in range(2):
    D = TMP + 16 + 16 * hh
    a(f"v_mfma_f32_32x32x16_bf16 {vr(D,16)}, {vr(TMP+8*hh,4)}, {vr(PHQ+8*hh,4)}, 0")
    a(f"v_mfma_f32_32x32x16_bf16 {vr(D,16)}, {vr(TMP+8*hh+4,4)}, {vr(PHQ+8*hh+4,4)}, {vr(D,16)}")
for hh in range(2):
    D = TMP + 16 + 16 * hh
    a(f"v_add_f32 v{D+8}, 0x358637bd, v{D+8}\nv_rcp_f32 v{D+8}, v{D+8}\nv_mul_f32 v{D+8}, v{D+8}, v15")
    for r in range(0, 8, 2): a(f"v_pk_mul_f32 {vr(D+r,2)}, {vr(D+r,2)}, {vr(D+8,2)} op_sel_hi:[1,0]")
    for r in range(4): a(f"v_cvt_pk_bf16_f32 v{D+12+r}, v{D+2*r}, v{D+2*r+1}")
    a(f"buffer_store_dwordx4 {vr(D+12,4)}, v{vL16}, {sr(sWS,4)}, s{t3} offen offset:{hh*1024} sc1")
a(f"s_lshl_b32 s{t3}, s{sS}, 2\ns_add_u32 s{t3}, s{t3}, {4*F_OB}\ns_waitcnt vmcnt(0)")
set_flag(f"s{t3}", 14, 15)
check(False)
stamp(9)
vPF = 13
a(f"""s_lshl_b32 s{t0}, s{sRB}, 10
s_add_u32 s{t0}, s{t0}, {WS_F}
v_and_b32 v{vPF}, 7, v0
v_lshlrev_b32 v{vPF}, 7, v{vPF}
v_add_u32 v{vPF}, s{t0}, v{vPF}""")

OF = [TMP, TMP + 32]; WF = [TMP + 64, TMP + 96]
def proj(batches, first):
    def loads(b):
        last = None
        for k, (ro, _) in enumerate(batches[b]):
            hi, lo = ro & ~4095, ro & 4095
            if hi != last: a(f"s_add_u32 s{t1}, s{sD0}, {hi}"); last = hi
            a(f"buffer_load_dwordx4 {vr(OF[b%2]+4*k,4)}, v{vL16}, {sr(sWS,4)}, s{t1} offen offset:{lo} sc1")
    def wreads(b, lo, hi):
        for k, (_, w) in list(enumerate(batches[b]))[lo:hi]:
            if w[0] == "lds": rd_w(WF[b % 2] + 4 * k, w[1], w[2], 1024)
    loads(0); wreads(0, 0, 8)
    if len(batches) > 1: loads(1)
    a("s_setprio 0")
    for b in range(len(batches)):
        more = b + 1 < len(batches)
        a(f"s_waitcnt vmcnt({8 if more else 0}) lgkmcnt(0)")
        mm = []
        for k, (_, w) in enumerate(batches[b]):
            wr = WF[b % 2] + 4 * k if w[0] == "lds" else w[1]
            mm.append(f"v_mfma_f32_32x32x16_bf16 {vr(ACC,16)}, {vr(wr,4)}, {vr(OF[b%2]+4*k,4)}, {'0' if (first and b == 0 and k == 0) else vr(ACC,16)}")
        fill = []
        if more: fill = [lambda: wreads(b + 1, 0, 4), lambda: wreads(b + 1, 4, 8), lambda: None,
                         (lambda: loads(b + 2)) if b + 2 < len(batches) else (lambda: None)]
        windows([mm[2*k:2*k+2] for k in range(4)], fill)
    a("s_setprio 2")
def bpart(first):
    a(f"""v_bfe_u32 v14, v0, 3, 1
    s_lshl_b32 s{t0}, s{sI}, 3
    v_lshl_add_u32 v14, v14, 2, v{vPF}
    v_add_u32 v14, s{t0}, v14""")
    poll_flags(14, vT, 4 * F_OB)
    bs = []
    for b in range(4):
        bs.append([(32768 + (8*b+k) * 1024, ("reg", WB0 + 4*k) if b == 0 else ("lds", vWO, ((12+b) % 3) * 16384 + k * 2048)) for k in range(8)])
    proj(bs, first)
def store_out():
    a(f"""v_and_b32 v14, 31, v0
    v_lshlrev_b32 v14, 10, v14
    v_lshrrev_b32 v15, 5, v0
    v_lshl_add_u32 v14, v15, 4, v14
    s_lshl_b32 s{t0}, s{sRB}, 16
    s_lshl_b32 s{t1}, s{sI}, 15
    s_add_u32 s{t0}, s{t0}, s{t1}
    s_lshl_b32 s{t1}, s{sHG}, 7
    s_add_u32 s{t0}, s{t0}, s{t1}
    s_lshl_b32 s{t1}, s{sP}, 6
    s_add_u32 s{t0}, s{t0}, s{t1}""")
    for r in range(8): a(f"v_cvt_pk_bf16_f32 v{TMP+r}, v{ACC+2*r}, v{ACC+2*r+1}")
    for kk in range(2):
        b = TMP + 4 * kk
        a(f"v_permlane32_swap_b32 v{b}, v{b+2}\nv_permlane32_swap_b32 v{b+1}, v{b+3}")
        a(f"buffer_store_dwordx4 {vr(b,4)}, v14, {sr(sOUT,4)}, s{t0} offen offset:{kk*32}")

a(f"s_cmp_eq_u32 s{sI}, 1\ns_cbranch_scc1 L_half1")
a(f"v_bfe_u32 v14, v0, 3, 2\nv_lshl_add_u32 v14, v14, 2, v{vPF}")
poll_flags(14, vT, 4 * F_OA)
proj([[((8*b+k) * 1024, ("lds", vWOA, (8*b+k) * 2048)) for k in range(8)] for b in range(4)], True)
stamp(10)
a(f"s_add_u32 s{sJ}, s{sP}, 4"); call_fin()
bpart(False)
store_out()
stamp(11)
a(f"s_add_u32 s{sJ}, s{sP}, 6"); call_fin()
stamp(12)
diag_dump(13)
a("s_endpgm")
a("L_half1:")
bpart(True)
stamp(10)
for j in range(4, 8):
    poll_flags(vPF, vT, 4 * (F_OA + j), nap=1)
    if j == 7: stamp(11)
    proj([[((4*k + j - 4) * 1024, ("lds", vWOA, (4*k + j - 4) * 2048)) for k in range(8)]], False)
store_out()
stamp(12)
diag_dump(13)
a("L_exit:\ns_endpgm")

FO = TMP
FL = TMP + 32
a("L_fin:\ns_nop 1")
lp, dn = a.lab("fw"), a.lab("fwd")
a(f"""s_and_b32 s{t2}, s{sJ}, 3
s_lshl_b32 s{t0}, s{t2}, 10
s_add_u32 s{t0}, s{t0}, {LT}
v_and_b32 v14, 3, v0
v_lshlrev_b32 v14, 8, v14
v_add_u32 v14, s{t0}, v14
v_and_b32 v15, 31, v0
v_lshl_add_u32 v15, v15, 2, s{t0}
s_lshl_b32 s{t1}, s{sJ}, 10
s_add_u32 s{t1}, s{t1}, {Q + 1024}
s_lshl_b32 s{t2}, s{t2}, 13
s_add_u32 s{t2}, s{t2}, {OP}
v_add_u32 v{FL+4}, s{t2}, v{vL16}
{lp}:
ds_read_b32 v{vT}, v14 offset:128
s_waitcnt lgkmcnt(0)
v_cmp_gt_u32 vcc, s{t1}, v{vT}
s_cbranch_vccz {dn}""")
budget_retry(lp, dn, 1)
a(f"{dn}:")
for w in range(4):
    a(f"ds_read_b128 {vr(FO+8*w,4)}, v{FL+4} offset:{w*2048}\nds_read_b128 {vr(FO+8*w+4,4)}, v{FL+4} offset:{w*2048+1024}\nds_read_b32 v{FL+w}, v15 offset:{w*256}")
a(f"""s_lshl_b32 s{t0}, s{sJ}, 2
s_add_u32 s{t0}, s{t0}, {CONS + 16}
v_mov_b32 v14, s{t0}
ds_write_b32 v14, v{vONE}
s_lshr_b32 s{t0}, s{sJ}, 2
s_lshl_b32 s{t2}, s{sRB}, 1
s_add_u32 s{t0}, s{t0}, s{t2}
s_lshl_b32 s{t0}, s{t0}, 6
s_lshl_b32 s{t2}, s{sHG}, 2
s_add_u32 s{t0}, s{t0}, s{t2}
s_and_b32 s{t2}, s{sJ}, 3
s_add_u32 s{t0}, s{t0}, s{t2}
s_lshl_b32 s{t4}, s{t0}, 10
s_add_u32 s{t4}, s{t4}, {WS_O}
s_waitcnt lgkmcnt(0)""")
for r in range(0, 8, 2):
    a(f"v_pk_add_f32 {vr(FO+r,2)}, {vr(FO+r,2)}, {vr(FO+8+r,2)}\nv_pk_add_f32 {vr(FO+16+r,2)}, {vr(FO+16+r,2)}, {vr(FO+24+r,2)}")
a(f"v_pk_add_f32 {vr(FL,2)}, {vr(FL,2)}, {vr(FL+2,2)}")
for r in range(0, 8, 2): a(f"v_pk_add_f32 {vr(FO+r,2)}, {vr(FO+r,2)}, {vr(FO+16+r,2)}")
a(f"v_add_f32 v{FO+8}, v{FL}, v{FL+1}")
a(f"""v_pk_mul_f32 {vr(FO+10,2)}, {vr(FO,2)}, 0 op_sel_hi:[1,0]
v_pk_fma_f32 {vr(FO+10,2)}, {vr(FO+2,2)}, 0, {vr(FO+10,2)} op_sel_hi:[1,0,1]
v_pk_fma_f32 {vr(FO+10,2)}, {vr(FO+4,2)}, 0, {vr(FO+10,2)} op_sel_hi:[1,0,1]
v_pk_fma_f32 {vr(FO+10,2)}, {vr(FO+6,2)}, 0, {vr(FO+10,2)} op_sel_hi:[1,0,1]
v_add_f32 v{FO+10}, v{FO+10}, v{FO+11}
v_add_f32 v{FO+10}, v{FO+10}, v{FO+8}
v_cmp_nle_f32 vcc, {hex((127-40)<<23)}, v{FO+10}
s_cbranch_vccnz L_fb
v_cmp_nge_f32 vcc, {hex((127+60)<<23)}, v{FO+10}
s_cbranch_vccnz L_fb""")
if FORCE_FB: a("s_branch L_fb")
a(f"""L_fin_norm:
v_rcp_f32 v{FO+8}, v{FO+8}
v_mul_f32 v{FO+8}, v{FO+8}, v{vGO}""")
for r in range(0, 8, 2): a(f"v_pk_mul_f32 {vr(FO+r,2)}, {vr(FO+r,2)}, {vr(FO+8,2)} op_sel_hi:[1,0]")
for r in range(4): a(f"v_cvt_pk_bf16_f32 v{FO+12+r}, v{FO+2*r}, v{FO+2*r+1}")
a(f"""buffer_store_dwordx4 {vr(FO+12,4)}, v{vL16}, {sr(sWS,4)}, s{t4} offen sc1
s_lshl_b32 s{t3}, s{sJ}, 2
s_add_u32 s{t3}, s{t3}, {4*F_OA}
s_waitcnt vmcnt(0)""")
set_flag(f"s{t3}", 14, 15)
a(f"s_setpc_b64 s[{sRET}:{sRET+1}]")
BS, BC, BK, BV, BQ, BM = TMP + 16, TMP + 32, TMP + 48, TMP + 52, TMP + 60, TMP + 64
a(f"""L_fb:
s_sub_u32 s{t1}, s{t1}, 1024
v_add_u32 v14, s{t1}, v{vL16}
ds_read_b128 {vr(BQ,4)}, v14
v_mov_b32 v{BM}, 0xff800000
s_mov_b32 s{t0}, 0
s_waitcnt lgkmcnt(0)
L_fb1:
buffer_load_dwordx4 {vr(BK,4)}, v{vL16}, {sr(sWS,4)}, s{t0} offen sc1
s_waitcnt vmcnt(0)
v_mfma_f32_32x32x16_bf16 {vr(BS,16)}, {vr(BK,4)}, {vr(BQ,4)}, 0""")
for r in range(0, 16, 2): a(f"v_max3_f32 v{BM}, v{BM}, v{BS+r}, v{BS+r+1}")
a(f"""s_add_u32 s{t0}, s{t0}, 1024
s_cmp_lt_u32 s{t0}, 65536
s_cbranch_scc1 L_fb1
v_mov_b32 v{BM+1}, v{BM}
v_permlane32_swap_b32 v{BM}, v{BM+1}
v_max_f32 v{BM}, v{BM}, v{BM+1}""")
for r in range(16): a(f"v_sub_f32 v{BC+r}, 0, v{BM}\nv_mov_b32 v{FO+r}, 0")
for r in range(8): a(f"v_mov_b32 v{BV+r}, 0x3f803f80")
a(f"""v_lshrrev_b32 v14, 5, v0
v_and_b32 v15, 15, v0
v_lshlrev_b32 v15, 4, v15
v_lshl_add_u32 v14, v14, 8, v15
v_add_u32 v14, {WS_V}, v14
v_mov_b32 v15, 0xdddd
s_mov_b32 s{t0}, 0
L_fb2:
buffer_load_dwordx4 {vr(BK,4)}, v{vL16}, {sr(sWS,4)}, s{t0} offen sc1
s_mov_b32 exec_lo, 0xffff
s_mov_b32 exec_hi, 0xffff
buffer_load_dwordx4 {vr(BV,4)}, v14, {sr(sWS,4)}, s{t0} offen sc1
buffer_load_dwordx4 {vr(BV+4,4)}, v14, {sr(sWS,4)}, s{t0} offen offset:512 sc1
s_mov_b64 exec, -1
s_waitcnt vmcnt(0)
v_mfma_f32_32x32x16_bf16 {vr(BS,16)}, {vr(BK,4)}, {vr(BQ,4)}, {vr(BC,16)}""")
for r in range(16): a(f"v_exp_f32 v{BS+r}, v{BS+r}")
a(f"""v_smfmac_f32_32x32x32_bf16 {vr(FO,16)}, {vr(BV,4)}, {vr(BS,8)}, v15
v_smfmac_f32_32x32x32_bf16 {vr(FO,16)}, {vr(BV+4,4)}, {vr(BS+8,8)}, v15
s_add_u32 s{t0}, s{t0}, 1024
s_cmp_lt_u32 s{t0}, 65536
s_cbranch_scc1 L_fb2
s_nop 9
s_branch L_fin_norm
CODE_END:""")

body = a.finish(verbose=bool(os.environ.get("VERBOSE")))
ref = open("cdna_kernels/" + NAME + ".s.ref").read().split("\n")
hdr = [l for l in ref if l.startswith(";") and "@launch" not in l and "Override" not in l and "grid=ceil" not in l]
out = "\n".join(hdr) + f"""
; @launch grid=(256,1,1) block=(512,1,1) lds={LDS_BYTES}
.amdgcn_target "amdgcn-amd-amdhsa--gfx950"
.text
.globl {NAME}_kernel
.p2align 8
.type {NAME}_kernel,@function
{NAME}_kernel:
{body}.section .rodata,"a"
.p2align 6
.amdhsa_kernel {NAME}_kernel
  .amdhsa_next_free_vgpr 256
  .amdhsa_next_free_sgpr 102
  .amdhsa_accum_offset 256
  .amdhsa_group_segment_fixed_size 0
  .amdhsa_kernarg_size 104
  .amdhsa_user_sgpr_count 2
  .amdhsa_user_sgpr_kernarg_segment_ptr 1
  .amdhsa_system_sgpr_workgroup_id_x 1
.end_amdhsa_kernel
"""
dst = sys.argv[1] if len(sys.argv) > 1 else "cdna_kernels/" + NAME + ".s"
open(dst, "w").write(out)
print("wrote", dst, len(a.lines), "lines,", len(a.inserted), "nops inserted")
```

```python
import sys, os
from asmlib import Asm, vr, sr

NAME = "gated_mix__grouped_kv_mqa__linear_kernel_hedgehog__prompt"
DIAG = int(os.environ.get("DIAG", "0"))
FORCE_FB = int(os.environ.get("FORCE_FB", "0"))
TOUCH = int(os.environ.get("TOUCH", "7"))
ZROWS = int(os.environ.get("ZROWS", "1"))
NOB = int(os.environ.get("NOB", "0"))
PRE = int(os.environ.get("PRE", "4"))

X = 0; XS = 1040
Q = 66560
OP = 74752
RING = 107520
LT = 156672
MISC = 160768
WKV = OP; WQ = OP + 16384
GATE = Q; WPHI = Q + 1024
G = MISC; NONCE = MISC + 256; SWBC = MISC + 272; CONS = MISC + 288
LDS_BYTES = 163840
WS_K = 0; WS_V = 0x10000; WS_F = 0x20000; WS_KVF = 0x30000; WS_DIAG = 0x40000
WS_PART = 0x80000; WS_O = 0x400000; WS_SIZE = 0x800000
KVF_STRIDE = 1152
F_KV = 0; F_F3 = 1; F_F2 = 4; F_OB = 8; F_OA = 12
pX, pWQ, pWK, pWV, pWOA, pBX, pWQKV, pWPHI, pWOB, pGATE, pOUT, pDBG, pWS = [4 + 2 * i for i in range(13)]
sX, sWQ, sWKV, sWB, sWOA, sWOB, sWS, sOUT, sDBG, sSM = [32 + 4 * i for i in range(10)]
sW, sRB, sHG, sL, sNON, sBUD, sS, sI, sP = 72, 73, 74, 75, 76, 77, 78, 79, 80
t0, t1, t2, t3, t4, t5 = 81, 82, 83, 84, 85, 86
sJ = 87; sRET = 88
sL2E = 90
sFL = 92
sD0, sD1 = 93, 94
sST = 4
LOG2E = 0x3fb8aa3b
QSCALE = 0x3eb8aa3b

a = Asm()
nst = [0]
HOLDAT = os.environ.get("HOLDAT")
role = ["E"]
def stamp(n):
    if DIAG: a(f"s_memrealtime {sr(sST + 2 * n, 2)}")
    if HOLDAT == f"{role[0]}{n}": a("s_memrealtime s[100:101]")
def hold():
    if HOLDAT and (HOLDAT[0] == role[0] or (HOLDAT[0] == "E" and role[0] == "S")):
        l = a.lab("hold")
        a(f"""{l}:
        s_memrealtime s[96:97]
        s_waitcnt lgkmcnt(0)
        s_sub_u32 s96, s96, s100
        s_cmp_lt_u32 s96, 4000
        s_cbranch_scc1 {l}""")

def srd(d, p, size):
    a(f"s_mov_b32 s{d}, s{p}\ns_mov_b32 s{d+1}, s{p+1}\ns_mov_b32 s{d+2}, {hex(size)}\ns_mov_b32 s{d+3}, 0x20000")

def budget_retry(loop, done, nap):
    a(f"s_cmp_eq_u32 s{sBUD}, 0\ns_cbranch_scc1 {done}\ns_sub_u32 s{sBUD}, s{sBUD}, 1")
    if nap: a(f"s_sleep {nap}")
    a(f"s_branch {loop}")

def poll_flags(vaddr, vtmp, off=0, nap=2):
    lp, dn = a.lab("pf"), a.lab("pfd")
    a(f"""{lp}:
    buffer_load_dword v{vtmp}, v{vaddr}, {sr(sWS,4)}, 0 offen offset:{off} sc1
    s_waitcnt vmcnt(0)
    v_cmp_ne_u32 vcc, s{sNON}, v{vtmp}
    s_cbranch_vccz {dn}""")
    budget_retry(lp, dn, nap)
    a(f"{dn}:")

def set_flag(idx_sgpr_or_const, vt0, vt1):
    if isinstance(idx_sgpr_or_const, int):
        a(f"v_mov_b32 v{vt0}, {4*idx_sgpr_or_const}")
    else:
        a(f"v_mov_b32 v{vt0}, {idx_sgpr_or_const}")
    a(f"""v_mov_b32 v{vt1}, s{sNON}
    s_mov_b64 exec, 1
    buffer_store_dword v{vt1}, v{vt0}, {sr(sWS,4)}, s{sFL} offen sc1
    s_mov_b64 exec, -1""")

def diag_dump(n):
    if not DIAG: return
    a("s_waitcnt lgkmcnt(0)")
    a(f"s_lshl_b32 s{t0}, s{sL}, 3\ns_add_u32 s{t0}, s{t0}, s{sW}\ns_lshl_b32 s{t0}, s{t0}, 6\ns_add_u32 s{t0}, s{t0}, {WS_DIAG}")
    a("v_mov_b32 v8, 0")
    for i in range(14):
        a(f"v_writelane_b32 v8, s{sST+2*i}, {i}")
    a(f"""v_mbcnt_lo_u32_b32 v9, -1, 0
    v_mbcnt_hi_u32_b32 v9, -1, v9
    v_lshlrev_b32 v9, 2, v9
    s_mov_b64 exec, 0xffff
    buffer_store_dword v8, v9, {sr(sWS,4)}, s{t0} offen
    s_mov_b64 exec, -1""")
    if DIAG == 2:
        l = a.lab("dd")
        aw = (n == 8)
        a(f"""s_cmp_lg_u32 s{sW}, {0 if aw else 6}
        s_cbranch_scc1 {l}
        v_subrev_u32 v8, s{sNON}, v8
        v_max_i32 v8, 0, v8
        s_mov_b64 exec, {hex(0xfe) if aw else hex(0x1fe0)}
        buffer_atomic_umax v8, v9, {sr(sDBG,4)}, 0 offen offset:{0 if aw else 12} sc1
        s_mov_b64 exec, -1
        {l}:""")

if HOLDAT == "E0": a("s_memrealtime s[100:101]")
a(f"""s_cmp_ge_u32 s2, 256
s_cbranch_scc1 L_exit
s_load_dwordx16 s[4:19], s[0:1], 0
s_load_dwordx8 s[20:27], s[0:1], 64
s_load_dwordx2 s[28:29], s[0:1], 96
v_lshrrev_b32 v1, 6, v0
v_and_b32 v0, 63, v0
v_readfirstlane_b32 s{sW}, v1
s_and_b32 s{t0}, s2, 7
s_lshr_b32 s{t1}, s2, 3
s_lshr_b32 s{t2}, s{t0}, 1
s_lshl_b32 s{t2}, s{t2}, 3
s_lshr_b32 s{t3}, s{t1}, 2
s_add_u32 s{sRB}, s{t2}, s{t3}
s_and_b32 s{t2}, s{t0}, 1
s_lshl_b32 s{t2}, s{t2}, 2
s_and_b32 s{t3}, s{t1}, 3
s_add_u32 s{sHG}, s{t2}, s{t3}
s_lshl_b32 s{sL}, s{sRB}, 3
s_add_u32 s{sL}, s{sL}, s{sHG}
s_lshl_b32 s{sFL}, s{sL}, 7
s_add_u32 s{sFL}, s{sFL}, {WS_F}
s_mov_b32 s{sBUD}, 400000
s_mov_b32 s{sL2E}, {hex(LOG2E)}
s_mov_b32 s{sL2E+1}, {hex(LOG2E)}
s_and_b32 s{sS}, s{sW}, 3
s_lshr_b32 s{sI}, s{sS}, 1
s_and_b32 s{sP}, s{sS}, 1
v_lshlrev_b32 v10, 4, v0
s_waitcnt lgkmcnt(0)""")
srd(sX, pX, 0x200000)
a(f"s_bitcmp1_b32 s{sHG}, 2\ns_cselect_b32 s{sWKV}, s{pWV}, s{pWK}\ns_cselect_b32 s{sWKV+1}, s{pWV+1}, s{pWK+1}\ns_mov_b32 s{sWKV+2}, 0x4000\ns_mov_b32 s{sWKV+3}, 0x20000")
a(f"s_and_b32 s{t5}, s{sHG}, 3")
a(f"s_cmp_lg_u32 s{sW}, 4\ns_cbranch_scc1 L_nojobdma")
a(f"""s_mul_i32 s{t0}, s{t5}, {16*XS}
s_lshl_b32 s{t1}, s{sRB}, 16
s_lshl_b32 s{t2}, s{t5}, 14
s_add_u32 s{t1}, s{t1}, s{t2}""")
for r in range(16):
    a(f"s_add_u32 m0, s{t0}, {X + (r//4)*4*XS + (r%4)*16}")
    if r % 4 == 0 and r: a(f"s_add_u32 s{t1}, s{t1}, 4096")
    a(f"buffer_load_dwordx4 v10, {sr(sX,4)}, s{t1} offen offset:{(r%4)*1024} lds")
for n in range(16):
    if n % 4 == 0: a(f"s_mov_b32 m0, {WKV + n*1024}\ns_mov_b32 s{t1}, {n*1024}")
    a(f"buffer_load_dwordx4 v10, {sr(sWKV,4)}, s{t1} offen offset:{(n%4)*1024} lds")
NT0 = 0
if TOUCH & 1:
    srd(sWQ, pWQ, 0x80000)
    a(f"""s_and_b32 s{t0}, s{sRB}, 7
    s_lshl_b32 s{t0}, s{t0}, 16
    s_lshl_b32 s{t1}, s{sHG}, 7
    s_add_u32 s{t0}, s{t0}, s{t1}
    v_lshlrev_b32 v11, 10, v0
    buffer_load_dword v{250}, v11, {sr(sWQ,4)}, s{t0} offen""")
    NT0 += 1
if TOUCH & 2:
    a(f"""s_getpc_b64 s[{sSM}:{sSM+1}]
    s_mov_b32 s{sSM+2}, CODE_END - .
    s_mov_b32 s{sSM+3}, 0x20000
    s_lshl_b32 s{t0}, s{t5}, 13
    v_lshlrev_b32 v11, 7, v0
    buffer_load_dword v{251}, v11, {sr(sSM,4)}, s{t0} offen""")
    NT0 += 1
a("L_nojobdma:")
srd(sWQ, pWQ, 0x80000); srd(sWB, pWQKV, 0x180000); srd(sWOA, pWOA, 0x80000); srd(sWOB, pWOB, 0x80000)
srd(sWS, pWS, WS_SIZE); srd(sOUT, pOUT, 0x200000); srd(sDBG, pDBG, 256)
a(f"""v_lshrrev_b32 v11, 3, v0
v_and_b32 v12, 7, v0
v_lshrrev_b32 v13, 2, v0
v_and_b32 v13, 4, v13
v_xor_b32 v12, v12, v13
v_lshlrev_b32 v12, 4, v12
v_lshl_add_u32 v9, v11, 10, v12
v_mul_u32_u24 v8, 3072, v11
v_add_u32 v8, v8, v12""")
a(f"""v_and_b32 v11, 31, v0
s_lshl_b32 s{t0}, s{sI}, 5
v_add_u32 v11, s{t0}, v11
v_mul_u32_u24 v4, {XS}, v11
v_lshrrev_b32 v12, 5, v0
v_lshl_add_u32 v4, v12, 4, v4
v_and_b32 v13, 15, v0
v_lshrrev_b32 v14, 2, v13
v_lshlrev_b32 v14, 7, v14
v_lshrrev_b32 v15, 3, v13
v_xor_b32 v15, s{sP}, v15
v_lshl_add_u32 v14, v15, 6, v14
v_bfe_u32 v15, v0, 4, 1
v_lshl_add_u32 v14, v15, 5, v14
v_and_b32 v15, 3, v0
v_lshl_add_u32 v14, v15, 3, v14
v_lshl_add_u32 v5, v12, 10, v14
v_lshl_add_u32 v6, v12, 9, v14""")
a(f"s_cmp_ge_u32 s{sW}, 4\ns_cbranch_scc1 L_sw")

def xrest(slot_sgpr):
    a(f"""s_add_u32 s{t0}, s{t5}, 1
    s_lshl_b32 s{t0}, s{t0}, 1
    s_add_u32 s{t0}, s{t0}, s{slot_sgpr}
    s_and_b32 s{t0}, s{t0}, 7
    s_lshl_b32 s{t1}, s{sRB}, 16
    s_lshl_b32 s{t2}, s{t0}, 13
    s_add_u32 s{t1}, s{t1}, s{t2}
    s_mul_i32 s{t0}, s{t0}, {8*XS}""")
    for r in range(8):
        a(f"s_add_u32 m0, s{t0}, {X + (r//4)*4*XS + (r%4)*16}")
        if r == 4: a(f"s_add_u32 s{t1}, s{t1}, 4096")
        a(f"buffer_load_dwordx4 v10, {sr(sX,4)}, s{t1} offen offset:{(r%4)*1024} lds")

S0, S1, O_, QR, KR, VR = 12, 28, 44, 60, 64, 128
vIDX, vZ, vQA, vPA, vLA, vCA, vCV = 1, 2, 4, 5, 6, 7, 8
role[0] = "A"
stamp(0)
a("s_setprio 1")
a(f"s_mov_b32 s{t0}, 0x3f803f80\ns_mov_b32 s{t1}, 0x3f803f80")
assert t0 % 2 == 1
a(f"s_mov_b32 s{t2}, 0x3f803f80")
if ZROWS:
    a(f"""v_and_b32 v12, 27, v0
    v_cmp_eq_u32 vcc, 16, v12
    v_mov_b32 v13, s{t1}
    v_cndmask_b32 v12, 0, v13, vcc
    v_mov_b32 v13, v12""")
    for r in range(VR, 256, 2): a(f"v_mov_b64 v[{r}:{r+1}], v[12:13]")
else:
    for r in range(VR, 256, 2): a(f"v_mov_b64 v[{r}:{r+1}], s[{t1}:{t2}]")
a("s_barrier")
xrest(sW)
a(f"s_lshl_b32 s{t0}, s{sW}, 10\ns_add_u32 s{t0}, s{t0}, {WQ}\ns_lshl_b32 s{t1}, s{sW}, 13\ns_lshl_b32 s{t2}, s{sHG}, 7\ns_add_u32 s{t1}, s{t1}, s{t2}")
for c in range(16):
    a(f"s_add_u32 m0, s{t0}, {c*4096}")
    if c: a(f"s_add_u32 s{t1}, s{t1}, 32768")
    a(f"buffer_load_dwordx4 v9, {sr(sWQ,4)}, s{t1} offen lds")
NT1 = 0
if TOUCH & 4:
    NT1 = 1
    a(f"""s_lshl_b32 s{t1}, s{sHG}, 7
    v_and_b32 v11, 15, v0
    s_cmp_ge_u32 s{sW}, 2
    s_cbranch_scc1 L_tw_o
    s_mul_i32 s{t0}, s{sRB}, {16*3072}
    s_add_u32 s{t0}, s{t0}, s{t1}
    s_lshl_b32 s{t1}, s{sW}, 11
    s_add_u32 s{t0}, s{t0}, s{t1}
    v_mul_u32_u24 v11, 3072, v11
    v_bfe_u32 v12, v0, 4, 1
    v_lshl_add_u32 v11, v12, 10, v11
    s_cmp_eq_u32 s{sW}, 0
    s_cselect_b32 exec_lo, -1, 0xffff
    s_mov_b32 exec_hi, 0
    buffer_load_dword v8, v11, {sr(sWB,4)}, s{t0} offen
    s_branch L_tw_e
    L_tw_o:
    s_lshl_b32 s{t0}, s{sRB}, 14
    s_add_u32 s{t0}, s{t0}, s{t1}
    v_lshlrev_b32 v11, 10, v11
    s_mov_b64 exec, 0xffff
    s_cmp_eq_u32 s{sW}, 2
    s_cbranch_scc1 L_tw_a
    buffer_load_dword v8, v11, {sr(sWOB,4)}, s{t0} offen
    s_branch L_tw_e
    L_tw_a:
    buffer_load_dword v8, v11, {sr(sWOA,4)}, s{t0} offen
    L_tw_e:
    s_mov_b64 exec, -1""")
if TOUCH & 8:
    NT1 = 2
    a(f"""s_lshl_b32 s{t1}, s{sHG}, 7
    s_cmp_eq_u32 s{sW}, 3
    s_cbranch_scc1 L_tw_o
    s_and_b32 s{t0}, s{sRB}, 7
    s_mul_i32 s{t0}, s{t0}, {64*3072}
    s_add_u32 s{t0}, s{t0}, s{t1}
    s_lshl_b32 s{t1}, s{sW}, 10
    s_add_u32 s{t0}, s{t0}, s{t1}
    v_mul_u32_u24 v11, 3072, v0
    buffer_load_dword v8, v11, {sr(sWB,4)}, s{t0} offen
    s_mov_b64 exec, 1
    buffer_load_dword v8, v11, {sr(sWB,4)}, s{t0} offen
    s_branch L_tw_e
    L_tw_o:
    s_lshl_b32 s{t0}, s{sRB}, 14
    s_add_u32 s{t0}, s{t0}, s{t1}
    v_lshlrev_b32 v11, 10, v0
    s_mov_b64 exec, 0xffff
    buffer_load_dword v8, v11, {sr(sWOB,4)}, s{t0} offen
    buffer_load_dword v8, v11, {sr(sWOA,4)}, s{t0} offen
    L_tw_e:
    s_mov_b64 exec, -1""")
a(f"v_add_u32 v5, {WQ}, v5")
def qreads(ks):
    b = KR + 8 * (ks % 8)
    a(f"ds_read_b128 {vr(b,4)}, v4 offset:{ks*32}")
    a(f"ds_read_b64_tr_b16 {vr(b+4,2)}, v5 offset:{ks*2048}")
    a(f"ds_read_b64_tr_b16 {vr(b+6,2)}, v5 offset:{ks*2048+512}")
for (k0, k1, vm) in ((0, 12, 10), (12, 24, 4), (24, 32, 0)):
    a(f"s_waitcnt vmcnt({vm + NT1})\ns_barrier")
    if k0 == 0: stamp(1)
    if k0 == 24: stamp(2)
    for ks in range(k0, k0 + 4): qreads(ks)
    for ks in range(k0, k1):
        left = min(k1 - 1, ks + 3) - ks
        a(f"s_waitcnt lgkmcnt({3*left})")
        b = KR + 8 * (ks % 8)
        a(f"v_mfma_f32_32x32x16_bf16 {vr(O_,16)}, {vr(b+4,4)}, {vr(b,4)}, {'0' if ks == 0 else vr(O_,16)}")
        if ks + 4 < k1: qreads(ks + 4)
a(f"s_mov_b32 s{t1}, {hex(QSCALE)}\ns_mov_b32 s{t2}, {hex(QSCALE)}")
a(f"s_lshl_b32 s{t0}, s{sW}, 11\ns_add_u32 s{t0}, s{t0}, {Q}\nv_add_u32 v11, s{t0}, v10")
for r in range(0, 16, 2): a(f"v_pk_mul_f32 {vr(O_+r,2)}, {vr(O_+r,2)}, s[{t1}:{t2}]")
for r in range(8): a(f"v_cvt_pk_bf16_f32 v{S0+r}, v{O_+2*r}, v{O_+2*r+1}")
a(f"ds_write_b128 v11, {vr(S0,4)}\nds_write_b128 v11, {vr(S0+4,4)} offset:1024")
a(f"v_mov_b32 v11, {NONCE}\nds_read_b32 v11, v11")
a("s_waitcnt lgkmcnt(0)\ns_barrier")
stamp(3)
a(f"""v_readfirstlane_b32 s{sNON}, v11
v_add_u32 v{vQA}, {Q}, v10
ds_read_b128 {vr(QR,4)}, v{vQA}
s_lshl_b32 s{t0}, s{sW}, 13
s_add_u32 s{t0}, s{t0}, {WS_F}
v_lshlrev_b32 v11, 7, v0
v_add_u32 v11, s{t0}, v11
s_lshl_b32 s{t0}, s{sW}, 11
s_add_u32 s{t0}, s{t0}, {OP}
v_add_u32 v{vPA}, s{t0}, v10
s_lshl_b32 s{t0}, s{sW}, 8
s_add_u32 s{t0}, s{t0}, {LT}
v_and_b32 v{vLA}, 31, v0
v_lshl_add_u32 v{vLA}, v{vLA}, 2, s{t0}
v_mov_b32 v{vCA}, {CONS}
v_mov_b32 v{vIDX}, 0xdddd
v_mov_b32 v{vZ}, 0
v_mov_b32 v{vZ+1}, 0
v_lshrrev_b32 v9, 5, v0
v_and_b32 v{S1}, 15, v0
v_lshlrev_b32 v{S1}, 4, v{S1}
v_lshl_add_u32 v9, v9, 8, v{S1}
v_add_u32 v9, {WS_V}, v9""")
poll_flags(11, 8, F_KV * 4)
stamp(4)
a(f"s_lshl_b32 s{t0}, s{sW}, 14\ns_mov_b32 s{t1}, 0xffff\ns_mov_b32 s{t2}, 0xffff")
def kvload(t):
    if t % 4 == 0 and t: a(f"s_add_u32 s{t0}, s{t0}, 4096")
    a(f"buffer_load_dwordx4 {vr(KR+4*t,4)}, v10, {sr(sWS,4)}, s{t0} offen offset:{(t%4)*1024} sc1")
    a(f"s_mov_b64 exec, s[{t1}:{t2}]")
    a(f"buffer_load_dwordx4 {vr(VR+8*t,4)}, v9, {sr(sWS,4)}, s{t0} offen offset:{(t%4)*1024} sc1")
    a(f"buffer_load_dwordx4 {vr(VR+8*t+4,4)}, v9, {sr(sWS,4)}, s{t0} offen offset:{(t%4)*1024+512} sc1")
    a("s_mov_b64 exec, -1")
for t in range(PRE): kvload(t)
def zero_o(): a(f"v_mfma_f32_32x32x8_bf16 {vr(O_,16)}, {vr(vZ,2)}, {vr(vZ,2)}, 0")
def qk(t, S): a(f"v_mfma_f32_32x32x16_bf16 {vr(S,16)}, {vr(KR+4*t,4)}, {vr(QR,4)}, 0")
def pv(t, s, S): a(f"v_smfmac_f32_32x32x32_bf16 {vr(O_,16)}, {vr(VR+8*t+4*s,4)}, {vr(S+8*s,8)}, v{vIDX}")
def flush():
    lp, dn = a.lab("cw"), a.lab("cwd")
    a(f"""v_cmp_eq_u32 vcc, 0, v{vCV}
    s_cbranch_vccz {dn}
    {lp}:
    ds_read_b32 v{vCV}, v{vCA}
    s_waitcnt lgkmcnt(0)
    v_cmp_eq_u32 vcc, 0, v{vCV}
    s_cbranch_vccz {dn}""")
    budget_retry(lp, dn, 1)
    a(f"""{dn}:
    ds_write_b128 v{vPA}, {vr(O_,4)}
    ds_write_b128 v{vPA}, {vr(O_+4,4)} offset:1024
    ds_write2_b32 v{vLA}, v{O_+8}, v{vQA} offset0:0 offset1:32""")
def apass(first):
    for t in range(16):
        S, Sn = (S0, S1) if t % 2 == 0 else (S1, S0)
        for e in range(16):
            if e == 2 and not (first and t == 0): pv((t - 1) % 16, 1, Sn)
            if e == 5:
                if first and t < 15: a(f"s_waitcnt vmcnt({2 + 3*(min(t + PRE - 1, 15) - (t + 1))})")
                if t == 15: a("s_waitcnt lgkmcnt(0)" if not first else "s_waitcnt vmcnt(0) lgkmcnt(0)")
                qk((t + 1) % 16, Sn)
                if t == 14:
                    a(f"v_add_u32 v{vQA}, 1024, v{vQA}\nds_read_b128 {vr(QR,4)}, v{vQA}\nds_read_b32 v{vCV}, v{vCA}")
            if e == 8 and first and t + PRE < 16: kvload(t + PRE)
            if e == 13 and t == 0 and not first:
                flush(); zero_o()
            if e == 15: pv(t, 0, S)
            a(f"v_exp_f32 v{S+e}, v{S+e}")
        if t == 0 and not first:
            a(f"""s_add_u32 s{sJ}, s{sJ}, 1
            s_cmp_eq_u32 s{sJ}, 4
            s_cselect_b32 s{t0}, -3, 1
            v_lshl_add_u32 v{vPA}, s{t0}, 13, v{vPA}
            v_lshl_add_u32 v{vLA}, s{t0}, 10, v{vLA}
            v_add_u32 v{vCA}, 4, v{vCA}""")
zero_o()
a(f"s_mov_b32 s{sJ}, 0\ns_waitcnt vmcnt({3*PRE-1}) lgkmcnt(0)")
qk(0, S0)
stamp(5)
apass(True)
stamp(6)
if DIAG: a("s_memtime s[96:97]")
a(".p2align 6\nL_aloop:")
apass(False)
if DIAG:
    for n in range(1, 6):
        l = a.lab("st")
        a(f"s_cmp_lg_u32 s{sJ}, {n}\ns_cbranch_scc1 {l}"); stamp(7 + n); a(f"{l}:")
a(f"s_cmp_lt_u32 s{sJ}, 7\ns_cbranch_scc1 L_aloop")
pv(15, 1, S1)
a("s_nop 9")
flush()
stamp(7)
if DIAG: a("s_memtime s[98:99]\ns_waitcnt lgkmcnt(0)\ns_sub_u32 s30, s98, s96")
diag_dump(8)
hold()
a("s_endpgm")

a("L_sw:")
role[0] = "S"
stamp(0)
vONE, vSWB, vT = 1, 2, 3
vXA, vWA, vWO, vWOA, vD3, vD1, vL16, vGI, vGO = 4, 5, 6, 7, 8, 9, 10, 11, 12
WPH, PHQ, ACC, AC2, WB0, TMP = 16, 24, 40, 56, 72, 104
a(f"""s_setprio 2
v_mov_b32 v{vONE}, 1
v_mov_b32 v{vSWB}, {SWBC}
v_add_u32 v{vWOA}, {X}, v6
v_add_u32 v{vWA}, {RING}, v5
v_add_u32 v{vWO}, {RING}, v6""")
epoch = [0]
def arrive():
    epoch[0] += 1
    a(f"s_mov_b64 exec, 1\nds_add_u32 v{vSWB}, v{vONE}\ns_mov_b64 exec, -1")
def check(lowprio):
    lp, dn = a.lab("sb"), a.lab("sbd")
    a(f"{lp}:\nds_read_b32 v{vT}, v{vSWB}")
    if lowprio: a("s_setprio 2")
    a(f"s_waitcnt lgkmcnt(0)\nv_readfirstlane_b32 s{t0}, v{vT}")
    if lowprio: a("s_setprio 0")
    a(f"s_cmp_ge_u32 s{t0}, {4*epoch[0]}\ns_cbranch_scc1 {dn}")
    budget_retry(lp, dn, 0)
    a(f"{dn}:")

a(f"s_cmp_lg_u32 s{sS}, 3\ns_cbranch_scc1 L_sw_not3")
a(f"s_cmp_lg_u32 s2, 0\ns_cbranch_scc1 L_sw_nononce")
a(f"""s_memrealtime s[{t1}:{t2}]
v_mov_b32 v13, 0
s_waitcnt lgkmcnt(0)
s_or_b32 s{t1}, s{t1}, 1
v_mov_b32 v14, s{t1}
s_mov_b64 exec, 1
buffer_store_dword v14, v13, {sr(sDBG,4)}, 0 offen sc1
s_mov_b64 exec, -1""")
a("L_sw_nononce:")
a(f"""v_mov_b32 v20, 0
v_mov_b32 v21, 0
v_mov_b32 v22, 0
v_mov_b32 v23, 0
v_add_u32 v13, {LT}, v{vL16}""")
for n in range(4): a(f"ds_write_b128 v13, v[20:23] offset:{n*1024}")
a(f"""v_lshlrev_b32 v13, 2, v0
v_add_u32 v13, {NONCE}, v13
v_cmp_gt_u32 vcc, 12, v0
v_cndmask_b32 v14, 0, v{vONE}, vcc
v_cmp_le_u32 vcc, 8, v0
v_cndmask_b32 v14, 0, v14, vcc
ds_write_b32 v13, v14""")
assert CONS == NONCE + 32
a("s_waitcnt lgkmcnt(0)")
a("L_sw_not3:")
if DIAG:
    pass
a("s_barrier")
a(f"s_cmp_eq_u32 s{sS}, 0\ns_cbranch_scc1 L_sw_job")
a(f"s_cmp_eq_u32 s{sS}, 3\ns_cbranch_scc1 L_sw_small")
a(f"s_add_u32 s{t3}, s{sS}, 3")
xrest(t3)
a("s_branch L_sw_h2")
a("L_sw_small:")
srd(sSM, pGATE, 1024)
a(f"s_mov_b32 m0, {GATE}\ns_nop 0\nbuffer_load_dwordx4 v{vL16}, {sr(sSM,4)}, 0 offen lds")
srd(sSM, pWPHI, 16384)
a(f"s_lshl_b32 s{t0}, s{sHG}, 11\ns_mov_b32 m0, {WPHI}\ns_nop 0")
a(f"buffer_load_dwordx4 v{vL16}, {sr(sSM,4)}, s{t0} offen lds\nbuffer_load_dwordx4 v{vL16}, {sr(sSM,4)}, s{t0} offen offset:1024 lds")
a("s_branch L_sw_h2")
a("L_sw_job:")
JX, JW = TMP, TMP + 64
a(f"""v_and_b32 v13, 15, v0
v_lshrrev_b32 v14, 4, v0
s_lshl_b32 s{t0}, s{t5}, 4
v_add_u32 v15, s{t0}, v13
v_mul_u32_u24 v15, {XS}, v15
v_lshl_add_u32 v15, v14, 4, v15
v_lshlrev_b32 v16, 3, v13
v_lshl_add_u32 v16, v14, 8, v16
v_add_u32 v16, {WKV}, v16""")
a(f"s_bitcmp1_b32 s{sHG}, 2\ns_cbranch_scc1 L_job_v")
def job(isv):
    if not isv:
        a(f"""v_and_b32 v17, 1, v14
        v_lshlrev_b32 v17, 9, v17
        v_lshl_add_u32 v17, v13, 4, v17
        v_lshrrev_b32 v18, 1, v14
        v_lshl_add_u32 v17, v18, 3, v17
        s_lshr_b32 s{t0}, s{t5}, 1
        s_lshl_b32 s{t1}, s{sRB}, 1
        s_add_u32 s{t0}, s{t0}, s{t1}
        s_lshl_b32 s{t0}, s{t0}, 10
        s_and_b32 s{t1}, s{t5}, 1
        s_lshl_b32 s{t1}, s{t1}, 8
        s_add_u32 s{t4}, s{t0}, s{t1}""")
    else:
        a(f"""v_lshrrev_b32 v17, 1, v14
        v_lshlrev_b32 v17, 8, v17
        v_lshl_add_u32 v17, v13, 4, v17
        v_and_b32 v18, 1, v14
        v_lshl_add_u32 v17, v18, 3, v17
        s_lshl_b32 s{t0}, s{sRB}, 2
        s_add_u32 s{t0}, s{t0}, s{t5}
        s_lshl_b32 s{t0}, s{t0}, 9
        s_add_u32 s{t4}, s{t0}, {WS_V}""")
    def grp(gq):
        a(f"s_waitcnt vmcnt({12 - 4*gq + NT0})")
        for n in range(4 * gq, 4 * gq + 4):
            a(f"ds_read_b128 {vr(JX+4*n,4)}, v15 offset:{n*64}")
            a(f"ds_read_b64_tr_b16 {vr(JW+4*n,2)}, v16 offset:{n*1024}")
            a(f"ds_read_b64_tr_b16 {vr(JW+4*n+2,2)}, v16 offset:{n*1024+128}")
    def mm(gq):
        for n in range(4 * gq, 4 * gq + 4):
            A, B = (JX, JW) if isv else (JW, JX)
            a(f"v_mfma_f32_16x16x32_bf16 {vr(ACC,4)}, {vr(A+4*n,4)}, {vr(B+4*n,4)}, {'0' if n == 0 else vr(ACC,4)}")
    grp(0)
    for gq in range(4):
        if gq < 3: grp(gq + 1); a("s_waitcnt lgkmcnt(12)")
        else: a("s_waitcnt lgkmcnt(0)")
        mm(gq)
job(False)
a("s_branch L_job_st\nL_job_v:")
job(True)
a("L_job_st:")
lp, dn = a.lab("np"), a.lab("npd")
a(f"""v_cvt_pk_bf16_f32 v18, v{ACC}, v{ACC+1}
v_cvt_pk_bf16_f32 v19, v{ACC+2}, v{ACC+3}
v_mov_b32 v13, 0
buffer_store_dwordx2 v[18:19], v17, {sr(sWS,4)}, s{t4} offen sc1""")
stamp(1)
a(f"""{lp}:
buffer_load_dword v14, v13, {sr(sDBG,4)}, 0 offen sc1
s_waitcnt vmcnt(0)
v_readfirstlane_b32 s{sNON}, v14
s_cmp_lg_u32 s{sNON}, 0
s_cbranch_scc1 {dn}""")
budget_retry(lp, dn, 1)
a(f"{dn}:")
set_flag(F_KV, 13, 15)
a(f"v_mov_b32 v13, {NONCE}\nds_write_b32 v13, v14\ns_waitcnt lgkmcnt(0)")
stamp(2)
a("s_branch L_sw_h2b")
a("L_sw_h2:\ns_waitcnt vmcnt(0)\nL_sw_h2b:\ns_barrier")
GF = TMP
a(f"""v_lshrrev_b32 v14, 4, v0
v_lshlrev_b32 v13, 4, v14
v_add_u32 v13, {GATE}, v13""")
for n in range(16): a(f"ds_read_b128 {vr(GF+4*n,4)}, v13 offset:{n*64}")
a(f"""v_and_b32 v13, 15, v0
v_lshlrev_b32 v13, 3, v13
v_lshrrev_b32 v14, 5, v0
v_lshl_add_u32 v13, v14, 7, v13
s_lshl_b32 s{t0}, s{sP}, 10
s_add_u32 s{t0}, s{t0}, {WPHI}
v_add_u32 v13, s{t0}, v13
s_waitcnt lgkmcnt(8)""")
for hh in range(2):
    a(f"ds_read_b64_tr_b16 {vr(WPH+4*hh,2)}, v13 offset:{hh*512}")
    a(f"ds_read_b64_tr_b16 {vr(WPH+4*hh+2,2)}, v13 offset:{hh*512+256}")
a(f"""v_mov_b32 v14, {NONCE}
ds_read_b32 v14, v14
v_bfe_u32 v13, v0, 4, 1
v_mul_u32_u24 v15, 0x8000, v13
v_lshl_add_u32 v15, v13, 31, v15
s_waitcnt lgkmcnt(0)
v_readfirstlane_b32 s{sNON}, v14""")
for r in range(8): a(f"v_xor_b32 v{WPH+r}, v15, v{WPH+r}")
a("s_barrier\ns_barrier\ns_barrier")
stamp(3)

def dma_stage(c):
    buf = RING + (c % 3) * 16384
    if c < 8:   srdw, vo, base, step = sWB, vD3, c * 64 * 3072, 8 * 3072
    elif c < 12: srdw, vo, base, step = sWB, vD3, (c - 8) * 128 * 3072, 8 * 3072
    else:       srdw, vo, base, step = sWOB, vD1, (c - 12) * 128 * 1024, 8 * 1024
    for n in range(4):
        a(f"s_add_u32 m0, s{sD0}, {buf + n*1024}\ns_add_u32 s{t1}, s{sD1}, {base + n*step}")
        a(f"buffer_load_dwordx4 v{vo}, {sr(srdw,4)}, s{t1} offen lds")
def dma_base(kind):
    a(f"s_lshl_b32 s{t1}, s{sHG}, 7")
    if kind == "kv":
        a(f"s_mul_i32 s{sD1}, s{sP}, {32*3072}\ns_add_u32 s{sD1}, s{sD1}, s{t1}\ns_lshl_b32 s{t1}, s{sI}, 10\ns_add_u32 s{sD1}, s{sD1}, s{t1}\ns_add_u32 s{sD1}, s{sD1}, 1024")
    elif kind == "q":
        a(f"s_mul_i32 s{sD1}, s{sS}, {32*3072}\ns_add_u32 s{sD1}, s{sD1}, s{t1}")
    else:
        a(f"s_lshl_b32 s{sD1}, s{sS}, 15\ns_add_u32 s{sD1}, s{sD1}, s{t1}")
if NOB:
    a(f"s_mov_b32 s{sJ}, s{sS}\ns_call_b64 s[{sRET}:{sRET+1}], L_fin")
    stamp(4)
    a(f"s_add_u32 s{sJ}, s{sS}, 4\ns_call_b64 s[{sRET}:{sRET+1}], L_fin")
    stamp(5)
    diag_dump(13)
    a("s_endpgm")
a(f"s_lshl_b32 s{sD0}, s{sS}, 12")
dma_base("kv")
for c in range(3): dma_stage(c)
GX = TMP + 64
a(f"""v_and_b32 v13, 15, v0
v_lshrrev_b32 v14, 4, v0
s_lshl_b32 s{t0}, s{sS}, 4
v_add_u32 v13, s{t0}, v13
v_mul_u32_u24 v15, {XS}, v13
v_lshl_add_u32 v15, v14, 4, v15""")
for n in range(16): a(f"ds_read_b128 {vr(GX+4*n,4)}, v15 offset:{n*64}")
for n in range(16):
    if n % 4 == 0: a(f"s_waitcnt lgkmcnt({12 - n})")
    a(f"v_mfma_f32_16x16x32_bf16 {vr(ACC,4)}, {vr(GF+4*n,4)}, {vr(GX+4*n,4)}, {'0' if n == 0 else vr(ACC,4)}")
a(f"""v_lshlrev_b32 v13, 2, v13
v_add_u32 v13, {G}, v13
v_mul_f32 v14, {hex(LOG2E | 0x80000000)}, v{ACC}
v_exp_f32 v14, v14
v_add_f32 v14, 1.0, v14
v_rcp_f32 v14, v14
ds_write_b32 v13, v14""")

def windows(pairs, fill):
    for n, pr in enumerate(pairs):
        for m in pr: a(m)
        if n < len(fill): fill[n]()

FA = [TMP, TMP + 64]
def rd_x(c, ks0, nks):
    for k in range(nks): a(f"ds_read_b128 {vr(FA[c%2]+4*k,4)}, v{vXA} offset:{(ks0+k)*32}")
def rd_w(dst, vaddr, off, second):
    a(f"ds_read_b64_tr_b16 {vr(dst,2)}, v{vaddr} offset:{off}\nds_read_b64_tr_b16 {vr(dst+2,2)}, v{vaddr} offset:{off+second}")
def rd_stage_w(c, lo, hi):
    for k in range(lo, hi): rd_w(FA[c % 2] + 32 + 4 * k, vWA, (c % 3) * 16384 + k * 2048, 512)

a("s_waitcnt vmcnt(8)")
arrive(); check(False)
a(f"""v_and_b32 v13, 31, v0
v_lshlrev_b32 v13, 2, v13
s_lshl_b32 s{t0}, s{sI}, 7
s_add_u32 s{t1}, s{t0}, {G}
v_add_u32 v14, s{t1}, v13
s_xor_b32 s{t0}, s{t0}, 128
s_add_u32 s{t1}, s{t0}, {G}
v_add_u32 v13, s{t1}, v13
ds_read_b32 v{vGI}, v14
ds_read_b32 v{vGO}, v13""")
rd_x(0, 0, 4); rd_stage_w(0, 0, 8)
stamp(4)
a("s_setprio 0")
for c in range(8):
    a("s_waitcnt lgkmcnt(0)")
    f = FA[c % 2]
    pairs = []
    for k in range(4):
        first = (c == 0 and k == 0)
        pairs.append([f"v_mfma_f32_32x32x16_bf16 {vr(ACC,16)}, {vr(f+32+4*k,4)}, {vr(f+4*k,4)}, {'0' if first else vr(ACC,16)}",
                      f"v_mfma_f32_32x32x16_bf16 {vr(AC2,16)}, {vr(f+4*k,4)}, {vr(f+48+4*k,4)}, {'0' if first else vr(AC2,16)}"])
    def g0():
        a(f"s_waitcnt vmcnt({4 if c < 7 else 0})"); arrive()
        if c < 7: rd_x(c + 1, 4 * (c + 1), 4)
    def g1():
        if c < 7:
            check(True)
            rd_stage_w(c + 1, 0, 3)
    def g2():
        if c < 7: rd_stage_w(c + 1, 3, 8)
    def g3():
        if c == 5: dma_base("q")
        if c < 6: dma_stage(c + 3)
    windows(pairs, [g0, g1, g2, g3])
a("s_setprio 2")
stamp(5)

def features(B, W, out, D, tm):
    m1, m2 = tm, tm + 1
    a(f"v_mfma_f32_32x32x16_bf16 {vr(D,16)}, {vr(W,4)}, {vr(B,4)}, 0")
    for (m, b) in ((m1, D), (m2, D + 8)):
        a(f"v_max3_f32 v{m}, v{b}, v{b+1}, v{b+2}\nv_max3_f32 v{m}, v{m}, v{b+3}, v{b+4}\nv_max3_f32 v{m}, v{m}, v{b+5}, v{b+6}\nv_max_f32 v{m}, v{m}, v{b+7}")
    a(f"""v_permlane32_swap_b32 v{m1}, v{m2}
    v_max_f32 v{m1}, v{m1}, v{m2}
    v_mul_f32 v{m1}, {hex(LOG2E | 0x80000000)}, v{m1}
    v_mov_b32 v{m2}, v{m1}
    v_permlane32_swap_b32 v{m1}, v{m2}""")
    for r in range(0, 16, 2):
        sel = "op_sel_hi:[1,1,0]" if r < 8 else "op_sel:[0,0,1]"
        a(f"v_pk_fma_f32 {vr(D+r,2)}, {vr(D+r,2)}, s[{sL2E}:{sL2E+1}], {vr(m1,2)} {sel}")
    for r in range(16): a(f"v_exp_f32 v{D+r}, v{D+r}")
    for (m, b) in ((m1, D), (m2, D + 8)):
        a(f"""v_pk_add_f32 {vr(tm+2,2)}, {vr(b,2)}, {vr(b+2,2)}
        v_pk_add_f32 {vr(tm+4,2)}, {vr(b+4,2)}, {vr(b+6,2)}
        v_pk_add_f32 {vr(tm+2,2)}, {vr(tm+2,2)}, {vr(tm+4,2)}
        v_add_f32 v{m}, v{tm+2}, v{tm+3}""")
    a(f"""v_permlane32_swap_b32 v{m1}, v{m2}
    v_add_f32 v{m1}, v{m1}, v{m2}
    v_rcp_f32 v{m1}, v{m1}
    v_mov_b32 v{m2}, v{m1}
    v_permlane32_swap_b32 v{m1}, v{m2}""")
    for r in range(0, 16, 2):
        sel = "op_sel_hi:[1,0]" if r < 8 else "op_sel:[0,1]"
        a(f"v_pk_mul_f32 {vr(D+r,2)}, {vr(D+r,2)}, {vr(m1,2)} {sel}")
    for r in range(8): a(f"v_cvt_pk_bf16_f32 v{out+r}, v{D+2*r}, v{D+2*r+1}")

KB, VB, DD, TM, PH = TMP, TMP + 8, TMP + 16, TMP + 32, TMP + 40
SCP = RING
SCV = RING + 16384
for r in range(8): a(f"v_cvt_pk_bf16_f32 v{KB+r}, v{ACC+2*r}, v{ACC+2*r+1}")
for r in range(8): a(f"v_cvt_pk_bf16_f32 v{VB+r}, v{AC2+2*r}, v{AC2+2*r+1}")
a(f"""v_and_b32 v13, 31, v0
v_bfe_u32 v14, v0, 1, 3
v_lshrrev_b32 v15, 5, v0
v_xor_b32 v14, v14, v15
v_lshlrev_b32 v14, 3, v14
v_lshl_add_u32 v13, v13, 6, v14
s_lshl_b32 s{t0}, s{sI}, 11
s_lshl_b32 s{t1}, s{sP}, 13
s_add_u32 s{t0}, s{t0}, s{t1}
s_add_u32 s{t0}, s{t0}, {SCP}
v_add_u32 v13, s{t0}, v13""")
assert SCP % 64 == 0
for aa in range(1, 4): a(f"v_xor_b32 v{TMP+48+aa}, {16*aa}, v13")
for hh in range(2):
    features(KB + 4 * hh, WPH + 4 * hh, PH, DD, TM)
    for aa in range(4):
        va = 13 if aa == 0 else TMP + 48 + aa
        a(f"ds_write_b64 v{va}, {vr(PH+2*aa,2)} offset:{hh*4096}")
check(False)
a(f"""s_lshl_b32 s{t0}, s{sS}, 11
s_add_u32 s{t0}, s{t0}, {SCV}
v_add_u32 v13, s{t0}, v{vL16}
ds_write_b128 v13, {vr(VB,4)}
ds_write_b128 v13, {vr(VB+4,4)} offset:1024""")
arrive()
KA, KBv, KD = TMP, TMP + 16, TMP + 32
a(f"s_mov_b32 s{t1}, 0x3f803f80\ns_mov_b32 s{t2}, 0x3f803f80")
for r in range(0, 16, 2): a(f"v_mov_b64 {vr(KBv+r,2)}, s[{t1}:{t2}]")
a(f"""s_lshl_b32 s{t3}, s{sP}, 1
s_add_u32 s{t3}, s{t3}, s{sI}
v_and_b32 v13, 15, v0
v_lshrrev_b32 v14, 5, v0
v_lshrrev_b32 v15, 2, v13
v_lshl_add_u32 v15, v14, 2, v15
v_lshrrev_b32 v{TMP+48}, 1, v15
v_bfe_u32 v{TMP+49}, v0, 4, 1
v_lshlrev_b32 v{TMP+49}, 2, v{TMP+49}
v_and_b32 v{TMP+50}, 3, v0
v_add_u32 v{TMP+49}, v{TMP+49}, v{TMP+50}
v_xor_b32 v{TMP+48}, v{TMP+48}, v{TMP+49}
v_lshlrev_b32 v{TMP+48}, 3, v{TMP+48}
v_lshl_add_u32 v15, v15, 6, v{TMP+48}
s_lshl_b32 s{t0}, s{t3}, 12
s_add_u32 s{t0}, s{t0}, {SCP}
v_add_u32 v15, s{t0}, v15
v_xor_b32 v{TMP+48}, 32, v15
v_lshlrev_b32 v13, 4, v13
v_lshl_add_u32 v13, v14, 9, v13
s_lshl_b32 s{t0}, s{sP}, 11
s_lshl_b32 s{t1}, s{sI}, 8
s_add_u32 s{t0}, s{t0}, s{t1}
s_add_u32 s{t0}, s{t0}, {SCV}
v_add_u32 v13, s{t0}, v13""")
check(False)
for u in range(4):
    a(f"ds_read_b64_tr_b16 {vr(KA+4*u,2)}, v15 offset:{u*1024}\nds_read_b64_tr_b16 {vr(KA+4*u+2,2)}, v{TMP+48} offset:{u*1024+512}")
a(f"s_mov_b32 exec_lo, 0xffff\ns_mov_b32 exec_hi, 0xffff")
for u in range(4):
    a(f"ds_read_b128 {vr(KBv+4*u,4)}, v13 offset:{(u//2)*4096 + (u%2)*1024}")
a("s_mov_b64 exec, -1")
arrive()
vLI = 13
a(f"""v_and_b32 v13, 31, v0
v_min_u32 v13, 16, v13
v_mad_u32_u24 v13, v14, 17, v13
v_lshlrev_b32 v14, 3, v13
s_lshl_b32 s{t0}, s{sHG}, 2
s_add_u32 s{t0}, s{t0}, s{t3}
s_lshl_b32 s{t0}, s{t0}, 8
s_add_u32 s{t0}, s{t0}, s{sRB}
s_mul_i32 s{t4}, s{t0}, 272
s_add_u32 s{t4}, s{t4}, {WS_PART}
s_waitcnt lgkmcnt(0)""")
for u in range(4):
    a(f"v_mfma_f32_32x32x16_bf16 {vr(KD,16)}, {vr(KA+4*u,4)}, {vr(KBv+4*u,4)}, {'0' if u == 0 else vr(KD,16)}")
a(f"s_mov_b32 exec_lo, 0x1ffff\ns_mov_b32 exec_hi, 0x1ffff")
for e in range(8):
    a(f"buffer_store_dwordx2 {vr(KD+2*e,2)}, v14, {sr(sWS,4)}, s{t4} offen sc1")
    if e < 7: a(f"s_add_u32 s{t4}, s{t4}, {32*272}")
a("s_mov_b64 exec, -1")
check(False)
dma_stage(9); dma_stage(10)
a(f"s_lshl_b32 s{t3}, s{t3}, 2\ns_add_u32 s{t3}, s{t3}, {4*F_F2}")
a("s_waitcnt vmcnt(8)")
rd_x(8, 0, 8); rd_stage_w(8, 0, 8)
set_flag(f"s{t3}", 14, 15)
stamp(6)
a("s_setprio 0")
for c in range(8, 12):
    a("s_waitcnt lgkmcnt(0)")
    f = FA[c % 2]
    mm = [f"v_mfma_f32_32x32x16_bf16 {vr(AC2,16)}, {vr(f+32+4*k,4)}, {vr(f+4*k,4)}, {'0' if (c == 8 and k == 0) else vr(AC2,16)}" for k in range(8)]
    pairs = [mm[2*k:2*k+2] for k in range(4)]
    def g0():
        a(f"s_waitcnt vmcnt({5 if c == 8 else 4})"); arrive()
        if c < 11: rd_x(c + 1, 8 * (c - 7), 8)
    def g1():
        check(True)
        if c < 11: rd_stage_w(c + 1, 0, 3)
        else:
            for k in range(3): rd_w(WB0 + 4 * k, vWO, k * 2048, 1024)
    def g2():
        if c < 11: rd_stage_w(c + 1, 3, 8)
        else:
            for k in range(3, 8): rd_w(WB0 + 4 * k, vWO, k * 2048, 1024)
            arrive()
    def g3():
        if c == 9: dma_base("o")
        if c < 11: dma_stage(c + 3)
    windows(pairs, [g0, g1, g2, g3])
a("s_setprio 2")
stamp(7)
a(f"s_cmp_lg_u32 s{sS}, 0\ns_cbranch_scc1 L_nored1")
a(f"""s_and_b32 s{t3}, s{sRB}, 3
s_lshl_b32 s{t0}, s{sHG}, 7
s_lshl_b32 s{t1}, s{t3}, 2
s_add_u32 s{t0}, s{t0}, s{t1}
s_add_u32 s{t0}, s{t0}, {WS_F + 4*F_F2}
v_and_b32 v14, 31, v0
v_lshlrev_b32 v14, 10, v14
v_add_u32 v14, s{t0}, v14""")
poll_flags(14, vT)
a(f"""s_lshl_b32 s{t0}, s{sHG}, 2
s_add_u32 s{t3}, s{t0}, s{t3}
s_lshl_b32 s{t0}, s{t3}, 3
s_lshr_b32 s{t2}, s{sRB}, 2
s_add_u32 s{t0}, s{t0}, s{t2}
s_mul_i32 s{t0}, s{t0}, {32*272}
s_add_u32 s{t0}, s{t0}, {WS_PART}
v_lshlrev_b32 v14, 3, v{vLI}
s_mov_b32 exec_lo, 0x1ffff
s_mov_b32 exec_hi, 0x1ffff""")
for n in range(32):
    if n and n % 8 == 0: a(f"s_add_u32 s{t0}, s{t0}, {8*272}")
    a(f"buffer_load_dwordx2 {vr(TMP+2*n,2)}, v14, {sr(sWS,4)}, s{t0} offen offset:{(n%8)*272} sc1")
a(f"""s_mul_i32 s{t0}, s{t3}, {KVF_STRIDE}
s_lshr_b32 s{t1}, s{t2}, 2
s_mul_i32 s{t1}, s{t1}, 544
s_add_u32 s{t0}, s{t0}, s{t1}
s_and_b32 s{t1}, s{t2}, 3
s_lshl_b32 s{t1}, s{t1}, 2
s_add_u32 s{t0}, s{t0}, s{t1}
s_add_u32 s{t0}, s{t0}, {WS_KVF}
v_lshlrev_b32 v14, 4, v{vLI}
s_waitcnt vmcnt(0)""")
st = 16
while st >= 1:
    for n in range(st): a(f"v_pk_add_f32 {vr(TMP+2*n,2)}, {vr(TMP+2*n,2)}, {vr(TMP+2*(n+st),2)}")
    st //= 2
a(f"""v_cvt_pk_bf16_f32 v15, v{TMP}, v{TMP+1}
buffer_store_dword v15, v14, {sr(sWS,4)}, s{t0} offen sc1
s_mov_b64 exec, -1
L_nored1:""")
dma_stage(14)
a(f"s_lshl_b32 s{t2}, s{sS}, 14\ns_lshl_b32 s{t3}, s{sS}, 17\ns_lshl_b32 s{t1}, s{sHG}, 7\ns_add_u32 s{t3}, s{t3}, s{t1}")
for n in range(16):
    a(f"s_add_u32 m0, s{t2}, {X + n*1024}\ns_add_u32 s{t1}, s{t3}, {n*8192}")
    a(f"buffer_load_dwordx4 v{vD1}, {sr(sWOA,4)}, s{t1} offen lds")
a(f"s_cmp_lg_u32 s{sS}, 0\ns_cbranch_scc1 L_nored2\ns_waitcnt vmcnt(20)")
set_flag(F_F3, 14, 15)
a("L_nored2:")
check(False)
dma_stage(15)
for r in range(8): a(f"v_cvt_pk_bf16_f32 v{KB+r}, v{AC2+2*r}, v{AC2+2*r+1}")
for hh in range(2): features(KB + 4 * hh, WPH + 4 * hh, PHQ + 8 * hh, DD, TM)
stamp(8)
def call_fin(): a(f"s_call_b64 s[{sRET}:{sRET+1}], L_fin\ns_nop 1")
a(f"s_cmp_eq_u32 s{sI}, 0\ns_cbranch_scc1 L_nofin0")
a(f"s_mov_b32 s{sJ}, s{sP}"); call_fin()
a(f"s_add_u32 s{sJ}, s{sP}, 2"); call_fin()
a("L_nofin0:")
a("s_waitcnt vmcnt(0)")
arrive()
a(f"""s_lshl_b32 s{t0}, s{sHG}, 7
s_add_u32 s{t0}, s{t0}, {WS_F + 4*F_F3}
v_and_b32 v14, 31, v0
v_lshlrev_b32 v14, 10, v14
v_add_u32 v14, s{t0}, v14""")
poll_flags(14, vT)
a(f"""s_lshl_b32 s{t3}, s{sHG}, 2
s_lshl_b32 s{t1}, s{sP}, 1
s_add_u32 s{t3}, s{t3}, s{t1}
s_mul_i32 s{t0}, s{t3}, {KVF_STRIDE}
s_add_u32 s{t0}, s{t0}, {WS_KVF}
v_lshlrev_b32 v14, 4, v{vLI}""")
for hh in range(2):
    for u in range(2):
        a(f"buffer_load_dwordx4 {vr(TMP+8*hh+4*u,4)}, v14, {sr(sWS,4)}, s{t0} offen offset:{hh*KVF_STRIDE + u*544} sc1")
a(f"""s_lshl_b32 s{sD0}, s{sRB}, 1
s_add_u32 s{sD0}, s{sD0}, s{sI}
s_lshl_b32 s{sD0}, s{sD0}, 16
s_add_u32 s{sD0}, s{sD0}, {WS_O}
s_lshl_b32 s{t3}, s{t3}, 10
s_add_u32 s{t3}, s{t3}, s{sD0}
s_add_u32 s{t3}, s{t3}, 32768
v_sub_f32 v15, 1.0, v{vGI}
s_waitcnt vmcnt(0)""")
for hh in range(2):
    D = TMP + 16 + 16 * hh
    a(f"v_mfma_f32_32x32x16_bf16 {vr(D,16)}, {vr(TMP+8*hh,4)}, {vr(PHQ+8*hh,4)}, 0")
    a(f"v_mfma_f32_32x32x16_bf16 {vr(D,16)}, {vr(TMP+8*hh+4,4)}, {vr(PHQ+8*hh+4,4)}, {vr(D,16)}")
for hh in range(2):
    D = TMP + 16 + 16 * hh
    a(f"v_add_f32 v{D+8}, 0x358637bd, v{D+8}\nv_rcp_f32 v{D+8}, v{D+8}\nv_mul_f32 v{D+8}, v{D+8}, v15")
    for r in range(0, 8, 2): a(f"v_pk_mul_f32 {vr(D+r,2)}, {vr(D+r,2)}, {vr(D+8,2)} op_sel_hi:[1,0]")
    for r in range(4): a(f"v_cvt_pk_bf16_f32 v{D+12+r}, v{D+2*r}, v{D+2*r+1}")
    a(f"buffer_store_dwordx4 {vr(D+12,4)}, v{vL16}, {sr(sWS,4)}, s{t3} offen offset:{hh*1024} sc1")
a(f"s_lshl_b32 s{t3}, s{sS}, 2\ns_add_u32 s{t3}, s{t3}, {4*F_OB}\ns_waitcnt vmcnt(0)")
set_flag(f"s{t3}", 14, 15)
check(False)
stamp(9)
vPF = 13
a(f"""s_lshl_b32 s{t0}, s{sRB}, 10
s_add_u32 s{t0}, s{t0}, {WS_F}
v_and_b32 v{vPF}, 7, v0
v_lshlrev_b32 v{vPF}, 7, v{vPF}
v_add_u32 v{vPF}, s{t0}, v{vPF}""")

OF = [TMP, TMP + 32]; WF = [TMP + 64, TMP + 96]
def proj(batches, first):
    def loads(b):
        last = None
        for k, (ro, _) in enumerate(batches[b]):
            hi, lo = ro & ~4095, ro & 4095
            if hi != last: a(f"s_add_u32 s{t1}, s{sD0}, {hi}"); last = hi
            a(f"buffer_load_dwordx4 {vr(OF[b%2]+4*k,4)}, v{vL16}, {sr(sWS,4)}, s{t1} offen offset:{lo} sc1")
    def wreads(b, lo, hi):
        for k, (_, w) in list(enumerate(batches[b]))[lo:hi]:
            if w[0] == "lds": rd_w(WF[b % 2] + 4 * k, w[1], w[2], 1024)
    loads(0); wreads(0, 0, 8)
    if len(batches) > 1: loads(1)
    a("s_setprio 0")
    for b in range(len(batches)):
        more = b + 1 < len(batches)
        a(f"s_waitcnt vmcnt({8 if more else 0}) lgkmcnt(0)")
        mm = []
        for k, (_, w) in enumerate(batches[b]):
            wr = WF[b % 2] + 4 * k if w[0] == "lds" else w[1]
            mm.append(f"v_mfma_f32_32x32x16_bf16 {vr(ACC,16)}, {vr(wr,4)}, {vr(OF[b%2]+4*k,4)}, {'0' if (first and b == 0 and k == 0) else vr(ACC,16)}")
        fill = []
        if more: fill = [lambda: wreads(b + 1, 0, 4), lambda: wreads(b + 1, 4, 8), lambda: None,
                         (lambda: loads(b + 2)) if b + 2 < len(batches) else (lambda: None)]
        windows([mm[2*k:2*k+2] for k in range(4)], fill)
    a("s_setprio 2")
def bpart(first):
    a(f"""v_bfe_u32 v14, v0, 3, 1
    s_lshl_b32 s{t0}, s{sI}, 3
    v_lshl_add_u32 v14, v14, 2, v{vPF}
    v_add_u32 v14, s{t0}, v14""")
    poll_flags(14, vT, 4 * F_OB)
    bs = []
    for b in range(4):
        bs.append([(32768 + (8*b+k) * 1024, ("reg", WB0 + 4*k) if b == 0 else ("lds", vWO, ((12+b) % 3) * 16384 + k * 2048)) for k in range(8)])
    proj(bs, first)
def store_out():
    a(f"""v_and_b32 v14, 31, v0
    v_lshlrev_b32 v14, 10, v14
    v_lshrrev_b32 v15, 5, v0
    v_lshl_add_u32 v14, v15, 4, v14
    s_lshl_b32 s{t0}, s{sRB}, 16
    s_lshl_b32 s{t1}, s{sI}, 15
    s_add_u32 s{t0}, s{t0}, s{t1}
    s_lshl_b32 s{t1}, s{sHG}, 7
    s_add_u32 s{t0}, s{t0}, s{t1}
    s_lshl_b32 s{t1}, s{sP}, 6
    s_add_u32 s{t0}, s{t0}, s{t1}""")
    for r in range(8): a(f"v_cvt_pk_bf16_f32 v{TMP+r}, v{ACC+2*r}, v{ACC+2*r+1}")
    for kk in range(2):
        b = TMP + 4 * kk
        a(f"v_permlane32_swap_b32 v{b}, v{b+2}\nv_permlane32_swap_b32 v{b+1}, v{b+3}")
        a(f"buffer_store_dwordx4 {vr(b,4)}, v14, {sr(sOUT,4)}, s{t0} offen offset:{kk*32}")

a(f"s_cmp_eq_u32 s{sI}, 1\ns_cbranch_scc1 L_half1")
a(f"v_bfe_u32 v14, v0, 3, 2\nv_lshl_add_u32 v14, v14, 2, v{vPF}")
poll_flags(14, vT, 4 * F_OA)
proj([[((8*b+k) * 1024, ("lds", vWOA, (8*b+k) * 2048)) for k in range(8)] for b in range(4)], True)
stamp(10)
a(f"s_add_u32 s{sJ}, s{sP}, 4"); call_fin()
bpart(False)
store_out()
stamp(11)
a(f"s_add_u32 s{sJ}, s{sP}, 6"); call_fin()
stamp(12)
diag_dump(13)
a("s_endpgm")
a("L_half1:")
bpart(True)
stamp(10)
for j in range(4, 8):
    poll_flags(vPF, vT, 4 * (F_OA + j), nap=1)
    if j == 7: stamp(11)
    proj([[((4*k + j - 4) * 1024, ("lds", vWOA, (4*k + j - 4) * 2048)) for k in range(8)]], False)
store_out()
stamp(12)
diag_dump(13)
hold()
if os.environ.get("HOLD"):
    a(f"""L_hold:
    s_memrealtime s[96:97]
    s_waitcnt lgkmcnt(0)
    s_sub_u32 s96, s96, s{sNON}
    s_cmp_lt_u32 s96, {os.environ["HOLD"]}
    s_cbranch_scc1 L_hold""")
a("L_exit:\ns_endpgm")

FO = TMP
FL = TMP + 32
a("L_fin:\ns_nop 1")
lp, dn = a.lab("fw"), a.lab("fwd")
a(f"""s_and_b32 s{t2}, s{sJ}, 3
s_lshl_b32 s{t0}, s{t2}, 10
s_add_u32 s{t0}, s{t0}, {LT}
v_and_b32 v14, 3, v0
v_lshlrev_b32 v14, 8, v14
v_add_u32 v14, s{t0}, v14
v_and_b32 v15, 31, v0
v_lshl_add_u32 v15, v15, 2, s{t0}
s_lshl_b32 s{t1}, s{sJ}, 10
s_add_u32 s{t1}, s{t1}, {Q + 1024}
s_lshl_b32 s{t2}, s{t2}, 13
s_add_u32 s{t2}, s{t2}, {OP}
v_add_u32 v{FL+4}, s{t2}, v{vL16}
{lp}:
ds_read_b32 v{vT}, v14 offset:128
s_waitcnt lgkmcnt(0)
v_cmp_gt_u32 vcc, s{t1}, v{vT}
s_cbranch_vccz {dn}""")
budget_retry(lp, dn, 1)
a(f"{dn}:")
for w in range(4):
    a(f"ds_read_b128 {vr(FO+8*w,4)}, v{FL+4} offset:{w*2048}\nds_read_b128 {vr(FO+8*w+4,4)}, v{FL+4} offset:{w*2048+1024}\nds_read_b32 v{FL+w}, v15 offset:{w*256}")
a(f"""s_lshl_b32 s{t0}, s{sJ}, 2
s_add_u32 s{t0}, s{t0}, {CONS + 16}
v_mov_b32 v14, s{t0}
ds_write_b32 v14, v{vONE}
s_lshr_b32 s{t0}, s{sJ}, 2
s_lshl_b32 s{t2}, s{sRB}, 1
s_add_u32 s{t0}, s{t0}, s{t2}
s_lshl_b32 s{t0}, s{t0}, 6
s_lshl_b32 s{t2}, s{sHG}, 2
s_add_u32 s{t0}, s{t0}, s{t2}
s_and_b32 s{t2}, s{sJ}, 3
s_add_u32 s{t0}, s{t0}, s{t2}
s_lshl_b32 s{t4}, s{t0}, 10
s_add_u32 s{t4}, s{t4}, {WS_O}
s_waitcnt lgkmcnt(0)""")
for r in range(0, 8, 2):
    a(f"v_pk_add_f32 {vr(FO+r,2)}, {vr(FO+r,2)}, {vr(FO+8+r,2)}\nv_pk_add_f32 {vr(FO+16+r,2)}, {vr(FO+16+r,2)}, {vr(FO+24+r,2)}")
a(f"v_pk_add_f32 {vr(FL,2)}, {vr(FL,2)}, {vr(FL+2,2)}")
for r in range(0, 8, 2): a(f"v_pk_add_f32 {vr(FO+r,2)}, {vr(FO+r,2)}, {vr(FO+16+r,2)}")
a(f"v_add_f32 v{FO+8}, v{FL}, v{FL+1}")
a(f"""v_pk_mul_f32 {vr(FO+10,2)}, {vr(FO,2)}, 0 op_sel_hi:[1,0]
v_pk_fma_f32 {vr(FO+10,2)}, {vr(FO+2,2)}, 0, {vr(FO+10,2)} op_sel_hi:[1,0,1]
v_pk_fma_f32 {vr(FO+10,2)}, {vr(FO+4,2)}, 0, {vr(FO+10,2)} op_sel_hi:[1,0,1]
v_pk_fma_f32 {vr(FO+10,2)}, {vr(FO+6,2)}, 0, {vr(FO+10,2)} op_sel_hi:[1,0,1]
v_add_f32 v{FO+10}, v{FO+10}, v{FO+11}
v_add_f32 v{FO+10}, v{FO+10}, v{FO+8}
v_cmp_nle_f32 vcc, {hex((127-40)<<23)}, v{FO+10}
s_cbranch_vccnz L_fb
v_cmp_nge_f32 vcc, {hex((127+60)<<23)}, v{FO+10}
s_cbranch_vccnz L_fb""")
if FORCE_FB: a("s_branch L_fb")
a(f"""L_fin_norm:
v_rcp_f32 v{FO+8}, v{FO+8}
v_mul_f32 v{FO+8}, v{FO+8}, v{vGO}""")
for r in range(0, 8, 2): a(f"v_pk_mul_f32 {vr(FO+r,2)}, {vr(FO+r,2)}, {vr(FO+8,2)} op_sel_hi:[1,0]")
for r in range(4): a(f"v_cvt_pk_bf16_f32 v{FO+12+r}, v{FO+2*r}, v{FO+2*r+1}")
a(f"""buffer_store_dwordx4 {vr(FO+12,4)}, v{vL16}, {sr(sWS,4)}, s{t4} offen sc1
s_lshl_b32 s{t3}, s{sJ}, 2
s_add_u32 s{t3}, s{t3}, {4*F_OA}
s_waitcnt vmcnt(0)""")
set_flag(f"s{t3}", 14, 15)
a(f"s_setpc_b64 s[{sRET}:{sRET+1}]")
BS, BC, BK, BV, BQ, BM = TMP + 16, TMP + 32, TMP + 48, TMP + 52, TMP + 60, TMP + 64
a(f"""L_fb:
s_sub_u32 s{t1}, s{t1}, 1024
v_add_u32 v14, s{t1}, v{vL16}
ds_read_b128 {vr(BQ,4)}, v14
v_mov_b32 v{BM}, 0xff800000
s_mov_b32 s{t0}, 0
s_waitcnt lgkmcnt(0)
L_fb1:
buffer_load_dwordx4 {vr(BK,4)}, v{vL16}, {sr(sWS,4)}, s{t0} offen sc1
s_waitcnt vmcnt(0)
v_mfma_f32_32x32x16_bf16 {vr(BS,16)}, {vr(BK,4)}, {vr(BQ,4)}, 0""")
for r in range(0, 16, 2): a(f"v_max3_f32 v{BM}, v{BM}, v{BS+r}, v{BS+r+1}")
a(f"""s_add_u32 s{t0}, s{t0}, 1024
s_cmp_lt_u32 s{t0}, 65536
s_cbranch_scc1 L_fb1
v_mov_b32 v{BM+1}, v{BM}
v_permlane32_swap_b32 v{BM}, v{BM+1}
v_max_f32 v{BM}, v{BM}, v{BM+1}""")
for r in range(16): a(f"v_sub_f32 v{BC+r}, 0, v{BM}\nv_mov_b32 v{FO+r}, 0")
for r in range(8): a(f"v_mov_b32 v{BV+r}, 0x3f803f80")
a(f"""v_lshrrev_b32 v14, 5, v0
v_and_b32 v15, 15, v0
v_lshlrev_b32 v15, 4, v15
v_lshl_add_u32 v14, v14, 8, v15
v_add_u32 v14, {WS_V}, v14
v_mov_b32 v15, 0xdddd
s_mov_b32 s{t0}, 0
L_fb2:
buffer_load_dwordx4 {vr(BK,4)}, v{vL16}, {sr(sWS,4)}, s{t0} offen sc1
s_mov_b32 exec_lo, 0xffff
s_mov_b32 exec_hi, 0xffff
buffer_load_dwordx4 {vr(BV,4)}, v14, {sr(sWS,4)}, s{t0} offen sc1
buffer_load_dwordx4 {vr(BV+4,4)}, v14, {sr(sWS,4)}, s{t0} offen offset:512 sc1
s_mov_b64 exec, -1
s_waitcnt vmcnt(0)
v_mfma_f32_32x32x16_bf16 {vr(BS,16)}, {vr(BK,4)}, {vr(BQ,4)}, {vr(BC,16)}""")
for r in range(16): a(f"v_exp_f32 v{BS+r}, v{BS+r}")
a(f"""v_smfmac_f32_32x32x32_bf16 {vr(FO,16)}, {vr(BV,4)}, {vr(BS,8)}, v15
v_smfmac_f32_32x32x32_bf16 {vr(FO,16)}, {vr(BV+4,4)}, {vr(BS+8,8)}, v15
s_add_u32 s{t0}, s{t0}, 1024
s_cmp_lt_u32 s{t0}, 65536
s_cbranch_scc1 L_fb2
s_nop 9
s_branch L_fin_norm
CODE_END:""")

body = a.finish(verbose=bool(os.environ.get("VERBOSE")))
ref = open("cdna_kernels/" + NAME + ".s.ref").read().split("\n")
hdr = [l for l in ref if l.startswith(";") and "@launch" not in l and "Override" not in l and "grid=ceil" not in l]
out = "\n".join(hdr) + f"""
; @launch grid=(256,1,1) block=(512,1,1) lds={LDS_BYTES}
.amdgcn_target "amdgcn-amd-amdhsa--gfx950"
.text
.globl {NAME}_kernel
.p2align 8
.type {NAME}_kernel,@function
{NAME}_kernel:
{body}.section .rodata,"a"
.p2align 6
.amdhsa_kernel {NAME}_kernel
  .amdhsa_next_free_vgpr 256
  .amdhsa_next_free_sgpr 102
  .amdhsa_accum_offset 256
  .amdhsa_group_segment_fixed_size 0
  .amdhsa_kernarg_size 104
  .amdhsa_user_sgpr_count 2
  .amdhsa_user_sgpr_kernarg_segment_ptr 1
  .amdhsa_system_sgpr_workgroup_id_x 1
.end_amdhsa_kernel
"""
dst = sys.argv[1] if len(sys.argv) > 1 else "cdna_kernels/" + NAME + ".s"
open(dst, "w").write(out)
print("wrote", dst, len(a.lines), "lines,", len(a.inserted), "nops inserted")
```

```python
import re

TRANS = ("v_exp_f32", "v_log_f32", "v_rcp_f32", "v_rsq_f32", "v_sqrt_f32", "v_sin_f32", "v_cos_f32")

def regs_of(op):
    op = op.strip()
    op = op.replace("abs(", "").replace(")", "").replace("|", "")
    if op.startswith("-"): op = op[1:]
    m = re.fullmatch(r"([vs])(\d+)", op)
    if m: return {(m.group(1), int(m.group(2)))}
    m = re.fullmatch(r"([vs])\[(\d+):(\d+)\]", op)
    if m: return {(m.group(1), i) for i in range(int(m.group(2)), int(m.group(3)) + 1)}
    if op in ("vcc", "vcc_lo", "vcc_hi"): return {("x", "vcc")}
    if op in ("exec", "exec_lo", "exec_hi"): return {("x", "exec")}
    if op == "m0": return {("x", "m0")}
    return set()

class Ins:
    def __init__(self, text):
        self.text = text
        t = text.split(";")[0].strip()
        self.label = None; self.mn = None; self.ops = []
        self.dst = set(); self.src = set(); self.srcC = set(); self.srcAB = set(); self.data = set()
        if not t or t.startswith("."):
            self.kind = "dir"; return
        if t.endswith(":"):
            self.kind = "label"; self.label = t[:-1]; return
        parts = t.split(None, 1)
        mn = self.mn = parts[0]
        rest = parts[1] if len(parts) > 1 else ""
        ops = [o.strip() for o in re.split(r",(?![^\[]*\])", rest)] if rest else []
        mods = ""
        if ops:
            sp = ops[-1].split(None, 1)
            ops[-1] = sp[0]
            if len(sp) > 1: mods = sp[1]
        self.ops = ops; self.mods = mods
        R = [regs_of(o) for o in ops]
        U = lambda l: set().union(*l) if l else set()
        if mn.startswith("v_mfma") or mn.startswith("v_smfmac"):
            self.kind = "mfma"
            self.passes = 8 if "32x32" in mn else 4
            self.dst = R[0]
            if mn.startswith("v_mfma"):
                self.srcAB = R[1] | R[2]; self.srcC = R[3]
            else:
                self.srcAB = R[1] | R[2] | R[3]; self.srcC = R[0]
            self.src = self.srcAB | self.srcC
        elif mn.startswith("v_"):
            self.kind = "valu"
            if mn.startswith("v_permlane"):
                self.dst = R[0] | R[1]; self.src = R[0] | R[1]
            elif mn.startswith("v_nop"):
                pass
            else:
                self.dst = R[0]; self.src = U(R[1:])
                if mn.startswith("v_add_co") or mn.startswith("v_addc_co") or mn.startswith("v_sub_co"):
                    self.dst = R[0] | R[1]; self.src = U(R[2:])
                if "fmac" in mn or mn.startswith("v_writelane") or "dot2c" in mn or "_dpp" in mn or "_sdwa" in mn: self.src |= R[0]
                if mn.startswith("v_cmpx"): self.dst |= {("x", "exec")}
        elif mn.startswith("ds_"):
            self.kind = "ds"
            if mn.startswith("ds_read") or "_rtn" in mn or "permute" in mn or "swizzle" in mn:
                self.dst = R[0]; self.src = U(R[1:])
            else:
                self.src = U(R)
        elif mn.startswith("buffer_") or mn.startswith("global_"):
            self.kind = "vmem"
            words = mods.split()
            if mn.startswith("buffer_wbl2") or mn.startswith("buffer_inv"): return
            if "load" in mn and ("lds" in words or "_lds_" in mn):
                self.src = U(R) | {("x", "m0")}; self.ldsdma = True
            elif "load" in mn:
                self.dst = R[0]; self.src = U(R[1:])
            else:
                self.src = U(R)
                if mn.startswith("buffer_store_dwordx4") or mn.startswith("buffer_store_dwordx3"): self.data = R[0]
                if "atomic" in mn and "sc0" in words: self.dst = R[0]
        elif mn.startswith("s_"):
            self.kind = "salu"
            nod = ("s_cmp", "s_waitcnt", "s_branch", "s_cbranch", "s_barrier", "s_nop", "s_setprio", "s_sleep", "s_endpgm", "s_bitcmp", "s_setpc")
            if mn.startswith(nod): self.src = U(R)
            else:
                self.dst = R[0] if R else set(); self.src = U(R[1:])
                if "saveexec" in mn: self.dst |= {("x", "exec")}
        else:
            raise ValueError("unknown instr " + text)
    def ws(self):
        if self.kind in ("dir", "label"): return 0
        if self.mn == "s_nop": return int(self.ops[0], 0) + 1
        return 1

def need(p, c):
    n = 0
    vg = lambda s: {r for r in s if r[0] == "v"}
    sg = lambda s: {r for r in s if r[0] == "s" or r == ("x", "vcc")}
    if p.kind == "valu":
        pv = vg(p.dst); ps = sg(p.dst)
        if c.kind == "mfma" and pv & c.src: n = max(n, 2)
        if c.kind == "valu":
            if p.mn.startswith(TRANS) and not c.mn.startswith(TRANS) and pv & c.src: n = max(n, 1)
            if c.mn.startswith(("v_readlane", "v_readfirstlane")) and pv & c.src: n = max(n, 1)
            if (c.mn.startswith("v_permlane") or "_dpp" in c.mn) and pv & c.src: n = max(n, 2)
            if ps & c.src: n = max(n, 4 if c.mn.startswith(("v_readlane", "v_writelane")) else 2)
            if ("op_sel" in getattr(p, "mods", "") and not p.mn.startswith("v_pk_") or "_sdwa" in p.mn) and pv & (c.src | c.dst): n = max(n, 1)
        if p.mn.startswith("v_dot") and c.mn != p.mn and pv & (c.src | c.dst): n = max(n, 3)
        if c.kind == "vmem" and ps & c.src: n = max(n, 5)
        if ("x", "exec") in p.dst and c.kind in ("mfma", "valu"): n = max(n, 5)
        if p.mn.startswith(TRANS) and c.kind in ("ds", "vmem") and pv & c.src: n = max(n, 1)
    if p.kind == "mfma":
        big = {8: 12, 4: 8}[p.passes]
        if c.kind == "mfma":
            if p.dst & c.srcAB: n = max(n, big)
            if p.dst & c.srcC:
                if not (p.dst == c.srcC and p.passes == c.passes): n = max(n, {8: 10, 4: 6}[p.passes])
            elif p.dst & c.dst and p.passes != c.passes: n = max(n, big)
        if c.kind == "valu":
            if p.dst & (c.src | c.dst): n = max(n, big)
            if p.srcC & c.dst: n = max(n, {8: 7, 4: 3}[p.passes])
        if c.kind in ("ds", "vmem") and p.dst & (c.src | c.dst): n = max(n, big)
    if p.kind == "salu" and ("x", "m0") in p.dst and getattr(c, "ldsdma", False): n = max(n, 1)
    if p.kind == "vmem" and p.data and c.kind in ("valu", "mfma", "ds", "vmem") and p.data & c.dst: n = max(n, 2)
    return n

class Asm:
    def __init__(self):
        self.lines = []
        self.uid = 0
    def __call__(self, s):
        for l in s.split("\n"):
            l = l.strip()
            if l: self.lines.append(l)
    def lab(self, base):
        self.uid += 1
        return f"L{base}_{self.uid}"
    def finish(self, verbose=False):
        ins = [Ins(l) for l in self.lines]
        def build():
            lab = {x.label: i for i, x in enumerate(ins) if x.kind == "label"}
            pred = [[] for _ in ins]
            for i, x in enumerate(ins):
                fall = True
                if x.kind == "salu":
                    if x.mn in ("s_branch", "s_endpgm", "s_setpc_b64"): fall = False
                    if x.mn == "s_branch" or x.mn.startswith("s_cbranch"):
                        pred[lab[x.ops[0]]].append(i)
                if fall and i + 1 < len(ins): pred[i + 1].append(i)
            return pred
        inserted = []
        pred = build()
        i = 0
        while i < len(ins):
            c = ins[i]
            if c.kind in ("dir", "label", "salu"):
                i += 1; continue
            deficit = 0; why = None
            stack = [(j, 0) for j in pred[i]]
            seen = {}
            while stack:
                j, d = stack.pop()
                if d >= 12 or seen.get(j, 99) <= d: continue
                seen[j] = d
                p = ins[j]
                if p.kind not in ("dir", "label"):
                    k = need(p, c) - d
                    if k > deficit: deficit = k; why = p.text
                for q in pred[j]: stack.append((q, d + p.ws()))
            if deficit > 0:
                ins.insert(i, Ins(f"s_nop {deficit-1}"))
                inserted.append((c.text, why, deficit))
                pred = build()
                i += 1
            i += 1
        self.inserted = inserted
        if verbose:
            for t, w, d in inserted: print(f"nop {d}: [{w}] -> [{t}]")
        out = []
        for x in ins:
            out.append(x.text if x.kind in ("label", "dir") else "    " + x.text)
        return "\n".join(out) + "\n"

def vr(a, n=1): return f"v{a}" if n == 1 else f"v[{a}:{a+n-1}]"
def sr(a, n=1): return f"s{a}" if n == 1 else f"s[{a}:{a+n-1}]"

class Cnt:
    def __init__(self, cap): self.q = []; self.cap = cap
    def issue(self, tag, n=1): self.q += [tag] * n
    def need(self, tag):
        idx = [i for i, t in enumerate(self.q) if t == tag]
        if not idx: return None
        n = len(self.q) - 1 - idx[-1]
        n = min(n, self.cap)
        self.q = self.q[len(self.q) - n:] if n else []
        return n
    def clear(self): self.q = []
```

```python
import sys, os
from asmlib import Asm, Cnt, vr, sr

NAME = "gated_mix__grouped_kv_mqa__linear_kernel_hedgehog__prompt"
E = lambda k, d: int(os.environ.get(k, d))
DIAG = E("DIAG", 0); FORCE_FB = E("FORCE_FB", 0); TOUCH = E("TOUCH", 5); NOB = E("NOB", 0); PRE = E("PRE", 4)
FLAGAT = E("FLAGAT", 1); FNAP = E("FNAP", 2); SIGT = E("SIGT", 9); KVT = E("KVT", 1)
HOLDAT = os.environ.get("HOLDAT")

X = 0; XS = 1040
Q = 66560
OP = 74752
RING = 107520
LT = 156672
MISC = 160768
WKV = OP; WQB = OP + 16384
WPHI = Q
NONCE = MISC; CONS = MISC + 16; SYNC = MISC + 64
G = MISC + 512; GATE = MISC + 2048
LDS_BYTES = 163840
WS_KV = 0; WS_KVF = 0x20000; WS_DIAG = 0x40000; WS_F = 0x80000
WS_PART = 0x100000; WS_O = 0x400000; WS_SIZE = 0x800000
KVF_STRIDE = 1152; PREC = 320
F_KV, F_F2, F_F3, F_OB, F_OA = 0, 1, 2, 3, 4
FP = 0x8000
pX, pWQ, pWK, pWV, pWOA, pBX, pWQKV, pWPHI, pWOB, pGATE, pOUT, pDBG, pWS = [4 + 2 * i for i in range(13)]
sX, sWQ, sWKV, sWB, sWOA, sWOB, sWS, sOUT, sDBG, sSM = [32 + 4 * i for i in range(10)]
sW, sRB, sHG, sL, sNON, sBUD, sS, sI, sP = 72, 73, 74, 75, 76, 77, 78, 79, 80
t0, t1, t2, t3, t4, t5 = 81, 82, 83, 84, 85, 86
sJ = 87; sRET = 88
sL2E = 90
sFL = 92
sD0, sD1 = 93, 94
sPF = 95
sST = 4
LOG2E = 0x3fb8aa3b
QSCALE = 0x3eb8aa3b
ONES = 0x3f803f80

a = Asm()
role = ["E"]
XST = os.environ.get("XST", "").split(",") if os.environ.get("XST") else []
def xs(name):
    if DIAG and name in XST: a(f"s_memrealtime {sr(sST + 2 * XST.index(name), 2)}")
def stamp(n):
    if DIAG and XST and role[0] == "S": xs(f"s{n}")
    elif DIAG: a(f"s_memrealtime {sr(sST + 2 * n, 2)}")
    if HOLDAT == f"{role[0]}{n}": a("s_memrealtime s[100:101]")
def hold():
    if HOLDAT and (HOLDAT[0] == role[0] or (HOLDAT[0] == "E" and role[0] == "S")):
        l = a.lab("hold")
        a(f"{l}:\ns_memrealtime s[96:97]\ns_waitcnt lgkmcnt(0)\ns_sub_u32 s96, s96, s100\ns_cmp_lt_u32 s96, 4000\ns_cbranch_scc1 {l}")
def srd(d, p, size):
    a(f"s_mov_b32 s{d}, s{p}\ns_mov_b32 s{d+1}, s{p+1}\ns_mov_b32 s{d+2}, {hex(size)}\ns_mov_b32 s{d+3}, 0x20000")
def budget(done):
    a(f"s_cmp_eq_u32 s{sBUD}, 0\ns_cbranch_scc1 {done}\ns_sub_u32 s{sBUD}, s{sBUD}, 1")
cold = []
def emit_cold():
    while cold: cold.pop(0)()
def poll_issue(vaddr, vtmp, plane):
    a(f"s_mov_b32 s{t0}, {WS_F + plane*FP}\nbuffer_load_dword v{vtmp}, v{vaddr}, {sr(sWS,4)}, s{t0} offen sc1")
def poll_check(vaddr, vtmp, plane, nap=4):
    lp, dn = a.lab("pf"), a.lab("pfd")
    a(f"v_cmp_ne_u32 vcc, s{sNON}, v{vtmp}\ns_cbranch_vccnz {lp}\n{dn}:")
    def slow():
        a(f"{lp}:"); budget(dn)
        if nap: a(f"s_sleep {nap}")
        poll_issue(vaddr, vtmp, plane)
        a(f"s_waitcnt vmcnt(0)\nv_cmp_ne_u32 vcc, s{sNON}, v{vtmp}\ns_cbranch_vccnz {lp}\ns_branch {dn}")
    cold.append(slow)
def put_flag(soff, vnon, vl4):
    a(f"s_mov_b32 exec_hi, 0\nbuffer_store_dword v{vnon}, v{vl4}, {sr(sWS,4)}, s{soff} offen sc1\ns_mov_b32 exec_hi, -1")
def diag_dump(n):
    if not DIAG: return
    a("s_waitcnt lgkmcnt(0)")
    a(f"s_lshl_b32 s{t0}, s{sL}, 3\ns_add_u32 s{t0}, s{t0}, s{sW}\ns_lshl_b32 s{t0}, s{t0}, 6\ns_add_u32 s{t0}, s{t0}, {WS_DIAG}")
    a("v_mov_b32 v8, 0")
    for i in range(14): a(f"v_writelane_b32 v8, s{sST+2*i}, {i}")
    a("v_writelane_b32 v8, s100, 14")
    a(f"""v_mbcnt_lo_u32_b32 v9, -1, 0
    v_mbcnt_hi_u32_b32 v9, -1, v9
    v_lshlrev_b32 v9, 2, v9
    s_mov_b64 exec, 0xffff
    buffer_store_dword v8, v9, {sr(sWS,4)}, s{t0} offen
    s_mov_b64 exec, -1""")
def dma_lane_addrs():
    a(f"""v_lshrrev_b32 v11, 3, v0
    v_and_b32 v12, 7, v0
    v_lshrrev_b32 v13, 2, v0
    v_and_b32 v13, 4, v13
    v_xor_b32 v12, v12, v13
    v_lshlrev_b32 v12, 4, v12
    v_lshl_add_u32 v9, v11, 10, v12
    v_mul_u32_u24 v8, 3072, v11
    v_add_u32 v8, v8, v12""")
def xrows(n):
    for r in range(n):
        a(f"s_add_u32 m0, s{sD0}, {X + (r//4)*4*XS + (r%4)*16}")
        if r % 4 == 0 and r: a(f"s_add_u32 s{sD1}, s{sD1}, 4096")
        a(f"buffer_load_dwordx4 v10, {sr(sX,4)}, s{sD1} offen offset:{(r%4)*1024} lds")
X0, X1, X2, X3 = X, X + 16384, X + 32768, X + 49152
R0, R1, R2 = RING, RING + 16384, RING + 32768
STG = [X0, X1, X2, X3, R0, R1, R2, X0,   X1, X2, X3, R0,   X0, R1, R2, R0]
W_ST, W_KV = 0, 1
nword = [2]

if HOLDAT == "E0" or DIAG: a("s_memrealtime s[100:101]")
a(f"""s_cmp_ge_u32 s2, 256
s_cbranch_scc1 L_exit
s_load_dwordx16 s[4:19], s[0:1], 0
s_load_dwordx8 s[20:27], s[0:1], 64
s_load_dwordx2 s[28:29], s[0:1], 96
s_getpc_b64 s[{sSM}:{sSM+1}]
s_mov_b32 s{sSM+2}, CODE_END - .
s_mov_b32 s{sSM+3}, 0x20000
v_lshlrev_b32 v2, 7, v0
v_lshrrev_b32 v1, 6, v0
buffer_load_dword v3, v2, {sr(sSM,4)}, 0 offen
v_and_b32 v0, 63, v0
v_readfirstlane_b32 s{sW}, v1
s_and_b32 s{t0}, s2, 7
s_lshr_b32 s{t1}, s2, 3
s_lshr_b32 s{t2}, s{t0}, 1
s_lshl_b32 s{t2}, s{t2}, 3
s_lshr_b32 s{t3}, s{t1}, 2
s_add_u32 s{sRB}, s{t2}, s{t3}
s_and_b32 s{t2}, s{t0}, 1
s_lshl_b32 s{t2}, s{t2}, 2
s_and_b32 s{t5}, s{t1}, 3
s_add_u32 s{sHG}, s{t2}, s{t5}
s_lshl_b32 s{sL}, s{sRB}, 3
s_add_u32 s{sL}, s{sL}, s{sHG}
s_mov_b32 s{sBUD}, 400000
s_lshl_b32 s{sFL}, s{sL}, 7
s_add_u32 s{sFL}, s{sFL}, {WS_F}
v_lshlrev_b32 v10, 4, v0
s_cmp_ge_u32 s{sW}, 4
s_cbranch_scc1 L_sw
s_cmp_lg_u32 s{sW}, 0
s_cbranch_scc1 L_aw123""")
role[0] = "A"
S0, S1, O_, QR, KR, VR = 12, 28, 44, 60, 64, 128
vIDX, vZ, vQA, vPA, vLA, vCA, vCV = 1, 2, 4, 5, 6, 7, 8
JX, JW, JA = KR, KR + 64, O_
aNON = O_ + 8
def vconst():
    a(f"""v_and_b32 v12, 11, v0
    v_cmp_eq_u32 vcc, 0, v12
    v_mov_b32 v13, {hex(ONES)}
    v_cndmask_b32 v12, 0, v13, vcc
    v_cndmask_b32 v13, 0, v13, vcc""")
    for t in range(16): a(f"v_mov_b64 {vr(VR+8*t+4,2)}, v[12:13]\nv_mov_b64 {vr(VR+8*t+6,2)}, v[12:13]")
a(f"""s_mul_i32 s{sD0}, s{t5}, {16*XS}
s_lshl_b32 s{sD1}, s{sRB}, 16
s_lshl_b32 s{t2}, s{t5}, 14
s_add_u32 s{sD1}, s{sD1}, s{t2}
s_waitcnt lgkmcnt(0)""")
srd(sX, pX, 0x200000)
xrows(16)
a(f"s_bitcmp1_b32 s{sHG}, 2\ns_cselect_b32 s{sWKV}, s{pWV}, s{pWK}\ns_cselect_b32 s{sWKV+1}, s{pWV+1}, s{pWK+1}\ns_mov_b32 s{sWKV+2}, 0x4000\ns_mov_b32 s{sWKV+3}, 0x20000")
for n in range(16):
    if n % 4 == 0: a(f"s_mov_b32 m0, {WKV + n*1024}\ns_mov_b32 s{t1}, {n*1024}")
    a(f"buffer_load_dwordx4 v10, {sr(sWKV,4)}, s{t1} offen offset:{(n%4)*1024} lds")
a("s_barrier")
srd(sWS, pWS, WS_SIZE); srd(sDBG, pDBG, 256)
stamp(0)
a(f"""v_and_b32 v16, 15, v0
v_lshrrev_b32 v14, 4, v0
s_lshl_b32 s{t0}, s{t5}, 4
v_add_u32 v13, s{t0}, v16
v_mul_u32_u24 v15, {XS}, v13
v_lshl_add_u32 v15, v14, 4, v15
v_lshlrev_b32 v19, 3, v16
v_lshl_add_u32 v19, v14, 8, v19
v_add_u32 v19, {WKV}, v19
s_lshr_b32 s{t0}, s{t5}, 1
s_lshl_b32 s{t1}, s{sRB}, 1
s_add_u32 s{t0}, s{t0}, s{t1}
s_lshl_b32 s{t0}, s{t0}, 11
s_and_b32 s{t1}, s{t5}, 1
s_lshl_b32 s{t1}, s{t1}, 8
s_add_u32 s{t4}, s{t0}, s{t1}
v_and_b32 v17, 1, v14
v_lshrrev_b32 v18, 1, v14""")
a(f"s_bitcmp1_b32 s{sHG}, 2\ns_cbranch_scc1 L_job_v")
def job(isv):
    hi, lo = (18, 17) if isv else (17, 18)
    a(f"v_lshlrev_b32 v20, 9, v{hi}\nv_lshl_add_u32 v20, v16, 4, v20\nv_lshl_add_u32 v17, v{lo}, 3, v20")
    if isv: a(f"s_add_u32 s{t4}, s{t4}, 1024")
    a("s_waitcnt vmcnt(16)")
    for n in range(16): a(f"ds_read_b128 {vr(JX+4*n,4)}, v15 offset:{n*64}")
    def grp(gq):
        a(f"s_waitcnt vmcnt({12 - 4*gq})")
        for n in range(4 * gq, 4 * gq + 4):
            a(f"ds_read_b64_tr_b16 {vr(JW+4*n,2)}, v19 offset:{n*1024}")
            a(f"ds_read_b64_tr_b16 {vr(JW+4*n+2,2)}, v19 offset:{n*1024+128}")
    def mm(gq):
        for n in range(4 * gq, 4 * gq + 4):
            A, B = (JX, JW) if isv else (JW, JX)
            a(f"v_mfma_f32_16x16x32_bf16 {vr(JA,4)}, {vr(A+4*n,4)}, {vr(B+4*n,4)}, {'0' if n == 0 else vr(JA,4)}")
    grp(0)
    for gq in range(4):
        if gq < 3: grp(gq + 1); a("s_waitcnt lgkmcnt(8)")
        else: a("s_waitcnt lgkmcnt(0)")
        mm(gq)
job(False)
a("s_branch L_job_st\nL_job_v:")
job(True)
a("L_job_st:")
a(f"""v_cvt_pk_bf16_f32 v20, v{JA}, v{JA+1}
v_cvt_pk_bf16_f32 v21, v{JA+2}, v{JA+3}
buffer_store_dwordx2 v[20:21], v17, {sr(sWS,4)}, s{t4} offen sc1
buffer_load_dword v{aNON}, off, {sr(sDBG,4)}, 0 sc1""")
stamp(8)
a("s_barrier")
stamp(1)
def job_flag():
    lp, dn = a.lab("np"), a.lab("npd")
    a(f"""v_lshlrev_b32 v14, 2, v0
    s_waitcnt vmcnt(0)
    v_cmp_eq_u32 vcc, 0, v{aNON}
    s_cbranch_vccnz {lp}
    {dn}:""")
    put_flag(sFL, aNON, 14)
    a(f"v_mov_b32 v13, {NONCE}\nds_write_b32 v13, v{aNON}\ns_waitcnt lgkmcnt(0)")
    stamp(9)
    def slow():
        a(f"{lp}:"); budget(dn)
        a(f"""buffer_load_dword v{aNON}, off, {sr(sDBG,4)}, 0 sc1
        s_waitcnt vmcnt(0)
        v_cmp_eq_u32 vcc, 0, v{aNON}
        s_cbranch_vccnz {lp}
        s_branch {dn}""")
    cold.append(slow)
vconst()
for b in range(4):
    if b == FLAGAT: job_flag()
    a("s_barrier")
a("s_branch L_aw_all")

a("L_aw123:")
a(f"s_cmp_eq_u32 s{sW}, 3\ns_cbranch_scc1 L_aw3")
dma_lane_addrs()
a(f"""s_sub_u32 s{sS}, s{sW}, 1
s_lshl_b32 s{t3}, s{sS}, 13
s_lshl_b32 s{t4}, s{sS}, 16
s_lshl_b32 s{t2}, s{sHG}, 7
s_add_u32 s{t4}, s{t4}, s{t2}
s_lshl_b32 s{sJ}, s{sS}, 10
s_add_u32 s{sJ}, s{sJ}, s{t2}
s_add_u32 s{sJ}, s{sJ}, 1024
s_mul_i32 s{sP}, s{sS}, 3
s_lshl_b32 s{t0}, s{t5}, 1
s_add_u32 s{sP}, s{sP}, s{t0}
s_add_u32 s{sP}, s{sP}, 2
s_waitcnt lgkmcnt(0)""")
srd(sX, pX, 0x200000); srd(sWQ, pWQ, 0x80000); srd(sWB, pWQKV, 0x180000); srd(sWS, pWS, WS_SIZE)
a("s_barrier")
stamp(0)
for gq in range(3):
    a(f"""s_add_u32 s{t0}, s{sP}, {gq}
    s_and_b32 s{t0}, s{t0}, 7
    s_lshl_b32 s{sD1}, s{sRB}, 16
    s_lshl_b32 s{t2}, s{t0}, 13
    s_add_u32 s{sD1}, s{sD1}, s{t2}
    s_mul_i32 s{sD0}, s{t0}, {8*XS}""")
    xrows(8)
def ld_wq(g):
    for n in range(8):
        a(f"s_add_u32 m0, s{t3}, {WQB + ((g + 1) % 4)*16384 + n*1024}\ns_add_u32 s{t1}, s{t4}, {g*131072 + n*8192}")
        a(f"buffer_load_dwordx4 v9, {sr(sWQ,4)}, s{t1} offen lds")
def ld_st(c):
    for n in range(8):
        a(f"s_add_u32 m0, s{t3}, {STG[c] + n*1024}\ns_add_u32 s{t1}, s{sJ}, {(c*64 + n*8)*3072}")
        a(f"buffer_load_dwordx4 v8, {sr(sWB,4)}, s{t1} offen lds")
ld_wq(0); ld_wq(1)
vconst()
a("s_waitcnt vmcnt(16)\ns_barrier")
stamp(1)
ld_wq(2); a("s_waitcnt vmcnt(16)\ns_barrier")
ld_wq(3); a("s_waitcnt vmcnt(16)\ns_barrier")
ld_st(0); a("s_waitcnt vmcnt(16)\ns_barrier")
ld_st(1); a("s_waitcnt vmcnt(16)\ns_barrier")
ld_st(2)
a("s_branch L_aw_all")

a("L_aw3:\ns_waitcnt lgkmcnt(0)")
srd(sWS, pWS, WS_SIZE); srd(sDBG, pDBG, 256)
a("s_cmp_lg_u32 s2, 0\ns_cbranch_scc1 L_nononce")
a(f"""s_memrealtime s[{t1}:{t2}]
s_waitcnt lgkmcnt(0)
s_or_b32 s{t1}, s{t1}, 1
v_mov_b32 v14, s{t1}
s_mov_b64 exec, 1
buffer_store_dword v14, off, {sr(sDBG,4)}, 0 sc1
s_mov_b64 exec, -1
L_nononce:""")
a(f"""v_mov_b32 v13, {WS_KVF}
s_mov_b32 s{t1}, {WS_KVF + 0x8000}
s_mov_b32 s{t0}, 0x200000
v_writelane_b32 v13, s{t1}, 1
v_writelane_b32 v13, s{t0}, 2
s_mov_b32 s{t1}, 0x400000
s_mov_b32 s{t0}, 0x600000
v_writelane_b32 v13, s{t1}, 3
v_writelane_b32 v13, s{t0}, 4
s_lshl_b32 s{t1}, s{sL}, 7
s_mov_b64 exec, 0x1f
buffer_load_dword v20, v13, {sr(sWS,4)}, s{t1} offen
s_mov_b64 exec, -1""")
srd(sWQ, pWQ, 0x80000); srd(sWB, pWQKV, 0x180000); srd(sWOA, pWOA, 0x80000); srd(sWOB, pWOB, 0x80000)
srd(sSM, pGATE, 1024); srd(sX, pWPHI, 16384)
a(f"""s_and_b32 s{t3}, s{sRB}, 7
s_lshl_b32 s{t4}, s{sHG}, 7
s_lshl_b32 s{t0}, s{t3}, 16
s_add_u32 s{t0}, s{t0}, s{t4}
v_lshlrev_b32 v11, 10, v0
s_mov_b32 m0, {GATE}
s_barrier""")
stamp(0)
if TOUCH & 1: a(f"buffer_load_dword v20, v11, {sr(sWQ,4)}, s{t0} offen")
a(f"""buffer_load_dwordx4 v10, {sr(sSM,4)}, 0 offen lds
s_lshl_b32 s{t0}, s{sHG}, 11
s_mov_b32 m0, {WPHI}
v_mov_b32 v24, 0
buffer_load_dwordx4 v10, {sr(sX,4)}, s{t0} offen lds
buffer_load_dwordx4 v10, {sr(sX,4)}, s{t0} offen offset:1024 lds
v_mov_b32 v25, 0
v_mov_b32 v26, 0
v_mov_b32 v27, 0
v_add_u32 v13, {LT}, v10""")
for n in range(4): a(f"ds_write_b128 v13, v[24:27] offset:{n*1024}")
a(f"""v_lshlrev_b32 v13, 2, v0
v_add_u32 v13, {MISC}, v13
v_lshrrev_b32 v14, 2, v0
v_cmp_eq_u32 vcc, 1, v14
v_cndmask_b32 v14, 0, v14, vcc
ds_write_b32 v13, v14""")
vconst()
a("s_waitcnt vmcnt(0) lgkmcnt(0)\ns_barrier")
stamp(1)
a("s_barrier")
if TOUCH & 4:
    a(f"""v_and_b32 v14, 15, v0
    v_mul_u32_u24 v15, 3072, v14
    v_lshrrev_b32 v16, 4, v0
    v_lshl_add_u32 v15, v16, 10, v15
    s_mul_i32 s{t0}, s{sRB}, {16*3072}
    s_add_u32 s{t0}, s{t0}, s{t4}
    s_mov_b32 exec_hi, 0xffff""")
if TOUCH & 8:
    a(f"""v_mul_u32_u24 v15, 3072, v0
    s_mul_i32 s{t0}, s{t3}, {64*3072}
    s_add_u32 s{t0}, s{t0}, s{t4}""")
a("s_barrier")
if TOUCH & 4: a(f"buffer_load_dword v20, v15, {sr(sWB,4)}, s{t0} offen")
if TOUCH & 8:
    for pr in (1, 2, 0): a(f"buffer_load_dword v20, v15, {sr(sWB,4)}, s{t0} offen offset:{pr*1024}")
if TOUCH & 12:
    a(f"""s_lshl_b32 s{t0}, s{sRB}, 14
    s_add_u32 s{t0}, s{t0}, s{t4}
    s_mov_b64 exec, 0xffff
    buffer_load_dword v20, v11, {sr(sWOB,4)}, s{t0} offen
    buffer_load_dword v20, v11, {sr(sWOA,4)}, s{t0} offen
    s_mov_b64 exec, -1""")
a("s_barrier\ns_barrier")

a("L_aw_all:")
stamp(2)
a(f"""s_lshl_b32 s{t1}, s{sW}, 13
v_lshlrev_b32 v11, 7, v0
v_add_u32 v11, s{t1}, v11""")
poll_issue(11, S1, F_KV)
a(f"""s_setprio 1
v_mov_b32 v9, {NONCE}
ds_read_b32 v{S1+1}, v9
s_lshl_b32 s{t0}, s{sW}, 11
s_add_u32 s{t0}, s{t0}, {OP}
v_add_u32 v{vPA}, s{t0}, v10
v_add_u32 v{vQA}, {Q}, v10
s_lshl_b32 s{t0}, s{sW}, 8
s_add_u32 s{t0}, s{t0}, {LT}
v_and_b32 v{vLA}, 31, v0
v_lshl_add_u32 v{vLA}, v{vLA}, 2, s{t0}
v_mov_b32 v{vCA}, {CONS}
v_mov_b32 v{vIDX}, 0xdddd
v_mov_b32 v{vZ}, 0
v_mov_b32 v{vZ+1}, 0
v_mov_b32 v{vCV}, 1
s_and_b32 s{t1}, s{sRB}, 3
s_lshl_b32 s{t1}, s{t1}, 13
v_lshlrev_b32 v{S1+2}, 7, v0
v_add_u32 v{S1+2}, s{t1}, v{S1+2}
s_waitcnt vmcnt(17) lgkmcnt(0)
v_readfirstlane_b32 s{sNON}, v{S1+1}
s_barrier""")
stamp(3)
def aw_signal(word):
    a(f"s_mov_b64 exec, 1\nds_add_u32 v9, v{vCV} offset:{SYNC - NONCE + 4*word}\ns_mov_b64 exec, -1")
a(f"ds_read_b128 {vr(QR,4)}, v{vQA}\ns_waitcnt vmcnt(0)")
aw_signal(W_ST)
poll_check(11, S1, F_KV, nap=2)
stamp(4)
a(f"s_lshl_b32 s{t3}, s{sW}, 15")
def kvload(t):
    if t % 2 == 0 and t: a(f"s_add_u32 s{t3}, s{t3}, 4096")
    a(f"buffer_load_dwordx4 {vr(KR+4*t,4)}, v10, {sr(sWS,4)}, s{t3} offen offset:{(t%2)*2048} sc1")
    a(f"buffer_load_dwordx4 {vr(VR+8*t,4)}, v10, {sr(sWS,4)}, s{t3} offen offset:{(t%2)*2048+1024} sc1")
kvload(0)
if KVT: a(f"buffer_load_dword v11, v{S1+2}, {sr(sWS,4)}, s{t3} offen sc1")
for t in range(1, PRE): kvload(t)
def zero_o(): a(f"v_mfma_f32_32x32x8_bf16 {vr(O_,16)}, {vr(vZ,2)}, {vr(vZ,2)}, 0")
def qk(t, S): a(f"v_mfma_f32_32x32x16_bf16 {vr(S,16)}, {vr(KR+4*t,4)}, {vr(QR,4)}, 0")
def pv(t, s, S): a(f"v_smfmac_f32_32x32x32_bf16 {vr(O_,16)}, {vr(VR+8*t+4*s,4)}, {vr(S+8*s,8)}, v{vIDX}")
def flush():
    lp, dn = a.lab("cw"), a.lab("cwd")
    a(f"v_cmp_eq_u32 vcc, 0, v{vCV}\ns_cbranch_vccnz {lp}")
    def slow():
        a(f"{lp}:"); budget(dn)
        a(f"""s_sleep 1
        ds_read_b32 v{vCV}, v{vCA}
        s_waitcnt lgkmcnt(0)
        v_cmp_eq_u32 vcc, 0, v{vCV}
        s_cbranch_vccnz {lp}
        s_branch {dn}""")
    cold.append(slow)
    a(f"""{dn}:
    ds_write_b128 v{vPA}, {vr(O_,4)}
    ds_write_b128 v{vPA}, {vr(O_+4,4)} offset:1024
    ds_write2_b32 v{vLA}, v{O_+8}, v{vQA} offset0:0 offset1:32""")
def apass(first):
    for t in range(16):
        S, Sn = (S0, S1) if t % 2 == 0 else (S1, S0)
        for e in range(16):
            if e == 2 and not (first and t == 0): pv((t - 1) % 16, 1, Sn)
            if e == 5:
                if first and t < 15: a(f"s_waitcnt vmcnt({1 + 2*(min(t + PRE - 1, 15) - (t + 1))})")
                if t == 15: a("s_waitcnt lgkmcnt(0)" if not first else "s_waitcnt vmcnt(0) lgkmcnt(0)")
                qk((t + 1) % 16, Sn)
                if t == 14:
                    a(f"v_add_u32 v{vQA}, 1024, v{vQA}\nds_read_b128 {vr(QR,4)}, v{vQA}\nds_read_b32 v{vCV}, v{vCA}")
            if e == 8 and first:
                for r in range(4): a(f"v_permlane16_swap_b32 v{VR+8*t+r}, v{VR+8*t+4+r}")
                if t + PRE < 16: kvload(t + PRE)
                if t == SIGT: aw_signal(W_KV)
            if e == 13 and t == 0 and not first:
                flush(); zero_o()
            if e == 15: pv(t, 0, S)
            a(f"v_exp_f32 v{S+e}, v{S+e}")
        if t == 0 and not first:
            a(f"""s_add_u32 s{sJ}, s{sJ}, 1
            s_cmp_eq_u32 s{sJ}, 4
            s_cselect_b32 s{t0}, -3, 1
            v_lshl_add_u32 v{vPA}, s{t0}, 13, v{vPA}
            v_lshl_add_u32 v{vLA}, s{t0}, 10, v{vLA}
            v_add_u32 v{vCA}, 4, v{vCA}""")
zero_o()
a(f"s_mov_b32 s{sJ}, 0\ns_waitcnt vmcnt({2*PRE-1+KVT}) lgkmcnt(0)")
qk(0, S0)
stamp(5)
apass(True)
stamp(6)
if DIAG: a("s_memtime s[96:97]")
a(".p2align 6\nL_aloop:")
apass(False)
a(f"s_cmp_lt_u32 s{sJ}, 7\ns_cbranch_scc1 L_aloop")
pv(15, 1, S1)
a("s_nop 9")
flush()
stamp(7)
if DIAG: a("s_memtime s[98:99]\ns_waitcnt lgkmcnt(0)\ns_sub_u32 s30, s98, s96")
diag_dump(8)
hold()
a("s_endpgm")
emit_cold()

role[0] = "S"
vONE, vSY, vT = 1, 2, 3
vXA, vWX, vWO, vWOA, vD3, vD1, vL16, vGI, vGO = 4, 5, 6, 7, 8, 9, 10, 11, 12
WPH, PHQ, ACC, AC2, WB0, TMP = 16, 24, 40, 56, 72, 104
vNON, vGF, vLI, vPF = 232, 233, 234, 235
vSW, vSR, vSR2, vSV, vSVR = 236, 240, 241, 242, 243
FOUT = 244
vPO, vT2, vL4, vWP, vPR, vPC = 248, 249, 251, 252, 253, 254
XF = TMP; WR = WB0
VM, LG = Cnt(63), Cnt(15)
def wait(vm=None, lg=None):
    v = VM.need(vm) if vm is not None else None
    l = LG.need(lg) if lg is not None else None
    t = ([f"vmcnt({v})"] if v is not None else []) + ([f"lgkmcnt({l})"] if l is not None else [])
    if t: a("s_waitcnt " + " ".join(t))
def newword():
    nword[0] += 1; assert nword[0] <= 48; return nword[0] - 1
def arrive(w=None):
    w = newword() if w is None else w
    a(f"s_mov_b64 exec, 1\nds_add_u32 v{vSY}, v{vONE} offset:{4*w}\ns_mov_b64 exec, -1")
    LG.issue("arr")
    return w
def chk_read(w):
    a(f"ds_read_b32 v{vT}, v{vSY} offset:{4*w}"); LG.issue("chk")
def chk_test(w, target=4, lowprio=False, nap=0):
    dn, rt = a.lab("sbd"), a.lab("sbr")
    if lowprio: a("s_setprio 2")
    wait(lg="chk")
    a(f"v_readfirstlane_b32 s{t0}, v{vT}\ns_cmp_lt_u32 s{t0}, {target}\ns_cbranch_scc1 {rt}\n{dn}:")
    if lowprio: a("s_setprio 0")
    def slow():
        a(f"{rt}:"); budget(dn)
        if nap: a(f"s_sleep {nap}")
        a(f"""ds_read_b32 v{vT}, v{vSY} offset:{4*w}
        s_waitcnt lgkmcnt(0)
        v_readfirstlane_b32 s{t0}, v{vT}
        s_cmp_lt_u32 s{t0}, {target}
        s_cbranch_scc1 {rt}
        s_branch {dn}""")
    cold.append(slow)
def check(w, target=4, nap=0): chk_read(w); chk_test(w, target, nap=nap)
class only:
    def __init__(s, reg, val): s.reg, s.val = reg, val
    def __enter__(s):
        s.l = a.lab("only"); a(f"s_cmp_lg_u32 s{s.reg}, {s.val}\ns_cbranch_scc1 {s.l}")
        s.sv = (list(VM.q), list(LG.q))
    def __exit__(s, *e):
        a(f"{s.l}:"); VM.q, LG.q = s.sv
def flag(plane): a(f"s_add_u32 s{t0}, s{sFL}, {plane*FP}"); put_flag(t0, vNON, vL4)
def call_fin(greg):
    a(f"v_mov_b32 v{vGF}, v{greg}\ns_call_b64 s[{sRET}:{sRET+1}], L_fin\ns_nop 1")
def dma_base(kind):
    a(f"s_lshl_b32 s{t1}, s{sHG}, 7")
    if kind == "kv":
        a(f"s_mul_i32 s{sD1}, s{sP}, {32*3072}\ns_add_u32 s{sD1}, s{sD1}, s{t1}\ns_lshl_b32 s{t1}, s{sI}, 10\ns_add_u32 s{sD1}, s{sD1}, s{t1}\ns_add_u32 s{sD1}, s{sD1}, 1024")
    elif kind == "q":
        a(f"s_mul_i32 s{sD1}, s{sS}, {32*3072}\ns_add_u32 s{sD1}, s{sD1}, s{t1}")
    else:
        a(f"s_lshl_b32 s{sD1}, s{sS}, 15\ns_add_u32 s{sD1}, s{sD1}, s{t1}")
def dma_one(c, n):
    if n == 0 and c in (8, 12): dma_base("q" if c == 8 else "o")
    if c < 8:   srdw, vo, base, step = sWB, vD3, c * 64 * 3072, 8 * 3072
    elif c < 12: srdw, vo, base, step = sWB, vD3, (c - 8) * 128 * 3072, 8 * 3072
    else:       srdw, vo, base, step = sWOB, vD1, (c - 12) * 128 * 1024, 8 * 1024
    a(f"s_add_u32 m0, s{sD0}, {STG[c] + n*1024}\ns_add_u32 s{t1}, s{sD1}, {base + n*step}")
    a(f"buffer_load_dwordx4 v{vo}, {sr(srdw,4)}, s{t1} offen lds")
    VM.issue(("st", c))
def dma_stage(c):
    for n in range(4): dma_one(c, n)
def rd_w(dst, vaddr, off, second, tag=None):
    a(f"ds_read_b64_tr_b16 {vr(dst,2)}, v{vaddr} offset:{off}\nds_read_b64_tr_b16 {vr(dst+2,2)}, v{vaddr} offset:{off+second}")
    LG.issue(tag, 2)
def rd_stage(dst, c, k, tag):
    if STG[c] < OP: rd_w(dst, vWX, STG[c] + k * 2048, 512, tag)
    else: rd_w(dst, vWP, STG[c] - WQB + k * 2048, 512, tag)

a(".p2align 6\nL_sw:")
a(f"""s_barrier
s_setprio 2
s_and_b32 s{sS}, s{sW}, 3
s_lshr_b32 s{sI}, s{sS}, 1
s_and_b32 s{sP}, s{sS}, 1""")
dma_lane_addrs()
SCP = R1
SCV = R2
assert SCP % 64 == 0 and X == 0
a(f"""v_and_b32 v11, 31, v0
s_lshl_b32 s{t0}, s{sI}, 5
v_add_u32 v13, s{t0}, v11
v_mul_u32_u24 v{vXA}, {XS}, v13
v_lshrrev_b32 v12, 5, v0
v_lshl_add_u32 v{vXA}, v12, 4, v{vXA}
v_and_b32 v13, 15, v0
v_lshrrev_b32 v16, 2, v13
v_lshlrev_b32 v14, 7, v16
v_lshrrev_b32 v15, 3, v13
v_xor_b32 v15, s{sP}, v15
v_lshl_add_u32 v14, v15, 6, v14
v_bfe_u32 v17, v0, 4, 1
v_lshl_add_u32 v14, v17, 5, v14
v_and_b32 v18, 3, v0
v_lshl_add_u32 v14, v18, 3, v14
v_lshl_add_u32 v{vWX}, v12, 10, v14
v_lshl_add_u32 v{vWOA}, v12, 9, v14
v_add_u32 v{vWP}, {WQB}, v{vWX}
v_add_u32 v{vWO}, {RING}, v{vWOA}
v_mov_b32 v{vONE}, 1
v_mov_b32 v{vSY}, {SYNC}
v_lshlrev_b32 v{vL4}, 2, v0
s_mov_b32 s{sL2E}, {hex(LOG2E)}
s_mov_b32 s{sL2E+1}, {hex(LOG2E)}
v_min_u32 v15, 16, v11
v_mad_u32_u24 v{vLI}, v12, 17, v15
v_lshlrev_b32 v{vLI}, 4, v{vLI}
v_mad_u32_u24 v15, v12, 20, v11
v_lshlrev_b32 v{vPR}, 3, v15
s_lshl_b32 s{t0}, s{sRB}, 10
v_and_b32 v{vPF}, 7, v0
v_lshlrev_b32 v{vPF}, 7, v{vPF}
v_add_u32 v{vPF}, s{t0}, v{vPF}
v_bfe_u32 v15, v0, 3, 2
v_lshl_add_u32 v{vPO}, v15, 15, v{vPF}
s_lshl_b32 s{t0}, s{sHG}, 7
v_lshlrev_b32 v{vPC}, 10, v11
v_add_u32 v{vPC}, s{t0}, v{vPC}
v_bfe_u32 v14, v0, 1, 3
v_xor_b32 v14, v14, v12
v_lshlrev_b32 v14, 3, v14
v_lshl_add_u32 v14, v11, 6, v14
s_lshl_b32 s{t0}, s{sI}, 11
s_lshl_b32 s{t1}, s{sP}, 13
s_add_u32 s{t0}, s{t0}, s{t1}
s_add_u32 s{t0}, s{t0}, {SCP}
v_add_u32 v{vSW}, s{t0}, v14
v_xor_b32 v{vSW+1}, 16, v{vSW}
v_xor_b32 v{vSW+2}, 32, v{vSW}
v_xor_b32 v{vSW+3}, 48, v{vSW}
v_lshl_add_u32 v15, v12, 2, v16
v_lshrrev_b32 v14, 1, v15
v_lshl_add_u32 v19, v17, 2, v18
v_xor_b32 v14, v14, v19
v_lshlrev_b32 v14, 3, v14
v_lshl_add_u32 v15, v15, 6, v14
s_lshl_b32 s{t3}, s{sP}, 1
s_add_u32 s{t3}, s{t3}, s{sI}
s_lshl_b32 s{t0}, s{t3}, 12
s_add_u32 s{t0}, s{t0}, {SCP}
v_add_u32 v{vSR}, s{t0}, v15
v_xor_b32 v{vSR2}, 32, v{vSR}
s_lshl_b32 s{t0}, s{sS}, 11
s_add_u32 s{t0}, s{t0}, {SCV}
v_add_u32 v{vSV}, s{t0}, v{vL16}
v_lshlrev_b32 v14, 4, v13
v_lshl_add_u32 v14, v12, 9, v14
s_lshl_b32 s{t0}, s{sP}, 11
s_lshl_b32 s{t1}, s{sI}, 8
s_add_u32 s{t0}, s{t0}, s{t1}
s_add_u32 s{t0}, s{t0}, {SCV}
v_add_u32 v{vSVR}, s{t0}, v14
v_lshlrev_b32 v{FOUT}, 3, v13
v_lshl_add_u32 v{FOUT}, v12, 7, v{FOUT}
s_lshl_b32 s{t0}, s{sP}, 10
s_add_u32 s{t0}, s{t0}, {WPHI}
v_add_u32 v{FOUT}, s{t0}, v{FOUT}
v_mul_u32_u24 v{FOUT+1}, 0x8000, v17
v_lshl_add_u32 v{FOUT+1}, v17, 31, v{FOUT+1}
s_lshl_b32 s{t0}, s{sS}, 11
s_add_u32 s{t0}, s{t0}, {Q}
v_add_u32 v{FOUT+2}, s{t0}, v{vL16}
s_lshl_b32 s{sD0}, s{sS}, 12
s_waitcnt lgkmcnt(0)""")
srd(sWS, pWS, WS_SIZE); srd(sWB, pWQKV, 0x180000); srd(sWOA, pWOA, 0x80000); srd(sWOB, pWOB, 0x80000); srd(sOUT, pOUT, 0x200000)
dma_base("kv")
stamp(0)
a("s_waitcnt vmcnt(0)\ns_barrier")
stamp(1)
for hh in range(2): rd_w(WPH + 4 * hh, FOUT, hh * 512, 256, "x")
for ks in range(32): a(f"ds_read_b128 {vr(XF+4*ks,4)}, v{vXA} offset:{ks*32}"); LG.issue("x")
DQ = 3
def qreads(ks):
    if ks % 8 == 0: a("s_barrier")
    rd_w(WR + 4 * (ks % 8), vWP, ((ks + 8) % 32) * 2048, 512, ("w", ks))
for ks in range(DQ): qreads(ks)
for ks in range(32):
    if ks + DQ < 32: qreads(ks + DQ)
    wait(lg=("w", ks))
    a(f"v_mfma_f32_32x32x16_bf16 {vr(ACC,16)}, {vr(WR+4*(ks%8),4)}, {vr(XF+4*ks,4)}, {'0' if ks == 0 else vr(ACC,16)}")
    if ks < 8: a(f"v_xor_b32 v{WPH+ks}, v{FOUT+1}, v{WPH+ks}")
a(f"v_mov_b32 v13, {NONCE}\nds_read_b32 v{vNON}, v13\ns_mov_b32 s{t1}, {hex(QSCALE)}\ns_mov_b32 s{t2}, {hex(QSCALE)}")
for r in range(0, 16, 2): a(f"v_pk_mul_f32 {vr(ACC+r,2)}, {vr(ACC+r,2)}, s[{t1}:{t2}]")
for r in range(8): a(f"v_cvt_pk_bf16_f32 v{PHQ+r}, v{ACC+2*r}, v{ACC+2*r+1}")
a(f"""ds_write_b128 v{FOUT+2}, {vr(PHQ,4)}
ds_write_b128 v{FOUT+2}, {vr(PHQ+4,4)} offset:1024
s_waitcnt lgkmcnt(0)
s_barrier""")
LG.clear()
stamp(2)
a(f"v_readfirstlane_b32 s{sNON}, v{vNON}")
DA = 2
def rd_a(n):
    rd_stage(WR + 8 * (n % 4), n // 4, n % 4, ("w", n)); rd_stage(WR + 8 * (n % 4) + 4, n // 4, 4 + n % 4, ("w", n))
def mm_a(n, mid=None):
    wait(lg=("w", n))
    w = WR + 8 * (n % 4)
    a(f"v_mfma_f32_32x32x16_bf16 {vr(ACC,16)}, {vr(w,4)}, {vr(XF+4*n,4)}, {'0' if n == 0 else vr(ACC,16)}")
    if mid: mid()
    a(f"v_mfma_f32_32x32x16_bf16 {vr(AC2,16)}, {vr(XF+4*n,4)}, {vr(w+4,4)}, {'0' if n == 0 else vr(AC2,16)}")
if not NOB:
    for n in range(DA): rd_a(n)
    for n in range(12):
        if n + DA == 4: chk_test(W_ST, 4)
        if n + DA < 12: rd_a(n + DA)
        mm_a(n)
        if n + DA == 3: chk_read(W_ST)
xs("a12")
a(f"""v_lshrrev_b32 v13, 5, v0
s_lshl_b32 s{t0}, s{sP}, 9
s_add_u32 s{t0}, s{t0}, {GATE}
v_lshl_add_u32 v13, v13, 4, s{t0}
v_mov_b32 v14, 0
v_mov_b32 v15, 0""")
for bq in range(2):
    for n in range(8): a(f"ds_read_b128 {vr(WR+4*n,4)}, v13 offset:{(8*bq+n)*32}")
    l1, l2 = a.lab("g"), a.lab("g")
    a(f"s_waitcnt lgkmcnt(0)\ns_cmp_eq_u32 s{sP}, 1\ns_cbranch_scc1 {l1}")
    for pp in range(2):
        for r in range(32): a(f"v_dot2c_f32_bf16 v{14 + r % 2}, v{XF + 64*pp + 32*bq + r}, v{WR + r}")
        a(f"s_branch {l2}\n{l1}:" if pp == 0 else f"{l2}:")
LG.clear()
a(f"""v_add_f32 v14, v14, v15
v_mov_b32 v15, v14
v_permlane32_swap_b32 v14, v15
v_add_f32 v14, v14, v15
v_and_b32 v13, 124, v{vL4}
s_lshl_b32 s{t0}, s{sI}, 7
s_add_u32 s{t1}, s{t0}, {G}
v_add_u32 v{vGI}, s{t1}, v13
s_xor_b32 s{t0}, s{t0}, 128
s_add_u32 s{t1}, s{t0}, {G}
v_add_u32 v{vGO}, s{t1}, v13
s_lshl_b32 s{t0}, s{sP}, 8
v_add_u32 v13, s{t0}, v{vGI}
ds_write_b32 v13, v14""")
wg = arrive(); check(wg)
a(f"ds_read2_b32 v[{FOUT}:{FOUT+1}], v{vGI} offset0:0 offset1:64\nds_read2_b32 v[{FOUT+2}:{FOUT+3}], v{vGO} offset0:0 offset1:64\ns_waitcnt lgkmcnt(0)")
for (d, s_) in ((vGI, FOUT), (vGO, FOUT + 2)):
    a(f"v_add_f32 v{d}, v{s_}, v{s_+1}\nv_mul_f32 v{d}, {hex(LOG2E | 0x80000000)}, v{d}\nv_exp_f32 v{d}, v{d}\nv_add_f32 v{d}, 1.0, v{d}\nv_rcp_f32 v{d}, v{d}")
stamp(3)
if NOB:
    a(f"s_mov_b32 s{sJ}, s{sS}"); call_fin(vGI); a("s_waitcnt vmcnt(0)"); put_flag(sPF, vNON, vL4)
    stamp(4)
    a(f"s_add_u32 s{sJ}, s{sS}, 4"); call_fin(vGI); a("s_waitcnt vmcnt(0)"); put_flag(sPF, vNON, vL4)
    stamp(5)
    diag_dump(13)
    a("s_endpgm")
check(W_KV, 4, nap=2)
xs("a13")
for c in (3, 4, 5): dma_stage(c)
wait(vm=("st", 3)); w = arrive(); check(w)
xs("a14")
dq = {12 + k: (c, n) for k, (c, n) in enumerate([(c, n) for c in (6, 7, 8, 9) for n in range(4)])}
dq2 = {20 + k: (10, k) for k in range(4)}; dq2.update({24 + k: (11, k) for k in range(4)})
for n in range(12, 12 + DA): rd_a(n)
a("s_setprio 0")
for n in range(12, 32):
    m = n + DA
    if m < 32:
        if m % 4 == 0: chk_test(w, lowprio=True)
        rd_a(m)
    mm_a(n, (lambda: dma_one(*dq[n])) if n in dq else None)
    if n in dq2: dma_one(*dq2[n])
    if (m + 2) % 4 == 0 and m + 2 < 32: wait(vm=("st", (m + 2) // 4)); w = arrive()
    if (m + 1) % 4 == 0 and m + 1 < 32: chk_read(w)
    if n == 29: w = arrive()
a("s_setprio 2")
stamp(4)

def features(B, W, out, D, tm):
    m1, m2 = tm, tm + 1
    a(f"v_mfma_f32_32x32x16_bf16 {vr(D,16)}, {vr(W,4)}, {vr(B,4)}, 0")
    for (m, b) in ((m1, D), (m2, D + 8)):
        a(f"v_max3_f32 v{m}, v{b}, v{b+1}, v{b+2}\nv_max3_f32 v{m}, v{m}, v{b+3}, v{b+4}\nv_max3_f32 v{m}, v{m}, v{b+5}, v{b+6}\nv_max_f32 v{m}, v{m}, v{b+7}")
    a(f"""v_permlane32_swap_b32 v{m1}, v{m2}
    v_max_f32 v{m1}, v{m1}, v{m2}
    v_mul_f32 v{m1}, {hex(LOG2E | 0x80000000)}, v{m1}
    v_mov_b32 v{m2}, v{m1}
    v_permlane32_swap_b32 v{m1}, v{m2}""")
    for r in range(0, 16, 2):
        sel = "op_sel_hi:[1,1,0]" if r < 8 else "op_sel:[0,0,1]"
        a(f"v_pk_fma_f32 {vr(D+r,2)}, {vr(D+r,2)}, s[{sL2E}:{sL2E+1}], {vr(m1,2)} {sel}")
    for r in range(16): a(f"v_exp_f32 v{D+r}, v{D+r}")
    for (m, b) in ((m1, D), (m2, D + 8)):
        a(f"""v_pk_add_f32 {vr(tm+2,2)}, {vr(b,2)}, {vr(b+2,2)}
        v_pk_add_f32 {vr(tm+4,2)}, {vr(b+4,2)}, {vr(b+6,2)}
        v_pk_add_f32 {vr(tm+2,2)}, {vr(tm+2,2)}, {vr(tm+4,2)}
        v_add_f32 v{m}, v{tm+2}, v{tm+3}""")
    a(f"""v_permlane32_swap_b32 v{m1}, v{m2}
    v_add_f32 v{m1}, v{m1}, v{m2}
    v_rcp_f32 v{m1}, v{m1}
    v_mov_b32 v{m2}, v{m1}
    v_permlane32_swap_b32 v{m1}, v{m2}""")
    for r in range(0, 16, 2):
        sel = "op_sel_hi:[1,0]" if r < 8 else "op_sel:[0,1]"
        a(f"v_pk_mul_f32 {vr(D+r,2)}, {vr(D+r,2)}, {vr(m1,2)} {sel}")
    for r in range(8): a(f"v_cvt_pk_bf16_f32 v{out+r}, v{D+2*r}, v{D+2*r+1}")

KB, VB, DD, TM, PH = PHQ, PHQ + 8, WR, WR + 16, WR + 24
chk_read(w)
a(f"""s_lshl_b32 s{t3}, s{sP}, 1
s_add_u32 s{t3}, s{t3}, s{sI}
s_lshl_b32 s{t2}, s{sHG}, 2
s_add_u32 s{t2}, s{t2}, s{t3}
s_lshl_b32 s{t2}, s{t2}, 8
s_add_u32 s{t2}, s{t2}, s{sRB}
s_mul_i32 s{t4}, s{t2}, {PREC}
s_add_u32 s{t4}, s{t4}, {WS_PART}""")
for r in range(8): a(f"v_cvt_pk_bf16_f32 v{KB+r}, v{ACC+2*r}, v{ACC+2*r+1}")
for r in range(8): a(f"v_cvt_pk_bf16_f32 v{VB+r}, v{AC2+2*r}, v{AC2+2*r+1}")
chk_test(w)
xs("k1")
a(f"ds_write_b128 v{vSV}, {vr(VB,4)}\nds_write_b128 v{vSV}, {vr(VB+4,4)} offset:1024")
dma_stage(12)
for hh in range(2):
    features(KB + 4 * hh, WPH + 4 * hh, PH, DD, TM)
    for aa in range(4): a(f"ds_write_b64 v{vSW+aa}, {vr(PH+2*aa,2)} offset:{hh*4096}")
    xs(f"k3{hh}")
wait(vm=("st", 12)); w = arrive()
KA, KBv, KD = WR, AC2, ACC
a(f"s_mov_b32 s{t1}, {hex(ONES)}\ns_mov_b32 s{t2}, {hex(ONES)}")
for r in range(0, 16, 2): a(f"v_mov_b64 {vr(KBv+r,2)}, s[{t1}:{t2}]")
check(w)
xs("k4")
for u in range(4):
    a(f"ds_read_b64_tr_b16 {vr(KA+4*u,2)}, v{vSR} offset:{u*1024}\nds_read_b64_tr_b16 {vr(KA+4*u+2,2)}, v{vSR2} offset:{u*1024+512}")
a(f"s_mov_b32 exec_lo, 0xffff\ns_mov_b32 exec_hi, 0xffff")
for u in range(4):
    a(f"ds_read_b128 {vr(KBv+4*u,4)}, v{vSVR} offset:{(u//2)*4096 + (u%2)*1024}")
a("s_mov_b64 exec, -1")
LG.issue("kv", 12)
DB = 4
qslot = lambda n: WR + 4 * ((n + 4) % 8)
for n in range(DB): rd_stage(qslot(n), 8 + n // 8, n % 8, ("w", n))
wait(lg="kv")
for u in range(4):
    a(f"v_mfma_f32_32x32x16_bf16 {vr(KD,16)}, {vr(KA+4*u,4)}, {vr(KBv+4*u,4)}, {'0' if u == 0 else vr(KD,16)}")
a(f"s_mov_b32 exec_lo, 0xfffff\ns_mov_b32 exec_hi, 0xfffff")
for e in range(8):
    a(f"buffer_store_dwordx2 {vr(KD+2*e,2)}, v{vPR}, {sr(sWS,4)}, s{t4} offen sc1"); VM.issue("part")
    if e < 7: a(f"s_add_u32 s{t4}, s{t4}, {32*PREC}")
a("s_mov_b64 exec, -1")
stamp(5)
dq = [(c, n) for c in (13, 14) for n in range(4)]
a("s_setprio 0")
for n in range(32):
    wait(lg=("w", n))
    a(f"v_mfma_f32_32x32x16_bf16 {vr(AC2,16)}, {vr(qslot(n),4)}, {vr(XF+4*n,4)}, {'0' if n == 0 else vr(AC2,16)}")
    m = n + DB
    if m < 32: rd_stage(qslot(m), 8 + m // 8, m % 8, ("w", m))
    if n == 8: wait(vm="part"); wp = arrive()
    if n == 10: chk_read(wp)
    if n == 11:
        chk_test(wp, lowprio=True)
        with only(sS, 2): flag(F_F2)
    if n > 11 and dq: dma_one(*dq.pop(0))
    if n == 26:
        with only(sS, 2): poll_issue(vPC, vT2, F_F2)
a("s_setprio 2")
for k in range(8): rd_w(WB0 + 4 * k, vWOA, STG[12] + k * 2048, 1024, "wb0")
stamp(6)
KB, DD, TM = TMP, TMP + 16, TMP + 32
RD = TMP + 64
with only(sS, 2):
    a("s_waitcnt vmcnt(0)")
    poll_check(vPC, vT2, F_F2)
    xs("r1")
    a(f"""s_and_b32 s{t3}, s{sRB}, 3
    s_lshl_b32 s{t0}, s{sHG}, 2
    s_add_u32 s{t3}, s{t0}, s{t3}
    s_lshl_b32 s{t0}, s{t3}, 3
    s_lshr_b32 s{t2}, s{sRB}, 2
    s_add_u32 s{t0}, s{t0}, s{t2}
    s_mul_i32 s{t0}, s{t0}, {32*PREC}
    s_add_u32 s{t0}, s{t0}, {WS_PART}
    s_mov_b32 exec_lo, 0x1ffff
    s_mov_b32 exec_hi, 0x1ffff""")
    for n in range(32):
        if n and n % 8 == 0: a(f"s_add_u32 s{t0}, s{t0}, {8*PREC}")
        a(f"buffer_load_dwordx2 {vr(RD+2*n,2)}, v{vPR}, {sr(sWS,4)}, s{t0} offen offset:{(n%8)*PREC} sc1")
    a("s_mov_b64 exec, -1")
xs("r2")
for r in range(8): a(f"v_cvt_pk_bf16_f32 v{KB+r}, v{AC2+2*r}, v{AC2+2*r+1}")
features(KB, WPH, PHQ, DD, TM)
with only(sS, 2):
    a(f"""s_mul_i32 s{t0}, s{t3}, {KVF_STRIDE}
    s_lshr_b32 s{t1}, s{t2}, 2
    s_mul_i32 s{t1}, s{t1}, 544
    s_add_u32 s{t0}, s{t0}, s{t1}
    s_and_b32 s{t1}, s{t2}, 3
    s_lshl_b32 s{t1}, s{t1}, 2
    s_add_u32 s{t0}, s{t0}, s{t1}
    s_add_u32 s{t0}, s{t0}, {WS_KVF}
    s_waitcnt vmcnt(0)""")
    st = 16
    while st >= 1:
        for n in range(st): a(f"v_pk_add_f32 {vr(RD+2*n,2)}, {vr(RD+2*n,2)}, {vr(RD+2*(n+st),2)}")
        st //= 2
    a(f"""v_cvt_pk_bf16_f32 v15, v{RD}, v{RD+1}
    s_mov_b32 exec_lo, 0x1ffff
    s_mov_b32 exec_hi, 0x1ffff
    buffer_store_dword v15, v{vLI}, {sr(sWS,4)}, s{t0} offen sc1
    s_mov_b64 exec, -1""")
xs("r3")
features(KB + 4, WPH + 4, PHQ + 8, DD, TM)
with only(sS, 2):
    a("s_waitcnt vmcnt(0)"); flag(F_F3)
w = arrive()
stamp(7)
with only(sI, 0):
    a(f"s_mov_b32 s{sJ}, s{sP}"); call_fin(vGI)
xs("l1")
check(w, nap=1)
xs("l2")
dma_stage(15)
a(f"s_lshl_b32 s{t2}, s{sS}, 14\ns_lshl_b32 s{t3}, s{sS}, 17\ns_lshl_b32 s{t1}, s{sHG}, 7\ns_add_u32 s{t3}, s{t3}, s{t1}")
for n in range(16):
    a(f"s_add_u32 m0, s{t2}, {X + n*1024}\ns_add_u32 s{t1}, s{t3}, {n*8192}")
    a(f"buffer_load_dwordx4 v{vD1}, {sr(sWOA,4)}, s{t1} offen lds")
xs("l3")
with only(sS, 0): poll_issue(vPC, vT2, F_F3)
with only(sI, 1):
    a(f"s_add_u32 s{sJ}, s{sP}, 2"); call_fin(vGO)
a("s_waitcnt vmcnt(0)")
put_flag(sPF, vNON, vL4)
xs("l4")
wl = newword()
with only(sS, 0):
    poll_check(vPC, vT2, F_F3)
    arrive(wl)
a(f"""s_lshl_b32 s{t3}, s{sHG}, 2
s_lshl_b32 s{t1}, s{sP}, 1
s_add_u32 s{t3}, s{t3}, s{t1}
s_mul_i32 s{t4}, s{t3}, {KVF_STRIDE}
s_add_u32 s{t4}, s{t4}, {WS_KVF}
s_lshl_b32 s{sD0}, s{sRB}, 1
s_add_u32 s{sD0}, s{sD0}, s{sI}
s_lshl_b32 s{sD0}, s{sD0}, 16
s_add_u32 s{sD0}, s{sD0}, {WS_O}
s_lshl_b32 s{t3}, s{t3}, 10
s_add_u32 s{t3}, s{t3}, s{sD0}
s_add_u32 s{t3}, s{t3}, 32768
v_sub_f32 v15, 1.0, v{vGI}""")
check(wl, 1, nap=1)
stamp(8)
for hh in range(2):
    for u in range(2):
        a(f"buffer_load_dwordx4 {vr(TMP+8*hh+4*u,4)}, v{vLI}, {sr(sWS,4)}, s{t4} offen offset:{hh*KVF_STRIDE + u*544} sc1")
a("s_waitcnt vmcnt(0)")
for hh in range(2):
    D = TMP + 16 + 16 * hh
    a(f"v_mfma_f32_32x32x16_bf16 {vr(D,16)}, {vr(TMP+8*hh,4)}, {vr(PHQ+8*hh,4)}, 0")
    a(f"v_mfma_f32_32x32x16_bf16 {vr(D,16)}, {vr(TMP+8*hh+4,4)}, {vr(PHQ+8*hh+4,4)}, {vr(D,16)}")
for hh in range(2):
    D = TMP + 16 + 16 * hh
    a(f"v_add_f32 v{D+8}, 0x358637bd, v{D+8}\nv_rcp_f32 v{D+8}, v{D+8}\nv_mul_f32 v{D+8}, v{D+8}, v15")
    for r in range(0, 8, 2): a(f"v_pk_mul_f32 {vr(D+r,2)}, {vr(D+r,2)}, {vr(D+8,2)} op_sel_hi:[1,0]")
    for r in range(4): a(f"v_cvt_pk_bf16_f32 v{D+12+r}, v{D+2*r}, v{D+2*r+1}")
    a(f"buffer_store_dwordx4 {vr(D+12,4)}, v{vL16}, {sr(sWS,4)}, s{t3} offen offset:{hh*1024} sc1")
a("s_waitcnt vmcnt(0)")
w = arrive(); check(w, nap=1)
stamp(9)
wb = newword()

OF = TMP; RO = 16; WF = TMP + 64; DW = 4
def proj(steps, first, gate=None):
    N = len(steps)
    VM.clear(); LG.clear()
    def load1(n):
        if gate and gate[0] == n: chk_test(gate[1], 1, lowprio=True, nap=1)
        ro = steps[n][0]
        hi, lo = ro & ~4095, ro & 4095
        if n == 0 or hi != (steps[n-1][0] & ~4095): a(f"s_add_u32 s{t1}, s{sD0}, {hi}")
        a(f"buffer_load_dwordx4 {vr(OF+4*(n%RO),4)}, v{vL16}, {sr(sWS,4)}, s{t1} offen offset:{lo} sc1"); VM.issue(("o", n))
        if gate and gate[0] == n + 2: chk_read(gate[1])
    def wread1(n):
        w = steps[n][1]
        if w[0] == "lds": rd_w(WF + 4 * (n % 8), w[1], w[2], 1024, ("w", n))
    for n in range(min(RO, N)): load1(n)
    d = DW if N > 8 else 7
    for n in range(d): wread1(n)
    a("s_setprio 0")
    for n in range(N):
        wait(vm=("o", n), lg=("w", n))
        w = steps[n][1]
        wr = WF + 4 * (n % 8) if w[0] == "lds" else w[1]
        a(f"v_mfma_f32_32x32x16_bf16 {vr(ACC,16)}, {vr(wr,4)}, {vr(OF+4*(n%RO),4)}, {'0' if (first and n == 0) else vr(ACC,16)}")
        if n + d < N: wread1(n + d)
        if n + RO < N: load1(n + RO)
    a("s_setprio 2")
bb = [(32768 + n * 1024, ("reg", WB0 + 4*n) if n < 8 else ("lds", vWO, STG[12 + n // 8] - RING + (n % 8) * 2048)) for n in range(32)]
ab = [(n * 1024, ("lds", vWOA, n * 2048)) for n in range(32)]
def poll_block(vaddr, plane, pending=False, nap=4):
    poll_issue(vaddr, vT2, plane); a("s_waitcnt vmcnt(0)")
    if pending: put_flag(sPF, vNON, vL4)
    poll_check(vaddr, vT2, plane, nap)
def store_out():
    a(f"""v_and_b32 v14, 31, v0
    v_lshlrev_b32 v14, 10, v14
    v_lshrrev_b32 v15, 5, v0
    v_lshl_add_u32 v14, v15, 4, v14
    s_lshl_b32 s{t0}, s{sRB}, 16
    s_lshl_b32 s{t1}, s{sI}, 15
    s_add_u32 s{t0}, s{t0}, s{t1}
    s_lshl_b32 s{t1}, s{sHG}, 7
    s_add_u32 s{t0}, s{t0}, s{t1}
    s_lshl_b32 s{t1}, s{sP}, 6
    s_add_u32 s{t0}, s{t0}, s{t1}""")
    for r in range(8): a(f"v_cvt_pk_bf16_f32 v{PHQ+r}, v{ACC+2*r}, v{ACC+2*r+1}")
    for kk in range(2):
        b = PHQ + 4 * kk
        a(f"v_permlane32_swap_b32 v{b}, v{b+2}\nv_permlane32_swap_b32 v{b+1}, v{b+3}")
        a(f"buffer_store_dwordx4 {vr(b,4)}, v14, {sr(sOUT,4)}, s{t0} offen offset:{kk*32}")

a(f"s_cmp_eq_u32 s{sI}, 1\ns_cbranch_scc1 L_half1")
poll_block(vPO, F_OA)
stamp(10)
proj(ab + bb, True, gate=(32, wb))
store_out()
stamp(11)
a(f"s_add_u32 s{sJ}, s{sP}, 6"); call_fin(vGO)
a("s_waitcnt vmcnt(0)"); put_flag(sPF, vNON, vL4)
stamp(12)
diag_dump(13)
a("s_endpgm")
a("L_half1:")
LG.clear(); VM.clear()
with only(sS, 3):
    flag(F_OB)
    poll_block(vPF, F_OB)
    arrive(wb)
check(wb, 1, nap=1)
xs("m1")
proj(bb, True)
stamp(10)
a(f"s_add_u32 s{sJ}, s{sP}, 4"); call_fin(vGI)
for j in range(4, 8):
    poll_block(vPF, F_OA + j, pending=(j == 4), nap=(4 if j < 7 else 1))
    if j == 7: stamp(11)
    proj([((4*k + j - 4) * 1024, ("lds", vWOA, (4*k + j - 4) * 2048)) for k in range(8)], False)
    xs(f"n{j}")
store_out()
stamp(12)
diag_dump(13)
hold()
a("L_exit:\ns_endpgm")

FO = TMP
FL = TMP + 32
a("L_fin:\ns_nop 1")
lp, dn = a.lab("fw"), a.lab("fwd")
a(f"""s_and_b32 s{t2}, s{sJ}, 3
s_lshl_b32 s{t0}, s{t2}, 10
s_add_u32 s{t0}, s{t0}, {LT}
v_and_b32 v14, 3, v0
v_lshl_add_u32 v14, v14, 8, s{t0}
v_and_b32 v15, 124, v{vL4}
v_add_u32 v15, s{t0}, v15
s_lshl_b32 s{t1}, s{sJ}, 10
s_add_u32 s{t1}, s{t1}, {Q + 1024}
s_lshl_b32 s{t2}, s{t2}, 13
s_add_u32 s{t2}, s{t2}, {OP}
v_add_u32 v{FL+4}, s{t2}, v{vL16}
s_lshl_b32 s{t0}, s{sJ}, 15
s_add_u32 s{sPF}, s{t0}, s{sFL}
s_add_u32 s{sPF}, s{sPF}, {F_OA*FP}
s_lshl_b32 s{t0}, s{sJ}, 2
s_add_u32 s{t0}, s{t0}, {CONS + 16}
v_mov_b32 v13, s{t0}
s_lshr_b32 s{t0}, s{sJ}, 2
s_lshl_b32 s{t2}, s{sRB}, 1
s_add_u32 s{t0}, s{t0}, s{t2}
s_lshl_b32 s{t0}, s{t0}, 6
s_lshl_b32 s{t2}, s{sHG}, 2
s_add_u32 s{t0}, s{t0}, s{t2}
s_and_b32 s{t2}, s{sJ}, 3
s_add_u32 s{t0}, s{t0}, s{t2}
s_lshl_b32 s{t4}, s{t0}, 10
s_add_u32 s{t4}, s{t4}, {WS_O}
{lp}:
ds_read_b32 v{vT}, v14 offset:128
s_waitcnt lgkmcnt(0)
v_cmp_gt_u32 vcc, s{t1}, v{vT}
s_cbranch_vccz {dn}""")
budget(dn)
a(f"s_sleep {FNAP}\ns_branch {lp}\n{dn}:")
assert FP == 1 << 15 and CONS + 16 + 32 <= SYNC
for w in range(4):
    a(f"ds_read_b128 {vr(FO+8*w,4)}, v{FL+4} offset:{w*2048}\nds_read_b128 {vr(FO+8*w+4,4)}, v{FL+4} offset:{w*2048+1024}\nds_read_b32 v{FL+w}, v15 offset:{w*256}")
a(f"ds_write_b32 v13, v{vONE}\ns_waitcnt lgkmcnt(1)")
for r in range(0, 8, 2):
    a(f"v_pk_add_f32 {vr(FO+r,2)}, {vr(FO+r,2)}, {vr(FO+8+r,2)}\nv_pk_add_f32 {vr(FO+16+r,2)}, {vr(FO+16+r,2)}, {vr(FO+24+r,2)}")
a(f"v_pk_add_f32 {vr(FL,2)}, {vr(FL,2)}, {vr(FL+2,2)}")
for r in range(0, 8, 2): a(f"v_pk_add_f32 {vr(FO+r,2)}, {vr(FO+r,2)}, {vr(FO+16+r,2)}")
a(f"v_add_f32 v{FO+8}, v{FL}, v{FL+1}")
a(f"""v_pk_mul_f32 {vr(FO+10,2)}, {vr(FO,2)}, 0 op_sel_hi:[1,0]
v_pk_fma_f32 {vr(FO+10,2)}, {vr(FO+2,2)}, 0, {vr(FO+10,2)} op_sel_hi:[1,0,1]
v_pk_fma_f32 {vr(FO+10,2)}, {vr(FO+4,2)}, 0, {vr(FO+10,2)} op_sel_hi:[1,0,1]
v_pk_fma_f32 {vr(FO+10,2)}, {vr(FO+6,2)}, 0, {vr(FO+10,2)} op_sel_hi:[1,0,1]
v_add_f32 v{FO+10}, v{FO+10}, v{FO+11}
v_add_f32 v{FO+10}, v{FO+10}, v{FO+8}
v_cmp_nle_f32 vcc, {hex((127-40)<<23)}, v{FO+10}
s_cbranch_vccnz L_fb
v_cmp_nge_f32 vcc, {hex((127+60)<<23)}, v{FO+10}
s_cbranch_vccnz L_fb""")
if FORCE_FB: a("s_branch L_fb")
a(f"""L_fin_norm:
v_rcp_f32 v{FO+8}, v{FO+8}
v_mul_f32 v{FO+8}, v{FO+8}, v{vGF}""")
for r in range(0, 8, 2): a(f"v_pk_mul_f32 {vr(FO+r,2)}, {vr(FO+r,2)}, {vr(FO+8,2)} op_sel_hi:[1,0]")
for r in range(4): a(f"v_cvt_pk_bf16_f32 v{FOUT+r}, v{FO+2*r}, v{FO+2*r+1}")
a(f"buffer_store_dwordx4 {vr(FOUT,4)}, v{vL16}, {sr(sWS,4)}, s{t4} offen sc1")
a(f"s_setpc_b64 s[{sRET}:{sRET+1}]")
emit_cold()
a("CODE_END:")
BS, BC, BK, BV, BQ, BM = TMP + 16, TMP + 32, TMP + 48, TMP + 52, TMP + 60, TMP + 64
a(f"""L_fb:
s_sub_u32 s{t1}, s{t1}, 1024
v_add_u32 v14, s{t1}, v{vL16}
ds_read_b128 {vr(BQ,4)}, v14
v_mov_b32 v{BM}, 0xff800000
s_mov_b32 s{t0}, 0
s_waitcnt lgkmcnt(0)
L_fb1:
buffer_load_dwordx4 {vr(BK,4)}, v{vL16}, {sr(sWS,4)}, s{t0} offen sc1
s_waitcnt vmcnt(0)
v_mfma_f32_32x32x16_bf16 {vr(BS,16)}, {vr(BK,4)}, {vr(BQ,4)}, 0""")
for r in range(0, 16, 2): a(f"v_max3_f32 v{BM}, v{BM}, v{BS+r}, v{BS+r+1}")
a(f"""s_add_u32 s{t0}, s{t0}, 2048
s_cmp_lt_u32 s{t0}, 131072
s_cbranch_scc1 L_fb1
v_mov_b32 v{BM+1}, v{BM}
v_permlane32_swap_b32 v{BM}, v{BM+1}
v_max_f32 v{BM}, v{BM}, v{BM+1}""")
for r in range(16): a(f"v_sub_f32 v{BC+r}, 0, v{BM}\nv_mov_b32 v{FO+r}, 0")
a(f"""v_mov_b32 v15, 0xdddd
s_mov_b32 s{t0}, 0
L_fb2:
buffer_load_dwordx4 {vr(BK,4)}, v{vL16}, {sr(sWS,4)}, s{t0} offen sc1
buffer_load_dwordx4 {vr(BV,4)}, v{vL16}, {sr(sWS,4)}, s{t0} offen offset:1024 sc1""")
for r in range(4): a(f"v_mov_b32 v{BV+4+r}, {hex(ONES)}")
a(f"""s_waitcnt vmcnt(0)
v_mfma_f32_32x32x16_bf16 {vr(BS,16)}, {vr(BK,4)}, {vr(BQ,4)}, {vr(BC,16)}""")
for r in range(4): a(f"v_permlane16_swap_b32 v{BV+r}, v{BV+4+r}")
for r in range(16): a(f"v_exp_f32 v{BS+r}, v{BS+r}")
a(f"""v_smfmac_f32_32x32x32_bf16 {vr(FO,16)}, {vr(BV,4)}, {vr(BS,8)}, v15
v_smfmac_f32_32x32x32_bf16 {vr(FO,16)}, {vr(BV+4,4)}, {vr(BS+8,8)}, v15
s_add_u32 s{t0}, s{t0}, 2048
s_cmp_lt_u32 s{t0}, 131072
s_cbranch_scc1 L_fb2
s_nop 9
s_branch L_fin_norm""")

body = a.finish(verbose=bool(os.environ.get("VERBOSE")))
ref = open("cdna_kernels/" + NAME + ".s.ref").read().split("\n")
hdr = [l for l in ref if l.startswith(";") and "@launch" not in l and "Override" not in l and "grid=ceil" not in l]
out = "\n".join(hdr) + f"""
; @launch grid=(256,1,1) block=(512,1,1) lds={LDS_BYTES}
.amdgcn_target "amdgcn-amd-amdhsa--gfx950"
.text
.globl {NAME}_kernel
.p2align 8
.type {NAME}_kernel,@function
{NAME}_kernel:
{body}.section .rodata,"a"
.p2align 6
.amdhsa_kernel {NAME}_kernel
  .amdhsa_next_free_vgpr 256
  .amdhsa_next_free_sgpr 102
  .amdhsa_accum_offset 256
  .amdhsa_group_segment_fixed_size 0
  .amdhsa_kernarg_size 104
  .amdhsa_user_sgpr_count 2
  .amdhsa_user_sgpr_kernarg_segment_ptr 1
  .amdhsa_system_sgpr_workgroup_id_x 1
.end_amdhsa_kernel
"""
dst = sys.argv[1] if len(sys.argv) > 1 else "cdna_kernels/" + NAME + ".s"
open(dst, "w").write(out)
print("wrote", dst, len(a.lines), "lines,", len(a.inserted), "nops inserted, words", nword[0])
```

```python
import sys, os
from asmlib import Asm, Cnt, vr, sr

NAME = "gated_mix__grouped_kv_mqa__linear_kernel_hedgehog__prompt"
E = lambda k, d: int(os.environ.get(k, d))
DIAG = E("DIAG", 0); FORCE_FB = E("FORCE_FB", 0); TOUCH = E("TOUCH", 4); NOB = E("NOB", 0); PRE = E("PRE", 6)
FNAP = E("FNAP", 2); SIGT = E("SIGT", 6); POLLAT = E("POLLAT", 3); NST = E("NST", 2); MAP = E("MAP", 1); PW = E("PW", 3); ROT = E("ROT", 1); PUSH = E("PUSH", 1); WQE = E("WQE", 2); CPF = E("CPF", 1); WQT = E("WQT", 0); XJ = E("XJ", 2); PAD = E("PAD", 0xd00)
HOLDAT = os.environ.get("HOLDAT")

X = 0; XS = 1040
Q = 66560
OP = 74752
RING = 107520
LT = 156672
MISC = 160768
WKV = OP; WQB = OP + 16384
WPHI = Q
NONCE = MISC; CONS = MISC + 16; SYNC = MISC + 64
G = MISC + 512; GATE = MISC + 2048
LDS_BYTES = 163840
WS_KV = 0; WS_KVF = 0x20000; WS_DIAG = 0x40000; WS_F = 0x80000
WS_PART = 0x100000; WS_O = 0x400000; WS_SIZE = 0x800000
KVF_STRIDE = 1152; PREC = 320
F_KV, F_F2, F_F3, F_OB, F_OA = 0, 1, 2, 3, 4
FP = 0x8000
pX, pWQ, pWK, pWV, pWOA, pBX, pWQKV, pWPHI, pWOB, pGATE, pOUT, pDBG, pWS = [4 + 2 * i for i in range(13)]
sX, sWQ, sWKV, sWB, sWOA, sWOB, sWS, sOUT, sDBG, sSM = [32 + 4 * i for i in range(10)]
sW, sRB, sHG, sL, sNON, sBUD, sS, sI, sP = 72, 73, 74, 75, 76, 77, 78, 79, 80
t0, t1, t2, t3, t4, t5 = 81, 82, 83, 84, 85, 86
sJ = 87; sRET = 88
sL2E = 90
sFL = 92
sD0, sD1 = 93, 94
sPF = 95
sST = 4
LOG2E = 0x3fb8aa3b
QSCALE = 0x3eb8aa3b
ONES = 0x3f803f80

a = Asm()
role = ["E"]
XST = os.environ.get("XST", "").split(",") if os.environ.get("XST") else []
def xs(name):
    if DIAG and name in XST: a(f"s_memrealtime {sr(sST + 2 * XST.index(name), 2)}")
YST = os.environ.get("YST", "").split(",") if os.environ.get("YST") else []
YB = 48
YREG = [48, 50, 52, 54, 60, 62, 88, 90, 96, 98]
def ys(name):
    if DIAG and name in YST: a(f"s_memrealtime {sr(YREG[YST.index(name)], 2)}")
def stamp(n):
    if DIAG and YST and role[0] == "A": ys(f"a{n}")
    elif DIAG and XST and role[0] == "S": xs(f"s{n}")
    elif DIAG: a(f"s_memrealtime {sr(sST + 2 * n, 2)}")
    if HOLDAT == f"{role[0]}{n}": a("s_memrealtime s[100:101]")
def hold():
    if HOLDAT and (HOLDAT[0] == role[0] or (HOLDAT[0] == "E" and role[0] == "S")):
        l = a.lab("hold")
        a(f"{l}:\ns_memrealtime s[96:97]\ns_waitcnt lgkmcnt(0)\ns_sub_u32 s96, s96, s100\ns_cmp_lt_u32 s96, 4000\ns_cbranch_scc1 {l}")
def srd(d, p, size):
    a(f"s_mov_b32 s{d}, s{p}\ns_mov_b32 s{d+1}, s{p+1}\ns_mov_b32 s{d+2}, {hex(size)}\ns_mov_b32 s{d+3}, 0x20000")
def budget(done):
    a(f"s_cmp_eq_u32 s{sBUD}, 0\ns_cbranch_scc1 {done}\ns_sub_u32 s{sBUD}, s{sBUD}, 1")
cold = []
def emit_cold():
    while cold: cold.pop(0)()
def poll_issue(vaddr, vtmp, plane):
    a(f"s_mov_b32 s{t0}, {WS_F + plane*FP}\nbuffer_load_dword v{vtmp}, v{vaddr}, {sr(sWS,4)}, s{t0} offen sc1")
def poll_check(vaddr, vtmp, plane, nap=4):
    lp, dn = a.lab("pf"), a.lab("pfd")
    a(f"v_cmp_ne_u32 vcc, s{sNON}, v{vtmp}\ns_cbranch_vccnz {lp}\n{dn}:")
    def slow():
        a(f"{lp}:"); budget(dn)
        if nap: a(f"s_sleep {nap}")
        poll_issue(vaddr, vtmp, plane)
        a(f"s_waitcnt vmcnt(0)\nv_cmp_ne_u32 vcc, s{sNON}, v{vtmp}\ns_cbranch_vccnz {lp}\ns_branch {dn}")
    cold.append(slow)
def put_flag(soff, vnon, vl4):
    a(f"s_mov_b32 exec_hi, 0\nbuffer_store_dword v{vnon}, v{vl4}, {sr(sWS,4)}, s{soff} offen sc1\ns_mov_b32 exec_hi, -1")
def diag_dump(n):
    if not DIAG: return
    a("s_waitcnt lgkmcnt(0)")
    a(f"s_lshl_b32 s{t0}, s{sL}, 3\ns_add_u32 s{t0}, s{t0}, s{sW}\ns_lshl_b32 s{t0}, s{t0}, 6\ns_add_u32 s{t0}, s{t0}, {WS_DIAG}")
    a("v_mov_b32 v8, 0")
    for i in range(14):
        a(f"v_writelane_b32 v8, s{YREG[i] if (YST and role[0] == 'A' and i < len(YST)) else sST+2*i}, {i}")
    a("v_writelane_b32 v8, s100, 14")
    a(f"""v_mbcnt_lo_u32_b32 v9, -1, 0
    v_mbcnt_hi_u32_b32 v9, -1, v9
    v_lshlrev_b32 v9, 2, v9
    s_mov_b64 exec, 0xffff
    buffer_store_dword v8, v9, {sr(sWS,4)}, s{t0} offen
    s_mov_b64 exec, -1""")
def dma_lane_addrs():
    a(f"""v_lshrrev_b32 v11, 3, v0
    v_and_b32 v12, 7, v0
    v_lshrrev_b32 v13, 2, v0
    v_and_b32 v13, 4, v13
    v_xor_b32 v12, v12, v13
    v_lshlrev_b32 v12, 4, v12
    v_lshl_add_u32 v9, v11, 10, v12
    v_mul_u32_u24 v8, 3072, v11
    v_add_u32 v8, v8, v12""")
def xrows(n):
    for r in range(n):
        a(f"s_add_u32 m0, s{sD0}, {X + (r//4)*4*XS + (r%4)*16}")
        if r % 4 == 0 and r: a(f"s_add_u32 s{sD1}, s{sD1}, 4096")
        a(f"buffer_load_dwordx4 v10, {sr(sX,4)}, s{sD1} offen offset:{(r%4)*1024} lds")
X0, X1, X2, X3 = X, X + 16384, X + 32768, X + 49152
R0, R1, R2 = RING, RING + 16384, RING + 32768
STG = [X0, X1, X2, X3, R0, R1, R2, X0,   X1, X2, X3, R0,   X0, R1, R2, R0]
W_ST, W_KV, W_Q = 0, 1, 2
nword = [3]

if HOLDAT or DIAG: a("s_memrealtime s[100:101]")
a(f"""s_cmp_ge_u32 s2, 256
s_cbranch_scc1 L_exit
s_load_dwordx16 s[4:19], s[0:1], 0
s_load_dwordx8 s[20:27], s[0:1], 64
s_load_dwordx2 s[28:29], s[0:1], 96
v_lshrrev_b32 v1, 6, v0
v_and_b32 v0, 63, v0
v_readfirstlane_b32 s{sW}, v1""")
a(f"""s_and_b32 s{t0}, s2, 7
s_lshr_b32 s{t1}, s2, 3""")
if MAP == 0:
    a(f"""s_lshr_b32 s{t2}, s{t0}, 1
    s_lshl_b32 s{t2}, s{t2}, 3
    s_lshr_b32 s{t3}, s{t1}, 2
    s_add_u32 s{sRB}, s{t2}, s{t3}
    s_and_b32 s{t2}, s{t0}, 1
    s_lshl_b32 s{t2}, s{t2}, 2
    s_and_b32 s{t5}, s{t1}, 3
    s_add_u32 s{sHG}, s{t2}, s{t5}""")
else:
    a(f"""s_lshl_b32 s{t2}, s{t0}, 2
    s_lshr_b32 s{t3}, s{t1}, 3
    s_add_u32 s{sRB}, s{t2}, s{t3}
    s_and_b32 s{sHG}, s{t1}, 7
    s_and_b32 s{t5}, s{t1}, 3""")
def ids():
    a(f"""s_lshl_b32 s{sL}, s{sRB}, 3
    s_add_u32 s{sL}, s{sL}, s{sHG}
    s_mov_b32 s{sBUD}, 400000
    s_lshl_b32 s{sFL}, s{sL}, 7
    s_add_u32 s{sFL}, s{sFL}, {WS_F}""")
a(f"""v_lshlrev_b32 v10, 4, v0
s_cmp_ge_u32 s{sW}, 3
s_cbranch_scc1 L_w37""")
def others():
    a(f"L_w37:\ns_cmp_eq_u32 s{sW}, 3\ns_cbranch_scc1 L_aw3")
    if CPF:
        a(f"""s_getpc_b64 s[{sSM}:{sSM+1}]
        L_pc:
        s_lshl_b32 s{t0}, s{t1}, 2
        s_add_u32 s{t0}, s{t0}, s{sW}
        s_sub_u32 s{t0}, s{t0}, 3
        s_lshl_b32 s{t0}, s{t0}, 8
        s_min_u32 s{t0}, s{t0}, CODE_END - L_pc - 256
        s_add_u32 s{sSM}, s{sSM}, s{t0}
        s_addc_u32 s{sSM+1}, s{sSM+1}, 0
        s_load_dword s96, s[{sSM}:{sSM+1}], 0
        s_load_dword s97, s[{sSM}:{sSM+1}], 64
        s_load_dword s98, s[{sSM}:{sSM+1}], 128
        s_load_dword s99, s[{sSM}:{sSM+1}], 192""")
    a("s_barrier\ns_branch L_sw")
    a(f"""L_aw3:
    s_cmp_lg_u32 s2, 0
    s_cbranch_scc1 L_nononce
    s_memrealtime s[{t1}:{t2}]
    v_mov_b32 v13, 0
    s_waitcnt lgkmcnt(0)
    s_or_b32 s{t1}, s{t1}, 1
    v_mov_b32 v14, s{t1}
    s_mov_b64 exec, 1
    global_store_dword v13, v14, s[{pDBG}:{pDBG+1}] sc1
    s_mov_b64 exec, -1
    L_nononce:
    s_barrier
    s_branch L_aw3b""")
role[0] = "A"
S0, S1, O_, QR, KR, VR = 12, 28, 44, 60, 64, 128
vIDX, vZ, vQA, vPA, vLA, vCA, vCV = 1, 2, 4, 5, 6, 7, 8
JX, JW, JA = KR, KR + 64, O_
aNON = O_ + 8
def vconst():
    a(f"""v_and_b32 v12, 11, v0
    v_cmp_eq_u32 vcc, 0, v12
    v_mov_b32 v13, {hex(ONES)}
    v_cndmask_b32 v12, 0, v13, vcc
    v_cndmask_b32 v13, 0, v13, vcc""")
    for t in range(16): a(f"v_mov_b64 {vr(VR+8*t+4,2)}, v[12:13]\nv_mov_b64 {vr(VR+8*t+6,2)}, v[12:13]")
a(f"""s_mul_i32 s{sP}, s{sW}, 3
s_max_u32 s{sP}, s{sP}, 1
s_lshl_b32 s{t0}, s{t5}, 1
s_add_u32 s{sP}, s{sP}, s{t0}
s_sub_u32 s{sP}, s{sP}, 1
s_min_u32 s{sI}, s{sW}, 1
s_add_u32 s{sI}, s{sI}, 2
s_lshl_b32 s{t4}, s{sRB}, 16""")
ys("pre")
a("s_waitcnt lgkmcnt(0)")
ys("ka")
srd(sX, pX, 0x200000)
a(f"""s_cmp_eq_u32 s{sW}, 0
s_cbranch_scc1 L_xl
s_barrier
L_xl:
s_and_b32 s{t0}, s{sP}, 7
s_lshl_b32 s{t2}, s{t0}, 13
s_add_u32 s{sD1}, s{t4}, s{t2}
s_mul_i32 s{sD0}, s{t0}, {8*XS}""")
xrows(8)
a(f"""s_add_u32 s{sP}, s{sP}, 1
s_sub_u32 s{sI}, s{sI}, 1
s_cmp_lg_u32 s{sI}, 0
s_cbranch_scc1 L_xl
s_cmp_lg_u32 s{sW}, 0
s_cbranch_scc1 L_aw12""")
ys("xi")
a(f"s_bitcmp1_b32 s{sHG}, 2\ns_cselect_b32 s{sWKV}, s{pWV}, s{pWK}\ns_cselect_b32 s{sWKV+1}, s{pWV+1}, s{pWK+1}\ns_mov_b32 s{sWKV+2}, 0x4000\ns_mov_b32 s{sWKV+3}, 0x20000")
for n in range(16):
    if n % 4 == 0: a(f"s_mov_b32 m0, {WKV + n*1024}\ns_mov_b32 s{t1}, {n*1024}")
    a(f"buffer_load_dwordx4 v10, {sr(sWKV,4)}, s{t1} offen offset:{(n%4)*1024} lds")
a("s_barrier\ns_branch L_aw0b")
others()
a("L_aw0b:")
ids()
srd(sWS, pWS, WS_SIZE); srd(sDBG, pDBG, 256)
stamp(0)
a(f"""v_and_b32 v16, 15, v0
v_lshrrev_b32 v14, 4, v0
s_lshl_b32 s{t0}, s{t5}, 4
v_add_u32 v13, s{t0}, v16
v_mul_u32_u24 v15, {XS}, v13
v_lshl_add_u32 v15, v14, 4, v15
v_lshlrev_b32 v19, 3, v16
v_lshl_add_u32 v19, v14, 8, v19
v_add_u32 v19, {WKV}, v19
s_lshr_b32 s{t0}, s{t5}, 1
s_lshl_b32 s{t1}, s{sRB}, 1
s_add_u32 s{t0}, s{t0}, s{t1}
s_lshl_b32 s{t0}, s{t0}, 11
s_and_b32 s{t1}, s{t5}, 1
s_lshl_b32 s{t1}, s{t1}, 8
s_add_u32 s{t4}, s{t0}, s{t1}
v_and_b32 v17, 1, v14
v_lshrrev_b32 v18, 1, v14""")
a(f"s_bitcmp1_b32 s{sHG}, 2\ns_cbranch_scc1 L_job_v")
def job(isv):
    hi, lo = (18, 17) if isv else (17, 18)
    a(f"v_lshlrev_b32 v20, 9, v{hi}\nv_lshl_add_u32 v20, v16, 4, v20\nv_lshl_add_u32 v17, v{lo}, 3, v20")
    if isv: a(f"s_add_u32 s{t4}, s{t4}, 1024")
    ys("j0")
    a("s_waitcnt vmcnt(16)")
    ys("xl")
    for n in range(16): a(f"ds_read_b128 {vr(JX+4*n,4)}, v15 offset:{n*64}")
    def grp(gq):
        a(f"s_waitcnt vmcnt({12 - 4*gq})")
        if gq == 3: ys("wl")
        for n in range(4 * gq, 4 * gq + 4):
            a(f"ds_read_b64_tr_b16 {vr(JW+4*n,2)}, v19 offset:{n*1024}")
            a(f"ds_read_b64_tr_b16 {vr(JW+4*n+2,2)}, v19 offset:{n*1024+128}")
    def mm(gq):
        for n in range(4 * gq, 4 * gq + 4):
            A, B = (JX, JW) if isv else (JW, JX)
            a(f"v_mfma_f32_16x16x32_bf16 {vr(JA,4)}, {vr(A+4*n,4)}, {vr(B+4*n,4)}, {'0' if n == 0 else vr(JA,4)}")
    grp(0)
    for gq in range(4):
        if gq < 3: grp(gq + 1); a("s_waitcnt lgkmcnt(8)")
        else: a("s_waitcnt lgkmcnt(0)")
        mm(gq)
job(False)
a("s_branch L_job_st\nL_job_v:")
job(True)
a("L_job_st:")
a(f"""v_cvt_pk_bf16_f32 v20, v{JA}, v{JA+1}
v_cvt_pk_bf16_f32 v21, v{JA+2}, v{JA+3}
buffer_store_dwordx2 v[20:21], v17, {sr(sWS,4)}, s{t4} offen sc1
buffer_load_dword v{aNON}, off, {sr(sDBG,4)}, 0 sc1""")
stamp(8)
a("s_barrier")
stamp(1)
def job_flag():
    lp, dn = a.lab("np"), a.lab("npd")
    a(f"""s_lshl_b32 s{t0}, s{sRB}, 7
    s_lshl_b32 s{t1}, s{sHG}, 2
    s_add_u32 s{t0}, s{t0}, s{t1}
    s_add_u32 s{t0}, s{t0}, {WS_F}
    s_waitcnt vmcnt(0)
    v_cmp_eq_u32 vcc, 0, v{aNON}
    s_cbranch_vccnz {lp}
    {dn}:
    s_mov_b64 exec, 1
    buffer_store_dword v{aNON}, off, {sr(sWS,4)}, s{t0} sc1
    s_mov_b64 exec, -1""")
    a(f"v_mov_b32 v13, {NONCE}\nds_write_b32 v13, v{aNON}\ns_waitcnt lgkmcnt(0)")
    stamp(9)
    def slow():
        a(f"{lp}:"); budget(dn)
        a(f"""buffer_load_dword v{aNON}, off, {sr(sDBG,4)}, 0 sc1
        s_waitcnt vmcnt(0)
        v_cmp_eq_u32 vcc, 0, v{aNON}
        s_cbranch_vccnz {lp}
        s_branch {dn}""")
    cold.append(slow)
def aw_poll():
    a(f"s_lshl_b32 s{t1}, s{sW}, 10\nv_lshrrev_b32 v11, 3, v0\nv_lshl_add_u32 v11, v11, 7, s{t1}\nv_and_b32 v14, 7, v0\nv_lshl_add_u32 v11, v14, 2, v11")
    poll_issue(11, S1, F_KV)
job_flag()
a("s_barrier")
vconst()
for b in range(1, 4):
    a("s_barrier")
    if b == POLLAT: aw_poll()
a("s_waitcnt vmcnt(0)\ns_branch L_aw_all")

a("L_aw12:")
ids()
stamp(0)
dma_lane_addrs()
a(f"""s_sub_u32 s{sS}, s{sW}, 1
s_lshl_b32 s{t3}, s{sS}, 13
s_lshl_b32 s{t4}, s{sS}, 16
s_lshl_b32 s{t2}, s{sHG}, 7
s_add_u32 s{t4}, s{t4}, s{t2}
""")
srd(sWQ, pWQ, 0x80000); srd(sWS, pWS, WS_SIZE)
AV = Cnt(63)
def ld_wq(g):
    for n in range(8):
        a(f"s_add_u32 m0, s{t3}, {WQB + ((g + 1) % 4)*16384 + n*1024}\ns_add_u32 s{t1}, s{t4}, {g*131072 + n*8192}")
        a(f"buffer_load_dwordx4 v9, {sr(sWQ,4)}, s{t1} offen lds")
    AV.issue(g, 8)
for g_ in range(WQE): ld_wq(g_)
ys("j0")
a(f"s_waitcnt vmcnt({8*WQE})")
ys("xl")
a("s_barrier")
stamp(1)
for g_ in range(WQE, 3): ld_wq(g_)
for b in range(4):
    ys(f"i{b}")
    a(f"s_waitcnt vmcnt({AV.need(b)})")
    ys(f"l{b}")
    a("s_barrier")
    ys(f"b{b}")
    if b == 0: ld_wq(3); vconst()
    if b == POLLAT: aw_poll(); AV.issue("poll")
a(f"s_waitcnt vmcnt({AV.need('poll')})\ns_branch L_aw_all")

a("L_aw3b:")
ids()
a("s_waitcnt lgkmcnt(0)")
srd(sWS, pWS, WS_SIZE)
NO3 = E("NO3", 0)
if not NO3 & 1: a(f"""v_lshlrev_b32 v13, 15, v0
s_lshl_b32 s{t1}, s{sL}, 7
s_add_u32 s{t1}, s{t1}, {WS_KVF}
s_mov_b64 exec, 3
buffer_load_dword v20, v13, {sr(sWS,4)}, s{t1} offen
s_lshl_b32 s{t1}, s{sRB}, 7
s_add_u32 s{t1}, s{t1}, {WS_F}
buffer_load_dword v20, off, {sr(sWS,4)}, s{t1}
s_mov_b64 exec, -1""")
if WQT:
    srd(sWQ, pWQ, 0x80000)
    a(f"""s_and_b32 s{t0}, s{sRB}, {3 if MAP else 7}
    s_lshl_b32 s{t0}, s{t0}, 16
    s_lshl_b32 s{t1}, s{sHG}, 7
    s_add_u32 s{t0}, s{t0}, s{t1}
    v_lshlrev_b32 v13, 10, v0
    buffer_load_dword v20, v13, {sr(sWQ,4)}, s{t0} offen""")
stamp(0)
srd(sWB, pWQKV, 0x180000); srd(sWOA, pWOA, 0x80000); srd(sWOB, pWOB, 0x80000)
srd(sSM, pGATE, 1024); srd(sX, pWPHI, 16384)
a(f"""s_lshl_b32 s{t4}, s{sHG}, 7
s_mov_b32 m0, {GATE}
v_lshlrev_b32 v17, 10, v0""")
if not NO3 & 2: a(f"""buffer_load_dwordx4 v10, {sr(sSM,4)}, 0 offen lds
s_lshl_b32 s{t0}, s{sHG}, 11
s_mov_b32 m0, {WPHI}
s_nop 0
buffer_load_dwordx4 v10, {sr(sX,4)}, s{t0} offen lds
buffer_load_dwordx4 v10, {sr(sX,4)}, s{t0} offen offset:1024 lds""")
a(f"""v_mov_b32 v24, 0
v_mov_b32 v25, 0
v_mov_b32 v26, 0
v_mov_b32 v27, 0
v_add_u32 v13, {LT}, v10""")
for n in range(4): a(f"ds_write_b128 v13, v[24:27] offset:{n*1024}")
a(f"""v_lshlrev_b32 v13, 2, v0
v_add_u32 v13, {MISC}, v13
v_lshrrev_b32 v14, 2, v0
v_cmp_eq_u32 vcc, 1, v14
v_cndmask_b32 v14, 0, v14, vcc
ds_write_b32 v13, v14""")
vconst()
a("s_waitcnt vmcnt(0) lgkmcnt(0)\ns_barrier")
stamp(1)
NT3 = 0
for b in range(4):
    a("s_barrier")
    if b == POLLAT:
        aw_poll()
        if TOUCH & 4:
            NT3 = 3
            a(f"""v_and_b32 v14, 15, v0
            v_mul_u32_u24 v15, 3072, v14
            v_lshrrev_b32 v16, 4, v0
            v_lshl_add_u32 v15, v16, 10, v15
            s_mul_i32 s{t0}, s{sRB}, {16*3072}
            s_add_u32 s{t0}, s{t0}, s{t4}
            s_mov_b32 exec_hi, 0xffff
            buffer_load_dword v{QR}, v15, {sr(sWB,4)}, s{t0} offen
            s_lshl_b32 s{t0}, s{sRB}, 14
            s_add_u32 s{t0}, s{t0}, s{t4}
            s_mov_b64 exec, 0xffff
            buffer_load_dword v{QR}, v17, {sr(sWOB,4)}, s{t0} offen
            buffer_load_dword v{QR}, v17, {sr(sWOA,4)}, s{t0} offen
            s_mov_b64 exec, -1""")
a(f"s_waitcnt vmcnt({NT3})")

a("L_aw_all:")
stamp(2)
a(f"""v_mov_b32 v9, {NONCE}
ds_read_b32 v{S1+1}, v9
s_setprio 1
s_lshl_b32 s{t4}, s{sW}, 15""")
if ROT: a(f"s_lshr_b32 s{t2}, s2, 3\ns_and_b32 s{t2}, s{t2}, 7\ns_lshl_b32 s{t2}, s{t2}, 12\ns_add_u32 s{t4}, s{t4}, s{t2}")
a(f"s_waitcnt lgkmcnt(0)\nv_readfirstlane_b32 s{sNON}, v{S1+1}")
poll_check(11, S1, F_KV, nap=2)
stamp(3)
def kvload(t):
    if t % 2 == 0: a(f"s_xor_b32 s{t3}, s{t4}, {t*2048}")
    a(f"buffer_load_dwordx4 {vr(KR+4*t,4)}, v10, {sr(sWS,4)}, s{t3} offen offset:{(t%2)*2048} sc1")
    a(f"buffer_load_dwordx4 {vr(VR+8*t,4)}, v10, {sr(sWS,4)}, s{t3} offen offset:{(t%2)*2048+1024} sc1")
for t in range(PRE): kvload(t)
a(f"""s_lshl_b32 s{t0}, s{sW}, 11
s_add_u32 s{t0}, s{t0}, {OP}
v_add_u32 v{vPA}, s{t0}, v10
v_add_u32 v{vQA}, {Q}, v10
s_lshl_b32 s{t0}, s{sW}, 8
s_add_u32 s{t0}, s{t0}, {LT}
v_and_b32 v{vLA}, 31, v0
v_lshl_add_u32 v{vLA}, v{vLA}, 2, s{t0}
v_mov_b32 v{vCA}, {CONS}
v_mov_b32 v{vIDX}, 0xdddd
v_mov_b32 v{vZ}, 0
v_mov_b32 v{vZ+1}, 0
v_mov_b32 v{vCV}, 1""")
def aw_signal(word):
    a(f"s_mov_b64 exec, 1\nds_add_u32 v9, v{vCV} offset:{SYNC - NONCE + 4*word}\ns_mov_b64 exec, -1")
if NT3: a(f"s_waitcnt vmcnt({2*PRE})")
lp, dn = a.lab("qb"), a.lab("qbd")
a(f"""{lp}:
ds_read_b32 v11, v9 offset:{SYNC - NONCE + 4*W_Q}
s_waitcnt lgkmcnt(0)
v_cmp_gt_u32 vcc, 4, v11
s_cbranch_vccz {dn}""")
budget(dn)
a(f"s_branch {lp}\n{dn}:\nds_read_b128 {vr(QR,4)}, v{vQA}")
stamp(4)
def zero_o(): a(f"v_mfma_f32_32x32x8_bf16 {vr(O_,16)}, {vr(vZ,2)}, {vr(vZ,2)}, 0")
def qk(t, S): a(f"v_mfma_f32_32x32x16_bf16 {vr(S,16)}, {vr(KR+4*t,4)}, {vr(QR,4)}, 0")
def pv(t, s, S): a(f"v_smfmac_f32_32x32x32_bf16 {vr(O_,16)}, {vr(VR+8*t+4*s,4)}, {vr(S+8*s,8)}, v{vIDX}")
def flush():
    lp, dn = a.lab("cw"), a.lab("cwd")
    a(f"v_cmp_eq_u32 vcc, 0, v{vCV}\ns_cbranch_vccnz {lp}")
    def slow():
        a(f"{lp}:"); budget(dn)
        a(f"""s_sleep 1
        ds_read_b32 v{vCV}, v{vCA}
        s_waitcnt lgkmcnt(0)
        v_cmp_eq_u32 vcc, 0, v{vCV}
        s_cbranch_vccnz {lp}
        s_branch {dn}""")
    cold.append(slow)
    a(f"""{dn}:
    ds_write_b128 v{vPA}, {vr(O_,4)}
    ds_write_b128 v{vPA}, {vr(O_+4,4)} offset:1024
    ds_write2_b32 v{vLA}, v{O_+8}, v{vQA} offset0:0 offset1:32""")
def apass(first):
    for t in range(16):
        S, Sn = (S0, S1) if t % 2 == 0 else (S1, S0)
        for e in range(16):
            if e == 2 and not (first and t == 0): pv((t - 1) % 16, 1, Sn)
            if e == 5:
                if first and t < 15: a(f"s_waitcnt vmcnt({1 + 2*(min(t + PRE - 1, 15) - (t + 1))})")
                if t == 15: a("s_waitcnt lgkmcnt(0)" if not first else "s_waitcnt vmcnt(0) lgkmcnt(0)")
                qk((t + 1) % 16, Sn)
                if t == 14:
                    a(f"v_add_u32 v{vQA}, 1024, v{vQA}\nds_read_b128 {vr(QR,4)}, v{vQA}\nds_read_b32 v{vCV}, v{vCA}")
            if e == 8 and first:
                for r in range(4): a(f"v_permlane16_swap_b32 v{VR+8*t+r}, v{VR+8*t+4+r}")
                if t + PRE < 16: kvload(t + PRE)
                if t == SIGT: aw_signal(W_KV)
            if e == 13 and t == 0 and not first:
                flush(); zero_o()
            if e == 15: pv(t, 0, S)
            a(f"v_exp_f32 v{S+e}, v{S+e}")
        if t == 0 and not first:
            a(f"""s_add_u32 s{sJ}, s{sJ}, 1
            s_cmp_eq_u32 s{sJ}, 4
            s_cselect_b32 s{t0}, -3, 1
            v_lshl_add_u32 v{vPA}, s{t0}, 13, v{vPA}
            v_lshl_add_u32 v{vLA}, s{t0}, 10, v{vLA}
            v_add_u32 v{vCA}, 4, v{vCA}""")
zero_o()
a(f"s_mov_b32 s{sJ}, 0\ns_waitcnt vmcnt({2*PRE-1}) lgkmcnt(0)")
qk(0, S0)
stamp(5)
apass(True)
stamp(6)
if DIAG and not YST: a("s_memtime s[96:97]")
a(".p2align 6\nL_aloop:")
apass(False)
a(f"s_cmp_lt_u32 s{sJ}, 7\ns_cbranch_scc1 L_aloop")
pv(15, 1, S1)
a("s_nop 9")
flush()
stamp(7)
if DIAG and not YST: a("s_memtime s[98:99]\ns_waitcnt lgkmcnt(0)\ns_sub_u32 s30, s98, s96")
diag_dump(8)
hold()
a("s_endpgm")
emit_cold()

role[0] = "S"
vONE, vSY, vT = 1, 2, 3
vXA, vWX, vWO, vWOA, vD3, vD1, vL16, vGI, vGO = 4, 5, 6, 7, 8, 9, 10, 11, 12
WPH, PHQ, ACC, AC2, WB0, TMP = 16, 24, 40, 56, 72, 104
vNON, vGF, vLI, vPF = 232, 233, 234, 235
vSW, vSR, vSR2, vSV, vSVR = 236, 240, 241, 242, 243
FOUT = 244
vPO, vT2, vL4, vWP, vPR, vPC = 248, 249, 251, 252, 253, 254
XF = TMP; WR = WB0
VM, LG = Cnt(63), Cnt(15)
def wait(vm=None, lg=None):
    if isinstance(vm, tuple) and vm[0] == "st": assert (vm[1], 3) in issued, vm
    v = VM.need(vm) if vm is not None else None
    l = LG.need(lg) if lg is not None else None
    t = ([f"vmcnt({v})"] if v is not None else []) + ([f"lgkmcnt({l})"] if l is not None else [])
    if t: a("s_waitcnt " + " ".join(t))
def newword():
    nword[0] += 1; assert nword[0] <= 48; return nword[0] - 1
def arrive(w=None):
    w = newword() if w is None else w
    a(f"s_mov_b64 exec, 1\nds_add_u32 v{vSY}, v{vONE} offset:{4*w}\ns_mov_b64 exec, -1")
    LG.issue("arr")
    return w
def chk_read(w):
    a(f"ds_read_b32 v{vT}, v{vSY} offset:{4*w}"); LG.issue("chk")
def chk_test(w, target=4, lowprio=False, nap=0):
    dn, rt = a.lab("sbd"), a.lab("sbr")
    if lowprio: a("s_setprio 2")
    wait(lg="chk")
    a(f"v_readfirstlane_b32 s{t0}, v{vT}\ns_cmp_lt_u32 s{t0}, {target}\ns_cbranch_scc1 {rt}\n{dn}:")
    if lowprio: a("s_setprio 0")
    def slow():
        a(f"{rt}:"); budget(dn)
        if nap: a(f"s_sleep {nap}")
        a(f"""ds_read_b32 v{vT}, v{vSY} offset:{4*w}
        s_waitcnt lgkmcnt(0)
        v_readfirstlane_b32 s{t0}, v{vT}
        s_cmp_lt_u32 s{t0}, {target}
        s_cbranch_scc1 {rt}
        s_branch {dn}""")
    cold.append(slow)
def check(w, target=4, nap=0): chk_read(w); chk_test(w, target, nap=nap)
class only:
    def __init__(s, reg, val): s.reg, s.val = reg, val
    def __enter__(s):
        s.l = a.lab("only"); a(f"s_cmp_lg_u32 s{s.reg}, {s.val}\ns_cbranch_scc1 {s.l}")
        s.sv = (list(VM.q), list(LG.q))
    def __exit__(s, *e):
        a(f"{s.l}:"); VM.q, LG.q = s.sv
def flag(plane): a(f"s_add_u32 s{t0}, s{sFL}, {plane*FP}"); put_flag(t0, vNON, vL4)
def call_fin(greg):
    a(f"v_mov_b32 v{vGF}, v{greg}\ns_call_b64 s[{sRET}:{sRET+1}], L_fin\ns_nop 1")
def dma_base(kind):
    a(f"s_lshl_b32 s{t1}, s{sHG}, 7")
    if kind == "kv":
        a(f"s_mul_i32 s{sD1}, s{sP}, {32*3072}\ns_add_u32 s{sD1}, s{sD1}, s{t1}\ns_lshl_b32 s{t1}, s{sI}, 10\ns_add_u32 s{sD1}, s{sD1}, s{t1}\ns_add_u32 s{sD1}, s{sD1}, 1024")
    elif kind == "q":
        a(f"s_mul_i32 s{sD1}, s{sS}, {32*3072}\ns_add_u32 s{sD1}, s{sD1}, s{t1}")
    else:
        a(f"s_lshl_b32 s{sD1}, s{sS}, 15\ns_add_u32 s{sD1}, s{sD1}, s{t1}")
def dma_one(c, n):
    if n == 0 and c in (8, 12): dma_base("q" if c == 8 else "o")
    if c < 8:   srdw, vo, base, step = sWB, vD3, c * 64 * 3072, 8 * 3072
    elif c < 12: srdw, vo, base, step = sWB, vD3, (c - 8) * 128 * 3072, 8 * 3072
    else:       srdw, vo, base, step = sWOB, vD1, (c - 12) * 128 * 1024, 8 * 1024
    a(f"s_add_u32 m0, s{sD0}, {STG[c] + n*1024}\ns_add_u32 s{t1}, s{sD1}, {base + n*step}")
    a(f"buffer_load_dwordx4 v{vo}, {sr(srdw,4)}, s{t1} offen lds")
    VM.issue(("st", c)); issued.add((c, n))
issued = set()
def dma_stage(c):
    for n in range(4): dma_one(c, n)
def rd_w(dst, vaddr, off, second, tag=None):
    a(f"ds_read_b64_tr_b16 {vr(dst,2)}, v{vaddr} offset:{off}\nds_read_b64_tr_b16 {vr(dst+2,2)}, v{vaddr} offset:{off+second}")
    LG.issue(tag, 2)
def rd_stage(dst, c, k, tag):
    if STG[c] < OP: rd_w(dst, vWX, STG[c] + k * 2048, 512, tag)
    else: rd_w(dst, vWP, STG[c] - WQB + k * 2048, 512, tag)

a(".p2align 6\nL_sw:")
ids()
a(f"""s_setprio 2
s_and_b32 s{sS}, s{sW}, 3
s_lshr_b32 s{sI}, s{sS}, 1
s_and_b32 s{sP}, s{sS}, 1""")
dma_lane_addrs()
SCP = R1
SCV = R2
assert SCP % 64 == 0 and X == 0
a(f"""v_and_b32 v11, 31, v0
s_lshl_b32 s{t0}, s{sI}, 5
v_add_u32 v13, s{t0}, v11
v_mul_u32_u24 v{vXA}, {XS}, v13
v_lshrrev_b32 v12, 5, v0
v_lshl_add_u32 v{vXA}, v12, 4, v{vXA}
v_and_b32 v13, 15, v0
v_lshrrev_b32 v16, 2, v13
v_lshlrev_b32 v14, 7, v16
v_lshrrev_b32 v15, 3, v13
v_xor_b32 v15, s{sP}, v15
v_lshl_add_u32 v14, v15, 6, v14
v_bfe_u32 v17, v0, 4, 1
v_lshl_add_u32 v14, v17, 5, v14
v_and_b32 v18, 3, v0
v_lshl_add_u32 v14, v18, 3, v14
v_lshl_add_u32 v{vWX}, v12, 10, v14
v_lshl_add_u32 v{vWOA}, v12, 9, v14
v_add_u32 v{vWP}, {WQB}, v{vWX}
v_add_u32 v{vWO}, {RING}, v{vWOA}
v_mov_b32 v{vONE}, 1
v_mov_b32 v{vSY}, {SYNC}
v_lshlrev_b32 v{vL4}, 2, v0
s_mov_b32 s{sL2E}, {hex(LOG2E)}
s_mov_b32 s{sL2E+1}, {hex(LOG2E)}
v_min_u32 v15, 16, v11
v_mad_u32_u24 v{vLI}, v12, 17, v15
v_lshlrev_b32 v{vLI}, 4, v{vLI}
v_mad_u32_u24 v15, v12, 20, v11
v_lshlrev_b32 v{vPR}, 3, v15
s_lshl_b32 s{t0}, s{sRB}, 10
v_and_b32 v{vPF}, 7, v0
v_lshlrev_b32 v{vPF}, 7, v{vPF}
v_add_u32 v{vPF}, s{t0}, v{vPF}
v_bfe_u32 v15, v0, 3, 2
v_lshl_add_u32 v{vPO}, v15, 15, v{vPF}
s_lshl_b32 s{t0}, s{sHG}, 7
v_lshlrev_b32 v{vPC}, 10, v11
v_add_u32 v{vPC}, s{t0}, v{vPC}
v_bfe_u32 v14, v0, 1, 3
v_xor_b32 v14, v14, v12
v_lshlrev_b32 v14, 3, v14
v_lshl_add_u32 v14, v11, 6, v14
s_lshl_b32 s{t0}, s{sI}, 11
s_lshl_b32 s{t1}, s{sP}, 13
s_add_u32 s{t0}, s{t0}, s{t1}
s_add_u32 s{t0}, s{t0}, {SCP}
v_add_u32 v{vSW}, s{t0}, v14
v_xor_b32 v{vSW+1}, 16, v{vSW}
v_xor_b32 v{vSW+2}, 32, v{vSW}
v_xor_b32 v{vSW+3}, 48, v{vSW}
v_lshl_add_u32 v15, v12, 2, v16
v_lshrrev_b32 v14, 1, v15
v_lshl_add_u32 v19, v17, 2, v18
v_xor_b32 v14, v14, v19
v_lshlrev_b32 v14, 3, v14
v_lshl_add_u32 v15, v15, 6, v14
s_lshl_b32 s{t3}, s{sP}, 1
s_add_u32 s{t3}, s{t3}, s{sI}
s_lshl_b32 s{t0}, s{t3}, 12
s_add_u32 s{t0}, s{t0}, {SCP}
v_add_u32 v{vSR}, s{t0}, v15
v_xor_b32 v{vSR2}, 32, v{vSR}
s_lshl_b32 s{t0}, s{sS}, 11
s_add_u32 s{t0}, s{t0}, {SCV}
v_add_u32 v{vSV}, s{t0}, v{vL16}
v_lshlrev_b32 v14, 4, v13
v_lshl_add_u32 v14, v12, 9, v14
s_lshl_b32 s{t0}, s{sP}, 11
s_lshl_b32 s{t1}, s{sI}, 8
s_add_u32 s{t0}, s{t0}, s{t1}
s_add_u32 s{t0}, s{t0}, {SCV}
v_add_u32 v{vSVR}, s{t0}, v14
v_lshlrev_b32 v{FOUT}, 3, v13
v_lshl_add_u32 v{FOUT}, v12, 7, v{FOUT}
s_lshl_b32 s{t0}, s{sP}, 10
s_add_u32 s{t0}, s{t0}, {WPHI}
v_add_u32 v{FOUT}, s{t0}, v{FOUT}
v_mul_u32_u24 v{FOUT+1}, 0x8000, v17
v_lshl_add_u32 v{FOUT+1}, v17, 31, v{FOUT+1}
s_lshl_b32 s{t0}, s{sS}, 11
s_add_u32 s{t0}, s{t0}, {Q}
v_add_u32 v{FOUT+2}, s{t0}, v{vL16}
s_lshl_b32 s{sD0}, s{sS}, 12
s_waitcnt lgkmcnt(0)""")
srd(sWS, pWS, WS_SIZE); srd(sWB, pWQKV, 0x180000); srd(sWOA, pWOA, 0x80000); srd(sWOB, pWOB, 0x80000); srd(sOUT, pOUT, 0x200000)
dma_base("kv")
stamp(0)
a("s_waitcnt vmcnt(0)\ns_barrier")
stamp(1)
for hh in range(2): rd_w(WPH + 4 * hh, FOUT, hh * 512, 256, "x")
xn = [0]
def xread(k):
    for _ in range(k):
        if xn[0] < 32:
            a(f"ds_read_b128 {vr(XF+4*xn[0],4)}, v{vXA} offset:{xn[0]*32}"); LG.issue("x"); xn[0] += 1
xread(4 if XJ else 32)
DQ = 3
def qreads(ks):
    if ks % 8 == 0: a("s_barrier")
    if ks == 24: assert xn[0] == 32 and "x" not in LG.q
    rd_w(WR + 4 * (ks % 8), vWP, ((ks + 8) % 32) * 2048, 512, ("w", ks))
edq = [] if NOB else [(c, n) for c in range(NST) for n in range(4)]
for ks in range(DQ): qreads(ks)
for ks in range(32):
    xread(XJ)
    if ks + DQ < 32: qreads(ks + DQ)
    wait(lg=("w", ks))
    a(f"v_mfma_f32_32x32x16_bf16 {vr(ACC,16)}, {vr(WR+4*(ks%8),4)}, {vr(XF+4*ks,4)}, {'0' if ks == 0 else vr(ACC,16)}")
    if ks < 8: a(f"v_xor_b32 v{WPH+ks}, v{FOUT+1}, v{WPH+ks}")
    if ks >= 21 and edq: dma_one(*edq.pop(0))
for c_, n_ in edq: dma_one(c_, n_)
a(f"v_mov_b32 v13, {NONCE}\nds_read_b32 v{vNON}, v13\ns_mov_b32 s{t1}, {hex(QSCALE)}\ns_mov_b32 s{t2}, {hex(QSCALE)}")
for r in range(0, 16, 2): a(f"v_pk_mul_f32 {vr(ACC+r,2)}, {vr(ACC+r,2)}, s[{t1}:{t2}]")
for r in range(8): a(f"v_cvt_pk_bf16_f32 v{PHQ+r}, v{ACC+2*r}, v{ACC+2*r+1}")
a(f"""ds_write_b128 v{FOUT+2}, {vr(PHQ,4)}
ds_write_b128 v{FOUT+2}, {vr(PHQ+4,4)} offset:1024""")
arrive(W_Q)
stamp(2)
DA = 2
def rd_a(n):
    rd_stage(WR + 8 * (n % 4), n // 4, n % 4, ("w", n)); rd_stage(WR + 8 * (n % 4) + 4, n // 4, 4 + n % 4, ("w", n))
def wgemm(items, slots, ahead, events=None, pre=None, extra=None, primed=0):
    N = len(items); events = events or {}; pre = pre or {}
    def rd(i):
        for f in pre.get(i, []): f()
        if items[i][0]: items[i][0](slots[i % len(slots)], ("w", i))
    assert ahead + PW <= len(slots)
    for i in range(primed, min(ahead, N)): rd(i)
    a("s_setprio 0")
    for g0 in range(0, N, PW):
        grp = list(range(g0, min(g0 + PW, N)))
        lgs = [i for i in grp if items[i][0]]
        wait(vm=items[grp[-1]][2], lg=("w", lgs[-1]) if lgs else None)
        for i in grp:
            t = items[i][1](slots[i % len(slots)])
            if PUSH and i == g0 + 2: a(f"s_setprio 2\n{t}\ns_setprio 0")
            else: a(t)
        for i in grp:
            if i + ahead < N: rd(i + ahead)
        for i in grp:
            if extra: extra(i)
            for f in events.get(i, []): f()
    a("s_setprio 2")
def mm_a(n, mid=None):
    wait(lg=("w", n))
    w = WR + 8 * (n % 4)
    em = a
    em(f"v_mfma_f32_32x32x16_bf16 {vr(ACC,16)}, {vr(w,4)}, {vr(XF+4*n,4)}, {'0' if n == 0 else vr(ACC,16)}")
    if mid: mid()
    em(f"v_mfma_f32_32x32x16_bf16 {vr(AC2,16)}, {vr(XF+4*n,4)}, {vr(w+4,4)}, {'0' if n == 0 else vr(AC2,16)}")
a(f"""v_lshrrev_b32 v13, 5, v0
s_lshl_b32 s{t0}, s{sP}, 9
s_add_u32 s{t0}, s{t0}, {GATE}
v_lshl_add_u32 v13, v13, 4, s{t0}""")
l1, l2 = a.lab("g"), a.lab("g")
GS = [WR + 4 * n for n in range(8)] + [AC2 + 4 * n for n in range(4)]
for n in range(12): a(f"ds_read_b128 {vr(GS[n],4)}, v13 offset:{n*32}")
a(f"s_cmp_eq_u32 s{sP}, 1\ns_cbranch_scc1 {l1}")
for pp in range(2):
    for n in range(16):
        a(f"s_waitcnt lgkmcnt({min(11, 15 - n)})")
        a(f"v_mfma_f32_32x32x16_bf16 {vr(ACC,16)}, {vr(GS[n%12],4)}, {vr(XF+64*pp+4*n,4)}, {'0' if n == 0 else vr(ACC,16)}")
        if n < 4: a(f"ds_read_b128 {vr(GS[n],4)}, v13 offset:{(12+n)*32}")
    a(f"s_branch {l2}\n{l1}:" if pp == 0 else f"{l2}:")
LG.clear()
a(f"""v_readfirstlane_b32 s{sNON}, v{vNON}
v_and_b32 v13, 124, v{vL4}
s_lshl_b32 s{t0}, s{sI}, 7
s_add_u32 s{t1}, s{t0}, {G}
v_add_u32 v{vGI}, s{t1}, v13
s_xor_b32 s{t0}, s{t0}, 128
s_add_u32 s{t1}, s{t0}, {G}
v_add_u32 v{vGO}, s{t1}, v13
s_lshl_b32 s{t0}, s{sP}, 8
v_add_u32 v13, s{t0}, v{vGI}
ds_write_b32 v13, v{ACC}""")
if not NOB: wait(vm=("st", NST - 1))
wg = arrive(); check(wg)
a(f"ds_read2_b32 v[{FOUT}:{FOUT+1}], v{vGI} offset0:0 offset1:64\nds_read2_b32 v[{FOUT+2}:{FOUT+3}], v{vGO} offset0:0 offset1:64\ns_waitcnt lgkmcnt(0)")
for (d, s_) in ((vGI, FOUT), (vGO, FOUT + 2)):
    a(f"v_add_f32 v{d}, v{s_}, v{s_+1}\nv_mul_f32 v{d}, {hex(LOG2E | 0x80000000)}, v{d}\nv_exp_f32 v{d}, v{d}\nv_add_f32 v{d}, 1.0, v{d}\nv_rcp_f32 v{d}, v{d}")
stamp(3)
if NOB:
    a(f"s_mov_b32 s{sJ}, s{sS}"); call_fin(vGI); a("s_waitcnt vmcnt(0)"); put_flag(sPF, vNON, vL4)
    stamp(4)
    a(f"s_add_u32 s{sJ}, s{sS}, 4"); call_fin(vGI); a("s_waitcnt vmcnt(0)"); put_flag(sPF, vNON, vL4)
    stamp(5)
    diag_dump(13)
    a("s_endpgm")
N1 = 4 * NST
xs("a0")
for n in range(DA): rd_a(n)
for n in range(N1):
    if n + DA < N1: rd_a(n + DA)
    mm_a(n)
xs("a12")
check(W_KV, 4, nap=2)
xs("a13")
for c in range(NST, NST + 3): dma_stage(c)
wait(vm=("st", NST)); w = arrive(); check(w)
xs("a14")
SL = [WR + 4 * n for n in range(8)] + [PHQ + 4 * n for n in range(4)]
AH = 2 * PW
its = []
for n in range(N1, 32):
    its.append((lambda d, tg, n=n: rd_stage(d, n // 4, n % 4, tg), lambda w_, n=n: f"v_mfma_f32_32x32x16_bf16 {vr(ACC,16)}, {vr(w_,4)}, {vr(XF+4*n,4)}, {vr(ACC,16)}", None))
    its.append((lambda d, tg, n=n: rd_stage(d, n // 4, 4 + n % 4, tg), lambda w_, n=n: f"v_mfma_f32_32x32x16_bf16 {vr(AC2,16)}, {vr(XF+4*n,4)}, {vr(w_,4)}, {vr(AC2,16)}", None))
pre, tested = {}, set(range(NST))
cur = {}
for c in range(NST + 1, 9):
    i0_ = 8 * (c - NST)
    def arr(c=c):
        if c < 8: wait(vm=("st", c))
        cur[c] = arrive()
    def tst(c=c): chk_test(cur[c], lowprio=True); tested.add(c - 2)
    if c < 8:
        pre.setdefault(max(i0_ - PW - 2, AH), []).append(arr)
        pre.setdefault(max(i0_ - 2, AH), []).append(lambda c=c: chk_read(cur[c]))
        pre.setdefault(i0_, []).append(tst)
dq = [(c, n) for c in range(NST + 3, 12) for n in range(4)]
def dma_next(i):
    if dq:
        prev = [k for k in range(dq[0][0]) if STG[k] == STG[dq[0][0]]]
        if not prev or prev[-1] in tested: dma_one(*dq.pop(0))
wgemm(its, SL, AH, pre=pre, extra=lambda i: dma_next(i) if i % 3 != 2 else None, events={len(its) - AH - 1: [arr]})
assert not dq
w = cur[8]
stamp(4)

def features(B, W, out, D, tm):
    m1, m2 = tm, tm + 1
    a(f"v_mfma_f32_32x32x16_bf16 {vr(D,16)}, {vr(W,4)}, {vr(B,4)}, 0")
    for (m, b) in ((m1, D), (m2, D + 8)):
        a(f"v_max3_f32 v{m}, v{b}, v{b+1}, v{b+2}\nv_max3_f32 v{m}, v{m}, v{b+3}, v{b+4}\nv_max3_f32 v{m}, v{m}, v{b+5}, v{b+6}\nv_max_f32 v{m}, v{m}, v{b+7}")
    a(f"""v_permlane32_swap_b32 v{m1}, v{m2}
    v_max_f32 v{m1}, v{m1}, v{m2}
    v_mul_f32 v{m1}, {hex(LOG2E | 0x80000000)}, v{m1}
    v_mov_b32 v{m2}, v{m1}
    v_permlane32_swap_b32 v{m1}, v{m2}""")
    for r in range(0, 16, 2):
        sel = "op_sel_hi:[1,1,0]" if r < 8 else "op_sel:[0,0,1]"
        a(f"v_pk_fma_f32 {vr(D+r,2)}, {vr(D+r,2)}, s[{sL2E}:{sL2E+1}], {vr(m1,2)} {sel}")
    for r in range(16): a(f"v_exp_f32 v{D+r}, v{D+r}")
    for (m, b) in ((m1, D), (m2, D + 8)):
        a(f"""v_pk_add_f32 {vr(tm+2,2)}, {vr(b,2)}, {vr(b+2,2)}
        v_pk_add_f32 {vr(tm+4,2)}, {vr(b+4,2)}, {vr(b+6,2)}
        v_pk_add_f32 {vr(tm+2,2)}, {vr(tm+2,2)}, {vr(tm+4,2)}
        v_add_f32 v{m}, v{tm+2}, v{tm+3}""")
    a(f"""v_permlane32_swap_b32 v{m1}, v{m2}
    v_add_f32 v{m1}, v{m1}, v{m2}
    v_rcp_f32 v{m1}, v{m1}
    v_mov_b32 v{m2}, v{m1}
    v_permlane32_swap_b32 v{m1}, v{m2}""")
    for r in range(0, 16, 2):
        sel = "op_sel_hi:[1,0]" if r < 8 else "op_sel:[0,1]"
        a(f"v_pk_mul_f32 {vr(D+r,2)}, {vr(D+r,2)}, {vr(m1,2)} {sel}")
    for r in range(8): a(f"v_cvt_pk_bf16_f32 v{out+r}, v{D+2*r}, v{D+2*r+1}")

KB, VB, DD, TM, PH = PHQ, PHQ + 8, WR, WR + 16, WR + 24
chk_read(w)
a(f"""s_lshl_b32 s{t3}, s{sP}, 1
s_add_u32 s{t3}, s{t3}, s{sI}
s_lshl_b32 s{t2}, s{sHG}, 2
s_add_u32 s{t2}, s{t2}, s{t3}
s_lshl_b32 s{t2}, s{t2}, 8
s_add_u32 s{t2}, s{t2}, s{sRB}
s_mul_i32 s{t4}, s{t2}, {PREC}
s_add_u32 s{t4}, s{t4}, {WS_PART}""")
for r in range(8): a(f"v_cvt_pk_bf16_f32 v{KB+r}, v{ACC+2*r}, v{ACC+2*r+1}")
for r in range(8): a(f"v_cvt_pk_bf16_f32 v{VB+r}, v{AC2+2*r}, v{AC2+2*r+1}")
chk_test(w)
xs("k1")
a(f"""v_lshlrev_b32 v13, 21, v0
s_lshl_b32 s{t0}, s{sL}, 7
s_mov_b64 exec, 14
buffer_load_dword v{vT2}, v13, {sr(sWS,4)}, s{t0} offen
s_mov_b64 exec, -1""")
a(f"ds_write_b128 v{vSV}, {vr(VB,4)}\nds_write_b128 v{vSV}, {vr(VB+4,4)} offset:1024")
dma_stage(12)
for hh in range(2):
    features(KB + 4 * hh, WPH + 4 * hh, PH, DD, TM)
    for aa in range(4): a(f"ds_write_b64 v{vSW+aa}, {vr(PH+2*aa,2)} offset:{hh*4096}")
    xs(f"k3{hh}")
wait(vm=("st", 12)); w = arrive()
KA, KBv, KD = WR, AC2, ACC
a(f"s_mov_b32 s{t1}, {hex(ONES)}\ns_mov_b32 s{t2}, {hex(ONES)}")
for r in range(0, 16, 2): a(f"v_mov_b64 {vr(KBv+r,2)}, s[{t1}:{t2}]")
check(w)
xs("k4")
for u in range(4):
    a(f"ds_read_b64_tr_b16 {vr(KA+4*u,2)}, v{vSR} offset:{u*1024}\nds_read_b64_tr_b16 {vr(KA+4*u+2,2)}, v{vSR2} offset:{u*1024+512}")
a(f"s_mov_b32 exec_lo, 0xffff\ns_mov_b32 exec_hi, 0xffff")
for u in range(4):
    a(f"ds_read_b128 {vr(KBv+4*u,4)}, v{vSVR} offset:{(u//2)*4096 + (u%2)*1024}")
a("s_mov_b64 exec, -1")
LG.issue("kv", 12)
SL = [WR + 16 + 4 * n for n in range(4)] + [PHQ + 4 * n for n in range(4)] + [WR + 4 * n for n in range(4)]
wait(lg="kv")
for u in range(4):
    a(f"v_mfma_f32_32x32x16_bf16 {vr(KD,16)}, {vr(KA+4*u,4)}, {vr(KBv+4*u,4)}, {'0' if u == 0 else vr(KD,16)}")
a(f"s_mov_b32 exec_lo, 0xfffff\ns_mov_b32 exec_hi, 0xfffff")
for e in range(8):
    a(f"buffer_store_dwordx2 {vr(KD+2*e,2)}, v{vPR}, {sr(sWS,4)}, s{t4} offen sc1"); VM.issue("part")
    if e < 7: a(f"s_add_u32 s{t4}, s{t4}, {32*PREC}")
a("s_mov_b64 exec, -1")
stamp(5)
dq = [(c, n) for c in (13, 14) for n in range(4)]
its = [(lambda d, tg, n=n: rd_stage(d, 8 + n // 8, n % 8, tg),
        lambda w_, n=n: f"v_mfma_f32_32x32x16_bf16 {vr(AC2,16)}, {vr(w_,4)}, {vr(XF+4*n,4)}, {'0' if n == 0 else vr(AC2,16)}", None) for n in range(32)]
def e1(): wait(vm="part"); cur["p"] = arrive()
def e2():
    chk_read(cur["p"]); chk_test(cur["p"], lowprio=True)
    with only(sS, 2): flag(F_F2)
def e3():
    with only(sS, 2): poll_issue(vPC, vT2, F_F2)
wgemm(its, SL, AH, events={9: [e1], 12: [e2], 27: [e3]}, extra=lambda i: dma_one(*dq.pop(0)) if i > 14 and dq else None)
for k in range(8): rd_w(WB0 + 4 * k, vWOA, STG[12] + k * 2048, 1024, "wb0")
stamp(6)
KB, DD, TM = TMP, TMP + 16, TMP + 32
RD = TMP + 64
with only(sS, 2):
    a("s_waitcnt vmcnt(0)")
    poll_check(vPC, vT2, F_F2)
    xs("r1")
    a(f"""s_and_b32 s{t3}, s{sRB}, 3
    s_lshl_b32 s{t0}, s{sHG}, 2
    s_add_u32 s{t3}, s{t0}, s{t3}
    s_lshl_b32 s{t0}, s{t3}, 3
    s_lshr_b32 s{t2}, s{sRB}, 2
    s_add_u32 s{t0}, s{t0}, s{t2}
    s_mul_i32 s{t0}, s{t0}, {32*PREC}
    s_add_u32 s{t0}, s{t0}, {WS_PART}
    s_mov_b32 exec_lo, 0x1ffff
    s_mov_b32 exec_hi, 0x1ffff""")
    for n in range(32):
        if n and n % 8 == 0: a(f"s_add_u32 s{t0}, s{t0}, {8*PREC}")
        a(f"buffer_load_dwordx2 {vr(RD+2*n,2)}, v{vPR}, {sr(sWS,4)}, s{t0} offen offset:{(n%8)*PREC} sc1")
    a("s_mov_b64 exec, -1")
xs("r2")
for r in range(8): a(f"v_cvt_pk_bf16_f32 v{KB+r}, v{AC2+2*r}, v{AC2+2*r+1}")
features(KB, WPH, PHQ, DD, TM)
with only(sS, 2):
    a(f"""s_mul_i32 s{t0}, s{t3}, {KVF_STRIDE}
    s_lshr_b32 s{t1}, s{t2}, 2
    s_mul_i32 s{t1}, s{t1}, 544
    s_add_u32 s{t0}, s{t0}, s{t1}
    s_and_b32 s{t1}, s{t2}, 3
    s_lshl_b32 s{t1}, s{t1}, 2
    s_add_u32 s{t0}, s{t0}, s{t1}
    s_add_u32 s{t0}, s{t0}, {WS_KVF}
    s_waitcnt vmcnt(0)""")
    st = 16
    while st >= 1:
        for n in range(st): a(f"v_pk_add_f32 {vr(RD+2*n,2)}, {vr(RD+2*n,2)}, {vr(RD+2*(n+st),2)}")
        st //= 2
    a(f"""v_cvt_pk_bf16_f32 v15, v{RD}, v{RD+1}
    s_mov_b32 exec_lo, 0x1ffff
    s_mov_b32 exec_hi, 0x1ffff
    buffer_store_dword v15, v{vLI}, {sr(sWS,4)}, s{t0} offen sc1
    s_mov_b64 exec, -1""")
xs("r3")
features(KB + 4, WPH + 4, PHQ + 8, DD, TM)
with only(sS, 2):
    a("s_waitcnt vmcnt(0)"); flag(F_F3)
w = arrive()
stamp(7)
with only(sI, 0):
    a(f"s_mov_b32 s{sJ}, s{sP}"); call_fin(vGI)
with only(sS, 3):
    a(f"s_mov_b32 s{sJ}, 2"); call_fin(vGO)
xs("l1")
check(w, nap=1)
xs("l2")
dma_stage(15)
a(f"s_lshl_b32 s{t2}, s{sS}, 14\ns_lshl_b32 s{t3}, s{sS}, 17\ns_lshl_b32 s{t1}, s{sHG}, 7\ns_add_u32 s{t3}, s{t3}, s{t1}")
for n in range(16):
    a(f"s_add_u32 m0, s{t2}, {X + n*1024}\ns_add_u32 s{t1}, s{t3}, {n*8192}")
    a(f"buffer_load_dwordx4 v{vD1}, {sr(sWOA,4)}, s{t1} offen lds")
xs("l3")
with only(sS, 0): poll_issue(vPC, vT2, F_F3)
with only(sS, 2):
    a(f"s_mov_b32 s{sJ}, 3"); call_fin(vGO)
a("s_waitcnt vmcnt(0)")
put_flag(sPF, vNON, vL4)
xs("l4")
wl = newword()
with only(sS, 0):
    poll_check(vPC, vT2, F_F3)
    arrive(wl)
a(f"""s_lshl_b32 s{t3}, s{sHG}, 2
s_lshl_b32 s{t1}, s{sP}, 1
s_add_u32 s{t3}, s{t3}, s{t1}
s_mul_i32 s{t4}, s{t3}, {KVF_STRIDE}
s_add_u32 s{t4}, s{t4}, {WS_KVF}
s_lshl_b32 s{sD0}, s{sRB}, 1
s_add_u32 s{sD0}, s{sD0}, s{sI}
s_lshl_b32 s{sD0}, s{sD0}, 16
s_add_u32 s{sD0}, s{sD0}, {WS_O}
s_lshl_b32 s{t3}, s{t3}, 10
s_add_u32 s{t3}, s{t3}, s{sD0}
s_add_u32 s{t3}, s{t3}, 32768
v_sub_f32 v15, 1.0, v{vGI}""")
check(wl, 1, nap=1)
stamp(8)
for hh in range(2):
    for u in range(2):
        a(f"buffer_load_dwordx4 {vr(TMP+8*hh+4*u,4)}, v{vLI}, {sr(sWS,4)}, s{t4} offen offset:{hh*KVF_STRIDE + u*544} sc1")
a("s_waitcnt vmcnt(0)")
for hh in range(2):
    D = TMP + 16 + 16 * hh
    a(f"v_mfma_f32_32x32x16_bf16 {vr(D,16)}, {vr(TMP+8*hh,4)}, {vr(PHQ+8*hh,4)}, 0")
    a(f"v_mfma_f32_32x32x16_bf16 {vr(D,16)}, {vr(TMP+8*hh+4,4)}, {vr(PHQ+8*hh+4,4)}, {vr(D,16)}")
for hh in range(2):
    D = TMP + 16 + 16 * hh
    a(f"v_add_f32 v{D+8}, 0x358637bd, v{D+8}\nv_rcp_f32 v{D+8}, v{D+8}\nv_mul_f32 v{D+8}, v{D+8}, v15")
    for r in range(0, 8, 2): a(f"v_pk_mul_f32 {vr(D+r,2)}, {vr(D+r,2)}, {vr(D+8,2)} op_sel_hi:[1,0]")
    for r in range(4): a(f"v_cvt_pk_bf16_f32 v{D+12+r}, v{D+2*r}, v{D+2*r+1}")
    a(f"buffer_store_dwordx4 {vr(D+12,4)}, v{vL16}, {sr(sWS,4)}, s{t3} offen offset:{hh*1024} sc1")
a("s_waitcnt vmcnt(0)")
w = arrive(); check(w, nap=1)
stamp(9)
wb = newword()

OF = TMP; RO = 18; WF = TMP + 72
def proj(steps, first, gate=None, pgate=None):
    N = len(steps)
    VM.clear(); LG.clear()
    def load1(n):
        if gate and gate[0] == n: chk_test(gate[1], 1, lowprio=True, nap=1)
        if pgate and pgate[0] == n:
            a("s_setprio 2"); wait(vm="poll"); poll_check(pgate[1], vT2, pgate[2]); a("s_setprio 0")
        ro = steps[n][0]
        hi, lo = ro & ~4095, ro & 4095
        if n == 0 or hi != (steps[n-1][0] & ~4095): a(f"s_add_u32 s{t1}, s{sD0}, {hi}")
        a(f"buffer_load_dwordx4 {vr(OF+4*(n%RO),4)}, v{vL16}, {sr(sWS,4)}, s{t1} offen offset:{lo} sc1"); VM.issue(("o", n))
        if gate and gate[0] == n + 2: chk_read(gate[1])
        if pgate and pgate[0] == n + 8: poll_issue(pgate[1], vT2, pgate[2]); VM.issue("poll")
    its = []
    for n, (ro, w_) in enumerate(steps):
        rdf = (lambda d, tg, w_=w_: rd_w(d, w_[1], w_[2], 1024, tg)) if w_[0] == "lds" else None
        its.append((rdf, lambda wr, n=n, w_=w_: f"v_mfma_f32_32x32x16_bf16 {vr(ACC,16)}, {vr(wr if w_[0] == 'lds' else w_[1],4)}, {vr(OF+4*(n%RO),4)}, {'0' if (first and n == 0) else vr(ACC,16)}", ("o", n)))
    for n in range(min(RO, N)): load1(n)
    wgemm(its, [WF + 4 * k for k in range(12)], AH, extra=lambda i: load1(i + RO) if i + RO < N else None)
bb = [(32768 + n * 1024, ("reg", WB0 + 4*n) if n < 8 else ("lds", vWO, STG[12 + n // 8] - RING + (n % 8) * 2048)) for n in range(32)]
ab = [(n * 1024, ("lds", vWOA, n * 2048)) for n in range(32)]
def poll_block(vaddr, plane, pending=False, nap=4):
    poll_issue(vaddr, vT2, plane); a("s_waitcnt vmcnt(0)")
    if pending: put_flag(sPF, vNON, vL4)
    poll_check(vaddr, vT2, plane, nap)
def store_out():
    a(f"""v_and_b32 v14, 31, v0
    v_lshlrev_b32 v14, 10, v14
    v_lshrrev_b32 v15, 5, v0
    v_lshl_add_u32 v14, v15, 4, v14
    s_lshl_b32 s{t0}, s{sRB}, 16
    s_lshl_b32 s{t1}, s{sI}, 15
    s_add_u32 s{t0}, s{t0}, s{t1}
    s_lshl_b32 s{t1}, s{sHG}, 7
    s_add_u32 s{t0}, s{t0}, s{t1}
    s_lshl_b32 s{t1}, s{sP}, 6
    s_add_u32 s{t0}, s{t0}, s{t1}""")
    for r in range(8): a(f"v_cvt_pk_bf16_f32 v{PHQ+r}, v{ACC+2*r}, v{ACC+2*r+1}")
    for kk in range(2):
        b = PHQ + 4 * kk
        a(f"v_permlane32_swap_b32 v{b}, v{b+2}\nv_permlane32_swap_b32 v{b+1}, v{b+3}")
        a(f"buffer_store_dwordx4 {vr(b,4)}, v14, {sr(sOUT,4)}, s{t0} offen offset:{kk*32}")

a(f"s_cmp_eq_u32 s{sI}, 1\ns_cbranch_scc1 L_half1")
poll_block(vPO, F_OA)
stamp(10)
proj(ab + bb, True, gate=(32, wb))
store_out()
stamp(11)
a(f"s_add_u32 s{sJ}, s{sP}, 6"); call_fin(vGO)
a("s_waitcnt vmcnt(0)"); put_flag(sPF, vNON, vL4)
stamp(12)
diag_dump(13)
a("s_endpgm")
a("L_half1:")
LG.clear(); VM.clear()
with only(sS, 3):
    flag(F_OB)
    poll_block(vPF, F_OB)
    arrive(wb)
with only(sS, 2):
    a(f"s_mov_b32 s{sJ}, 4"); call_fin(vGI)
    a("s_waitcnt vmcnt(0)"); put_flag(sPF, vNON, vL4)
check(wb, 1, nap=1)
xs("m1")
rnd = lambda j: [((4*k + j - 4) * 1024, ("lds", vWOA, (4*k + j - 4) * 2048)) for k in range(8)]
proj(bb + rnd(4), True, pgate=(32, vPF, F_OA + 4))
stamp(10)
with only(sS, 3):
    a(f"s_mov_b32 s{sJ}, 5"); call_fin(vGI)
    a("s_waitcnt vmcnt(0)"); put_flag(sPF, vNON, vL4)
for j in range(5, 8):
    poll_block(vPF, F_OA + j, nap=(4 if j < 7 else 1))
    if j == 7: stamp(11)
    proj(rnd(j), False)
    xs(f"n{j}")
store_out()
stamp(12)
diag_dump(13)
hold()
a("L_exit:\ns_endpgm")

FO = TMP
FL = TMP + 32
a("L_fin:\ns_nop 1")
lp, dn = a.lab("fw"), a.lab("fwd")
a(f"""s_and_b32 s{t2}, s{sJ}, 3
s_lshl_b32 s{t0}, s{t2}, 10
s_add_u32 s{t0}, s{t0}, {LT}
v_and_b32 v14, 3, v0
v_lshl_add_u32 v14, v14, 8, s{t0}
v_and_b32 v15, 124, v{vL4}
v_add_u32 v15, s{t0}, v15
s_lshl_b32 s{t1}, s{sJ}, 10
s_add_u32 s{t1}, s{t1}, {Q + 1024}
s_lshl_b32 s{t2}, s{t2}, 13
s_add_u32 s{t2}, s{t2}, {OP}
v_add_u32 v{FL+4}, s{t2}, v{vL16}
s_lshl_b32 s{t0}, s{sJ}, 15
s_add_u32 s{sPF}, s{t0}, s{sFL}
s_add_u32 s{sPF}, s{sPF}, {F_OA*FP}
s_lshl_b32 s{t0}, s{sJ}, 2
s_add_u32 s{t0}, s{t0}, {CONS + 16}
v_mov_b32 v13, s{t0}
s_lshr_b32 s{t0}, s{sJ}, 2
s_lshl_b32 s{t2}, s{sRB}, 1
s_add_u32 s{t0}, s{t0}, s{t2}
s_lshl_b32 s{t0}, s{t0}, 6
s_lshl_b32 s{t2}, s{sHG}, 2
s_add_u32 s{t0}, s{t0}, s{t2}
s_and_b32 s{t2}, s{sJ}, 3
s_add_u32 s{t0}, s{t0}, s{t2}
s_lshl_b32 s{t4}, s{t0}, 10
s_add_u32 s{t4}, s{t4}, {WS_O}
{lp}:
ds_read_b32 v{vT}, v14 offset:128
s_waitcnt lgkmcnt(0)
v_cmp_gt_u32 vcc, s{t1}, v{vT}
s_cbranch_vccz {dn}""")
budget(dn)
a(f"s_sleep {FNAP}\ns_branch {lp}\n{dn}:")
assert FP == 1 << 15 and CONS + 16 + 32 <= SYNC
for w in range(4):
    a(f"ds_read_b128 {vr(FO+8*w,4)}, v{FL+4} offset:{w*2048}\nds_read_b128 {vr(FO+8*w+4,4)}, v{FL+4} offset:{w*2048+1024}\nds_read_b32 v{FL+w}, v15 offset:{w*256}")
a(f"ds_write_b32 v13, v{vONE}\ns_waitcnt lgkmcnt(1)")
for r in range(0, 8, 2):
    a(f"v_pk_add_f32 {vr(FO+r,2)}, {vr(FO+r,2)}, {vr(FO+8+r,2)}\nv_pk_add_f32 {vr(FO+16+r,2)}, {vr(FO+16+r,2)}, {vr(FO+24+r,2)}")
a(f"v_pk_add_f32 {vr(FL,2)}, {vr(FL,2)}, {vr(FL+2,2)}")
for r in range(0, 8, 2): a(f"v_pk_add_f32 {vr(FO+r,2)}, {vr(FO+r,2)}, {vr(FO+16+r,2)}")
a(f"v_add_f32 v{FO+8}, v{FL}, v{FL+1}")
a(f"""v_pk_mul_f32 {vr(FO+10,2)}, {vr(FO,2)}, 0 op_sel_hi:[1,0]
v_pk_fma_f32 {vr(FO+10,2)}, {vr(FO+2,2)}, 0, {vr(FO+10,2)} op_sel_hi:[1,0,1]
v_pk_fma_f32 {vr(FO+10,2)}, {vr(FO+4,2)}, 0, {vr(FO+10,2)} op_sel_hi:[1,0,1]
v_pk_fma_f32 {vr(FO+10,2)}, {vr(FO+6,2)}, 0, {vr(FO+10,2)} op_sel_hi:[1,0,1]
v_add_f32 v{FO+10}, v{FO+10}, v{FO+11}
v_add_f32 v{FO+10}, v{FO+10}, v{FO+8}
v_cmp_nle_f32 vcc, {hex((127-40)<<23)}, v{FO+10}
s_cbranch_vccnz L_fb
v_cmp_nge_f32 vcc, {hex((127+60)<<23)}, v{FO+10}
s_cbranch_vccnz L_fb""")
if FORCE_FB: a("s_branch L_fb")
a(f"""L_fin_norm:
v_rcp_f32 v{FO+8}, v{FO+8}
v_mul_f32 v{FO+8}, v{FO+8}, v{vGF}""")
for r in range(0, 8, 2): a(f"v_pk_mul_f32 {vr(FO+r,2)}, {vr(FO+r,2)}, {vr(FO+8,2)} op_sel_hi:[1,0]")
for r in range(4): a(f"v_cvt_pk_bf16_f32 v{FOUT+r}, v{FO+2*r}, v{FO+2*r+1}")
a(f"buffer_store_dwordx4 {vr(FOUT,4)}, v{vL16}, {sr(sWS,4)}, s{t4} offen sc1")
a(f"s_setpc_b64 s[{sRET}:{sRET+1}]")
emit_cold()
a("CODE_END:")
BS, BC, BK, BV, BQ, BM = TMP + 16, TMP + 32, TMP + 48, TMP + 52, TMP + 60, TMP + 64
a(f"""L_fb:
s_sub_u32 s{t1}, s{t1}, 1024
v_add_u32 v14, s{t1}, v{vL16}
ds_read_b128 {vr(BQ,4)}, v14
v_mov_b32 v{BM}, 0xff800000
s_mov_b32 s{t0}, 0
s_waitcnt lgkmcnt(0)
L_fb1:
buffer_load_dwordx4 {vr(BK,4)}, v{vL16}, {sr(sWS,4)}, s{t0} offen sc1
s_waitcnt vmcnt(0)
v_mfma_f32_32x32x16_bf16 {vr(BS,16)}, {vr(BK,4)}, {vr(BQ,4)}, 0""")
for r in range(0, 16, 2): a(f"v_max3_f32 v{BM}, v{BM}, v{BS+r}, v{BS+r+1}")
a(f"""s_add_u32 s{t0}, s{t0}, 2048
s_cmp_lt_u32 s{t0}, 131072
s_cbranch_scc1 L_fb1
v_mov_b32 v{BM+1}, v{BM}
v_permlane32_swap_b32 v{BM}, v{BM+1}
v_max_f32 v{BM}, v{BM}, v{BM+1}""")
for r in range(16): a(f"v_sub_f32 v{BC+r}, 0, v{BM}\nv_mov_b32 v{FO+r}, 0")
a(f"""v_mov_b32 v15, 0xdddd
s_mov_b32 s{t0}, 0
L_fb2:
buffer_load_dwordx4 {vr(BK,4)}, v{vL16}, {sr(sWS,4)}, s{t0} offen sc1
buffer_load_dwordx4 {vr(BV,4)}, v{vL16}, {sr(sWS,4)}, s{t0} offen offset:1024 sc1""")
for r in range(4): a(f"v_mov_b32 v{BV+4+r}, {hex(ONES)}")
a(f"""s_waitcnt vmcnt(0)
v_mfma_f32_32x32x16_bf16 {vr(BS,16)}, {vr(BK,4)}, {vr(BQ,4)}, {vr(BC,16)}""")
for r in range(4): a(f"v_permlane16_swap_b32 v{BV+r}, v{BV+4+r}")
for r in range(16): a(f"v_exp_f32 v{BS+r}, v{BS+r}")
a(f"""v_smfmac_f32_32x32x32_bf16 {vr(FO,16)}, {vr(BV,4)}, {vr(BS,8)}, v15
v_smfmac_f32_32x32x32_bf16 {vr(FO,16)}, {vr(BV+4,4)}, {vr(BS+8,8)}, v15
s_add_u32 s{t0}, s{t0}, 2048
s_cmp_lt_u32 s{t0}, 131072
s_cbranch_scc1 L_fb2
s_nop 9
s_branch L_fin_norm""")

body = a.finish(verbose=bool(os.environ.get("VERBOSE")))
ref = open("cdna_kernels/" + NAME + ".s.ref").read().split("\n")
hdr = [l for l in ref if l.startswith(";") and "@launch" not in l and "Override" not in l and "grid=ceil" not in l]
out = "\n".join(hdr) + f"""
; @launch grid=(256,1,1) block=(512,1,1) lds={LDS_BYTES}
.amdgcn_target "amdgcn-amd-amdhsa--gfx950"
.text
.p2align 12
.fill {PAD // 4}, 4, 0xbf810000
.globl {NAME}_kernel
.p2align 8
.type {NAME}_kernel,@function
{NAME}_kernel:
{body}.section .rodata,"a"
.p2align 6
.amdhsa_kernel {NAME}_kernel
  .amdhsa_next_free_vgpr 256
  .amdhsa_next_free_sgpr 102
  .amdhsa_accum_offset 256
  .amdhsa_group_segment_fixed_size 0
  .amdhsa_kernarg_size 104
  .amdhsa_user_sgpr_count 2
  .amdhsa_user_sgpr_kernarg_segment_ptr 1
  .amdhsa_system_sgpr_workgroup_id_x 1
.end_amdhsa_kernel
"""
dst = sys.argv[1] if len(sys.argv) > 1 else "cdna_kernels/" + NAME + ".s"
open(dst, "w").write(out)
print("wrote", dst, len(a.lines), "lines,", len(a.inserted), "nops inserted, words", nword[0])
```

```python
import sys, os
from asmlib import Asm, Cnt, vr, sr

NAME = "gated_mix__grouped_kv_mqa__linear_kernel_hedgehog__prompt"
E = lambda k, d: int(os.environ.get(k, d))
DIAG = E("DIAG", 0); FORCE_FB = E("FORCE_FB", 0); TOUCH = E("TOUCH", 0); NOB = E("NOB", 0); PRE = E("PRE", 8)
FNAP = E("FNAP", 2); SIGT = E("SIGT", 6); POLLAT = E("POLLAT", 3); NST = E("NST", 2); MAP = E("MAP", 1); PW = E("PW", 2); PRET = E("PRET", 24); WOTAT = E("WOTAT", 20); R7AT = E("R7AT", 1); RNAP = E("RNAP", 8); DEFER = E("DEFER", 1); ROT = E("ROT", 1); PUSH = E("PUSH", 1); WQE = E("WQE", 1); CPF = E("CPF", 1); WQT = E("WQT", 1); SPF = E("SPF", 1); HAT = E("HAT", 0); WOT = E("WOT", 1); XJ = E("XJ", 1); XNT = E("XNT", 1); G0H = E("G0H", 1); PAD = E("PAD", 0xd00)
OUTF = os.environ.get("OUTF", "")
HOLDAT = os.environ.get("HOLDAT")

X = 0; XS = 1040
Q = 66560
OP = 74752
RING = 107520
LT = 156672
MISC = 160768
WKV = OP; WQB = OP + 16384
WPHI = Q
NONCE = MISC; CONS = MISC + 16; SYNC = MISC + 64
GATE = MISC + 2048
LDS_BYTES = 163840
WS_KV = 0; WS_KVF = 0x20000; WS_G = 0x30000; WS_DIAG = 0x40000; WS_F = 0x80000
WS_PART = 0x100000; WS_O = 0x400000; WS_SIZE = 0x800000
KVF_STRIDE = 1152; PREC = 320
F_KV, F_F2, F_F3, F_OB, F_OA = 0, 1, 2, 3, 4
FP = 0x8000
pX, pWQ, pWK, pWV, pWOA, pBX, pWQKV, pWPHI, pWOB, pGATE, pOUT, pDBG, pWS = [4 + 2 * i for i in range(13)]
sX, sWQ, sWKV, sWB, sWOA, sWOB, sWS, sOUT, sDBG, sSM = [32 + 4 * i for i in range(10)]
sW, sRB, sHG, sL, sNON, sBUD, sS, sI, sP = 72, 73, 74, 75, 76, 77, 78, 79, 80
t0, t1, t2, t3, t4, t5 = 81, 82, 83, 84, 85, 86
sJ = 87; sRET = 88
sL2E = 90
sFL = 92
sD0, sD1 = 93, 94
sPF = 95
sST = 4
LOG2E = 0x3fb8aa3b
QSCALE = 0x3eb8aa3b
ONES = 0x3f803f80

a = Asm()
role = ["E"]
XST = os.environ.get("XST", "").split(",") if os.environ.get("XST") else []
def xs(name):
    if DIAG and name in XST: a(f"s_memrealtime {sr(sST + 2 * XST.index(name), 2)}")
YST = os.environ.get("YST", "").split(",") if os.environ.get("YST") else []
YB = 48
YREG = [48, 50, 52, 54, 60, 62, 88, 90, 96, 98]
def ys(name):
    if DIAG and name in YST: a(f"s_memrealtime {sr(YREG[YST.index(name)], 2)}")
def stamp(n):
    if DIAG and YST and role[0] == "A": ys(f"a{n}")
    elif DIAG and XST and role[0] == "S": xs(f"s{n}")
    elif DIAG: a(f"s_memrealtime {sr(sST + 2 * n, 2)}")
    if HOLDAT == f"{role[0]}{n}": a("s_memrealtime s[100:101]")
def hold():
    if HOLDAT and (HOLDAT[0] == role[0] or (HOLDAT[0] == "E" and role[0] == "S")):
        l = a.lab("hold")
        a(f"{l}:\ns_memrealtime s[96:97]\ns_waitcnt lgkmcnt(0)\ns_sub_u32 s96, s96, s100\ns_cmp_lt_u32 s96, 4000\ns_cbranch_scc1 {l}")
def srd(d, p, size):
    a(f"s_mov_b32 s{d}, s{p}\ns_mov_b32 s{d+1}, s{p+1}\ns_mov_b32 s{d+2}, {hex(size)}\ns_mov_b32 s{d+3}, 0x20000")
def budget(done):
    a(f"s_cmp_eq_u32 s{sBUD}, 0\ns_cbranch_scc1 {done}\ns_sub_u32 s{sBUD}, s{sBUD}, 1")
cold = []
def emit_cold():
    while cold: cold.pop(0)()
def poll_issue(vaddr, vtmp, plane):
    a(f"s_mov_b32 s{t0}, {WS_F + plane*FP}\nbuffer_load_dword v{vtmp}, v{vaddr}, {sr(sWS,4)}, s{t0} offen sc1")
def poll_check(vaddr, vtmp, plane, nap=4):
    lp, dn = a.lab("pf"), a.lab("pfd")
    a(f"v_cmp_ne_u32 vcc, s{sNON}, v{vtmp}\ns_cbranch_vccnz {lp}\n{dn}:")
    def slow():
        a(f"{lp}:"); budget(dn)
        if nap: a(f"s_sleep {nap}")
        poll_issue(vaddr, vtmp, plane)
        a(f"s_waitcnt vmcnt(0)\nv_cmp_ne_u32 vcc, s{sNON}, v{vtmp}\ns_cbranch_vccnz {lp}\ns_branch {dn}")
    cold.append(slow)
def put_flag(soff, vnon, vl4):
    a(f"s_mov_b32 exec_hi, 0\nbuffer_store_dword v{vnon}, v{vl4}, {sr(sWS,4)}, s{soff} offen sc1\ns_mov_b32 exec_hi, -1")
def diag_dump(n):
    if not DIAG: return
    a("s_waitcnt lgkmcnt(0)")
    a(f"s_lshl_b32 s{t0}, s{sL}, 3\ns_add_u32 s{t0}, s{t0}, s{sW}\ns_lshl_b32 s{t0}, s{t0}, 6\ns_add_u32 s{t0}, s{t0}, {WS_DIAG}")
    a("v_mov_b32 v8, 0")
    for i in range(14):
        a(f"v_writelane_b32 v8, s{YREG[i] if (YST and role[0] == 'A' and i < len(YST)) else sST+2*i}, {i}")
    a("v_writelane_b32 v8, s100, 14\nv_writelane_b32 v8, s31, 15")
    a(f"""v_mbcnt_lo_u32_b32 v9, -1, 0
    v_mbcnt_hi_u32_b32 v9, -1, v9
    v_lshlrev_b32 v9, 2, v9
    s_mov_b64 exec, 0xffff
    buffer_store_dword v8, v9, {sr(sWS,4)}, s{t0} offen
    s_mov_b64 exec, -1""")
def dma_lane_addrs():
    a(f"""v_lshrrev_b32 v11, 3, v0
    v_and_b32 v12, 7, v0
    v_lshrrev_b32 v13, 2, v0
    v_and_b32 v13, 4, v13
    v_xor_b32 v12, v12, v13
    v_lshlrev_b32 v12, 4, v12
    v_lshl_add_u32 v9, v11, 10, v12
    v_mul_u32_u24 v8, 3072, v11
    v_add_u32 v8, v8, v12""")
def xrows(n, mod=""):
    for r in range(n):
        a(f"s_add_u32 m0, s{sD0}, {X + (r//4)*4*XS + (r%4)*16}")
        if r % 4 == 0 and r: a(f"s_add_u32 s{sD1}, s{sD1}, 4096")
        a(f"buffer_load_dwordx4 v10, {sr(sX,4)}, s{sD1} offen offset:{(r%4)*1024} {mod} lds")
X0, X1, X2, X3 = X, X + 16384, X + 32768, X + 49152
R0, R1, R2 = RING, RING + 16384, RING + 32768
STG = [X0, X1, X2, X3, R0, R1, R2, X0,   X1, X2, X3, R0,   X0, R1, R2, R0]
W_KV, W_Q, W_G, W_OB = 0, 1, 2, 6
nword = [7]
G1 = MISC + 512

def fin_body(pk, fb, nap):
    FO, FL, vT, vONE, vGF, FOUT, vL16 = 104, 136, 3, 1, 233, 244, 10
    lp, dn = a.lab("fw"), a.lab("fwd")
    a(f"{lp}:\nds_read_b32 v{vT}, v14 offset:128\ns_waitcnt lgkmcnt(0)\nv_cmp_gt_u32 vcc, s{t1}, v{vT}\ns_cbranch_vccz {dn}")
    budget(dn)
    if nap: a(f"s_sleep {nap}")
    a(f"s_branch {lp}\n{dn}:")
    xs("f0")
    for w in range(4):
        a(f"ds_read_b128 {vr(FO+8*w,4)}, v{FL+4} offset:{w*2048}\nds_read_b128 {vr(FO+8*w+4,4)}, v{FL+4} offset:{w*2048+1024}\nds_read_b32 v{FL+w}, v15 offset:{w*256}")
    def add2(d, x, y):
        if pk: a(f"v_pk_add_f32 {vr(d,2)}, {vr(x,2)}, {vr(y,2)}")
        else: a(f"v_add_f32 v{d}, v{x}, v{y}\nv_add_f32 v{d+1}, v{x+1}, v{y+1}")
    if pk:
        a(f"ds_write_b32 v13, v{vONE}\ns_waitcnt lgkmcnt(1)")
        xs("f1")
        for r in range(0, 8, 2): add2(FO + r, FO + r, FO + 8 + r); add2(FO + 16 + r, FO + 16 + r, FO + 24 + r)
    else:
        a("s_waitcnt lgkmcnt(6)")
        for r in range(0, 8, 2): add2(FO + r, FO + r, FO + 8 + r)
        a("s_waitcnt lgkmcnt(0)")
        for r in range(0, 8, 2): add2(FO + 16 + r, FO + 16 + r, FO + 24 + r)
    add2(FL, FL, FL + 2)
    for r in range(0, 8, 2): add2(FO + r, FO + r, FO + 16 + r)
    a(f"v_add_f32 v{FO+8}, v{FL}, v{FL+1}")
    if pk:
        a(f"""v_pk_mul_f32 {vr(FO+10,2)}, {vr(FO,2)}, 0 op_sel_hi:[1,0]
        v_pk_fma_f32 {vr(FO+10,2)}, {vr(FO+2,2)}, 0, {vr(FO+10,2)} op_sel_hi:[1,0,1]
        v_pk_fma_f32 {vr(FO+10,2)}, {vr(FO+4,2)}, 0, {vr(FO+10,2)} op_sel_hi:[1,0,1]
        v_pk_fma_f32 {vr(FO+10,2)}, {vr(FO+6,2)}, 0, {vr(FO+10,2)} op_sel_hi:[1,0,1]
        v_add_f32 v{FO+10}, v{FO+10}, v{FO+11}
        v_add_f32 v{FO+10}, v{FO+10}, v{FO+8}""")
    else:
        a(f"v_fma_f32 v{FO+10}, v{FO}, 0, v{FO+8}")
        for r in range(1, 8): a(f"v_fma_f32 v{FO+10}, v{FO+r}, 0, v{FO+10}")
    a(f"""v_cmp_nle_f32 vcc, {hex((127-40)<<23)}, v{FO+10}
    s_cbranch_vccnz {fb}
    v_cmp_nge_f32 vcc, {hex((127+60)<<23)}, v{FO+10}
    s_cbranch_vccnz {fb}""")
    if FORCE_FB: a(f"s_branch {fb}")
    if pk: a("L_fin_norm:")
    a(f"v_rcp_f32 v{FO+8}, v{FO+8}\nv_mul_f32 v{FO+8}, v{FO+8}, v{vGF}")
    for r in range(0, 8, 2):
        if pk: a(f"v_pk_mul_f32 {vr(FO+r,2)}, {vr(FO+r,2)}, {vr(FO+8,2)} op_sel_hi:[1,0]")
        else: a(f"v_mul_f32 v{FO+r}, v{FO+r}, v{FO+8}\nv_mul_f32 v{FO+r+1}, v{FO+r+1}, v{FO+8}")
    for r in range(4): a(f"v_cvt_pk_bf16_f32 v{FOUT+r}, v{FO+2*r}, v{FO+2*r+1}")
    for r in range(4): a(f"v_min_u32 v{FOUT+r}, -2, v{FOUT+r}")
    xs("f2")
    a(f"buffer_store_dwordx4 {vr(FOUT,4)}, v{vL16}, {sr(sWS,4)}, s{t4} offen sc1")
    xs("f3")

if HOLDAT or DIAG: a("s_memrealtime s[100:101]")
a(f"""s_cmp_ge_u32 s2, 256
s_cbranch_scc1 L_exit
s_load_dwordx16 s[4:19], s[0:1], 0
s_load_dwordx8 s[20:27], s[0:1], 64
s_load_dwordx2 s[28:29], s[0:1], 96
v_lshrrev_b32 v1, 6, v0
v_and_b32 v0, 63, v0
v_readfirstlane_b32 s{sW}, v1""")
a(f"""s_and_b32 s{t0}, s2, 7
s_lshr_b32 s{t1}, s2, 3""")
if MAP == 0:
    a(f"""s_lshr_b32 s{t2}, s{t0}, 1
    s_lshl_b32 s{t2}, s{t2}, 3
    s_lshr_b32 s{t3}, s{t1}, 2
    s_add_u32 s{sRB}, s{t2}, s{t3}
    s_and_b32 s{t2}, s{t0}, 1
    s_lshl_b32 s{t2}, s{t2}, 2
    s_and_b32 s{t5}, s{t1}, 3
    s_add_u32 s{sHG}, s{t2}, s{t5}""")
else:
    a(f"""s_lshl_b32 s{t2}, s{t0}, 2
    s_lshr_b32 s{t3}, s{t1}, 3
    s_add_u32 s{sRB}, s{t2}, s{t3}
    s_and_b32 s{sHG}, s{t1}, 7
    s_and_b32 s{t5}, s{t1}, 3""")
def ids():
    a(f"""s_lshl_b32 s{sL}, s{sRB}, 3
    s_add_u32 s{sL}, s{sL}, s{sHG}
    s_mov_b32 s{sBUD}, 400000
    s_lshl_b32 s{sFL}, s{sL}, 7
    s_add_u32 s{sFL}, s{sFL}, {WS_F}""")
a(f"""v_lshlrev_b32 v10, 4, v0
s_cmp_lg_u32 s{sW}, 0
s_cbranch_scc1 L_w17""")
def others():
    a(f"L_w17:\ns_cmp_eq_u32 s{sW}, 3\ns_cbranch_scc1 L_aw3\ns_cmp_lt_u32 s{sW}, 3\ns_cbranch_scc1 L_aw12")
    if CPF:
        a(f"""s_getpc_b64 s[{sSM}:{sSM+1}]
        L_pc:
        s_lshl_b32 s{t0}, s{t1}, 2
        s_add_u32 s{t0}, s{t0}, s{sW}
        s_sub_u32 s{t0}, s{t0}, 3
        s_lshl_b32 s{t0}, s{t0}, 8
        s_min_u32 s{t0}, s{t0}, CODE_END - L_pc - 256
        s_add_u32 s{sSM}, s{sSM}, s{t0}
        s_addc_u32 s{sSM+1}, s{sSM+1}, 0
        s_load_dword s96, s[{sSM}:{sSM+1}], 0
        s_load_dword s97, s[{sSM}:{sSM+1}], 64
        s_load_dword s98, s[{sSM}:{sSM+1}], 128
        s_load_dword s99, s[{sSM}:{sSM+1}], 192""")
    a("s_branch L_sw")
    a(f"""L_aw3:
    s_cmp_lg_u32 s2, 0
    s_cbranch_scc1 L_nononce
    s_memrealtime s[{t1}:{t2}]
    v_mov_b32 v13, 0
    s_waitcnt lgkmcnt(0)
    s_or_b32 s{t1}, s{t1}, 1
    v_mov_b32 v14, s{t1}
    s_mov_b64 exec, 1
    global_store_dword v13, v14, s[{pDBG}:{pDBG+1}] sc1
    s_mov_b64 exec, -1
    L_nononce:
    s_lshl_b32 s{t0}, s{sHG}, 11
    v_add_u32 v11, s{t0}, v10
    s_lshl_b32 s{t0}, s2, 11
    v_lshl_add_u32 v12, v0, 7, s{t0}
    s_lshl_b32 s{t0}, s2, 7
    s_add_u32 s{t0}, s{t0}, {WS_KVF}
    v_lshl_add_u32 v13, v0, 15, s{t0}
    s_lshl_b32 s{t0}, s{sRB}, 7
    s_add_u32 s{t0}, s{t0}, {WS_F}
    v_writelane_b32 v13, s{t0}, 2
    s_waitcnt lgkmcnt(0)
    s_mov_b32 m0, {WPHI}
    s_mov_b64 exec, 0xffff""")
    if WQT == 1: a(f"global_load_dword v20, v12, s[{pWQ}:{pWQ+1}]")
    a(f"""s_mov_b64 exec, 7
    global_load_dword v21, v13, s[{pWS}:{pWS+1}]
    s_mov_b64 exec, -1
    global_load_lds_dwordx4 v11, s[{pWPHI}:{pWPHI+1}]
    global_load_lds_dwordx4 v11, s[{pWPHI}:{pWPHI+1}] offset:1024
    s_branch L_aw3b""")
role[0] = "A"
S0, S1, O_, QR, KR, VR = 12, 28, 44, 60, 64, 128
vIDX, vZ, vQA, vPA, vLA, vCA, vCV = 1, 2, 4, 5, 6, 7, 8
JX, JW, JA = KR, KR + 64, O_
aNON = O_ + 8
def vconst():
    a(f"""v_and_b32 v12, 11, v0
    v_cmp_eq_u32 vcc, 0, v12
    v_mov_b32 v13, {hex(ONES)}
    v_cndmask_b32 v12, 0, v13, vcc
    v_cndmask_b32 v13, 0, v13, vcc""")
    for t in range(16): a(f"v_mov_b64 {vr(VR+8*t+4,2)}, v[12:13]\nv_mov_b64 {vr(VR+8*t+6,2)}, v[12:13]")
a(f"""s_mul_i32 s{sD0}, s{t5}, {16*XS}
s_lshl_b32 s{sD1}, s{sRB}, 16
s_lshl_b32 s{t2}, s{t5}, 14
s_add_u32 s{sD1}, s{sD1}, s{t2}
s_mov_b32 m0, {GATE}
s_waitcnt lgkmcnt(0)""")
ys("ka")
a(f"global_load_lds_dwordx4 v10, s[{pGATE}:{pGATE+1}]")
srd(sX, pX, 0x200000)
xrows(16, "nt" if XNT else "")
ys("xi")
a(f"s_bitcmp1_b32 s{sHG}, 2\ns_cselect_b32 s{sWKV}, s{pWV}, s{pWK}\ns_cselect_b32 s{sWKV+1}, s{pWV+1}, s{pWK+1}\ns_mov_b32 s{sWKV+2}, 0x4000\ns_mov_b32 s{sWKV+3}, 0x20000")
for n in range(16):
    if n % 4 == 0: a(f"s_mov_b32 m0, {WKV + n*1024}\ns_mov_b32 s{t1}, {n*1024}")
    a(f"buffer_load_dwordx4 v10, {sr(sWKV,4)}, s{t1} offen offset:{(n%4)*1024} lds")
NTQ = 0
if WQT == 2:
    NTQ = 2 if MAP else 1
    a(f"""s_and_b32 s{t0}, s{sRB}, {3 if MAP else 7}
    s_lshl_b32 s{t0}, s{t0}, {17 if MAP else 16}
    s_lshl_b32 s{t1}, s{sHG}, 7
    s_add_u32 s{t0}, s{t0}, s{t1}
    v_lshl_add_u32 v12, v0, 10, s{t0}
    global_load_dword v24, v12, s[{pWQ}:{pWQ+1}]""")
    if MAP: a(f"v_add_u32 v12, 0x10000, v12\nglobal_load_dword v24, v12, s[{pWQ}:{pWQ+1}]")
a("s_branch L_aw0b")
others()
a("L_aw0b:")
ids()
srd(sWS, pWS, WS_SIZE); srd(sDBG, pDBG, 256)
stamp(0)
a(f"""v_and_b32 v16, 15, v0
v_lshrrev_b32 v14, 4, v0
s_lshl_b32 s{t0}, s{t5}, 4
v_add_u32 v13, s{t0}, v16
v_mul_u32_u24 v15, {XS}, v13
v_lshl_add_u32 v15, v14, 4, v15
v_lshlrev_b32 v19, 3, v16
v_lshl_add_u32 v19, v14, 8, v19
v_add_u32 v19, {WKV}, v19
s_lshr_b32 s{t0}, s{t5}, 1
s_lshl_b32 s{t1}, s{sRB}, 1
s_add_u32 s{t0}, s{t0}, s{t1}
s_lshl_b32 s{t0}, s{t0}, 11
s_and_b32 s{t1}, s{t5}, 1
s_lshl_b32 s{t1}, s{t1}, 8
s_add_u32 s{t4}, s{t0}, s{t1}
v_and_b32 v17, 1, v14
v_lshrrev_b32 v18, 1, v14
v_lshlrev_b32 v25, 4, v14
v_add_u32 v25, {GATE}, v25
v_lshlrev_b32 v26, 2, v0
s_lshl_b32 s{t3}, s{sL}, 6
s_add_u32 s{t3}, s{t3}, {WS_G}
s_waitcnt vmcnt({32 + NTQ})""")
JG = KR + 128
for n in range(16): a(f"ds_read_b128 {vr(JG+4*n,4)}, v25 offset:{n*64}")
a(f"s_bitcmp1_b32 s{sHG}, 2\ns_cbranch_scc1 L_job_v")
def job(isv):
    a(f"v_lshlrev_b32 v20, 9, v{18 if isv else 17}\nv_lshl_add_u32 v17, v16, 4, v20")
    if isv: a(f"s_add_u32 s{t4}, s{t4}, 1024")
    ys("j0")
    a(f"s_waitcnt vmcnt({16 + NTQ})")
    ys("xl")
    for n in range(16): a(f"ds_read_b128 {vr(JX+4*n,4)}, v15 offset:{n*64}")
    def grp(gq):
        a(f"s_waitcnt vmcnt({12 - 4*gq + NTQ})")
        if gq == 3: ys("wl")
        if gq == HAT: a("s_barrier")
        for n in range(4 * gq, 4 * gq + 4):
            a(f"ds_read_b64_tr_b16 {vr(JW+4*n,2)}, v19 offset:{n*1024}")
            a(f"ds_read_b64_tr_b16 {vr(JW+4*n+2,2)}, v19 offset:{n*1024+128}")
    def mm(gq):
        for n in range(4 * gq, 4 * gq + 4):
            A, B = (JX, JW) if isv else (JW, JX)
            a(f"v_mfma_f32_16x16x32_bf16 {vr(JA,4)}, {vr(A+4*n,4)}, {vr(B+4*n,4)}, {'0' if n == 0 else vr(JA,4)}")
        for n in {0: range(0, 8), 1: range(8, 16)}.get(gq, []):
            a(f"v_mfma_f32_16x16x32_bf16 {vr(JA+4,4)}, {vr(JG+4*n,4)}, {vr(JX+4*n,4)}, {'0' if n == 0 else vr(JA+4,4)}")
    grp(0)
    for gq in range(4):
        if gq < 3: grp(gq + 1); a("s_waitcnt lgkmcnt(8)")
        else: a(f"buffer_load_dword v{aNON}, off, {sr(sDBG,4)}, 0 sc1\ns_waitcnt lgkmcnt(0)")
        mm(gq)
    sw = "v_permlane16_swap_b32" if isv else "v_permlane32_swap_b32"
    a(f"""v_cvt_pk_bf16_f32 v20, v{JA}, v{JA+1}
    v_cvt_pk_bf16_f32 v21, v{JA+2}, v{JA+3}
    {sw} v20, v22
    {sw} v21, v23""")
    a("s_mov_b32 exec_lo, 0xffff\ns_mov_b32 exec_hi, 0xffff" if isv else "s_mov_b32 exec_hi, 0")
job(False)
a("s_branch L_job_st\nL_job_v:")
job(True)
a("L_job_st:")
a(f"""buffer_store_dwordx4 v[20:23], v17, {sr(sWS,4)}, s{t4} offen sc1
s_mov_b64 exec, 0xffff
buffer_store_dword v{JA+4}, v26, {sr(sWS,4)}, s{t3} offen sc1
s_mov_b64 exec, -1""")
stamp(8)
if HAT == 4: a("s_barrier")
def job_flag():
    lp, dn = a.lab("np"), a.lab("npd")
    a(f"""s_lshl_b32 s{t0}, s{sRB}, 7
    s_lshl_b32 s{t1}, s{sHG}, 2
    s_add_u32 s{t0}, s{t0}, s{t1}
    s_add_u32 s{t0}, s{t0}, {WS_F}""")
    if "nn" in YST: a("s_waitcnt vmcnt(1)"); ys("nn")
    a("s_waitcnt vmcnt(0)"); ys("ack")
    a(f"""v_cmp_eq_u32 vcc, 0, v{aNON}
    s_cbranch_vccnz {lp}
    {dn}:
    s_mov_b64 exec, 1
    buffer_store_dword v{aNON}, off, {sr(sWS,4)}, s{t0} sc1
    s_mov_b64 exec, -1""")
    a(f"v_mov_b32 v13, {NONCE}\nds_write_b32 v13, v{aNON}\ns_waitcnt lgkmcnt(0)")
    stamp(9)
    def slow():
        a(f"{lp}:"); budget(dn)
        a(f"""buffer_load_dword v{aNON}, off, {sr(sDBG,4)}, 0 sc1
        s_waitcnt vmcnt(0)
        v_cmp_eq_u32 vcc, 0, v{aNON}
        s_cbranch_vccnz {lp}
        s_branch {dn}""")
    cold.append(slow)
def aw_poll():
    a(f"s_lshl_b32 s{t1}, s{sW}, 10\nv_lshrrev_b32 v11, 3, v0\nv_lshl_add_u32 v11, v11, 7, s{t1}\nv_and_b32 v14, 7, v0\nv_lshl_add_u32 v11, v14, 2, v11")
    poll_issue(11, S1, F_KV)
def aw_wait(word, target, nap=0):
    lp, dn = a.lab("aw"), a.lab("awd")
    a(f"""{lp}:
    ds_read_b32 v14, v9 offset:{SYNC - NONCE + 4*word}
    s_waitcnt lgkmcnt(0)
    v_cmp_gt_u32 vcc, {target}, v14
    s_cbranch_vccz {dn}""")
    budget(dn)
    if nap: a(f"s_sleep {nap}")
    a(f"s_branch {lp}\n{dn}:")
def aw_signal(word):
    a(f"s_mov_b64 exec, 1\nds_add_u32 v9, v{vCV} offset:{SYNC - NONCE + 4*word}\ns_mov_b64 exec, -1")
job_flag()
a("s_barrier")
stamp(1)
a("s_branch L_aw03")

a("L_aw12:")
ids()
dma_lane_addrs()
a(f"""v_mov_b32 v11, v9
s_sub_u32 s{sS}, s{sW}, 1
s_lshl_b32 s{t3}, s{sS}, 13
s_lshl_b32 s{t4}, s{sS}, 16
s_lshl_b32 s{t2}, s{sHG}, 7
s_add_u32 s{t4}, s{t4}, s{t2}
s_mul_i32 s{sP}, s{sS}, 3
s_lshl_b32 s{t0}, s{t5}, 1
s_add_u32 s{sP}, s{sP}, s{t0}
s_add_u32 s{sP}, s{sP}, 2
v_mov_b32 v9, {NONCE}
v_mov_b32 v{vCV}, 1
s_waitcnt lgkmcnt(0)""")
srd(sX, pX, 0x200000); srd(sWQ, pWQ, 0x80000); srd(sWS, pWS, WS_SIZE)
vconst()
AV = Cnt(63)
for gq in range(3):
    a(f"""s_add_u32 s{t0}, s{sP}, {gq}
    s_and_b32 s{t0}, s{t0}, 7
    s_lshl_b32 s{sD1}, s{sRB}, 16
    s_lshl_b32 s{t2}, s{t0}, 13
    s_add_u32 s{sD1}, s{sD1}, s{t2}
    s_mul_i32 s{sD0}, s{t0}, {8*XS}""")
    if gq == 0:
        a("s_barrier")
        stamp(0)
    xrows(8)
def ld_wq(g):
    for n in range(8):
        a(f"s_add_u32 m0, s{t3}, {WQB + ((g + 1) % 4)*16384 + n*1024}\ns_add_u32 s{t1}, s{t4}, {g*131072 + n*8192}")
        a(f"buffer_load_dwordx4 v11, {sr(sWQ,4)}, s{t1} offen lds")
    AV.issue(g, 8)
for g_ in range(WQE): ld_wq(g_)
ys("j0")
a(f"s_waitcnt vmcnt({AV.need(0) if G0H else 8*WQE})")
ys("xl")
a("s_barrier")
stamp(1)
for g_ in range(WQE, 2): ld_wq(g_)
for b in range(4):
    if max(WQE, 2) + b < 4: ld_wq(max(WQE, 2) + b)
    if G0H and b == 0: continue
    a(f"s_waitcnt vmcnt({AV.need(b)})")
    aw_signal(W_G + b)
    ys(f"l{b}")
a("s_branch L_aw_all")

a("L_aw3b:")
ids()
srd(sWS, pWS, WS_SIZE)
stamp(0)
a(f"""v_mov_b32 v24, 0
v_mov_b32 v25, 0
v_mov_b32 v26, 0
v_mov_b32 v27, 0
v_add_u32 v13, {LT}, v10""")
for n in range(4): a(f"ds_write_b128 v13, v[24:27] offset:{n*1024}")
a(f"""v_lshlrev_b32 v13, 2, v0
v_add_u32 v13, {MISC}, v13
v_lshrrev_b32 v14, 2, v0
v_cmp_eq_u32 vcc, 1, v14
v_cndmask_b32 v14, 0, v14, vcc
ds_write_b32 v13, v14""")
a("s_waitcnt lgkmcnt(0)\ns_barrier")
a("s_waitcnt vmcnt(0)\ns_barrier")
stamp(1)
a("L_aw03:")
vconst()
a(f"v_mov_b32 v9, {NONCE}\nv_mov_b32 v{vCV}, 1")
aw_wait(W_G + POLLAT, 2, nap=2)

a("L_aw_all:")
aw_poll()
stamp(2)
a(f"""ds_read_b32 v{S1+1}, v9
s_lshl_b32 s{t4}, s{sW}, 15""")
if ROT: a(f"s_lshr_b32 s{t2}, s2, 3\ns_and_b32 s{t2}, s{t2}, 7\ns_lshl_b32 s{t2}, s{t2}, 12\ns_add_u32 s{t4}, s{t4}, s{t2}")
a(f"s_waitcnt vmcnt(0) lgkmcnt(0)\nv_readfirstlane_b32 s{sNON}, v{S1+1}")
poll_check(11, S1, F_KV, nap=2)
stamp(3)
def kvload(t):
    if t % 2 == 0: a(f"s_xor_b32 s{t3}, s{t4}, {t*2048}")
    a(f"buffer_load_dwordx4 {vr(KR+4*t,4)}, v10, {sr(sWS,4)}, s{t3} offen offset:{(t%2)*2048} sc1")
    a(f"buffer_load_dwordx4 {vr(VR+8*t,4)}, v10, {sr(sWS,4)}, s{t3} offen offset:{(t%2)*2048+1024} sc1")
for t in range(PRE): kvload(t)
a(f"""s_lshl_b32 s{t0}, s{sW}, 11
s_add_u32 s{t0}, s{t0}, {OP}
v_add_u32 v{vPA}, s{t0}, v10
v_add_u32 v{vQA}, {Q}, v10
s_lshl_b32 s{t0}, s{sW}, 8
s_add_u32 s{t0}, s{t0}, {LT}
v_and_b32 v{vLA}, 31, v0
v_lshl_add_u32 v{vLA}, v{vLA}, 2, s{t0}
v_mov_b32 v{vCA}, {CONS}
v_mov_b32 v{vIDX}, 0xdddd
v_mov_b32 v{vZ}, 0
v_mov_b32 v{vZ+1}, 0""")
aw_wait(W_Q, 4, nap=E("QNAP", 1))
a(f"ds_read_b128 {vr(QR,4)}, v{vQA}\ns_setprio 1")
stamp(4)
def zero_o(): a(f"v_mfma_f32_32x32x8_bf16 {vr(O_,16)}, {vr(vZ,2)}, {vr(vZ,2)}, 0")
def qk(t, S): a(f"v_mfma_f32_32x32x16_bf16 {vr(S,16)}, {vr(KR+4*t,4)}, {vr(QR,4)}, 0")
def pv(t, s, S): a(f"v_smfmac_f32_32x32x32_bf16 {vr(O_,16)}, {vr(VR+8*t+4*s,4)}, {vr(S+8*s,8)}, v{vIDX}")
def flush():
    lp, dn = a.lab("cw"), a.lab("cwd")
    a(f"v_cmp_eq_u32 vcc, 0, v{vCV}\ns_cbranch_vccnz {lp}")
    def slow():
        a(f"{lp}:"); budget(dn)
        a(f"""s_sleep 1
        ds_read_b32 v{vCV}, v{vCA}
        s_waitcnt lgkmcnt(0)
        v_cmp_eq_u32 vcc, 0, v{vCV}
        s_cbranch_vccnz {lp}
        s_branch {dn}""")
    cold.append(slow)
    a(f"""{dn}:
    ds_write_b128 v{vPA}, {vr(O_,4)}
    ds_write_b128 v{vPA}, {vr(O_+4,4)} offset:1024
    ds_write2_b32 v{vLA}, v{O_+8}, v{vQA} offset0:0 offset1:32""")
def apass(first):
    for t in range(16):
        S, Sn = (S0, S1) if t % 2 == 0 else (S1, S0)
        for e in range(16):
            if e == 2 and not (first and t == 0): pv((t - 1) % 16, 1, Sn)
            if e == 5:
                if first and t < 15: a(f"s_waitcnt vmcnt({1 + 2*(min(t + PRE - 1, 15) - (t + 1))})")
                if t == 15: a("s_waitcnt lgkmcnt(0)" if not first else "s_waitcnt vmcnt(0) lgkmcnt(0)")
                qk((t + 1) % 16, Sn)
                if t == 14:
                    a(f"v_add_u32 v{vQA}, 1024, v{vQA}\nds_read_b128 {vr(QR,4)}, v{vQA}\nds_read_b32 v{vCV}, v{vCA}")
            if e == 8 and first:
                for r in range(4): a(f"v_permlane16_swap_b32 v{VR+8*t+r}, v{VR+8*t+4+r}")
                if t + PRE < 16: kvload(t + PRE)
                if t == SIGT: aw_signal(W_KV)
            if e == 13 and t == 0 and not first:
                flush(); zero_o()
            if e == 15: pv(t, 0, S)
            a(f"v_exp_f32 v{S+e}, v{S+e}")
        if t == 0 and not first:
            a(f"""s_add_u32 s{sJ}, s{sJ}, 1
            s_cmp_eq_u32 s{sJ}, 4
            s_cselect_b32 s{t0}, -3, 1
            v_lshl_add_u32 v{vPA}, s{t0}, 13, v{vPA}
            v_lshl_add_u32 v{vLA}, s{t0}, 10, v{vLA}
            v_add_u32 v{vCA}, 4, v{vCA}""")
zero_o()
a(f"s_mov_b32 s{sJ}, 0\ns_waitcnt vmcnt({2*PRE-1}) lgkmcnt(0)")
qk(0, S0)
stamp(5)
apass(True)
stamp(6)
if DIAG and not YST: a(f"s_memtime s[96:97]\ns_mov_b32 s31, s{sBUD}")
a(".p2align 6\nL_aloop:")
apass(False)
if DIAG and os.environ.get("PASSST"):
    for n, sl in zip(range(1, 7), (0, 1, 2, 3, 4, 11)):
        l = a.lab("st")
        a(f"s_cmp_lg_u32 s{sJ}, {n}\ns_cbranch_scc1 {l}"); stamp(sl); a(f"{l}:")
a(f"s_cmp_lt_u32 s{sJ}, 7\ns_cbranch_scc1 L_aloop")
pv(15, 1, S1)
if not NOB:
    a(f"""v_lshlrev_b32 v251, 2, v0
    v_add_u32 v13, {G1}, v251
    ds_read_b32 v11, v9 offset:{SYNC - NONCE + 4*W_OB}
    ds_read_b32 v233, v13
    v_and_b32 v14, 3, v0
    v_lshlrev_b32 v14, 8, v14
    v_add_u32 v14, {LT + 3*1024}, v14
    v_and_b32 v15, 124, v251
    v_add_u32 v15, {LT + 3*1024}, v15
    v_add_u32 v140, {OP + 3*8192}, v10""")
else: a("s_nop 9")
flush()
stamp(7)
if DIAG and not YST: a("s_memtime s[98:99]\ns_waitcnt lgkmcnt(0)\ns_sub_u32 s30, s98, s96\ns_sub_u32 s31, s31, s77")
if not NOB:
    lp, dn = a.lab("ob"), a.lab("obd")
    a(f"""s_setprio 3
    s_cmp_lg_u32 s{sW}, {E("FINW", 3)}
    s_cbranch_scc1 L_aw_end
    s_lshl_b32 s{t0}, s{sRB}, 7
    s_lshl_b32 s{t1}, s{sHG}, 2
    s_add_u32 s{t0}, s{t0}, s{t1}
    s_lshl_b32 s{t4}, s{t0}, 10
    s_add_u32 s{t4}, s{t4}, {WS_O + 67*1024}
    s_mov_b32 s{t1}, {Q + 8*1024}
    s_waitcnt lgkmcnt(3)
    v_cmp_gt_u32 vcc, 4, v11
    s_cbranch_vccnz {lp}
    {dn}:""")
    fin_body(False, "L_aw_fb", 0)
    a("L_aw_end:")
    cold.append(lambda: a(f"L_aw_fb:\ns_call_b64 s[{sRET}:{sRET+1}], L_fb\ns_endpgm"))
    def slow():
        a(f"{lp}:"); budget(dn)
        a(f"""s_sleep 2
        ds_read_b32 v11, v9 offset:{SYNC - NONCE + 4*W_OB}
        ds_read_b32 v233, v13
        s_waitcnt lgkmcnt(0)
        v_cmp_gt_u32 vcc, 4, v11
        s_cbranch_vccnz {lp}
        s_branch {dn}""")
    cold.append(slow)
    stamp(10)
diag_dump(8)
hold()
a("s_endpgm")
emit_cold()

role[0] = "S"
vONE, vSY, vT = 1, 2, 3
vXA, vWX, vWO, vWOA, vD3, vD1, vL16, vGI, vGO = 4, 5, 6, 7, 8, 9, 10, 11, 12
WPH, PHQ, ACC, AC2, WB0, TMP = 16, 24, 40, 56, 72, 104
vNON, vGF, vLI, vPF = 232, 233, 234, 235
vSW, vSR, vSR2, vSV, vSVR = 236, 240, 241, 242, 243
FOUT = 244
vPO, vT2, vL4, vWP, vPR, vPC = 248, 249, 251, 252, 253, 254
XF = TMP; WR = WB0
VM, LG = Cnt(63), Cnt(15)
def wait(vm=None, lg=None):
    if isinstance(vm, tuple) and vm[0] == "st": assert (vm[1], 3) in issued, vm
    v = VM.need(vm) if vm is not None else None
    l = LG.need(lg) if lg is not None else None
    t = ([f"vmcnt({v})"] if v is not None else []) + ([f"lgkmcnt({l})"] if l is not None else [])
    if t: a("s_waitcnt " + " ".join(t))
def newword():
    nword[0] += 1; assert nword[0] <= 48; return nword[0] - 1
def arrive(w=None):
    w = newword() if w is None else w
    a(f"s_mov_b64 exec, 1\nds_add_u32 v{vSY}, v{vONE} offset:{4*w}\ns_mov_b64 exec, -1")
    LG.issue("arr")
    return w
def chk_read(w):
    a(f"ds_read_b32 v{vT}, v{vSY} offset:{4*w}"); LG.issue("chk")
def chk_test(w, target=4, lowprio=False, nap=0):
    dn, rt = a.lab("sbd"), a.lab("sbr")
    if lowprio: a("s_setprio 2")
    wait(lg="chk")
    a(f"v_readfirstlane_b32 s{t0}, v{vT}\ns_cmp_lt_u32 s{t0}, {target}\ns_cbranch_scc1 {rt}\n{dn}:")
    if lowprio: a("s_setprio 0")
    def slow():
        a(f"{rt}:"); budget(dn)
        if nap: a(f"s_sleep {nap}")
        a(f"""ds_read_b32 v{vT}, v{vSY} offset:{4*w}
        s_waitcnt lgkmcnt(0)
        v_readfirstlane_b32 s{t0}, v{vT}
        s_cmp_lt_u32 s{t0}, {target}
        s_cbranch_scc1 {rt}
        s_branch {dn}""")
    cold.append(slow)
def check(w, target=4, nap=0): chk_read(w); chk_test(w, target, nap=nap)
class only:
    def __init__(s, reg, val): s.reg, s.val = reg, val
    def __enter__(s):
        s.l = a.lab("only"); a(f"s_cmp_lg_u32 s{s.reg}, {s.val}\ns_cbranch_scc1 {s.l}")
        s.sv = (list(VM.q), list(LG.q))
    def __exit__(s, *e):
        a(f"{s.l}:"); VM.q, LG.q = s.sv
def flag(plane): a(f"s_add_u32 s{t0}, s{sFL}, {plane*FP}"); put_flag(t0, vNON, vL4)
def call_fin(greg):
    a(f"v_mov_b32 v{vGF}, v{greg}\ns_call_b64 s[{sRET}:{sRET+1}], L_fin\ns_nop 1")
def dma_base(kind):
    a(f"s_lshl_b32 s{t1}, s{sHG}, 7")
    if kind == "kv":
        a(f"s_mul_i32 s{sD1}, s{sP}, {32*3072}\ns_add_u32 s{sD1}, s{sD1}, s{t1}\ns_lshl_b32 s{t1}, s{sI}, 10\ns_add_u32 s{sD1}, s{sD1}, s{t1}\ns_add_u32 s{sD1}, s{sD1}, 1024")
    elif kind == "q":
        a(f"s_mul_i32 s{sD1}, s{sS}, {32*3072}\ns_add_u32 s{sD1}, s{sD1}, s{t1}")
    else:
        a(f"s_lshl_b32 s{sD1}, s{sS}, 15\ns_add_u32 s{sD1}, s{sD1}, s{t1}")
def dma_one(c, n):
    if n == 0 and c in (8, 12): dma_base("q" if c == 8 else "o")
    if c < 8:   srdw, vo, base, step = sWB, vD3, c * 64 * 3072, 8 * 3072
    elif c < 12: srdw, vo, base, step = sWB, vD3, (c - 8) * 128 * 3072, 8 * 3072
    else:       srdw, vo, base, step = sWOB, vD1, (c - 12) * 128 * 1024, 8 * 1024
    a(f"s_add_u32 m0, s{sD0}, {STG[c] + n*1024}\ns_add_u32 s{t1}, s{sD1}, {base + n*step}")
    a(f"buffer_load_dwordx4 v{vo}, {sr(srdw,4)}, s{t1} offen lds")
    VM.issue(("st", c)); issued.add((c, n))
issued = set()
def dma_stage(c):
    for n in range(4): dma_one(c, n)
def rd_w(dst, vaddr, off, second, tag=None):
    a(f"ds_read_b64_tr_b16 {vr(dst,2)}, v{vaddr} offset:{off}\nds_read_b64_tr_b16 {vr(dst+2,2)}, v{vaddr} offset:{off+second}")
    LG.issue(tag, 2)
def rd_stage(dst, c, k, tag):
    if STG[c] < OP: rd_w(dst, vWX, STG[c] + k * 2048, 512, tag)
    else: rd_w(dst, vWP, STG[c] - WQB + k * 2048, 512, tag)

a(".p2align 6\nL_sw:")
ids()
a(f"""s_setprio 2
s_and_b32 s{sS}, s{sW}, 3
s_lshr_b32 s{sI}, s{sS}, 1
s_and_b32 s{sP}, s{sS}, 1""")
dma_lane_addrs()
SCP = R1
SCV = R2
assert SCP % 64 == 0 and X == 0
a(f"""v_and_b32 v11, 31, v0
s_lshl_b32 s{t0}, s{sI}, 5
v_add_u32 v13, s{t0}, v11
v_mul_u32_u24 v{vXA}, {XS}, v13
v_lshrrev_b32 v12, 5, v0
v_lshl_add_u32 v{vXA}, v12, 4, v{vXA}
v_and_b32 v13, 15, v0
v_lshrrev_b32 v16, 2, v13
v_lshlrev_b32 v14, 7, v16
v_lshrrev_b32 v15, 3, v13
v_xor_b32 v15, s{sP}, v15
v_lshl_add_u32 v14, v15, 6, v14
v_bfe_u32 v17, v0, 4, 1
v_lshl_add_u32 v14, v17, 5, v14
v_and_b32 v18, 3, v0
v_lshl_add_u32 v14, v18, 3, v14
v_lshl_add_u32 v{vWX}, v12, 10, v14
v_lshl_add_u32 v{vWOA}, v12, 9, v14
v_add_u32 v{vWP}, {WQB}, v{vWX}
v_add_u32 v{vWO}, {RING}, v{vWOA}
v_mov_b32 v{vONE}, 1
v_mov_b32 v{vSY}, {SYNC}
v_lshlrev_b32 v{vL4}, 2, v0
s_mov_b32 s{sL2E}, {hex(LOG2E)}
s_mov_b32 s{sL2E+1}, {hex(LOG2E)}
v_min_u32 v15, 16, v11
v_mad_u32_u24 v{vLI}, v12, 17, v15
v_lshlrev_b32 v{vLI}, 4, v{vLI}
v_mad_u32_u24 v15, v12, 20, v11
v_lshlrev_b32 v{vPR}, 3, v15
s_lshl_b32 s{t0}, s{sRB}, 10
v_and_b32 v{vPF}, 7, v0
v_lshlrev_b32 v{vPF}, 7, v{vPF}
v_add_u32 v{vPF}, s{t0}, v{vPF}
s_lshl_b32 s{t0}, s{sHG}, 7
v_lshlrev_b32 v{vPC}, 10, v11
v_add_u32 v{vPC}, s{t0}, v{vPC}
v_bfe_u32 v14, v0, 1, 3
v_xor_b32 v14, v14, v12
v_lshlrev_b32 v14, 3, v14
v_lshl_add_u32 v14, v11, 6, v14
s_lshl_b32 s{t0}, s{sI}, 11
s_lshl_b32 s{t1}, s{sP}, 13
s_add_u32 s{t0}, s{t0}, s{t1}
s_add_u32 s{t0}, s{t0}, {SCP}
v_add_u32 v{vSW}, s{t0}, v14
v_xor_b32 v{vSW+1}, 16, v{vSW}
v_xor_b32 v{vSW+2}, 32, v{vSW}
v_xor_b32 v{vSW+3}, 48, v{vSW}
v_lshl_add_u32 v15, v12, 2, v16
v_lshrrev_b32 v14, 1, v15
v_lshl_add_u32 v19, v17, 2, v18
v_xor_b32 v14, v14, v19
v_lshlrev_b32 v14, 3, v14
v_lshl_add_u32 v15, v15, 6, v14
s_lshl_b32 s{t3}, s{sP}, 1
s_add_u32 s{t3}, s{t3}, s{sI}
s_lshl_b32 s{t0}, s{t3}, 12
s_add_u32 s{t0}, s{t0}, {SCP}
v_add_u32 v{vSR}, s{t0}, v15
v_xor_b32 v{vSR2}, 32, v{vSR}
s_lshl_b32 s{t0}, s{sS}, 11
s_add_u32 s{t0}, s{t0}, {SCV}
v_add_u32 v{vSV}, s{t0}, v{vL16}
v_lshlrev_b32 v14, 4, v13
v_lshl_add_u32 v14, v12, 9, v14
s_lshl_b32 s{t0}, s{sP}, 11
s_lshl_b32 s{t1}, s{sI}, 8
s_add_u32 s{t0}, s{t0}, s{t1}
s_add_u32 s{t0}, s{t0}, {SCV}
v_add_u32 v{vSVR}, s{t0}, v14
v_lshlrev_b32 v{FOUT}, 3, v13
v_lshl_add_u32 v{FOUT}, v12, 7, v{FOUT}
s_lshl_b32 s{t0}, s{sP}, 10
s_add_u32 s{t0}, s{t0}, {WPHI}
v_add_u32 v{FOUT}, s{t0}, v{FOUT}
v_mul_u32_u24 v{FOUT+1}, 0x8000, v17
v_lshl_add_u32 v{FOUT+1}, v17, 31, v{FOUT+1}
s_lshl_b32 s{t0}, s{sS}, 11
s_add_u32 s{t0}, s{t0}, {Q}
v_add_u32 v{FOUT+2}, s{t0}, v{vL16}
s_lshl_b32 s{sD0}, s{sS}, 12""")
a("s_waitcnt lgkmcnt(0)")
srd(sWS, pWS, WS_SIZE); srd(sWB, pWQKV, 0x180000); srd(sWOA, pWOA, 0x80000); srd(sWOB, pWOB, 0x80000); srd(sOUT, pOUT, 0x200000)
dma_base("kv")
if SPF:
    a(f"""s_lshr_b32 s{t0}, s2, 2
    s_mul_i32 s{t0}, s{t0}, 3072
    s_and_b32 s{t1}, s2, 3
    s_lshl_b32 s{t1}, s{t1}, 2
    s_add_u32 s{t1}, s{t1}, s{sS}
    s_lshl_b32 s{t1}, s{t1}, 7
    s_add_u32 s{t0}, s{t0}, s{t1}
    s_add_u32 s{t0}, s{t0}, 1024
    s_add_u32 s{sSM}, s{pWQKV}, s{t0}
    s_addc_u32 s{sSM+1}, s{pWQKV+1}, 0
    s_add_u32 s{sSM+2}, s{sSM}, {4*64*3072}
    s_addc_u32 s{sSM+3}, s{sSM+1}, 0""")
stamp(0)
a("s_barrier")
if SPF:
    for n in range(15): a(f"s_load_dword s96, s[{sSM + 2*(n//8)}:{sSM + 2*(n//8) + 1}], {((n//2) % 4)*64*3072 + 64*(n%2)}")
a("s_barrier")
stamp(1)
for hh in range(2): rd_w(WPH + 4 * hh, FOUT, hh * 512, 256, "x")
xn = [0]
def xread(k):
    for _ in range(k):
        if xn[0] < 32:
            a(f"ds_read_b128 {vr(XF+4*xn[0],4)}, v{vXA} offset:{xn[0]*32}"); LG.issue("x"); xn[0] += 1
xread(4 if XJ else 32)
DQ = 3
def qreads(ks):
    if ks % 8 == 0 and (ks or not G0H): chk_test(W_G + ks // 8, 2)
    rd_w(WR + 4 * (ks % 8), vWP, ((ks + 8) % 32) * 2048, 512, ("w", ks))
    if ks % 8 == 6 and ks < 24: chk_read(W_G + ks // 8 + 1)
edq = [] if NOB else [(c, n) for c in range(NST) for n in range(4)]
if not G0H: chk_read(W_G)
for ks in range(DQ): qreads(ks)
for ks in range(32):
    xread(XJ)
    if ks + DQ < 32: qreads(ks + DQ)
    wait(lg=("w", ks))
    a(f"v_mfma_f32_32x32x16_bf16 {vr(ACC,16)}, {vr(WR+4*(ks%8),4)}, {vr(XF+4*ks,4)}, {'0' if ks == 0 else vr(ACC,16)}")
    if ks < 8: a(f"v_xor_b32 v{WPH+ks}, v{FOUT+1}, v{WPH+ks}")
    xs(f"q{ks}")
    if ks == 2: wx = arrive()
    if ks == 21: chk_read(wx)
    if ks == 22: chk_test(wx)
a(f"v_mov_b32 v13, {NONCE}\nds_read_b32 v{vNON}, v13\ns_mov_b32 s{t1}, {hex(QSCALE)}\ns_mov_b32 s{t2}, {hex(QSCALE)}")
for r in range(0, 16, 2): a(f"v_pk_mul_f32 {vr(ACC+r,2)}, {vr(ACC+r,2)}, s[{t1}:{t2}]")
for r in range(8): a(f"v_cvt_pk_bf16_f32 v{PHQ+r}, v{ACC+2*r}, v{ACC+2*r+1}")
a(f"""ds_write_b128 v{FOUT+2}, {vr(PHQ,4)}
ds_write_b128 v{FOUT+2}, {vr(PHQ+4,4)} offset:1024""")
arrive(W_Q)
stamp(2)
DA = 2
def rd_a(n):
    rd_stage(WR + 8 * (n % 4), n // 4, n % 4, ("w", n)); rd_stage(WR + 8 * (n % 4) + 4, n // 4, 4 + n % 4, ("w", n))
def wgemm(items, slots, ahead, events=None, pre=None, extra=None, primed=0):
    N = len(items); events = events or {}; pre = pre or {}
    def rd(i):
        for f in pre.get(i, []): f()
        if items[i][0]: items[i][0](slots[i % len(slots)], ("w", i))
    assert ahead + PW <= len(slots)
    for i in range(primed, min(ahead, N)): rd(i)
    a("s_setprio 0")
    for g0 in range(0, N, PW):
        grp = list(range(g0, min(g0 + PW, N)))
        lgs = [i for i in grp if items[i][0]]
        wait(vm=items[grp[-1]][2], lg=("w", lgs[-1]) if lgs else None)
        for i in grp:
            t = items[i][1](slots[i % len(slots)])
            if PUSH and i == g0 + 2: a(f"s_setprio 2\n{t}\ns_setprio 0")
            else: a(t)
        for i in grp:
            if i + ahead < N: rd(i + ahead)
        for i in grp:
            if extra: extra(i)
            for f in events.get(i, []): f()
    a("s_setprio 2")
def mm_a(n, mid=None):
    wait(lg=("w", n))
    w = WR + 8 * (n % 4)
    em = a
    em(f"v_mfma_f32_32x32x16_bf16 {vr(ACC,16)}, {vr(w,4)}, {vr(XF+4*n,4)}, {'0' if n == 0 else vr(ACC,16)}")
    if mid: mid()
    em(f"v_mfma_f32_32x32x16_bf16 {vr(AC2,16)}, {vr(XF+4*n,4)}, {vr(w+4,4)}, {'0' if n == 0 else vr(AC2,16)}")
a(f"""v_and_b32 v13, 124, v{vL4}
s_lshl_b32 s{t2}, s{sRB}, 9
s_add_u32 s{t2}, s{t2}, {WS_G}
s_lshl_b32 s{t1}, s{sI}, 7
s_add_u32 s{t2}, s{t2}, s{t1}
s_xor_b32 s{t3}, s{t2}, 128""")
check(W_KV, 4, nap=2)
xs("a13")
a(f"""v_readfirstlane_b32 s{sNON}, v{vNON}
buffer_load_dword v{vGI}, v13, {sr(sWS,4)}, s{t2} offen sc1
buffer_load_dword v{vGO}, v13, {sr(sWS,4)}, s{t3} offen sc1""")
VM.issue("g", 2)
def gates():
    for d in (vGI, vGO):
        a(f"v_mul_f32 v{d}, {hex(LOG2E | 0x80000000)}, v{d}\nv_exp_f32 v{d}, v{d}\nv_add_f32 v{d}, 1.0, v{d}\nv_rcp_f32 v{d}, v{d}")
if NOB:
    wait(vm="g"); gates()
    a(f"s_mov_b32 s{sJ}, s{sS}"); call_fin(vGI)
    stamp(4)
    a(f"s_add_u32 s{sJ}, s{sS}, 4"); call_fin(vGI)
    stamp(5)
    diag_dump(13)
    a("s_endpgm")
NST = 0; N1 = 0
for c in range(3): dma_stage(c)
a("v_lshlrev_b32 v13, 7, v0")
def wot():
    a(f"""s_lshl_b32 s{t0}, s2, 2
    s_add_u32 s{t0}, s{t0}, s{sS}
    s_lshl_b32 s{t0}, s{t0}, 9
    s_mov_b64 exec, 15
    buffer_load_dword v{vT2}, v13, {sr(sWOB,4)}, s{t0} offen
    buffer_load_dword v{vT2}, v13, {sr(sWOA,4)}, s{t0} offen
    s_lshr_b32 s{t1}, s{t0}, 10
    s_lshl_b32 s{t1}, s{t1}, 11
    s_add_u32 s{t0}, s{t0}, s{t1}
    buffer_load_dword v{vT2}, v13, {sr(sWB,4)}, s{t0} offen
    s_mov_b64 exec, -1""")
    VM.issue("wot", 3)
wait(vm=("st", NST)); w = arrive()
gates()
check(w)
stamp(3)
SL = [WR + 4 * n for n in range(8)] + [PHQ + 4 * n for n in range(4)]
AH = 6
its = []
for n in range(N1, 32):
    its.append((lambda d, tg, n=n: rd_stage(d, n // 4, n % 4, tg), lambda w_, n=n: f"v_mfma_f32_32x32x16_bf16 {vr(ACC,16)}, {vr(w_,4)}, {vr(XF+4*n,4)}, {vr(ACC,16) if n else 0}", None))
    its.append((lambda d, tg, n=n: rd_stage(d, n // 4, 4 + n % 4, tg), lambda w_, n=n: f"v_mfma_f32_32x32x16_bf16 {vr(AC2,16)}, {vr(XF+4*n,4)}, {vr(w_,4)}, {vr(AC2,16) if n else 0}", None))
pre, tested = {}, set(range(NST))
cur = {}
for c in range(NST + 1, 9):
    i0_ = 8 * (c - NST)
    def arr(c=c):
        if c < 8: wait(vm=("st", c))
        cur[c] = arrive()
    def tst(c=c): chk_test(cur[c], lowprio=True); tested.add(c - 2)
    if c < 8:
        pre.setdefault(max(i0_ - PW - 2, AH), []).append(arr)
        pre.setdefault(max(i0_ - 2, AH), []).append(lambda c=c: chk_read(cur[c]))
        pre.setdefault(i0_, []).append(tst)
dq = [(c, n) for c in range(NST + 3, 12) for n in range(4)]
def dma_next(i):
    if dq:
        prev = [k for k in range(dq[0][0]) if STG[k] == STG[dq[0][0]]]
        if not prev or prev[-1] in tested: dma_one(*dq.pop(0))
wgemm(its, SL, AH, pre=pre, extra=lambda i: dma_next(i) if i % 3 != 2 else None, events={len(its) - AH - 1: [arr], WOTAT: [wot] if WOT else []})
assert not dq
w = cur[8]
stamp(4)

def features(B, W, out, D, tm):
    m1, m2 = tm, tm + 1
    a(f"v_mfma_f32_32x32x16_bf16 {vr(D,16)}, {vr(W,4)}, {vr(B,4)}, 0")
    for (m, b) in ((m1, D), (m2, D + 8)):
        a(f"v_max3_f32 v{m}, v{b}, v{b+1}, v{b+2}\nv_max3_f32 v{m}, v{m}, v{b+3}, v{b+4}\nv_max3_f32 v{m}, v{m}, v{b+5}, v{b+6}\nv_max_f32 v{m}, v{m}, v{b+7}")
    a(f"""v_permlane32_swap_b32 v{m1}, v{m2}
    v_max_f32 v{m1}, v{m1}, v{m2}
    v_mul_f32 v{m1}, {hex(LOG2E | 0x80000000)}, v{m1}
    v_mov_b32 v{m2}, v{m1}
    v_permlane32_swap_b32 v{m1}, v{m2}""")
    for r in range(0, 16, 2):
        sel = "op_sel_hi:[1,1,0]" if r < 8 else "op_sel:[0,0,1]"
        a(f"v_pk_fma_f32 {vr(D+r,2)}, {vr(D+r,2)}, s[{sL2E}:{sL2E+1}], {vr(m1,2)} {sel}")
    for r in range(16): a(f"v_exp_f32 v{D+r}, v{D+r}")
    for (m, b) in ((m1, D), (m2, D + 8)):
        a(f"""v_pk_add_f32 {vr(tm+2,2)}, {vr(b,2)}, {vr(b+2,2)}
        v_pk_add_f32 {vr(tm+4,2)}, {vr(b+4,2)}, {vr(b+6,2)}
        v_pk_add_f32 {vr(tm+2,2)}, {vr(tm+2,2)}, {vr(tm+4,2)}
        v_add_f32 v{m}, v{tm+2}, v{tm+3}""")
    a(f"""v_permlane32_swap_b32 v{m1}, v{m2}
    v_add_f32 v{m1}, v{m1}, v{m2}
    v_rcp_f32 v{m1}, v{m1}
    v_mov_b32 v{m2}, v{m1}
    v_permlane32_swap_b32 v{m1}, v{m2}""")
    for r in range(0, 16, 2):
        sel = "op_sel_hi:[1,0]" if r < 8 else "op_sel:[0,1]"
        a(f"v_pk_mul_f32 {vr(D+r,2)}, {vr(D+r,2)}, {vr(m1,2)} {sel}")
    for r in range(8): a(f"v_cvt_pk_bf16_f32 v{out+r}, v{D+2*r}, v{D+2*r+1}")

KB, VB, DD, TM, PH = PHQ, PHQ + 8, WR, WR + 16, WR + 24
chk_read(w)
a(f"""s_lshl_b32 s{t3}, s{sP}, 1
s_add_u32 s{t3}, s{t3}, s{sI}
s_lshl_b32 s{t2}, s{sHG}, 2
s_add_u32 s{t2}, s{t2}, s{t3}
s_lshl_b32 s{t2}, s{t2}, 8
s_add_u32 s{t2}, s{t2}, s{sRB}
s_mul_i32 s{t4}, s{t2}, {PREC}
s_add_u32 s{t4}, s{t4}, {WS_PART}""")
for r in range(8): a(f"v_cvt_pk_bf16_f32 v{KB+r}, v{ACC+2*r}, v{ACC+2*r+1}")
for r in range(8): a(f"v_cvt_pk_bf16_f32 v{VB+r}, v{AC2+2*r}, v{AC2+2*r+1}")
chk_test(w)
xs("k1")
a(f"ds_write_b128 v{vSV}, {vr(VB,4)}\nds_write_b128 v{vSV}, {vr(VB+4,4)} offset:1024")
dma_stage(12)
for hh in range(2):
    features(KB + 4 * hh, WPH + 4 * hh, PH, DD, TM)
    for aa in range(4): a(f"ds_write_b64 v{vSW+aa}, {vr(PH+2*aa,2)} offset:{hh*4096}")
    xs(f"k3{hh}")
wait(vm=("st", 12)); w = arrive()
KA, KBv, KD = WR, AC2, ACC
a(f"s_mov_b32 s{t1}, {hex(ONES)}\ns_mov_b32 s{t2}, {hex(ONES)}")
for r in range(0, 16, 2): a(f"v_mov_b64 {vr(KBv+r,2)}, s[{t1}:{t2}]")
check(w)
xs("k4")
for u in range(4):
    a(f"ds_read_b64_tr_b16 {vr(KA+4*u,2)}, v{vSR} offset:{u*1024}\nds_read_b64_tr_b16 {vr(KA+4*u+2,2)}, v{vSR2} offset:{u*1024+512}")
a(f"s_mov_b32 exec_lo, 0xffff\ns_mov_b32 exec_hi, 0xffff")
for u in range(4):
    a(f"ds_read_b128 {vr(KBv+4*u,4)}, v{vSVR} offset:{(u//2)*4096 + (u%2)*1024}")
a("s_mov_b64 exec, -1")
LG.issue("kv", 12)
SL = [WR + 16 + 4 * n for n in range(4)] + [PHQ + 4 * n for n in range(4)] + [WR + 4 * n for n in range(4)]
wait(lg="kv")
for u in range(4):
    a(f"v_mfma_f32_32x32x16_bf16 {vr(KD,16)}, {vr(KA+4*u,4)}, {vr(KBv+4*u,4)}, {'0' if u == 0 else vr(KD,16)}")
FIL = FOUT
def kvf_addr():
    a(f"""s_and_b32 s{t0}, s{sRB}, 3
    s_lshl_b32 s{t1}, s{sHG}, 2
    s_add_u32 s{t0}, s{t0}, s{t1}
    s_mul_i32 s{t0}, s{t0}, {KVF_STRIDE}
    s_lshr_b32 s{t1}, s{sRB}, 4
    s_mul_i32 s{t1}, s{t1}, 544
    s_add_u32 s{t0}, s{t0}, s{t1}
    s_and_b32 s{t1}, s{sRB}, 12
    s_add_u32 s{t0}, s{t0}, s{t1}
    s_add_u32 s{t0}, s{t0}, {WS_KVF}""")
a(f"""s_lshl_b32 s{t0}, s{sRB}, 2
s_add_u32 s{t0}, s{t0}, s{sS}
s_lshl_b32 s{t0}, s{t0}, 15
s_lshl_b32 s{t1}, s{sHG}, 12
s_add_u32 s{t0}, s{t0}, s{t1}
s_add_u32 s{t0}, s{t0}, {WS_O}""")
for r in range(4): a(f"v_mov_b32 v{FIL+r}, -1")
for r in range(4): a(f"buffer_store_dwordx4 {vr(FIL,4)}, v{vL16}, {sr(sWS,4)}, s{t0} offen offset:{r*1024} sc1")
with only(sS, 2):
    kvf_addr()
    a(f"s_mov_b32 exec_lo, 0x1ffff\ns_mov_b32 exec_hi, 0x1ffff\nbuffer_store_dword v{FIL}, v{vLI}, {sr(sWS,4)}, s{t0} offen sc1")
a(f"s_mov_b32 exec_lo, 0xfffff\ns_mov_b32 exec_hi, 0xfffff")
for e in range(8):
    a(f"buffer_store_dwordx2 {vr(KD+2*e,2)}, v{vPR}, {sr(sWS,4)}, s{t4} offen sc1"); VM.issue("part")
    if e < 7: a(f"s_add_u32 s{t4}, s{t4}, {32*PREC}")
a("s_mov_b64 exec, -1")
stamp(5)
dq = [(c, n) for c in (13, 14) for n in range(4)]
its = [(lambda d, tg, n=n: rd_stage(d, 8 + n // 8, n % 8, tg),
        lambda w_, n=n: f"v_mfma_f32_32x32x16_bf16 {vr(AC2,16)}, {vr(w_,4)}, {vr(XF+4*n,4)}, {'0' if n == 0 else vr(AC2,16)}", None) for n in range(32)]
def e1(): wait(vm="part"); cur["p"] = arrive()
def e2():
    chk_read(cur["p"]); chk_test(cur["p"], lowprio=True)
    with only(sS, 2): flag(F_F2)
def e3():
    with only(sS, 2): poll_issue(vPC, vT2, F_F2)
    with only(sS, 0): poll_issue(vPF, vT2, F_F2)
wgemm(its, SL, AH, events={9: [e1], 12: [e2], 27: [e3]}, extra=lambda i: dma_one(*dq.pop(0)) if i > 14 and dq else None)
vWA0, vWA1, vWB0, vWB1 = vXA, vWX, vWO, vWP
a(f"""s_lshl_b32 s{t0}, s{sP}, 13
v_add_u32 v{vWA0}, s{t0}, v{vWOA}
v_xor_b32 v{vWA1}, 64, v{vWA0}
v_add_u32 v{vWB0}, s{t0}, v{vWO}
v_xor_b32 v{vWB1}, 64, v{vWB0}""")
assert RING % 128 == 0 and STG[12] == 0
for k in range(8): rd_w(WB0 + 4 * k, (vWA0, vWA1)[k % 2], (k // 2) * 2048, 1024, "wb0")
stamp(6)
KB, DD, TM = TMP, TMP + 16, TMP + 32
RD = TMP + 64
with only(sS, 2):
    a("s_waitcnt vmcnt(0)")
    poll_check(vPC, vT2, F_F2)
    xs("r1")
    a(f"""s_and_b32 s{t3}, s{sRB}, 3
    s_lshl_b32 s{t0}, s{sHG}, 2
    s_add_u32 s{t3}, s{t0}, s{t3}
    s_lshl_b32 s{t0}, s{t3}, 3
    s_lshr_b32 s{t2}, s{sRB}, 2
    s_add_u32 s{t0}, s{t0}, s{t2}
    s_mul_i32 s{t0}, s{t0}, {32*PREC}
    s_add_u32 s{t0}, s{t0}, {WS_PART}
    s_mov_b32 exec_lo, 0x1ffff
    s_mov_b32 exec_hi, 0x1ffff""")
    for n in range(32):
        if n and n % 8 == 0: a(f"s_add_u32 s{t0}, s{t0}, {8*PREC}")
        a(f"buffer_load_dwordx2 {vr(RD+2*n,2)}, v{vPR}, {sr(sWS,4)}, s{t0} offen offset:{(n%8)*PREC} sc1")
    a("s_mov_b64 exec, -1")
xs("r2")
def fin(j, g): a(f"s_mov_b32 s{sJ}, {j}"); call_fin(g)
with only(sI, 0): fin(f"s{sP}", vGI)
with only(sS, 3): fin(2, vGO)
for r in range(8): a(f"v_cvt_pk_bf16_f32 v{KB+r}, v{AC2+2*r}, v{AC2+2*r+1}")
features(KB, WPH, PHQ, DD, TM)
with only(sS, 2):
    kvf_addr()
    a("s_waitcnt vmcnt(0)")
    st = 16
    while st >= 1:
        for n in range(st): a(f"v_pk_add_f32 {vr(RD+2*n,2)}, {vr(RD+2*n,2)}, {vr(RD+2*(n+st),2)}")
        st //= 2
    a(f"""v_cvt_pk_bf16_f32 v15, v{RD}, v{RD+1}
    v_min_u32 v15, -2, v15
    s_mov_b32 exec_lo, 0x1ffff
    s_mov_b32 exec_hi, 0x1ffff
    buffer_store_dword v15, v{vLI}, {sr(sWS,4)}, s{t0} offen sc1
    s_mov_b64 exec, -1""")
xs("r3")
features(KB + 4, WPH + 4, PHQ + 8, DD, TM)
with only(sS, 0):
    a("s_waitcnt vmcnt(0)"); poll_check(vPF, vT2, F_F2)
w = arrive()
stamp(7)
with only(sS, 2): a(f"v_add_u32 v13, {G1}, v{vL4}\nds_write_b32 v13, v{vGI}")
xs("l1")
def take(loads, regs, nap, issued=False):
    lp, dn, l2 = a.lab("tk"), a.lab("tkd"), a.lab("tkw")
    if issued: a(f"s_branch {l2}")
    a(f"{lp}:"); loads()
    a(f"{l2}:\ns_waitcnt vmcnt(0)\nv_max_u32 v{vT}, v{regs[0]}, v{regs[1]}")
    for k in range(2, len(regs), 2): a(f"v_max3_u32 v{vT}, v{vT}, v{regs[k]}, v{regs[k+1]}")
    a(f"v_cmp_eq_u32 vcc, -1, v{vT}\ns_cbranch_vccz {dn}")
    budget(dn)
    if nap: a(f"s_sleep {nap}")
    a(f"s_branch {lp}\n{dn}:")
a(f"""s_lshl_b32 s{t3}, s{sHG}, 2
s_lshl_b32 s{t1}, s{sP}, 1
s_add_u32 s{t3}, s{t3}, s{t1}
s_mul_i32 s{t4}, s{t3}, {KVF_STRIDE}
s_add_u32 s{t4}, s{t4}, {WS_KVF}
s_lshl_b32 s{sPF}, s{sRB}, 1
s_add_u32 s{sPF}, s{sPF}, s{sI}
s_lshl_b32 s{sPF}, s{sPF}, 16
s_add_u32 s{sPF}, s{sPF}, {WS_O}
s_lshl_b32 s{t3}, s{t3}, 10
s_add_u32 s{t3}, s{t3}, s{sPF}
s_add_u32 s{t3}, s{t3}, 32768
v_sub_f32 v15, 1.0, v{vGI}""")
check(w, nap=1)
xs("l2")
def kvf_loads():
    for hh in range(2):
        for u in range(2):
            a(f"buffer_load_dwordx4 {vr(TMP+8*hh+4*u,4)}, v{vLI}, {sr(sWS,4)}, s{t4} offen offset:{hh*KVF_STRIDE + u*544} sc1")
take(kvf_loads, list(range(TMP, TMP + 16)), E("KNAP", 6))
stamp(8)
for hh in range(2):
    D = TMP + 16 + 16 * hh
    a(f"v_mfma_f32_32x32x16_bf16 {vr(D,16)}, {vr(TMP+8*hh,4)}, {vr(PHQ+8*hh,4)}, 0")
    a(f"v_mfma_f32_32x32x16_bf16 {vr(D,16)}, {vr(TMP+8*hh+4,4)}, {vr(PHQ+8*hh+4,4)}, {vr(D,16)}")
for hh in range(2):
    D = TMP + 16 + 16 * hh
    a(f"v_add_f32 v{D+8}, 0x358637bd, v{D+8}\nv_rcp_f32 v{D+8}, v{D+8}\nv_mul_f32 v{D+8}, v{D+8}, v15")
    for r in range(0, 8, 2): a(f"v_pk_mul_f32 {vr(D+r,2)}, {vr(D+r,2)}, {vr(D+8,2)} op_sel_hi:[1,0]")
    for r in range(4): a(f"v_cvt_pk_bf16_f32 v{D+12+r}, v{D+2*r}, v{D+2*r+1}")
    a(f"v_min_u32 v{D+12}, -2, v{D+12}")
    a(f"buffer_store_dwordx4 {vr(D+12,4)}, v{vL16}, {sr(sWS,4)}, s{t3} offen offset:{hh*1024} sc1")
xs("l3")
w = arrive()
with only(sS, 3): fin(3, vGO)
check(w, nap=1)
dma_stage(15)
a(f"s_lshl_b32 s{t2}, s{sS}, 14\ns_lshl_b32 s{t3}, s{sS}, 17\ns_lshl_b32 s{t1}, s{sHG}, 7\ns_add_u32 s{t3}, s{t3}, s{t1}")
for n in range(16):
    a(f"s_add_u32 m0, s{t2}, {X + n*1024}\ns_add_u32 s{t1}, s{t3}, {n*8192}")
    a(f"buffer_load_dwordx4 v{vD1}, {sr(sWOA,4)}, s{t1} offen lds")
a(f"s_mov_b32 s{sD0}, s{sPF}\ns_waitcnt vmcnt(0)")
arrive(W_OB)
stamp(9)

def out_addr():
    a(f"""v_and_b32 v14, 31, v0
    v_lshlrev_b32 v14, 10, v14
    v_lshrrev_b32 v15, 5, v0
    v_lshl_add_u32 v14, v15, 4, v14
    s_lshl_b32 s{t4}, s{sRB}, 16
    s_lshl_b32 s{t1}, s{sI}, 15
    s_add_u32 s{t4}, s{t4}, s{t1}
    s_lshl_b32 s{t1}, s{sHG}, 7
    s_add_u32 s{t4}, s{t4}, s{t1}
    s_lshl_b32 s{t1}, s{sP}, 6
    s_add_u32 s{t4}, s{t4}, s{t1}""")
def store_out():
    for r in range(8): a(f"v_cvt_pk_bf16_f32 v{PHQ+r}, v{ACC+2*r}, v{ACC+2*r+1}")
    for kk in range(2):
        b = PHQ + 4 * kk
        a(f"v_permlane32_swap_b32 v{b}, v{b+2}\nv_permlane32_swap_b32 v{b+1}, v{b+3}")
        a(f"buffer_store_dwordx4 {vr(b,4)}, v14, {sr(sOUT,4)}, s{t4} offen offset:{kk*32} {OUTF}")

TS = [WPH + 4 * n for n in range(6)] + [vSW, vSW + 4]
assert vSW == 236
def steps_a(hs, reg): return [(h * 1024, ((vWA0, vWA1), h * 2048), reg + 4 * k) for k, h in enumerate(hs)]
def steps_b(reg):
    o = []
    for k, h in enumerate(8 * m + r for m in range(4) for r in range(4)):
        o.append((32768 + h * 1024, WB0 + 8 * k if k < 4 else ((vWB0, vWB1), STG[12 + h // 8] - RING + (h % 8) * 2048), reg + 4 * k))
    return o
def rec_loads(steps, base):
    for k, (ro, _, reg) in enumerate(steps):
        hi, lo = ro & ~4095, ro & 4095
        if k == 0 or hi != (steps[k-1][0] & ~4095): a(f"s_add_u32 s{t1}, s{base}, {hi}")
        a(f"buffer_load_dwordx4 {vr(reg,4)}, v{vL16}, {sr(sWS,4)}, s{t1} offen offset:{lo} sc1")
def run_items(its, first, windows, hooks=None, prime_only=None):
    hooks = hooks or {}
    slot = {}; cnt = [0]
    def rd(n):
        w_, _, c = its[n]
        if isinstance(w_, int): slot[n] = w_ + 4 * c
        else:
            slot[n] = TS[cnt[0] % 8]; cnt[0] += 1
            rd_w(slot[n], w_[0][c], w_[1], 1024, ("w", n))
    LG.clear()
    nr = 0
    while nr < len(its) and cnt[0] < 6: rd(nr); nr += 1
    if prime_only: prime_only()
    if windows: a("s_setprio 0")
    seen = set()
    step = 2 if windows else 1
    for g0 in range(0, len(its), step):
        grp = range(g0, min(g0 + step, len(its)))
        for n in grp:
            for f in hooks.get(n, []): f()
        wait(lg=("w", grp[-1]))
        for n in grp:
            acc = (ACC, AC2)[its[n][2]]
            wait(lg=("w", n))
            a(f"v_mfma_f32_32x32x16_bf16 {vr(acc,16)}, {vr(slot[n],4)}, {vr(its[n][1],4)}, {0 if first and acc not in seen else vr(acc,16)}")
            seen.add(acc)
        for n in grp:
            if not isinstance(its[n][0], int):
                while nr < len(its):
                    rd(nr); nr += 1
                    if not isinstance(its[nr-1][0], int): break
    assert nr == len(its)
    if windows: a("s_setprio 2")
items = lambda steps: [(w_, reg, c) for (_, w_, reg) in steps for c in range(2)]
def tail(its, late, last):
    n0 = len(its)
    its = its + items(late)
    k = 12
    its = its[:-k] + [x for x in its[-k:] if x[2] == 1] + [x for x in its[-k:] if x[2] == 0]
    LW = TMP
    def gate():
        out_addr()
        lp, dn = a.lab("tw"), a.lab("twd")
        a(f"""s_lshl_b32 s{t2}, s{sS}, 12
        s_add_u32 s{t0}, s{t2}, {OP}
        v_add_u32 v{vPC}, s{t0}, v{vL16}
        s_xor_b32 s{t2}, s{t2}, 4096
        s_add_u32 s{t0}, s{t2}, {OP}
        v_add_u32 v{vPR}, s{t0}, v{vL16}
        s_lshl_b32 s{t0}, s{sS}, 8
        s_add_u32 s{t0}, s{t0}, {LT + 3*1024 + 128}
        v_mov_b32 v13, s{t0}""")
        if last:
            for q_, (_, w_, _) in enumerate(last): rd_w(LW + 4 * q_, vWOA, w_, 1024, "lw")
        xs("t0")
        a(f"""{lp}:
        ds_read_b32 v{vT}, v13
        s_waitcnt lgkmcnt(0)
        v_cmp_gt_u32 vcc, {Q + 8*1024}, v{vT}
        s_cbranch_vccz {dn}""")
        budget(dn)
        a(f"s_sleep 2\ns_branch {lp}\n{dn}:")
        LG.clear()
        stamp(11)
        if late: rec_loads(late, sD1)
    hooks = {}
    if late:
        lr = [reg for (_, _, reg) in late]
        nl = min(n for n, x in enumerate(its) if x[1] in lr)
        hooks.setdefault(nl, []).append(lambda: (take(lambda: rec_loads(late, sD1), list(range(lr[0], lr[0] + 4 * len(lr))), 0, issued=True), xs("n6")))
    if last: hooks.setdefault(len(its) - R7AT, []).append(lambda: rec_loads(last, sD0))
    ww = newword()
    def x1():
        for q4 in range(4): a(f"ds_write_b128 v{vPC}, {vr(AC2+4*q4,4)} offset:{q4*1024}")
        LG.issue("xw", 4); arrive(ww)
    hooks.setdefault(len(its) - k // 2 + 2, []).append(x1)
    hooks.setdefault(len(its) - 1, []).append(lambda: chk_read(ww))
    run_items(its, False, False, hooks, gate)
    chk_test(ww, 2)
    for q4 in range(4): a(f"ds_read_b128 {vr(AC2+4*q4,4)}, v{vPR} offset:{q4*1024}")
    xs("t1")
    if last:
        take(lambda: rec_loads(last, sD0), list(range(last[0][2], last[0][2] + 32)), 0, issued=True)
        xs("n7")
        for q_, (_, _, reg) in enumerate(last): a(f"v_mfma_f32_32x32x16_bf16 {vr(ACC,16)}, {vr(LW+4*q_,4)}, {vr(reg,4)}, {vr(ACC,16)}")
    a("s_waitcnt lgkmcnt(0)")
    for r in range(0, 16, 2): a(f"v_pk_add_f32 {vr(ACC+r,2)}, {vr(ACC+r,2)}, {vr(AC2+r,2)}")
    store_out()
def slot_free(j):
    lp, dn = a.lab("cf"), a.lab("cfd")
    a(f"v_mov_b32 v13, {CONS + 16 + 4*j}\n{lp}:\nds_read_b32 v{vT}, v13\ns_waitcnt lgkmcnt(0)\nv_cmp_eq_u32 vcc, 0, v{vT}\ns_cbranch_vccz {dn}")
    budget(dn)
    a(f"s_sleep 2\ns_branch {lp}\n{dn}:")

a(f"s_lshl_b32 s{t0}, s{sP}, 12\ns_add_u32 s{sD1}, s{sD0}, s{t0}")
a(f"s_cmp_eq_u32 s{sI}, 1\ns_cbranch_scc1 L_half1")
sa, sb = steps_a([8 * m + r for m in range(4) for r in range(4)], TMP + 64), steps_b(TMP)
first_words = lambda st: [reg for (_, _, reg) in st]
assert 16 <= PRET <= 32 and PRET % 2 == 0
take(lambda: rec_loads(sa, sD1), first_words(sa), RNAP)
check(W_OB, nap=1)
xs("m0")
with only(sS, 1): fin(5, vGO)
run_items(items(sa)[:PRET], True, True)
xs("m2")
with only(sS, 0): fin(6, vGO)
take(lambda: rec_loads(sb, sD1), first_words(sb), RNAP)
stamp(10)
slot_free(4)
tail(items(sb) + items(sa)[PRET:], [], None)
stamp(12)
diag_dump(13)
a("s_endpgm")
a("L_half1:")
LG.clear(); VM.clear()
with only(sS, 2): fin(4, vGI)
take(lambda: rec_loads(sb, sD1), first_words(sb), RNAP)
check(W_OB, nap=1)
xs("m0")
run_items(items(sb)[:PRET], True, True)
xs("m2")
s45, s6 = steps_a([8 * m + r for m in range(4) for r in range(2)], TMP + 64), steps_a([8 * m + 2 for m in range(4)], TMP + 96)
slot_free(5)
take(lambda: rec_loads(s45, sD1), first_words(s45), RNAP)
stamp(10)
tail(items(sb)[PRET:] + items(s45), s6, [((4*k + 3) * 1024, (4*k + 3) * 2048, WB0 + 4 * k) for k in range(8)])
stamp(12)
diag_dump(13)
hold()
a("L_exit:\ns_endpgm")

FO = TMP
FL = TMP + 32
a("L_fin:\ns_nop 1")
a(f"""s_and_b32 s{t2}, s{sJ}, 3
s_lshl_b32 s{t0}, s{t2}, 10
s_add_u32 s{t0}, s{t0}, {LT}
v_and_b32 v14, 3, v0
v_lshl_add_u32 v14, v14, 8, s{t0}
v_and_b32 v15, 124, v{vL4}
v_add_u32 v15, s{t0}, v15
s_lshl_b32 s{t1}, s{sJ}, 10
s_add_u32 s{t1}, s{t1}, {Q + 1024}
s_lshl_b32 s{t2}, s{t2}, 13
s_add_u32 s{t2}, s{t2}, {OP}
v_add_u32 v{FL+4}, s{t2}, v{vL16}
s_lshl_b32 s{t0}, s{sJ}, 2
s_add_u32 s{t0}, s{t0}, {CONS + 16}
v_mov_b32 v13, s{t0}
s_lshr_b32 s{t0}, s{sJ}, 2
s_lshl_b32 s{t2}, s{sRB}, 1
s_add_u32 s{t0}, s{t0}, s{t2}
s_lshl_b32 s{t0}, s{t0}, 6
s_lshl_b32 s{t2}, s{sHG}, 2
s_add_u32 s{t0}, s{t0}, s{t2}
s_and_b32 s{t2}, s{sJ}, 3
s_add_u32 s{t0}, s{t0}, s{t2}
s_lshl_b32 s{t4}, s{t0}, 10
s_add_u32 s{t4}, s{t4}, {WS_O}
""")
assert FP == 1 << 15 and CONS + 16 + 32 <= SYNC and (TMP, vGF, vL4, vONE, vL16, vT, FOUT) == (104, 233, 251, 1, 10, 3, 244)
fin_body(True, "L_fb", FNAP)
if DIAG: a("s_waitcnt lgkmcnt(0)")
a(f"s_setpc_b64 s[{sRET}:{sRET+1}]")
emit_cold()
a("CODE_END:")
BS, BC, BK, BV, BQ, BM = TMP + 16, TMP + 32, TMP + 48, TMP + 52, TMP + 60, FOUT
a(f"""L_fb:
s_sub_u32 s{t1}, s{t1}, 1024
v_add_u32 v14, s{t1}, v{vL16}
ds_read_b128 {vr(BQ,4)}, v14
v_mov_b32 v{BM}, 0xff800000
s_mov_b32 s{t0}, 0
s_waitcnt lgkmcnt(0)
L_fb1:
buffer_load_dwordx4 {vr(BK,4)}, v{vL16}, {sr(sWS,4)}, s{t0} offen sc1
s_waitcnt vmcnt(0)
v_mfma_f32_32x32x16_bf16 {vr(BS,16)}, {vr(BK,4)}, {vr(BQ,4)}, 0""")
for r in range(0, 16, 2): a(f"v_max3_f32 v{BM}, v{BM}, v{BS+r}, v{BS+r+1}")
a(f"""s_add_u32 s{t0}, s{t0}, 2048
s_cmp_lt_u32 s{t0}, 131072
s_cbranch_scc1 L_fb1
v_mov_b32 v{BM+1}, v{BM}
v_permlane32_swap_b32 v{BM}, v{BM+1}
v_max_f32 v{BM}, v{BM}, v{BM+1}""")
for r in range(16): a(f"v_sub_f32 v{BC+r}, 0, v{BM}\nv_mov_b32 v{FO+r}, 0")
a(f"""v_mov_b32 v15, 0xdddd
s_mov_b32 s{t0}, 0
L_fb2:
buffer_load_dwordx4 {vr(BK,4)}, v{vL16}, {sr(sWS,4)}, s{t0} offen sc1
buffer_load_dwordx4 {vr(BV,4)}, v{vL16}, {sr(sWS,4)}, s{t0} offen offset:1024 sc1""")
for r in range(4): a(f"v_mov_b32 v{BV+4+r}, {hex(ONES)}")
a(f"""s_waitcnt vmcnt(0)
v_mfma_f32_32x32x16_bf16 {vr(BS,16)}, {vr(BK,4)}, {vr(BQ,4)}, {vr(BC,16)}""")
for r in range(4): a(f"v_permlane16_swap_b32 v{BV+r}, v{BV+4+r}")
for r in range(16): a(f"v_exp_f32 v{BS+r}, v{BS+r}")
a(f"""v_smfmac_f32_32x32x32_bf16 {vr(FO,16)}, {vr(BV,4)}, {vr(BS,8)}, v15
v_smfmac_f32_32x32x32_bf16 {vr(FO,16)}, {vr(BV+4,4)}, {vr(BS+8,8)}, v15
s_add_u32 s{t0}, s{t0}, 2048
s_cmp_lt_u32 s{t0}, 131072
s_cbranch_scc1 L_fb2
s_nop 9
s_branch L_fin_norm""")

body = a.finish(verbose=bool(os.environ.get("VERBOSE")))
ref = open("cdna_kernels/" + NAME + ".s.ref").read().split("\n")
hdr = [l for l in ref if l.startswith(";") and "@launch" not in l and "Override" not in l and "grid=ceil" not in l]
out = "\n".join(hdr) + f"""
; @launch grid=(256,1,1) block=(512,1,1) lds={LDS_BYTES}
.amdgcn_target "amdgcn-amd-amdhsa--gfx950"
.text
.p2align 12
.fill {PAD // 4}, 4, 0xbf810000
.globl {NAME}_kernel
.p2align 8
.type {NAME}_kernel,@function
{NAME}_kernel:
{body}.section .rodata,"a"
.p2align 6
.amdhsa_kernel {NAME}_kernel
  .amdhsa_next_free_vgpr 256
  .amdhsa_next_free_sgpr 102
  .amdhsa_accum_offset 256
  .amdhsa_group_segment_fixed_size 0
  .amdhsa_kernarg_size 104
  .amdhsa_user_sgpr_count 2
  .amdhsa_user_sgpr_kernarg_segment_ptr 1
  .amdhsa_system_sgpr_workgroup_id_x 1
.end_amdhsa_kernel
"""
dst = sys.argv[1] if len(sys.argv) > 1 else "cdna_kernels/" + NAME + ".s"
open(dst, "w").write(out)
print("wrote", dst, len(a.lines), "lines,", len(a.inserted), "nops inserted, words", nword[0])
```

```python
import sys, os
from asmlib import Asm, Cnt, vr, sr

NAME = "gated_mix__grouped_kv_mqa__linear_kernel_hedgehog__prompt"
E = lambda k, d: int(os.environ.get(k, d))
DIAG = E("DIAG", 0); FORCE_FB = E("FORCE_FB", 0); TOUCH = E("TOUCH", 0); NOB = E("NOB", 0); PRE = E("PRE", 4)
FNAP = E("FNAP", 2); SIGT = E("SIGT", 4); POLLAT = E("POLLAT", 3); NST = E("NST", 2); MAP = E("MAP", 1); PW = E("PW", 2); PRET = E("PRET", 16); WOTAT = E("WOTAT", 20); R7AT = E("R7AT", 1); RNAP = E("RNAP", 8); DEFER = E("DEFER", 1); ROT = E("ROT", 1); PUSH = E("PUSH", 1); WQE = E("WQE", 2); CPF = E("CPF", 1); WQT = E("WQT", 1); SPF = E("SPF", 2); HAT = E("HAT", 0); WOT = E("WOT", 1); XJ = E("XJ", 0); XNT = E("XNT", 1); G0H = E("G0H", 0); FLAG1 = E("FLAG1", 0); LPT = E("LPT", 4); LATE = E("LATE", 1); PAD = E("PAD", 0xd00)
OUTF = os.environ.get("OUTF", "")
HOLDAT = os.environ.get("HOLDAT")

X = 0; XS = 1040
Q = 66560
OP = 74752
RING = 107520
LT = 156672
MISC = 160768
WKV = OP; WQB = OP + 16384
WPHI = Q
NONCE = MISC; CONS = MISC + 16; SYNC = MISC + 64
GATE = MISC + 2048
LDS_BYTES = 163840
WS_KV = 0; WS_KVF = 0x20000; WS_G = 0x30000; WS_DIAG = 0x40000; WS_F = 0x80000
WS_PART = 0x100000; WS_O = 0x400000; WS_L = 0x800000; WS_SIZE = 0x900000
KVF_STRIDE = 1152; PREC = 320
F_KV, F_F2, F_F3, F_OB, F_OA = 0, 1, 2, 3, 4
FP = 0x8000
pX, pWQ, pWK, pWV, pWOA, pBX, pWQKV, pWPHI, pWOB, pGATE, pOUT, pDBG, pWS = [4 + 2 * i for i in range(13)]
sX, sWQ, sWKV, sWB, sWOA, sWOB, sWS, sOUT, sDBG, sSM = [32 + 4 * i for i in range(10)]
sW, sRB, sHG, sL, sNON, sBUD, sS, sI, sP = 72, 73, 74, 75, 76, 77, 78, 79, 80
t0, t1, t2, t3, t4, t5 = 81, 82, 83, 84, 85, 86
sJ = 87; sRET = 88
sL2E = 90
sFL = 92
sD0, sD1 = 93, 94
sPF = 95
sST = 4
LOG2E = 0x3fb8aa3b
QSCALE = 0x3eb8aa3b
ONES = 0x3f803f80

a = Asm()
role = ["E"]
XST = os.environ.get("XST", "").split(",") if os.environ.get("XST") else []
def xs(name):
    if DIAG and name in XST: a(f"s_memrealtime {sr(sST + 2 * XST.index(name), 2)}")
YST = os.environ.get("YST", "").split(",") if os.environ.get("YST") else []
YB = 48
YREG = [48, 50, 52, 54, 60, 62, 88, 90, 96, 98]
def ys(name):
    if DIAG and name in YST: a(f"s_memrealtime {sr(YREG[YST.index(name)], 2)}")
def stamp(n):
    if DIAG and YST and role[0] == "A": ys(f"a{n}")
    elif DIAG and XST and role[0] == "S": xs(f"s{n}")
    elif DIAG: a(f"s_memrealtime {sr(sST + 2 * n, 2)}")
    if HOLDAT == f"{role[0]}{n}": a("s_memrealtime s[100:101]")
def hold():
    if HOLDAT and (HOLDAT[0] == role[0] or (HOLDAT[0] == "E" and role[0] == "S")):
        l = a.lab("hold")
        a(f"{l}:\ns_memrealtime s[96:97]\ns_waitcnt lgkmcnt(0)\ns_sub_u32 s96, s96, s100\ns_cmp_lt_u32 s96, 4000\ns_cbranch_scc1 {l}")
def srd(d, p, size):
    a(f"s_mov_b32 s{d}, s{p}\ns_mov_b32 s{d+1}, s{p+1}\ns_mov_b32 s{d+2}, {hex(size)}\ns_mov_b32 s{d+3}, 0x20000")
def budget(done):
    a(f"s_cmp_eq_u32 s{sBUD}, 0\ns_cbranch_scc1 {done}\ns_sub_u32 s{sBUD}, s{sBUD}, 1")
cold = []
def emit_cold():
    while cold: cold.pop(0)()
def poll_issue(vaddr, vtmp, plane):
    a(f"s_mov_b32 s{t0}, {WS_F + plane*FP}\nbuffer_load_dword v{vtmp}, v{vaddr}, {sr(sWS,4)}, s{t0} offen sc1")
def poll_check(vaddr, vtmp, plane, nap=4):
    lp, dn = a.lab("pf"), a.lab("pfd")
    a(f"v_cmp_ne_u32 vcc, s{sNON}, v{vtmp}\ns_cbranch_vccnz {lp}\n{dn}:")
    def slow():
        a(f"{lp}:"); budget(dn)
        if nap: a(f"s_sleep {nap}")
        poll_issue(vaddr, vtmp, plane)
        a(f"s_waitcnt vmcnt(0)\nv_cmp_ne_u32 vcc, s{sNON}, v{vtmp}\ns_cbranch_vccnz {lp}\ns_branch {dn}")
    cold.append(slow)
def put_flag(soff, vnon, vl4):
    a(f"s_mov_b32 exec_hi, 0\nbuffer_store_dword v{vnon}, v{vl4}, {sr(sWS,4)}, s{soff} offen sc1\ns_mov_b32 exec_hi, -1")
def diag_dump(n):
    if not DIAG: return
    a("s_waitcnt lgkmcnt(0)")
    a(f"s_lshl_b32 s{t0}, s{sL}, 3\ns_add_u32 s{t0}, s{t0}, s{sW}\ns_lshl_b32 s{t0}, s{t0}, 6\ns_add_u32 s{t0}, s{t0}, {WS_DIAG}")
    a("v_mov_b32 v8, 0")
    for i in range(14):
        a(f"v_writelane_b32 v8, s{YREG[i] if (YST and role[0] == 'A' and i < len(YST)) else sST+2*i}, {i}")
    a("v_writelane_b32 v8, s100, 14\nv_writelane_b32 v8, s31, 15")
    a(f"""v_mbcnt_lo_u32_b32 v9, -1, 0
    v_mbcnt_hi_u32_b32 v9, -1, v9
    v_lshlrev_b32 v9, 2, v9
    s_mov_b64 exec, 0xffff
    buffer_store_dword v8, v9, {sr(sWS,4)}, s{t0} offen
    s_mov_b64 exec, -1""")
def dma_lane_addrs():
    a(f"""v_lshrrev_b32 v11, 3, v0
    v_and_b32 v12, 7, v0
    v_lshrrev_b32 v13, 2, v0
    v_and_b32 v13, 4, v13
    v_xor_b32 v12, v12, v13
    v_lshlrev_b32 v12, 4, v12
    v_lshl_add_u32 v9, v11, 10, v12
    v_mul_u32_u24 v8, 3072, v11
    v_add_u32 v8, v8, v12""")
def xrows(n, mod=""):
    for r in range(n):
        a(f"s_add_u32 m0, s{sD0}, {X + (r//4)*4*XS + (r%4)*16}")
        if r % 4 == 0 and r: a(f"s_add_u32 s{sD1}, s{sD1}, 4096")
        a(f"buffer_load_dwordx4 v10, {sr(sX,4)}, s{sD1} offen offset:{(r%4)*1024} {mod} lds")
X0, X1, X2, X3 = X, X + 16384, X + 32768, X + 49152
R0, R1, R2 = RING, RING + 16384, RING + 32768
STG = [X0, X1, X2, X3, R0, R1, R2, X0,   X1, X2, X3, R0,   X0, R1, R2, R0]
W_KV, W_Q, W_G, W_OB = 0, 1, 2, 6
nword = [7]
G1 = MISC + 512

def fin_body(pk, fb, nap):
    FO, FL, vT, vONE, vGF, FOUT, vL16 = 104, 136, 3, 1, 233, 244, 10
    lp, dn = a.lab("fw"), a.lab("fwd")
    a(f"{lp}:\nds_read_b32 v{vT}, v14 offset:128\ns_waitcnt lgkmcnt(0)\nv_cmp_gt_u32 vcc, s{t1}, v{vT}\ns_cbranch_vccz {dn}")
    budget(dn)
    if nap: a(f"s_sleep {nap}")
    a(f"s_branch {lp}\n{dn}:")
    xs("f0")
    for w in range(4):
        a(f"ds_read_b128 {vr(FO+8*w,4)}, v{FL+4} offset:{w*2048}\nds_read_b128 {vr(FO+8*w+4,4)}, v{FL+4} offset:{w*2048+1024}\nds_read_b32 v{FL+w}, v15 offset:{w*256}")
    def add2(d, x, y):
        if pk: a(f"v_pk_add_f32 {vr(d,2)}, {vr(x,2)}, {vr(y,2)}")
        else: a(f"v_add_f32 v{d}, v{x}, v{y}\nv_add_f32 v{d+1}, v{x+1}, v{y+1}")
    if pk:
        a(f"ds_write_b32 v13, v{vONE}\ns_waitcnt lgkmcnt(1)")
        xs("f1")
        for r in range(0, 8, 2): add2(FO + r, FO + r, FO + 8 + r); add2(FO + 16 + r, FO + 16 + r, FO + 24 + r)
    else:
        a("s_waitcnt lgkmcnt(6)")
        for r in range(0, 8, 2): add2(FO + r, FO + r, FO + 8 + r)
        a("s_waitcnt lgkmcnt(0)")
        for r in range(0, 8, 2): add2(FO + 16 + r, FO + 16 + r, FO + 24 + r)
    add2(FL, FL, FL + 2)
    for r in range(0, 8, 2): add2(FO + r, FO + r, FO + 16 + r)
    a(f"v_add_f32 v{FO+8}, v{FL}, v{FL+1}")
    if pk:
        a(f"""v_pk_mul_f32 {vr(FO+10,2)}, {vr(FO,2)}, 0 op_sel_hi:[1,0]
        v_pk_fma_f32 {vr(FO+10,2)}, {vr(FO+2,2)}, 0, {vr(FO+10,2)} op_sel_hi:[1,0,1]
        v_pk_fma_f32 {vr(FO+10,2)}, {vr(FO+4,2)}, 0, {vr(FO+10,2)} op_sel_hi:[1,0,1]
        v_pk_fma_f32 {vr(FO+10,2)}, {vr(FO+6,2)}, 0, {vr(FO+10,2)} op_sel_hi:[1,0,1]
        v_add_f32 v{FO+10}, v{FO+10}, v{FO+11}
        v_add_f32 v{FO+10}, v{FO+10}, v{FO+8}""")
    else:
        a(f"v_fma_f32 v{FO+10}, v{FO}, 0, v{FO+8}")
        for r in range(1, 8): a(f"v_fma_f32 v{FO+10}, v{FO+r}, 0, v{FO+10}")
    a(f"""v_cmp_nle_f32 vcc, {hex((127-40)<<23)}, v{FO+10}
    s_cbranch_vccnz {fb}
    v_cmp_nge_f32 vcc, {hex((127+60)<<23)}, v{FO+10}
    s_cbranch_vccnz {fb}""")
    if FORCE_FB: a(f"s_branch {fb}")
    if pk: a("L_fin_norm:")
    a(f"v_rcp_f32 v{FO+8}, v{FO+8}\nv_mul_f32 v{FO+8}, v{FO+8}, v{vGF}")
    for r in range(0, 8, 2):
        if pk: a(f"v_pk_mul_f32 {vr(FO+r,2)}, {vr(FO+r,2)}, {vr(FO+8,2)} op_sel_hi:[1,0]")
        else: a(f"v_mul_f32 v{FO+r}, v{FO+r}, v{FO+8}\nv_mul_f32 v{FO+r+1}, v{FO+r+1}, v{FO+8}")
    for r in range(4): a(f"v_cvt_pk_bf16_f32 v{FOUT+r}, v{FO+2*r}, v{FO+2*r+1}")
    for r in range(4): a(f"v_min_u32 v{FOUT+r}, -2, v{FOUT+r}")
    xs("f2")
    if not pk: a(f"buffer_store_dwordx4 {vr(FOUT,4)}, v{vL16}, {sr(sWS,4)}, s{t2} offen offset:3072")
    a(f"buffer_store_dwordx4 {vr(FOUT,4)}, v{vL16}, {sr(sWS,4)}, s{t4} offen sc1")
    xs("f3")

if HOLDAT or DIAG: a("s_memrealtime s[100:101]")
a(f"""s_cmp_ge_u32 s2, 256
s_cbranch_scc1 L_exit
s_load_dwordx16 s[4:19], s[0:1], 0
s_load_dwordx8 s[20:27], s[0:1], 64
s_load_dwordx2 s[28:29], s[0:1], 96
v_lshrrev_b32 v1, 6, v0
v_and_b32 v0, 63, v0
v_readfirstlane_b32 s{sW}, v1""")
a(f"""s_and_b32 s{t0}, s2, 7
s_lshr_b32 s{t1}, s2, 3""")
if MAP == 0:
    a(f"""s_lshr_b32 s{t2}, s{t0}, 1
    s_lshl_b32 s{t2}, s{t2}, 3
    s_lshr_b32 s{t3}, s{t1}, 2
    s_add_u32 s{sRB}, s{t2}, s{t3}
    s_and_b32 s{t2}, s{t0}, 1
    s_lshl_b32 s{t2}, s{t2}, 2
    s_and_b32 s{t5}, s{t1}, 3
    s_add_u32 s{sHG}, s{t2}, s{t5}""")
else:
    a(f"""s_lshl_b32 s{t2}, s{t0}, 2
    s_lshr_b32 s{t3}, s{t1}, 3
    s_add_u32 s{sRB}, s{t2}, s{t3}
    s_and_b32 s{sHG}, s{t1}, 7
    s_and_b32 s{t5}, s{t1}, 3""")
def ids():
    a(f"""s_lshl_b32 s{sL}, s{sRB}, 3
    s_add_u32 s{sL}, s{sL}, s{sHG}
    s_mov_b32 s{sBUD}, 400000
    s_lshl_b32 s{sFL}, s{sL}, 7
    s_add_u32 s{sFL}, s{sFL}, {WS_F}""")
a(f"""v_lshlrev_b32 v10, 4, v0
s_cmp_lg_u32 s{sW}, 0
s_cbranch_scc1 L_w17""")
def others():
    a(f"L_w17:\ns_cmp_eq_u32 s{sW}, 3\ns_cbranch_scc1 L_aw3\ns_cmp_lt_u32 s{sW}, 3\ns_cbranch_scc1 L_aw12")
    if CPF:
        a(f"""s_getpc_b64 s[{sSM}:{sSM+1}]
        L_pc:
        s_lshl_b32 s{t0}, s{t1}, 2
        s_add_u32 s{t0}, s{t0}, s{sW}
        s_sub_u32 s{t0}, s{t0}, 3
        s_lshl_b32 s{t0}, s{t0}, 8
        s_min_u32 s{t0}, s{t0}, CODE_END - L_pc - 256
        s_add_u32 s{sSM}, s{sSM}, s{t0}
        s_addc_u32 s{sSM+1}, s{sSM+1}, 0
        s_load_dword s96, s[{sSM}:{sSM+1}], 0
        s_load_dword s97, s[{sSM}:{sSM+1}], 64
        s_load_dword s98, s[{sSM}:{sSM+1}], 128
        s_load_dword s99, s[{sSM}:{sSM+1}], 192""")
    a("s_branch L_sw")
    a(f"""L_aw3:
    s_cmp_lg_u32 s2, 0
    s_cbranch_scc1 L_nononce
    s_memrealtime s[{t1}:{t2}]
    v_mov_b32 v13, 0
    s_waitcnt lgkmcnt(0)
    s_or_b32 s{t1}, s{t1}, 1
    v_mov_b32 v14, s{t1}
    s_mov_b64 exec, 1
    global_store_dword v13, v14, s[{pDBG}:{pDBG+1}] sc1
    s_mov_b64 exec, -1
    L_nononce:
    s_lshl_b32 s{t0}, s{sHG}, 11
    v_add_u32 v11, s{t0}, v10
    s_lshl_b32 s{t0}, s2, 11
    v_lshl_add_u32 v12, v0, 7, s{t0}
    s_lshl_b32 s{t0}, s2, 7
    s_add_u32 s{t0}, s{t0}, {WS_KVF}
    v_lshl_add_u32 v13, v0, 15, s{t0}
    s_lshl_b32 s{t0}, s{sRB}, 7
    s_add_u32 s{t0}, s{t0}, {WS_F}
    v_writelane_b32 v13, s{t0}, 2
    s_waitcnt lgkmcnt(0)
    s_mov_b32 m0, {WPHI}
    s_mov_b64 exec, 0xffff""")
    if WQT == 1: a(f"global_load_dword v20, v12, s[{pWQ}:{pWQ+1}]")
    a(f"""s_mov_b64 exec, 7
    global_load_dword v21, v13, s[{pWS}:{pWS+1}]
    s_mov_b64 exec, -1
    global_load_lds_dwordx4 v11, s[{pWPHI}:{pWPHI+1}]
    global_load_lds_dwordx4 v11, s[{pWPHI}:{pWPHI+1}] offset:1024
    s_branch L_aw3b""")
role[0] = "A"
S0, S1, O_, QR, KR, VR = 12, 28, 44, 60, 64, 128
vIDX, vZ, vQA, vPA, vLA, vCA, vCV = 1, 2, 4, 5, 6, 7, 8
JX, JW, JA = KR, KR + 64, O_
aNON = O_ + 8
def vconst():
    a(f"""v_and_b32 v12, 11, v0
    v_cmp_eq_u32 vcc, 0, v12
    v_mov_b32 v13, {hex(ONES)}
    v_cndmask_b32 v12, 0, v13, vcc
    v_cndmask_b32 v13, 0, v13, vcc""")
    for t in range(16): a(f"v_mov_b64 {vr(VR+8*t+4,2)}, v[12:13]\nv_mov_b64 {vr(VR+8*t+6,2)}, v[12:13]")
a(f"""s_mul_i32 s{sD0}, s{t5}, {16*XS}
s_lshl_b32 s{sD1}, s{sRB}, 16
s_lshl_b32 s{t2}, s{t5}, 14
s_add_u32 s{sD1}, s{sD1}, s{t2}
s_mov_b32 m0, {GATE}
s_waitcnt lgkmcnt(0)""")
ys("ka")
a(f"global_load_lds_dwordx4 v10, s[{pGATE}:{pGATE+1}]")
srd(sX, pX, 0x200000)
xrows(16, "nt" if XNT else "")
ys("xi")
a(f"s_bitcmp1_b32 s{sHG}, 2\ns_cselect_b32 s{sWKV}, s{pWV}, s{pWK}\ns_cselect_b32 s{sWKV+1}, s{pWV+1}, s{pWK+1}\ns_mov_b32 s{sWKV+2}, 0x4000\ns_mov_b32 s{sWKV+3}, 0x20000")
for n in range(16):
    if n % 4 == 0: a(f"s_mov_b32 m0, {WKV + n*1024}\ns_mov_b32 s{t1}, {n*1024}")
    a(f"buffer_load_dwordx4 v10, {sr(sWKV,4)}, s{t1} offen offset:{(n%4)*1024} lds")
NTQ = 0
if WQT == 2:
    NTQ = 2 if MAP else 1
    a(f"""s_and_b32 s{t0}, s{sRB}, {3 if MAP else 7}
    s_lshl_b32 s{t0}, s{t0}, {17 if MAP else 16}
    s_lshl_b32 s{t1}, s{sHG}, 7
    s_add_u32 s{t0}, s{t0}, s{t1}
    v_lshl_add_u32 v12, v0, 10, s{t0}
    global_load_dword v24, v12, s[{pWQ}:{pWQ+1}]""")
    if MAP: a(f"v_add_u32 v12, 0x10000, v12\nglobal_load_dword v24, v12, s[{pWQ}:{pWQ+1}]")
a("s_branch L_aw0b")
others()
a("L_aw0b:")
ids()
srd(sWS, pWS, WS_SIZE); srd(sDBG, pDBG, 256)
stamp(0)
a(f"""v_and_b32 v16, 15, v0
v_lshrrev_b32 v14, 4, v0
s_lshl_b32 s{t0}, s{t5}, 4
v_add_u32 v13, s{t0}, v16
v_mul_u32_u24 v15, {XS}, v13
v_lshl_add_u32 v15, v14, 4, v15
v_lshlrev_b32 v19, 3, v16
v_lshl_add_u32 v19, v14, 8, v19
v_add_u32 v19, {WKV}, v19
s_lshr_b32 s{t0}, s{t5}, 1
s_lshl_b32 s{t1}, s{sRB}, 1
s_add_u32 s{t0}, s{t0}, s{t1}
s_lshl_b32 s{t0}, s{t0}, 11
s_and_b32 s{t1}, s{t5}, 1
s_lshl_b32 s{t1}, s{t1}, 8
s_add_u32 s{t4}, s{t0}, s{t1}
v_and_b32 v17, 1, v14
v_lshrrev_b32 v18, 1, v14
v_lshlrev_b32 v25, 4, v14
v_add_u32 v25, {GATE}, v25
v_lshlrev_b32 v26, 2, v0
s_lshl_b32 s{t3}, s{sL}, 6
s_add_u32 s{t3}, s{t3}, {WS_G}
s_waitcnt vmcnt({32 + NTQ})""")
JG = KR + 128
for n in range(16): a(f"ds_read_b128 {vr(JG+4*n,4)}, v25 offset:{n*64}")
a(f"s_bitcmp1_b32 s{sHG}, 2\ns_cbranch_scc1 L_job_v")
def job(isv):
    a(f"v_lshlrev_b32 v20, 9, v{18 if isv else 17}\nv_lshl_add_u32 v17, v16, 4, v20")
    if isv: a(f"s_add_u32 s{t4}, s{t4}, 1024")
    ys("j0")
    a(f"s_waitcnt vmcnt({16 + NTQ})")
    ys("xl")
    for n in range(16): a(f"ds_read_b128 {vr(JX+4*n,4)}, v15 offset:{n*64}")
    def grp(gq):
        a(f"s_waitcnt vmcnt({12 - 4*gq + NTQ})")
        if gq == 3: ys("wl")
        if gq == HAT: a("s_barrier")
        for n in range(4 * gq, 4 * gq + 4):
            a(f"ds_read_b64_tr_b16 {vr(JW+4*n,2)}, v19 offset:{n*1024}")
            a(f"ds_read_b64_tr_b16 {vr(JW+4*n+2,2)}, v19 offset:{n*1024+128}")
    def mm(gq):
        for n in range(4 * gq, 4 * gq + 4):
            A, B = (JX, JW) if isv else (JW, JX)
            a(f"v_mfma_f32_16x16x32_bf16 {vr(JA,4)}, {vr(A+4*n,4)}, {vr(B+4*n,4)}, {'0' if n == 0 else vr(JA,4)}")
        for n in {0: range(0, 8), 1: range(8, 16)}.get(gq, []):
            a(f"v_mfma_f32_16x16x32_bf16 {vr(JA+4,4)}, {vr(JG+4*n,4)}, {vr(JX+4*n,4)}, {'0' if n == 0 else vr(JA+4,4)}")
    grp(0)
    for gq in range(4):
        if gq < 3: grp(gq + 1); a("s_waitcnt lgkmcnt(8)")
        else: a(f"buffer_load_dword v{aNON}, off, {sr(sDBG,4)}, 0 sc1\ns_waitcnt lgkmcnt(0)")
        mm(gq)
    sw = "v_permlane16_swap_b32" if isv else "v_permlane32_swap_b32"
    a(f"""v_cvt_pk_bf16_f32 v20, v{JA}, v{JA+1}
    v_cvt_pk_bf16_f32 v21, v{JA+2}, v{JA+3}
    {sw} v20, v22
    {sw} v21, v23""")
    a("s_mov_b32 exec_lo, 0xffff\ns_mov_b32 exec_hi, 0xffff" if isv else "s_mov_b32 exec_hi, 0")
job(False)
a("s_branch L_job_st\nL_job_v:")
job(True)
a("L_job_st:")
a(f"""buffer_store_dwordx4 v[20:23], v17, {sr(sWS,4)}, s{t4} offen sc1
s_mov_b64 exec, 0xffff
buffer_store_dword v{JA+4}, v26, {sr(sWS,4)}, s{t3} offen sc1
s_mov_b64 exec, -1""")
stamp(8)
if HAT == 4: a("s_barrier")
def job_flag():
    lp, dn = a.lab("np"), a.lab("npd")
    a(f"""s_lshl_b32 s{t0}, s{sRB}, 7
    s_lshl_b32 s{t1}, s{sHG}, 2
    s_add_u32 s{t0}, s{t0}, s{t1}
    s_add_u32 s{t0}, s{t0}, {WS_F}""")
    if "nn" in YST: a("s_waitcnt vmcnt(1)"); ys("nn")
    a("s_waitcnt vmcnt(0)"); ys("ack")
    a(f"""v_cmp_eq_u32 vcc, 0, v{aNON}
    s_cbranch_vccnz {lp}
    {dn}:
    s_mov_b64 exec, 1
    buffer_store_dword v{aNON}, off, {sr(sWS,4)}, s{t0} sc1
    s_mov_b64 exec, -1""")
    a(f"v_mov_b32 v13, {NONCE}\nds_write_b32 v13, v{aNON}\ns_waitcnt lgkmcnt(0)")
    stamp(9)
    def slow():
        a(f"{lp}:"); budget(dn)
        a(f"""buffer_load_dword v{aNON}, off, {sr(sDBG,4)}, 0 sc1
        s_waitcnt vmcnt(0)
        v_cmp_eq_u32 vcc, 0, v{aNON}
        s_cbranch_vccnz {lp}
        s_branch {dn}""")
    cold.append(slow)
def aw_poll():
    a(f"s_lshl_b32 s{t1}, s{sW}, 10\nv_lshrrev_b32 v11, 3, v0\nv_lshl_add_u32 v11, v11, 7, s{t1}\nv_and_b32 v14, 7, v0\nv_lshl_add_u32 v11, v14, 2, v11")
    poll_issue(11, S1, F_KV)
def aw_wait(word, target, nap=0):
    lp, dn = a.lab("aw"), a.lab("awd")
    a(f"""{lp}:
    ds_read_b32 v14, v9 offset:{SYNC - NONCE + 4*word}
    s_waitcnt lgkmcnt(0)
    v_cmp_gt_u32 vcc, {target}, v14
    s_cbranch_vccz {dn}""")
    budget(dn)
    if nap: a(f"s_sleep {nap}")
    a(f"s_branch {lp}\n{dn}:")
def aw_signal(word):
    a(f"s_mov_b64 exec, 1\nds_add_u32 v9, v{vCV} offset:{SYNC - NONCE + 4*word}\ns_mov_b64 exec, -1")
if FLAG1: job_flag()
a("s_barrier")
stamp(1)
if not FLAG1: job_flag()
a("s_branch L_aw03")

a("L_aw12:")
ids()
dma_lane_addrs()
a(f"""v_mov_b32 v11, v9
s_sub_u32 s{sS}, s{sW}, 1
s_lshl_b32 s{t3}, s{sS}, 13
s_lshl_b32 s{t4}, s{sS}, 16
s_lshl_b32 s{t2}, s{sHG}, 7
s_add_u32 s{t4}, s{t4}, s{t2}
s_mul_i32 s{sP}, s{sS}, 3
s_lshl_b32 s{t0}, s{t5}, 1
s_add_u32 s{sP}, s{sP}, s{t0}
s_add_u32 s{sP}, s{sP}, 2
v_mov_b32 v9, {NONCE}
v_mov_b32 v{vCV}, 1
s_waitcnt lgkmcnt(0)""")
srd(sX, pX, 0x200000); srd(sWQ, pWQ, 0x80000); srd(sWS, pWS, WS_SIZE)
vconst()
AV = Cnt(63)
for gq in range(3):
    a(f"""s_add_u32 s{t0}, s{sP}, {gq}
    s_and_b32 s{t0}, s{t0}, 7
    s_lshl_b32 s{sD1}, s{sRB}, 16
    s_lshl_b32 s{t2}, s{t0}, 13
    s_add_u32 s{sD1}, s{sD1}, s{t2}
    s_mul_i32 s{sD0}, s{t0}, {8*XS}""")
    if gq == 0:
        a("s_barrier")
        stamp(0)
    xrows(8)
def ld_wq(g):
    for n in range(8):
        a(f"s_add_u32 m0, s{t3}, {WQB + ((g + 1) % 4)*16384 + n*1024}\ns_add_u32 s{t1}, s{t4}, {g*131072 + n*8192}")
        a(f"buffer_load_dwordx4 v11, {sr(sWQ,4)}, s{t1} offen lds")
    AV.issue(g, 8)
for g_ in range(WQE): ld_wq(g_)
ys("j0")
a(f"s_waitcnt vmcnt({AV.need(0) if G0H else 8*WQE})")
ys("xl")
a("s_barrier")
stamp(1)
for g_ in range(WQE, 2): ld_wq(g_)
for b in range(4):
    if not LATE and max(WQE, 2) + b < 4: ld_wq(max(WQE, 2) + b)
    if not (G0H and b == 0):
        a(f"s_waitcnt vmcnt({AV.need(b)})")
        aw_signal(W_G + b)
    ys(f"l{b}")
    if LATE and max(WQE, 2) + b < 4: ld_wq(max(WQE, 2) + b)
a("s_branch L_aw_all")

a("L_aw3b:")
ids()
srd(sWS, pWS, WS_SIZE)
stamp(0)
a(f"""v_mov_b32 v24, 0
v_mov_b32 v25, 0
v_mov_b32 v26, 0
v_mov_b32 v27, 0
v_add_u32 v13, {LT}, v10""")
for n in range(4): a(f"ds_write_b128 v13, v[24:27] offset:{n*1024}")
a(f"""v_lshlrev_b32 v13, 2, v0
v_add_u32 v13, {MISC}, v13
v_lshrrev_b32 v14, 2, v0
v_cmp_eq_u32 vcc, 1, v14
v_cndmask_b32 v14, 0, v14, vcc
ds_write_b32 v13, v14""")
a("s_waitcnt lgkmcnt(0)\ns_barrier")
a("s_waitcnt vmcnt(0)\ns_barrier")
stamp(1)
a("L_aw03:")
vconst()
a(f"v_mov_b32 v9, {NONCE}\nv_mov_b32 v{vCV}, 1")
aw_wait(W_G + POLLAT, 2, nap=2)

a("L_aw_all:")
aw_poll()
stamp(2)
aw_wait((NONCE - SYNC) // 4, 1)
a(f"s_lshl_b32 s{t4}, s{sW}, 15")
if ROT: a(f"s_lshr_b32 s{t2}, s2, 3\ns_and_b32 s{t2}, s{t2}, 7\ns_lshl_b32 s{t2}, s{t2}, 12\ns_add_u32 s{t4}, s{t4}, s{t2}")
a(f"v_readfirstlane_b32 s{sNON}, v14\ns_waitcnt vmcnt(0)")
poll_check(11, S1, F_KV, nap=2)
stamp(3)
kvn = [0]
def kvload(k):
    for _ in range(k):
        n = kvn[0]; t = n // 2
        if n == 32: return
        if n % 4 == 0: a(f"s_xor_b32 s{t3}, s{t4}, {t*2048}")
        a(f"buffer_load_dwordx4 {vr(VR+8*t if n % 2 else KR+4*t,4)}, v10, {sr(sWS,4)}, s{t3} offen offset:{(n%4)*1024} sc1")
        kvn[0] += 1
kvload(2 * PRE)
a(f"""s_lshl_b32 s{t0}, s{sW}, 11
s_add_u32 s{t0}, s{t0}, {OP}
v_add_u32 v{vPA}, s{t0}, v10
v_add_u32 v{vQA}, {Q}, v10
s_lshl_b32 s{t0}, s{sW}, 8
s_add_u32 s{t0}, s{t0}, {LT}
v_and_b32 v{vLA}, 31, v0
v_lshl_add_u32 v{vLA}, v{vLA}, 2, s{t0}
v_mov_b32 v{vCA}, {CONS}
v_mov_b32 v{vIDX}, 0xdddd
v_mov_b32 v{vZ}, 0
v_mov_b32 v{vZ+1}, 0""")
aw_wait(W_Q, 4, nap=E("QNAP", 1))
a(f"ds_read_b128 {vr(QR,4)}, v{vQA}\ns_setprio 1")
stamp(4)
def zero_o(): a(f"v_mfma_f32_32x32x8_bf16 {vr(O_,16)}, {vr(vZ,2)}, {vr(vZ,2)}, 0")
def qk(t, S): a(f"v_mfma_f32_32x32x16_bf16 {vr(S,16)}, {vr(KR+4*t,4)}, {vr(QR,4)}, 0")
def pv(t, s, S): a(f"v_smfmac_f32_32x32x32_bf16 {vr(O_,16)}, {vr(VR+8*t+4*s,4)}, {vr(S+8*s,8)}, v{vIDX}")
def flush():
    lp, dn = a.lab("cw"), a.lab("cwd")
    a(f"v_cmp_eq_u32 vcc, 0, v{vCV}\ns_cbranch_vccnz {lp}")
    def slow():
        a(f"{lp}:"); budget(dn)
        a(f"""s_sleep 1
        ds_read_b32 v{vCV}, v{vCA}
        s_waitcnt lgkmcnt(0)
        v_cmp_eq_u32 vcc, 0, v{vCV}
        s_cbranch_vccnz {lp}
        s_branch {dn}""")
    cold.append(slow)
    a(f"""{dn}:
    ds_write_b128 v{vPA}, {vr(O_,4)}
    ds_write_b128 v{vPA}, {vr(O_+4,4)} offset:1024
    ds_write2_b32 v{vLA}, v{O_+8}, v{vQA} offset0:0 offset1:32""")
def apass(first):
    for t in range(16):
        S, Sn = (S0, S1) if t % 2 == 0 else (S1, S0)
        for e in range(16):
            if e == 2 and not (first and t == 0): pv((t - 1) % 16, 1, Sn)
            if e == 5:
                if first and t < 15: assert kvn[0] > 2*(t+1); a(f"s_waitcnt vmcnt({kvn[0] - 1 - 2*(t + 1)})")
                if t == 15: a("s_waitcnt lgkmcnt(0)" if not first else "s_waitcnt vmcnt(0) lgkmcnt(0)")
                qk((t + 1) % 16, Sn)
                if t == 14:
                    a(f"v_add_u32 v{vQA}, 1024, v{vQA}\nds_read_b128 {vr(QR,4)}, v{vQA}\nds_read_b32 v{vCV}, v{vCA}")
            if e == 8 and first:
                for r in range(4): a(f"v_permlane16_swap_b32 v{VR+8*t+r}, v{VR+8*t+4+r}")
                kvload(LPT)
                if t == SIGT: aw_signal(W_KV)
            if e == 13 and t == 0 and not first:
                flush(); zero_o()
            if e == 15: pv(t, 0, S)
            a(f"v_exp_f32 v{S+e}, v{S+e}")
        if t == 0 and not first:
            a(f"""s_add_u32 s{sJ}, s{sJ}, 1
            s_cmp_eq_u32 s{sJ}, 4
            s_cselect_b32 s{t0}, -3, 1
            v_lshl_add_u32 v{vPA}, s{t0}, 13, v{vPA}
            v_lshl_add_u32 v{vLA}, s{t0}, 10, v{vLA}
            v_add_u32 v{vCA}, 4, v{vCA}""")
zero_o()
a(f"s_mov_b32 s{sJ}, 0\ns_waitcnt vmcnt({2*PRE-1}) lgkmcnt(0)")
qk(0, S0)
stamp(5)
apass(True)
stamp(6)
if DIAG and not YST: a(f"s_memtime s[96:97]\ns_mov_b32 s31, s{sBUD}")
a(".p2align 6\nL_aloop:")
apass(False)
if DIAG and os.environ.get("PASSST"):
    for n, sl in zip(range(1, 7), (0, 1, 2, 3, 4, 11)):
        l = a.lab("st")
        a(f"s_cmp_lg_u32 s{sJ}, {n}\ns_cbranch_scc1 {l}"); stamp(sl); a(f"{l}:")
a(f"s_cmp_lt_u32 s{sJ}, 7\ns_cbranch_scc1 L_aloop")
pv(15, 1, S1)
if not NOB:
    a(f"""v_lshlrev_b32 v251, 2, v0
    v_add_u32 v13, {G1}, v251
    ds_read_b32 v11, v9 offset:{SYNC - NONCE + 4*W_OB}
    ds_read_b32 v233, v13
    v_and_b32 v14, 3, v0
    v_lshlrev_b32 v14, 8, v14
    v_add_u32 v14, {LT + 3*1024}, v14
    v_and_b32 v15, 124, v251
    v_add_u32 v15, {LT + 3*1024}, v15
    v_add_u32 v140, {OP + 3*8192}, v10""")
else: a("s_nop 9")
flush()
stamp(7)
if DIAG and not YST: a("s_memtime s[98:99]\ns_waitcnt lgkmcnt(0)\ns_sub_u32 s30, s98, s96\ns_sub_u32 s31, s31, s77")
if not NOB:
    lp, dn = a.lab("ob"), a.lab("obd")
    a(f"""s_setprio 3
    s_cmp_lg_u32 s{sW}, {E("FINW", 3)}
    s_cbranch_scc1 L_aw_end
    s_lshl_b32 s{t0}, s{sRB}, 7
    s_lshl_b32 s{t1}, s{sHG}, 2
    s_add_u32 s{t0}, s{t0}, s{t1}
    s_lshl_b32 s{t4}, s{t0}, 10
    s_add_u32 s{t4}, s{t4}, {WS_O + 67*1024}
    s_mov_b32 s{t1}, {Q + 8*1024}
    s_lshl_b32 s{t2}, s{sL}, 12
    s_add_u32 s{t2}, s{t2}, {WS_L}
    s_waitcnt lgkmcnt(3)
    v_cmp_gt_u32 vcc, 4, v11
    s_cbranch_vccnz {lp}
    {dn}:""")
    fin_body(False, "L_aw_fb", 0)
    a("L_aw_end:")
    cold.append(lambda: a(f"L_aw_fb:\ns_call_b64 s[{sRET}:{sRET+1}], L_fb\ns_endpgm"))
    def slow():
        a(f"{lp}:"); budget(dn)
        a(f"""s_sleep 2
        ds_read_b32 v11, v9 offset:{SYNC - NONCE + 4*W_OB}
        ds_read_b32 v233, v13
        s_waitcnt lgkmcnt(0)
        v_cmp_gt_u32 vcc, 4, v11
        s_cbranch_vccnz {lp}
        s_branch {dn}""")
    cold.append(slow)
    stamp(10)
diag_dump(8)
hold()
a("s_endpgm")
emit_cold()

role[0] = "S"
vONE, vSY, vT = 1, 2, 3
vXA, vWX, vWO, vWOA, vD3, vD1, vL16, vGI, vGO = 4, 5, 6, 7, 8, 9, 10, 11, 12
WPH, PHQ, ACC, AC2, WB0, TMP = 16, 24, 40, 56, 72, 104
vNON, vGF, vLI, vPF = 232, 233, 234, 235
vSW, vSR, vSR2, vSV, vSVR = 236, 240, 241, 242, 243
FOUT = 244
vPO, vT2, vL4, vWP, vPR, vPC = 248, 249, 251, 252, 253, 254
XF = TMP; WR = WB0
VM, LG = Cnt(63), Cnt(15)
def wait(vm=None, lg=None):
    if isinstance(vm, tuple) and vm[0] == "st": assert (vm[1], 3) in issued, vm
    v = VM.need(vm) if vm is not None else None
    l = LG.need(lg) if lg is not None else None
    t = ([f"vmcnt({v})"] if v is not None else []) + ([f"lgkmcnt({l})"] if l is not None else [])
    if t: a("s_waitcnt " + " ".join(t))
def newword():
    nword[0] += 1; assert nword[0] <= 48; return nword[0] - 1
def arrive(w=None):
    w = newword() if w is None else w
    a(f"s_mov_b64 exec, 1\nds_add_u32 v{vSY}, v{vONE} offset:{4*w}\ns_mov_b64 exec, -1")
    LG.issue("arr")
    return w
def chk_read(w):
    a(f"ds_read_b32 v{vT}, v{vSY} offset:{4*w}"); LG.issue("chk")
def chk_test(w, target=4, lowprio=False, nap=0, near=False):
    dn, rt = a.lab("sbd"), a.lab("sbr")
    if near:
        wait(lg="chk")
        a(f"{rt}:\nv_readfirstlane_b32 s{t0}, v{vT}\ns_cmp_ge_u32 s{t0}, {target}\ns_cbranch_scc1 {dn}")
        budget(dn)
        a(f"ds_read_b32 v{vT}, v{vSY} offset:{4*w}\ns_waitcnt lgkmcnt(0)\ns_branch {rt}\n{dn}:")
        return
    if lowprio: a("s_setprio 2")
    wait(lg="chk")
    a(f"v_readfirstlane_b32 s{t0}, v{vT}\ns_cmp_lt_u32 s{t0}, {target}\ns_cbranch_scc1 {rt}\n{dn}:")
    if lowprio: a("s_setprio 0")
    def slow():
        a(f"{rt}:"); budget(dn)
        if nap: a(f"s_sleep {nap}")
        a(f"""ds_read_b32 v{vT}, v{vSY} offset:{4*w}
        s_waitcnt lgkmcnt(0)
        v_readfirstlane_b32 s{t0}, v{vT}
        s_cmp_lt_u32 s{t0}, {target}
        s_cbranch_scc1 {rt}
        s_branch {dn}""")
    cold.append(slow)
def check(w, target=4, nap=0): chk_read(w); chk_test(w, target, nap=nap)
class only:
    def __init__(s, reg, val): s.reg, s.val = reg, val
    def __enter__(s):
        s.l = a.lab("only"); a(f"s_cmp_lg_u32 s{s.reg}, {s.val}\ns_cbranch_scc1 {s.l}")
        s.sv = (list(VM.q), list(LG.q))
    def __exit__(s, *e):
        a(f"{s.l}:"); VM.q, LG.q = s.sv
def flag(plane): a(f"s_add_u32 s{t0}, s{sFL}, {plane*FP}"); put_flag(t0, vNON, vL4)
def call_fin(greg):
    a(f"v_mov_b32 v{vGF}, v{greg}\ns_call_b64 s[{sRET}:{sRET+1}], L_fin\ns_nop 1")
def dma_base(kind):
    a(f"s_lshl_b32 s{t1}, s{sHG}, 7")
    if kind == "kv":
        a(f"s_mul_i32 s{sD1}, s{sP}, {32*3072}\ns_add_u32 s{sD1}, s{sD1}, s{t1}\ns_lshl_b32 s{t1}, s{sI}, 10\ns_add_u32 s{sD1}, s{sD1}, s{t1}\ns_add_u32 s{sD1}, s{sD1}, 1024")
    elif kind == "q":
        a(f"s_mul_i32 s{sD1}, s{sS}, {32*3072}\ns_add_u32 s{sD1}, s{sD1}, s{t1}")
    else:
        a(f"s_lshl_b32 s{sD1}, s{sS}, 15\ns_add_u32 s{sD1}, s{sD1}, s{t1}")
def dma_one(c, n):
    if n == 0 and c in (8, 12): dma_base("q" if c == 8 else "o")
    if c < 8:   srdw, vo, base, step = sWB, vD3, c * 64 * 3072, 8 * 3072
    elif c < 12: srdw, vo, base, step = sWB, vD3, (c - 8) * 128 * 3072, 8 * 3072
    else:       srdw, vo, base, step = sWOB, vD1, (c - 12) * 128 * 1024, 8 * 1024
    a(f"s_add_u32 m0, s{sD0}, {STG[c] + n*1024}\ns_add_u32 s{t1}, s{sD1}, {base + n*step}")
    a(f"buffer_load_dwordx4 v{vo}, {sr(srdw,4)}, s{t1} offen lds")
    VM.issue(("st", c)); issued.add((c, n))
issued = set()
def dma_stage(c):
    for n in range(4): dma_one(c, n)
def rd_w(dst, vaddr, off, second, tag=None):
    a(f"ds_read_b64_tr_b16 {vr(dst,2)}, v{vaddr} offset:{off}\nds_read_b64_tr_b16 {vr(dst+2,2)}, v{vaddr} offset:{off+second}")
    LG.issue(tag, 2)
def rd_stage(dst, c, k, tag):
    if STG[c] < OP: rd_w(dst, vWX, STG[c] + k * 2048, 512, tag)
    else: rd_w(dst, vWP, STG[c] - WQB + k * 2048, 512, tag)

a(".p2align 6\nL_sw:")
ids()
a(f"""s_setprio 2
s_and_b32 s{sS}, s{sW}, 3
s_lshr_b32 s{sI}, s{sS}, 1
s_and_b32 s{sP}, s{sS}, 1""")
dma_lane_addrs()
SCP = R1
SCV = R2
assert SCP % 64 == 0 and X == 0
a(f"""v_and_b32 v11, 31, v0
s_lshl_b32 s{t0}, s{sI}, 5
v_add_u32 v13, s{t0}, v11
v_mul_u32_u24 v{vXA}, {XS}, v13
v_lshrrev_b32 v12, 5, v0
v_lshl_add_u32 v{vXA}, v12, 4, v{vXA}
v_and_b32 v13, 15, v0
v_lshrrev_b32 v16, 2, v13
v_lshlrev_b32 v14, 7, v16
v_lshrrev_b32 v15, 3, v13
v_xor_b32 v15, s{sP}, v15
v_lshl_add_u32 v14, v15, 6, v14
v_bfe_u32 v17, v0, 4, 1
v_lshl_add_u32 v14, v17, 5, v14
v_and_b32 v18, 3, v0
v_lshl_add_u32 v14, v18, 3, v14
v_lshl_add_u32 v{vWX}, v12, 10, v14
v_lshl_add_u32 v{vWOA}, v12, 9, v14
v_add_u32 v{vWP}, {WQB}, v{vWX}
v_add_u32 v{vWO}, {RING}, v{vWOA}
v_mov_b32 v{vONE}, 1
v_mov_b32 v{vSY}, {SYNC}
v_lshlrev_b32 v{vL4}, 2, v0
s_mov_b32 s{sL2E}, {hex(LOG2E)}
s_mov_b32 s{sL2E+1}, {hex(LOG2E)}
v_min_u32 v15, 16, v11
v_mad_u32_u24 v{vLI}, v12, 17, v15
v_lshlrev_b32 v{vLI}, 4, v{vLI}
v_mad_u32_u24 v15, v12, 20, v11
v_lshlrev_b32 v{vPR}, 3, v15
s_lshl_b32 s{t0}, s{sRB}, 10
v_and_b32 v{vPF}, 7, v0
v_lshlrev_b32 v{vPF}, 7, v{vPF}
v_add_u32 v{vPF}, s{t0}, v{vPF}
s_lshl_b32 s{t0}, s{sHG}, 7
v_lshlrev_b32 v{vPC}, 10, v11
v_add_u32 v{vPC}, s{t0}, v{vPC}
v_bfe_u32 v14, v0, 1, 3
v_xor_b32 v14, v14, v12
v_lshlrev_b32 v14, 3, v14
v_lshl_add_u32 v14, v11, 6, v14
s_lshl_b32 s{t0}, s{sI}, 11
s_lshl_b32 s{t1}, s{sP}, 13
s_add_u32 s{t0}, s{t0}, s{t1}
s_add_u32 s{t0}, s{t0}, {SCP}
v_add_u32 v{vSW}, s{t0}, v14
v_xor_b32 v{vSW+1}, 16, v{vSW}
v_xor_b32 v{vSW+2}, 32, v{vSW}
v_xor_b32 v{vSW+3}, 48, v{vSW}
v_lshl_add_u32 v15, v12, 2, v16
v_lshrrev_b32 v14, 1, v15
v_lshl_add_u32 v19, v17, 2, v18
v_xor_b32 v14, v14, v19
v_lshlrev_b32 v14, 3, v14
v_lshl_add_u32 v15, v15, 6, v14
s_lshl_b32 s{t3}, s{sP}, 1
s_add_u32 s{t3}, s{t3}, s{sI}
s_lshl_b32 s{t0}, s{t3}, 12
s_add_u32 s{t0}, s{t0}, {SCP}
v_add_u32 v{vSR}, s{t0}, v15
v_xor_b32 v{vSR2}, 32, v{vSR}
s_lshl_b32 s{t0}, s{sS}, 11
s_add_u32 s{t0}, s{t0}, {SCV}
v_add_u32 v{vSV}, s{t0}, v{vL16}
v_lshlrev_b32 v14, 4, v13
v_lshl_add_u32 v14, v12, 9, v14
s_lshl_b32 s{t0}, s{sP}, 11
s_lshl_b32 s{t1}, s{sI}, 8
s_add_u32 s{t0}, s{t0}, s{t1}
s_add_u32 s{t0}, s{t0}, {SCV}
v_add_u32 v{vSVR}, s{t0}, v14
v_lshlrev_b32 v{FOUT}, 3, v13
v_lshl_add_u32 v{FOUT}, v12, 7, v{FOUT}
s_lshl_b32 s{t0}, s{sP}, 10
s_add_u32 s{t0}, s{t0}, {WPHI}
v_add_u32 v{FOUT}, s{t0}, v{FOUT}
v_mul_u32_u24 v{FOUT+1}, 0x8000, v17
v_lshl_add_u32 v{FOUT+1}, v17, 31, v{FOUT+1}
s_lshl_b32 s{t0}, s{sS}, 11
s_add_u32 s{t0}, s{t0}, {Q}
v_add_u32 v{FOUT+2}, s{t0}, v{vL16}
s_lshl_b32 s{sD0}, s{sS}, 12""")
a("s_waitcnt lgkmcnt(0)")
srd(sWS, pWS, WS_SIZE); srd(sWB, pWQKV, 0x180000); srd(sWOA, pWOA, 0x80000); srd(sWOB, pWOB, 0x80000); srd(sOUT, pOUT, 0x200000)
dma_base("kv")
if SPF:
    a(f"""s_lshr_b32 s{t0}, s2, 2
    s_mul_i32 s{t0}, s{t0}, 3072
    s_and_b32 s{t1}, s2, 3
    s_lshl_b32 s{t1}, s{t1}, 2
    s_add_u32 s{t1}, s{t1}, s{sS}
    s_lshl_b32 s{t1}, s{t1}, 7
    s_add_u32 s{t0}, s{t0}, s{t1}
    s_add_u32 s{t0}, s{t0}, 1024
    s_add_u32 s{sSM}, s{pWQKV}, s{t0}
    s_addc_u32 s{sSM+1}, s{pWQKV+1}, 0
    s_add_u32 s{sSM+2}, s{sSM}, {4*64*3072}
    s_addc_u32 s{sSM+3}, s{sSM+1}, 0""")
stamp(0)
a("s_barrier")
def spf(k):
    for n in range(k): a(f"s_load_dword s96, s[{sSM + 2*(n//8)}:{sSM + 2*(n//8) + 1}], {((n//2) % 4)*64*3072 + 64*(n%2)}")
if SPF == 1: spf(15)
a("s_barrier")
stamp(1)
for hh in range(2): rd_w(WPH + 4 * hh, FOUT, hh * 512, 256, "x")
xn = [0]
def xread(k):
    for _ in range(k):
        if xn[0] < 32:
            a(f"ds_read_b128 {vr(XF+4*xn[0],4)}, v{vXA} offset:{xn[0]*32}"); LG.issue("x"); xn[0] += 1
xread(4 if XJ else 32)
DQ = 3
def qreads(ks):
    if ks % 8 == 0 and (ks or not G0H): chk_test(W_G + ks // 8, 2, near=bool(E('NEAR', 1)))
    rd_w(WR + 4 * (ks % 8), vWP, ((ks + 8) % 32) * 2048, 512, ("w", ks))
    if ks % 8 == 6 and ks < 24: chk_read(W_G + ks // 8 + 1)
edq = [] if NOB else [(c, n) for c in range(NST) for n in range(4)]
if not G0H: chk_read(W_G)
for ks in range(DQ): qreads(ks)
for ks in range(32):
    xread(XJ)
    if ks + DQ < 32: qreads(ks + DQ)
    wait(lg=("w", ks))
    a(f"v_mfma_f32_32x32x16_bf16 {vr(ACC,16)}, {vr(WR+4*(ks%8),4)}, {vr(XF+4*ks,4)}, {'0' if ks == 0 else vr(ACC,16)}")
    if ks < 8: a(f"v_xor_b32 v{WPH+ks}, v{FOUT+1}, v{WPH+ks}")
    xs(f"q{ks}")
    if ks == 2: wx = arrive()
    if ks == 21: chk_read(wx)
    if ks == 22: chk_test(wx)
a(f"s_mov_b32 s{t1}, {hex(QSCALE)}\ns_mov_b32 s{t2}, {hex(QSCALE)}")
for r in range(0, 16, 2): a(f"v_pk_mul_f32 {vr(ACC+r,2)}, {vr(ACC+r,2)}, s[{t1}:{t2}]")
for r in range(8): a(f"v_cvt_pk_bf16_f32 v{PHQ+r}, v{ACC+2*r}, v{ACC+2*r+1}")
a(f"""ds_write_b128 v{FOUT+2}, {vr(PHQ,4)}
ds_write_b128 v{FOUT+2}, {vr(PHQ+4,4)} offset:1024""")
arrive(W_Q)
stamp(2)
if SPF == 2: spf(16)
DA = 2
def rd_a(n):
    rd_stage(WR + 8 * (n % 4), n // 4, n % 4, ("w", n)); rd_stage(WR + 8 * (n % 4) + 4, n // 4, 4 + n % 4, ("w", n))
def wgemm(items, slots, ahead, events=None, pre=None, extra=None, primed=0):
    N = len(items); events = events or {}; pre = pre or {}
    def rd(i):
        for f in pre.get(i, []): f()
        if items[i][0]: items[i][0](slots[i % len(slots)], ("w", i))
    assert ahead + PW <= len(slots)
    for i in range(primed, min(ahead, N)): rd(i)
    a("s_setprio 0")
    for g0 in range(0, N, PW):
        grp = list(range(g0, min(g0 + PW, N)))
        lgs = [i for i in grp if items[i][0]]
        wait(vm=items[grp[-1]][2], lg=("w", lgs[-1]) if lgs else None)
        for i in grp:
            t = items[i][1](slots[i % len(slots)])
            if PUSH and i == g0 + 2: a(f"s_setprio 2\n{t}\ns_setprio 0")
            else: a(t)
        for i in grp:
            if i + ahead < N: rd(i + ahead)
        for i in grp:
            if extra: extra(i)
            for f in events.get(i, []): f()
    a("s_setprio 2")
def mm_a(n, mid=None):
    wait(lg=("w", n))
    w = WR + 8 * (n % 4)
    em = a
    em(f"v_mfma_f32_32x32x16_bf16 {vr(ACC,16)}, {vr(w,4)}, {vr(XF+4*n,4)}, {'0' if n == 0 else vr(ACC,16)}")
    if mid: mid()
    em(f"v_mfma_f32_32x32x16_bf16 {vr(AC2,16)}, {vr(XF+4*n,4)}, {vr(w+4,4)}, {'0' if n == 0 else vr(AC2,16)}")
a(f"""v_and_b32 v13, 124, v{vL4}
s_lshl_b32 s{t2}, s{sRB}, 9
s_add_u32 s{t2}, s{t2}, {WS_G}
s_lshl_b32 s{t1}, s{sI}, 7
s_add_u32 s{t2}, s{t2}, s{t1}
s_xor_b32 s{t3}, s{t2}, 128""")
check(W_KV, 4, nap=2)
xs("a13")
a(f"""v_mov_b32 v14, {NONCE}
ds_read_b32 v{vNON}, v14
buffer_load_dword v{vGI}, v13, {sr(sWS,4)}, s{t2} offen sc1
buffer_load_dword v{vGO}, v13, {sr(sWS,4)}, s{t3} offen sc1""")
VM.issue("g", 2)
def gates():
    for d in (vGI, vGO):
        a(f"v_mul_f32 v{d}, {hex(LOG2E | 0x80000000)}, v{d}\nv_exp_f32 v{d}, v{d}\nv_add_f32 v{d}, 1.0, v{d}\nv_rcp_f32 v{d}, v{d}")
if NOB:
    wait(vm="g"); gates()
    a(f"s_mov_b32 s{sJ}, s{sS}"); call_fin(vGI)
    stamp(4)
    a(f"s_add_u32 s{sJ}, s{sS}, 4"); call_fin(vGI)
    stamp(5)
    diag_dump(13)
    a("s_endpgm")
NST = 0; N1 = 0
for c in range(3): dma_stage(c)
a("v_lshlrev_b32 v13, 7, v0")
def wot():
    a(f"""s_lshl_b32 s{t0}, s2, 2
    s_add_u32 s{t0}, s{t0}, s{sS}
    s_lshl_b32 s{t0}, s{t0}, 9
    s_mov_b64 exec, 15
    buffer_load_dword v{vT2}, v13, {sr(sWOB,4)}, s{t0} offen
    buffer_load_dword v{vT2}, v13, {sr(sWOA,4)}, s{t0} offen
    s_lshr_b32 s{t1}, s{t0}, 10
    s_lshl_b32 s{t1}, s{t1}, 11
    s_add_u32 s{t0}, s{t0}, s{t1}
    buffer_load_dword v{vT2}, v13, {sr(sWB,4)}, s{t0} offen
    s_mov_b64 exec, -1""")
    VM.issue("wot", 3)
wait(vm=("st", NST)); w = arrive()
gates()
check(w)
a(f"v_readfirstlane_b32 s{sNON}, v{vNON}")
stamp(3)
SL = [WR + 4 * n for n in range(8)] + [PHQ + 4 * n for n in range(4)]
AH = 6
its = []
for n in range(N1, 32):
    its.append((lambda d, tg, n=n: rd_stage(d, n // 4, n % 4, tg), lambda w_, n=n: f"v_mfma_f32_32x32x16_bf16 {vr(ACC,16)}, {vr(w_,4)}, {vr(XF+4*n,4)}, {vr(ACC,16) if n else 0}", None))
    its.append((lambda d, tg, n=n: rd_stage(d, n // 4, 4 + n % 4, tg), lambda w_, n=n: f"v_mfma_f32_32x32x16_bf16 {vr(AC2,16)}, {vr(XF+4*n,4)}, {vr(w_,4)}, {vr(AC2,16) if n else 0}", None))
pre, tested = {}, set(range(NST))
cur = {}
for c in range(NST + 1, 9):
    i0_ = 8 * (c - NST)
    def arr(c=c):
        if c < 8: wait(vm=("st", c))
        cur[c] = arrive()
    def tst(c=c): chk_test(cur[c], lowprio=True); tested.add(c - 2)
    if c < 8:
        pre.setdefault(max(i0_ - PW - 2, AH), []).append(arr)
        pre.setdefault(max(i0_ - 2, AH), []).append(lambda c=c: chk_read(cur[c]))
        pre.setdefault(i0_, []).append(tst)
dq = [(c, n) for c in range(NST + 3, 12) for n in range(4)]
def dma_next(i):
    if dq:
        prev = [k for k in range(dq[0][0]) if STG[k] == STG[dq[0][0]]]
        if not prev or prev[-1] in tested: dma_one(*dq.pop(0))
wgemm(its, SL, AH, pre=pre, extra=lambda i: dma_next(i) if i % 3 != 2 else None, events={len(its) - AH - 1: [arr], WOTAT: [wot] if WOT else []})
assert not dq
w = cur[8]
stamp(4)

def features(B, W, out, D, tm):
    m1, m2 = tm, tm + 1
    a(f"v_mfma_f32_32x32x16_bf16 {vr(D,16)}, {vr(W,4)}, {vr(B,4)}, 0")
    for (m, b) in ((m1, D), (m2, D + 8)):
        a(f"v_max3_f32 v{m}, v{b}, v{b+1}, v{b+2}\nv_max3_f32 v{m}, v{m}, v{b+3}, v{b+4}\nv_max3_f32 v{m}, v{m}, v{b+5}, v{b+6}\nv_max_f32 v{m}, v{m}, v{b+7}")
    a(f"""v_permlane32_swap_b32 v{m1}, v{m2}
    v_max_f32 v{m1}, v{m1}, v{m2}
    v_mul_f32 v{m1}, {hex(LOG2E | 0x80000000)}, v{m1}
    v_mov_b32 v{m2}, v{m1}
    v_permlane32_swap_b32 v{m1}, v{m2}""")
    for r in range(0, 16, 2):
        sel = "op_sel_hi:[1,1,0]" if r < 8 else "op_sel:[0,0,1]"
        a(f"v_pk_fma_f32 {vr(D+r,2)}, {vr(D+r,2)}, s[{sL2E}:{sL2E+1}], {vr(m1,2)} {sel}")
    for r in range(16): a(f"v_exp_f32 v{D+r}, v{D+r}")
    for (m, b) in ((m1, D), (m2, D + 8)):
        a(f"""v_pk_add_f32 {vr(tm+2,2)}, {vr(b,2)}, {vr(b+2,2)}
        v_pk_add_f32 {vr(tm+4,2)}, {vr(b+4,2)}, {vr(b+6,2)}
        v_pk_add_f32 {vr(tm+2,2)}, {vr(tm+2,2)}, {vr(tm+4,2)}
        v_add_f32 v{m}, v{tm+2}, v{tm+3}""")
    a(f"""v_permlane32_swap_b32 v{m1}, v{m2}
    v_add_f32 v{m1}, v{m1}, v{m2}
    v_rcp_f32 v{m1}, v{m1}
    v_mov_b32 v{m2}, v{m1}
    v_permlane32_swap_b32 v{m1}, v{m2}""")
    for r in range(0, 16, 2):
        sel = "op_sel_hi:[1,0]" if r < 8 else "op_sel:[0,1]"
        a(f"v_pk_mul_f32 {vr(D+r,2)}, {vr(D+r,2)}, {vr(m1,2)} {sel}")
    for r in range(8): a(f"v_cvt_pk_bf16_f32 v{out+r}, v{D+2*r}, v{D+2*r+1}")

KB, VB, DD, TM, PH = PHQ, PHQ + 8, WR, WR + 16, WR + 24
chk_read(w)
a(f"""s_lshl_b32 s{t3}, s{sP}, 1
s_add_u32 s{t3}, s{t3}, s{sI}
s_lshl_b32 s{t2}, s{sHG}, 2
s_add_u32 s{t2}, s{t2}, s{t3}
s_lshl_b32 s{t2}, s{t2}, 8
s_add_u32 s{t2}, s{t2}, s{sRB}
s_mul_i32 s{t4}, s{t2}, {PREC}
s_add_u32 s{t4}, s{t4}, {WS_PART}""")
for r in range(8): a(f"v_cvt_pk_bf16_f32 v{KB+r}, v{ACC+2*r}, v{ACC+2*r+1}")
for r in range(8): a(f"v_cvt_pk_bf16_f32 v{VB+r}, v{AC2+2*r}, v{AC2+2*r+1}")
chk_test(w)
xs("k1")
a(f"ds_write_b128 v{vSV}, {vr(VB,4)}\nds_write_b128 v{vSV}, {vr(VB+4,4)} offset:1024")
dma_stage(12)
for hh in range(2):
    features(KB + 4 * hh, WPH + 4 * hh, PH, DD, TM)
    for aa in range(4): a(f"ds_write_b64 v{vSW+aa}, {vr(PH+2*aa,2)} offset:{hh*4096}")
    xs(f"k3{hh}")
wait(vm=("st", 12)); w = arrive()
KA, KBv, KD = WR, AC2, ACC
a(f"s_mov_b32 s{t1}, {hex(ONES)}\ns_mov_b32 s{t2}, {hex(ONES)}")
for r in range(0, 16, 2): a(f"v_mov_b64 {vr(KBv+r,2)}, s[{t1}:{t2}]")
check(w)
xs("k4")
for u in range(4):
    a(f"ds_read_b64_tr_b16 {vr(KA+4*u,2)}, v{vSR} offset:{u*1024}\nds_read_b64_tr_b16 {vr(KA+4*u+2,2)}, v{vSR2} offset:{u*1024+512}")
a(f"s_mov_b32 exec_lo, 0xffff\ns_mov_b32 exec_hi, 0xffff")
for u in range(4):
    a(f"ds_read_b128 {vr(KBv+4*u,4)}, v{vSVR} offset:{(u//2)*4096 + (u%2)*1024}")
a("s_mov_b64 exec, -1")
LG.issue("kv", 12)
SL = [WR + 16 + 4 * n for n in range(4)] + [PHQ + 4 * n for n in range(4)] + [WR + 4 * n for n in range(4)]
wait(lg="kv")
for u in range(4):
    a(f"v_mfma_f32_32x32x16_bf16 {vr(KD,16)}, {vr(KA+4*u,4)}, {vr(KBv+4*u,4)}, {'0' if u == 0 else vr(KD,16)}")
FIL = FOUT
def kvf_addr():
    a(f"""s_and_b32 s{t0}, s{sRB}, 3
    s_lshl_b32 s{t1}, s{sHG}, 2
    s_add_u32 s{t0}, s{t0}, s{t1}
    s_mul_i32 s{t0}, s{t0}, {KVF_STRIDE}
    s_lshr_b32 s{t1}, s{sRB}, 4
    s_mul_i32 s{t1}, s{t1}, 544
    s_add_u32 s{t0}, s{t0}, s{t1}
    s_and_b32 s{t1}, s{sRB}, 12
    s_add_u32 s{t0}, s{t0}, s{t1}
    s_add_u32 s{t0}, s{t0}, {WS_KVF}""")
a(f"""s_lshl_b32 s{t0}, s{sRB}, 2
s_add_u32 s{t0}, s{t0}, s{sS}
s_lshl_b32 s{t0}, s{t0}, 15
s_lshl_b32 s{t1}, s{sHG}, 12
s_add_u32 s{t0}, s{t0}, s{t1}
s_add_u32 s{t0}, s{t0}, {WS_O}""")
for r in range(4): a(f"v_mov_b32 v{FIL+r}, -1")
for r in range(4): a(f"buffer_store_dwordx4 {vr(FIL,4)}, v{vL16}, {sr(sWS,4)}, s{t0} offen offset:{r*1024} sc1")
with only(sS, 3):
    a(f"s_lshl_b32 s{t0}, s{sL}, 12\ns_add_u32 s{t0}, s{t0}, {WS_L}\nbuffer_store_dwordx4 {vr(FIL,4)}, v{vL16}, {sr(sWS,4)}, s{t0} offen offset:3072 sc1")
with only(sS, 2):
    kvf_addr()
    a(f"s_mov_b32 exec_lo, 0x1ffff\ns_mov_b32 exec_hi, 0x1ffff\nbuffer_store_dword v{FIL}, v{vLI}, {sr(sWS,4)}, s{t0} offen sc1")
a(f"s_mov_b32 exec_lo, 0xfffff\ns_mov_b32 exec_hi, 0xfffff")
for e in range(8):
    a(f"buffer_store_dwordx2 {vr(KD+2*e,2)}, v{vPR}, {sr(sWS,4)}, s{t4} offen sc1"); VM.issue("part")
    if e < 7: a(f"s_add_u32 s{t4}, s{t4}, {32*PREC}")
a("s_mov_b64 exec, -1")
stamp(5)
dq = [(c, n) for c in (13, 14) for n in range(4)]
its = [(lambda d, tg, n=n: rd_stage(d, 8 + n // 8, n % 8, tg),
        lambda w_, n=n: f"v_mfma_f32_32x32x16_bf16 {vr(AC2,16)}, {vr(w_,4)}, {vr(XF+4*n,4)}, {'0' if n == 0 else vr(AC2,16)}", None) for n in range(32)]
def e1(): wait(vm="part"); cur["p"] = arrive()
def e2():
    chk_read(cur["p"]); chk_test(cur["p"], lowprio=True)
    with only(sS, 2): flag(F_F2)
def e3():
    with only(sS, 2): poll_issue(vPC, vT2, F_F2)
    with only(sS, 0): poll_issue(vPF, vT2, F_F2)
wgemm(its, SL, AH, events={9: [e1], 12: [e2], 27: [e3]}, extra=lambda i: dma_one(*dq.pop(0)) if i > 14 and dq else None)
vWA0, vWA1, vWB0, vWB1 = vXA, vWX, vWO, vWP
a(f"""s_lshl_b32 s{t0}, s{sP}, 13
v_add_u32 v{vWA0}, s{t0}, v{vWOA}
v_xor_b32 v{vWA1}, 64, v{vWA0}
v_add_u32 v{vWB0}, s{t0}, v{vWO}
v_xor_b32 v{vWB1}, 64, v{vWB0}""")
assert RING % 128 == 0 and STG[12] == 0
for k in range(8): rd_w(WB0 + 4 * k, (vWA0, vWA1)[k % 2], (k // 2) * 2048, 1024, "wb0")
stamp(6)
KB, DD, TM = TMP, TMP + 16, TMP + 32
RD = TMP + 64
with only(sS, 2):
    a("s_waitcnt vmcnt(0)")
    poll_check(vPC, vT2, F_F2)
    xs("r1")
    a(f"""s_and_b32 s{t3}, s{sRB}, 3
    s_lshl_b32 s{t0}, s{sHG}, 2
    s_add_u32 s{t3}, s{t0}, s{t3}
    s_lshl_b32 s{t0}, s{t3}, 3
    s_lshr_b32 s{t2}, s{sRB}, 2
    s_add_u32 s{t0}, s{t0}, s{t2}
    s_mul_i32 s{t0}, s{t0}, {32*PREC}
    s_add_u32 s{t0}, s{t0}, {WS_PART}
    s_mov_b32 exec_lo, 0x1ffff
    s_mov_b32 exec_hi, 0x1ffff""")
    for n in range(32):
        if n and n % 8 == 0: a(f"s_add_u32 s{t0}, s{t0}, {8*PREC}")
        a(f"buffer_load_dwordx2 {vr(RD+2*n,2)}, v{vPR}, {sr(sWS,4)}, s{t0} offen offset:{(n%8)*PREC} sc1")
    a("s_mov_b64 exec, -1")
xs("r2")
def fin(j, g): a(f"s_mov_b32 s{sJ}, {j}"); call_fin(g)
with only(sI, 0): fin(f"s{sP}", vGI)
with only(sS, 3): fin(2, vGO)
for r in range(8): a(f"v_cvt_pk_bf16_f32 v{KB+r}, v{AC2+2*r}, v{AC2+2*r+1}")
features(KB, WPH, PHQ, DD, TM)
with only(sS, 2):
    kvf_addr()
    a("s_waitcnt vmcnt(0)")
    st = 16
    while st >= 1:
        for n in range(st): a(f"v_pk_add_f32 {vr(RD+2*n,2)}, {vr(RD+2*n,2)}, {vr(RD+2*(n+st),2)}")
        st //= 2
    a(f"""v_cvt_pk_bf16_f32 v15, v{RD}, v{RD+1}
    v_min_u32 v15, -2, v15
    s_mov_b32 exec_lo, 0x1ffff
    s_mov_b32 exec_hi, 0x1ffff
    buffer_store_dword v15, v{vLI}, {sr(sWS,4)}, s{t0} offen sc1
    s_mov_b64 exec, -1""")
xs("r3")
with only(sS, 0):
    a("s_waitcnt vmcnt(0)"); poll_check(vPF, vT2, F_F2)
w = arrive()
features(KB + 4, WPH + 4, PHQ + 8, DD, TM)
stamp(7)
with only(sS, 3): fin(3, vGO)
with only(sS, 2): a(f"v_add_u32 v13, {G1}, v{vL4}\nds_write_b32 v13, v{vGI}")
xs("l1")
check(w, nap=1)
xs("l2")
dma_stage(15)
a(f"s_lshl_b32 s{t2}, s{sS}, 14\ns_lshl_b32 s{t3}, s{sS}, 17\ns_lshl_b32 s{t1}, s{sHG}, 7\ns_add_u32 s{t3}, s{t3}, s{t1}")
for n in range(16):
    a(f"s_add_u32 m0, s{t2}, {X + n*1024}\ns_add_u32 s{t1}, s{t3}, {n*8192}")
    a(f"buffer_load_dwordx4 v{vD1}, {sr(sWOA,4)}, s{t1} offen lds")
with only(sS, 1): fin(4, vGO)
def take(loads, regs, nap, issued=False):
    lp, dn, l2 = a.lab("tk"), a.lab("tkd"), a.lab("tkw")
    if issued: a(f"s_branch {l2}")
    a(f"{lp}:"); loads()
    a(f"{l2}:\ns_waitcnt vmcnt(0)\nv_max_u32 v{vT}, v{regs[0]}, v{regs[1]}")
    for k in range(2, len(regs), 2): a(f"v_max3_u32 v{vT}, v{vT}, v{regs[k]}, v{regs[k+1]}")
    a(f"v_cmp_eq_u32 vcc, -1, v{vT}\ns_cbranch_vccz {dn}")
    budget(dn)
    if nap: a(f"s_sleep {nap}")
    a(f"s_branch {lp}\n{dn}:")
a(f"""s_lshl_b32 s{t3}, s{sHG}, 2
s_lshl_b32 s{t1}, s{sP}, 1
s_add_u32 s{t3}, s{t3}, s{t1}
s_mul_i32 s{t4}, s{t3}, {KVF_STRIDE}
s_add_u32 s{t4}, s{t4}, {WS_KVF}
s_lshl_b32 s{sPF}, s{sRB}, 1
s_add_u32 s{sPF}, s{sPF}, s{sI}
s_lshl_b32 s{sPF}, s{sPF}, 16
s_add_u32 s{sPF}, s{sPF}, {WS_O}
s_lshl_b32 s{t3}, s{t3}, 10
s_add_u32 s{t3}, s{t3}, s{sPF}
s_add_u32 s{t3}, s{t3}, 32768
v_sub_f32 v15, 1.0, v{vGI}""")
def kvf_loads():
    for hh in range(2):
        for u in range(2):
            a(f"buffer_load_dwordx4 {vr(TMP+8*hh+4*u,4)}, v{vLI}, {sr(sWS,4)}, s{t4} offen offset:{hh*KVF_STRIDE + u*544} sc1")
take(kvf_loads, list(range(TMP, TMP + 16)), E("KNAP", 6))
arrive(W_OB)
stamp(8)
for hh in range(2):
    D = TMP + 16 + 16 * hh
    a(f"v_mfma_f32_32x32x16_bf16 {vr(D,16)}, {vr(TMP+8*hh,4)}, {vr(PHQ+8*hh,4)}, 0")
    a(f"v_mfma_f32_32x32x16_bf16 {vr(D,16)}, {vr(TMP+8*hh+4,4)}, {vr(PHQ+8*hh+4,4)}, {vr(D,16)}")
for hh in range(2):
    D = TMP + 16 + 16 * hh
    a(f"v_add_f32 v{D+8}, 0x358637bd, v{D+8}\nv_rcp_f32 v{D+8}, v{D+8}\nv_mul_f32 v{D+8}, v{D+8}, v15")
    for r in range(0, 8, 2): a(f"v_pk_mul_f32 {vr(D+r,2)}, {vr(D+r,2)}, {vr(D+8,2)} op_sel_hi:[1,0]")
    for r in range(4): a(f"v_cvt_pk_bf16_f32 v{D+12+r}, v{D+2*r}, v{D+2*r+1}")
    a(f"v_min_u32 v{D+12}, -2, v{D+12}")
    a(f"buffer_store_dwordx4 {vr(D+12,4)}, v{vL16}, {sr(sWS,4)}, s{t3} offen offset:{hh*1024} sc1")
wo = arrive()
a(f"""s_mov_b32 s{sD0}, s{sPF}
v_bfe_u32 v13, v0, 2, 2
v_and_b32 v14, 3, v0
v_lshl_add_u32 v13, v13, 3, v14
v_lshlrev_b32 v{vPO}, 10, v13""")
stamp(9)
def probe(off):
    lp, dn = a.lab("pb"), a.lab("pbd")
    a(f"""s_add_u32 s{t1}, s{sD1}, {off}
    {lp}:
    buffer_load_dword v{vT2}, v{vPO}, {sr(sWS,4)}, s{t1} offen offset:1008 sc1
    s_waitcnt vmcnt(0)
    v_cmp_eq_u32 vcc, -1, v{vT2}
    s_cbranch_vccz {dn}""")
    budget(dn)
    a(f"s_sleep {RNAP}\ns_branch {lp}\n{dn}:")

def out_addr():
    a(f"""v_and_b32 v14, 31, v0
    v_lshlrev_b32 v14, 10, v14
    v_lshrrev_b32 v15, 5, v0
    v_lshl_add_u32 v14, v15, 4, v14
    s_lshl_b32 s{t4}, s{sRB}, 16
    s_lshl_b32 s{t1}, s{sI}, 15
    s_add_u32 s{t4}, s{t4}, s{t1}
    s_lshl_b32 s{t1}, s{sHG}, 7
    s_add_u32 s{t4}, s{t4}, s{t1}
    s_lshl_b32 s{t1}, s{sP}, 6
    s_add_u32 s{t4}, s{t4}, s{t1}""")
def store_out():
    for r in range(8): a(f"v_cvt_pk_bf16_f32 v{PHQ+r}, v{ACC+2*r}, v{ACC+2*r+1}")
    for kk in range(2):
        b = PHQ + 4 * kk
        a(f"v_permlane32_swap_b32 v{b}, v{b+2}\nv_permlane32_swap_b32 v{b+1}, v{b+3}")
        a(f"buffer_store_dwordx4 {vr(b,4)}, v14, {sr(sOUT,4)}, s{t4} offen offset:{kk*32} {OUTF}")

TS = [WPH + 4 * n for n in range(6)] + [vSW, vSW + 4]
assert vSW == 236
def steps_a(hs, reg): return [(h * 1024, ((vWA0, vWA1), h * 2048), reg + 4 * k) for k, h in enumerate(hs)]
def steps_b(reg):
    o = []
    for k, h in enumerate(8 * m + r for m in range(4) for r in range(4)):
        o.append((32768 + h * 1024, WB0 + 8 * k if k < 4 else ((vWB0, vWB1), STG[12 + h // 8] - RING + (h % 8) * 2048), reg + 4 * k))
    return o
def rec_loads(steps, base):
    for k, (ro, _, reg) in enumerate(steps):
        hi, lo = ro & ~4095, ro & 4095
        if k == 0 or hi != (steps[k-1][0] & ~4095): a(f"s_add_u32 s{t1}, s{base}, {hi}")
        a(f"buffer_load_dwordx4 {vr(reg,4)}, v{vL16}, {sr(sWS,4)}, s{t1} offen offset:{lo} sc1")
def run_items(its, first, windows, hooks=None, prime_only=None):
    hooks = hooks or {}
    slot = {}; cnt = [0]
    def rd(n):
        w_, _, c = its[n]
        if isinstance(w_, int): slot[n] = w_ + 4 * c
        else:
            slot[n] = TS[cnt[0] % 8]; cnt[0] += 1
            rd_w(slot[n], w_[0][c], w_[1], 1024, ("w", n))
    LG.clear()
    nr = 0
    while nr < len(its) and cnt[0] < 6: rd(nr); nr += 1
    if prime_only: prime_only()
    if windows: a("s_setprio 0")
    seen = set()
    step = 2 if windows else 1
    for g0 in range(0, len(its), step):
        grp = range(g0, min(g0 + step, len(its)))
        for n in grp:
            for f in hooks.get(n, []): f()
        wait(lg=("w", grp[-1]))
        for n in grp:
            acc = (ACC, AC2)[its[n][2]]
            wait(lg=("w", n))
            a(f"v_mfma_f32_32x32x16_bf16 {vr(acc,16)}, {vr(slot[n],4)}, {vr(its[n][1],4)}, {0 if first and acc not in seen else vr(acc,16)}")
            seen.add(acc)
        for n in grp:
            if not isinstance(its[n][0], int):
                while nr < len(its):
                    rd(nr); nr += 1
                    if not isinstance(its[nr-1][0], int): break
    assert nr == len(its)
    if windows: a("s_setprio 2")
items = lambda steps: [(w_, reg, c) for (_, w_, reg) in steps for c in range(2)]
def tail(its, late, last):
    n0 = len(its)
    its = its + items(late)
    k = 12
    its = its[:-k] + [x for x in its[-k:] if x[2] == 1] + [x for x in its[-k:] if x[2] == 0]
    LW = TMP
    def gate():
        out_addr()
        lp, dn = a.lab("tw"), a.lab("twd")
        a(f"""s_lshl_b32 s{t2}, s{sS}, 12
        s_add_u32 s{t0}, s{t2}, {OP}
        v_add_u32 v{vPC}, s{t0}, v{vL16}
        s_xor_b32 s{t2}, s{t2}, 4096
        s_add_u32 s{t0}, s{t2}, {OP}
        v_add_u32 v{vPR}, s{t0}, v{vL16}
        s_lshl_b32 s{t0}, s{sS}, 8
        s_add_u32 s{t0}, s{t0}, {LT + 3*1024 + 128}
        v_mov_b32 v13, s{t0}""")
        if last:
            for q_, (_, w_, _) in enumerate(last): rd_w(LW + 4 * q_, vWOA, w_, 1024, "lw")
            a(f"s_lshl_b32 s{sPF}, s{sRB}, 15\ns_add_u32 s{sPF}, s{sPF}, {WS_L}\ns_mov_b32 s{sJ}, 0")
        xs("t0")
        a(f"""{lp}:
        ds_read_b32 v{vT}, v13
        s_waitcnt lgkmcnt(0)
        v_cmp_gt_u32 vcc, {Q + 8*1024}, v{vT}
        s_cbranch_vccz {dn}""")
        budget(dn)
        a(f"s_sleep 2\ns_branch {lp}\n{dn}:")
        LG.clear()
        stamp(11)
        if late: rec_loads(late, sD1)
    hooks = {}
    if late:
        lr = [reg for (_, _, reg) in late]
        nl = min(n for n, x in enumerate(its) if x[1] in lr)
        hooks.setdefault(nl, []).append(lambda: (take(lambda: rec_loads(late, sD1), list(range(lr[0], lr[0] + 4 * len(lr))), 0, issued=True), xs("n6")))
    if last: hooks.setdefault(len(its) - R7AT, []).append(lambda: rec_loads(last, sPF))
    ww = newword()
    def x1():
        for q4 in range(4): a(f"ds_write_b128 v{vPC}, {vr(AC2+4*q4,4)} offset:{q4*1024}")
        LG.issue("xw", 4); arrive(ww)
    hooks.setdefault(len(its) - k // 2 + 2, []).append(x1)
    hooks.setdefault(len(its) - 1, []).append(lambda: chk_read(ww))
    run_items(its, False, False, hooks, gate)
    chk_test(ww, 2)
    for q4 in range(4): a(f"ds_read_b128 {vr(AC2+4*q4,4)}, v{vPR} offset:{q4*1024}")
    xs("t1")
    if last:
        D7 = TMP + 32
        l2, rt, d2 = a.lab("r7"), a.lab("r7r"), a.lab("r7d")
        a(f"s_waitcnt lgkmcnt(0)\ns_branch {l2}\n{rt}:")
        budget(d2)
        a(f"s_add_u32 s{sJ}, s{sJ}, 1\ns_and_b32 s{t0}, s{sJ}, 15\ns_cselect_b32 s{t2}, s{sPF}, s{sD0}")
        rec_loads(last, t2)
        a(f"{l2}:")
        for q_, (_, _, reg) in enumerate(last):
            a(f"s_waitcnt vmcnt({7 - q_})")
            a(f"v_mfma_f32_32x32x16_bf16 {vr(D7,16)}, {vr(LW+4*q_,4)}, {vr(reg,4)}, {vr(D7 if q_ else AC2,16)}")
            a(f"v_max_u32 v{vT}, v{reg}, v{reg+1}\nv_max3_u32 v{vT}, v{vT}, v{reg+2}, v{reg+3}\nv_cmp_eq_u32 vcc, -1, v{vT}\ns_cbranch_vccnz {rt}")
        a(f"{d2}:")
        xs("n7")
    else:
        D7 = AC2
        a("s_waitcnt lgkmcnt(0)")
    for r in range(0, 16, 2): a(f"v_pk_add_f32 {vr(ACC+r,2)}, {vr(ACC+r,2)}, {vr(D7+r,2)}")
    store_out()
def slot_free(j):
    lp, dn = a.lab("cf"), a.lab("cfd")
    a(f"v_mov_b32 v13, {CONS + 16 + 4*j}\n{lp}:\nds_read_b32 v{vT}, v13\ns_waitcnt lgkmcnt(0)\nv_cmp_eq_u32 vcc, 0, v{vT}\ns_cbranch_vccz {dn}")
    budget(dn)
    a(f"s_sleep 2\ns_branch {lp}\n{dn}:")

a(f"s_lshl_b32 s{t0}, s{sP}, 12\ns_add_u32 s{sD1}, s{sD0}, s{t0}")
a(f"s_cmp_eq_u32 s{sI}, 1\ns_cbranch_scc1 L_half1")
sa, sb = steps_a([8 * m + r for m in range(4) for r in range(4)], TMP + 64), steps_b(TMP)
first_words = lambda st: [reg for (_, _, reg) in st]
assert 16 <= PRET <= 32 and PRET % 2 == 0
take(lambda: rec_loads(sa, sD1), first_words(sa), RNAP)
check(W_OB, nap=2)
xs("m0")
run_items(items(sa)[:PRET], True, True)
xs("m2")
with only(sS, 1): probe(32768)
with only(sS, 0): fin(6, vGO)
take(lambda: rec_loads(sb, sD1), first_words(sb), RNAP)
stamp(10)
slot_free(4)
tail(items(sb) + items(sa)[PRET:], [], None)
stamp(12)
diag_dump(13)
a("s_endpgm")
a("L_half1:")
LG.clear(); VM.clear()
with only(sS, 2): fin(5, vGI)
check(wo, nap=2)
probe(32768)
take(lambda: rec_loads(sb, sD1), first_words(sb), RNAP)
xs("m0")
s45, s6 = steps_a([8 * m + r for m in range(4) for r in range(2)], TMP + 64), steps_a([8 * m + 2 for m in range(4)], TMP + 96)
slot_free(5)
run_items(items(sb)[:PRET], True, True, hooks={PRET - 8: [lambda: rec_loads(s45, sD1)]})
xs("m2")
take(lambda: rec_loads(s45, sD1), first_words(s45), RNAP, issued=True)
stamp(10)
tail(items(sb)[PRET:] + items(s45), s6, [((4*k + 3) * 1024, (4*k + 3) * 2048, WB0 + 4 * k) for k in range(8)])
stamp(12)
diag_dump(13)
hold()
a("L_exit:\ns_endpgm")

FO = TMP
FL = TMP + 32
a("L_fin:\ns_nop 1")
a(f"""s_and_b32 s{t2}, s{sJ}, 3
s_lshl_b32 s{t0}, s{t2}, 10
s_add_u32 s{t0}, s{t0}, {LT}
v_and_b32 v14, 3, v0
v_lshl_add_u32 v14, v14, 8, s{t0}
v_and_b32 v15, 124, v{vL4}
v_add_u32 v15, s{t0}, v15
s_lshl_b32 s{t1}, s{sJ}, 10
s_add_u32 s{t1}, s{t1}, {Q + 1024}
s_lshl_b32 s{t2}, s{t2}, 13
s_add_u32 s{t2}, s{t2}, {OP}
v_add_u32 v{FL+4}, s{t2}, v{vL16}
s_lshl_b32 s{t0}, s{sJ}, 2
s_add_u32 s{t0}, s{t0}, {CONS + 16}
v_mov_b32 v13, s{t0}
s_lshr_b32 s{t0}, s{sJ}, 2
s_lshl_b32 s{t2}, s{sRB}, 1
s_add_u32 s{t0}, s{t0}, s{t2}
s_lshl_b32 s{t0}, s{t0}, 6
s_lshl_b32 s{t2}, s{sHG}, 2
s_add_u32 s{t0}, s{t0}, s{t2}
s_and_b32 s{t2}, s{sJ}, 3
s_add_u32 s{t0}, s{t0}, s{t2}
s_lshl_b32 s{t4}, s{t0}, 10
s_add_u32 s{t4}, s{t4}, {WS_O}
""")
assert FP == 1 << 15 and CONS + 16 + 32 <= SYNC and (TMP, vGF, vL4, vONE, vL16, vT, FOUT) == (104, 233, 251, 1, 10, 3, 244)
fin_body(True, "L_fb", FNAP)
if DIAG: a("s_waitcnt lgkmcnt(0)")
a(f"s_setpc_b64 s[{sRET}:{sRET+1}]")
emit_cold()
a("CODE_END:")
BS, BC, BK, BV, BQ, BM = TMP + 16, TMP + 32, TMP + 48, TMP + 52, TMP + 60, FOUT
a(f"""L_fb:
s_sub_u32 s{t1}, s{t1}, 1024
v_add_u32 v14, s{t1}, v{vL16}
ds_read_b128 {vr(BQ,4)}, v14
v_mov_b32 v{BM}, 0xff800000
s_mov_b32 s{t0}, 0
s_waitcnt lgkmcnt(0)
L_fb1:
buffer_load_dwordx4 {vr(BK,4)}, v{vL16}, {sr(sWS,4)}, s{t0} offen sc1
s_waitcnt vmcnt(0)
v_mfma_f32_32x32x16_bf16 {vr(BS,16)}, {vr(BK,4)}, {vr(BQ,4)}, 0""")
for r in range(0, 16, 2): a(f"v_max3_f32 v{BM}, v{BM}, v{BS+r}, v{BS+r+1}")
a(f"""s_add_u32 s{t0}, s{t0}, 2048
s_cmp_lt_u32 s{t0}, 131072
s_cbranch_scc1 L_fb1
v_mov_b32 v{BM+1}, v{BM}
v_permlane32_swap_b32 v{BM}, v{BM+1}
v_max_f32 v{BM}, v{BM}, v{BM+1}""")
for r in range(16): a(f"v_sub_f32 v{BC+r}, 0, v{BM}\nv_mov_b32 v{FO+r}, 0")
a(f"""v_mov_b32 v15, 0xdddd
s_mov_b32 s{t0}, 0
L_fb2:
buffer_load_dwordx4 {vr(BK,4)}, v{vL16}, {sr(sWS,4)}, s{t0} offen sc1
buffer_load_dwordx4 {vr(BV,4)}, v{vL16}, {sr(sWS,4)}, s{t0} offen offset:1024 sc1""")
for r in range(4): a(f"v_mov_b32 v{BV+4+r}, {hex(ONES)}")
a(f"""s_waitcnt vmcnt(0)
v_mfma_f32_32x32x16_bf16 {vr(BS,16)}, {vr(BK,4)}, {vr(BQ,4)}, {vr(BC,16)}""")
for r in range(4): a(f"v_permlane16_swap_b32 v{BV+r}, v{BV+4+r}")
for r in range(16): a(f"v_exp_f32 v{BS+r}, v{BS+r}")
a(f"""v_smfmac_f32_32x32x32_bf16 {vr(FO,16)}, {vr(BV,4)}, {vr(BS,8)}, v15
v_smfmac_f32_32x32x32_bf16 {vr(FO,16)}, {vr(BV+4,4)}, {vr(BS+8,8)}, v15
s_add_u32 s{t0}, s{t0}, 2048
s_cmp_lt_u32 s{t0}, 131072
s_cbranch_scc1 L_fb2
s_nop 9
s_branch L_fin_norm""")

body = a.finish(verbose=bool(os.environ.get("VERBOSE")))
ref = open("cdna_kernels/" + NAME + ".s.ref").read().split("\n")
hdr = [l for l in ref if l.startswith(";") and "@launch" not in l and "Override" not in l and "grid=ceil" not in l]
out = "\n".join(hdr) + f"""
; @launch grid=(256,1,1) block=(512,1,1) lds={LDS_BYTES}
.amdgcn_target "amdgcn-amd-amdhsa--gfx950"
.text
.p2align 12
.fill {PAD // 4}, 4, 0xbf810000
.globl {NAME}_kernel
.p2align 8
.type {NAME}_kernel,@function
{NAME}_kernel:
{body}.section .rodata,"a"
.p2align 6
.amdhsa_kernel {NAME}_kernel
  .amdhsa_next_free_vgpr 256
  .amdhsa_next_free_sgpr 102
  .amdhsa_accum_offset 256
  .amdhsa_group_segment_fixed_size 0
  .amdhsa_kernarg_size 104
  .amdhsa_user_sgpr_count 2
  .amdhsa_user_sgpr_kernarg_segment_ptr 1
  .amdhsa_system_sgpr_workgroup_id_x 1
.end_amdhsa_kernel
"""
dst = sys.argv[1] if len(sys.argv) > 1 else "cdna_kernels/" + NAME + ".s"
open(dst, "w").write(out)
print("wrote", dst, len(a.lines), "lines,", len(a.inserted), "nops inserted, words", nword[0])
```

```python
import sys, os
from asmlib import Asm, Cnt, vr, sr

NAME = "gated_mix__grouped_kv_mqa__linear_kernel_hedgehog__prompt"
E = lambda k, d: int(os.environ.get(k, d))
DIAG = E("DIAG", 0); FORCE_FB = E("FORCE_FB", 0); TOUCH = E("TOUCH", 0); NOB = E("NOB", 0); PRE = E("PRE", 4)
FNAP = E("FNAP", 2); SIGT = E("SIGT", 4); POLLAT = E("POLLAT", 3); NST = E("NST", 2); MAP = E("MAP", 1); PW = E("PW", 2); PRET = E("PRET", 24); WOTAT = E("WOTAT", 20); R7AT = E("R7AT", 1); RNAP = E("RNAP", 8); DEFER = E("DEFER", 1); ROT = E("ROT", 1); PUSH = E("PUSH", 1); WQE = E("WQE", 2); CPF = E("CPF", 1); WQT = E("WQT", 1); SPF = E("SPF", 2); HAT = E("HAT", 0); WOT = E("WOT", 1); XJ = E("XJ", 0); XNT = E("XNT", 1); G0H = E("G0H", 0); FLAG1 = E("FLAG1", 0); LPT = E("LPT", 4); LATE = E("LATE", 1); PAD = E("PAD", 0xd00)
OUTF = os.environ.get("OUTF", "")
HOLDAT = os.environ.get("HOLDAT")

X = 0; XS = 1040
Q = 66560
OP = 74752
RING = 107520
LT = 156672
MISC = 160768
WKV = OP; WQB = OP + 16384
WPHI = Q
NONCE = MISC; CONS = MISC + 16; SYNC = MISC + 64
GATE = MISC + 2048
LDS_BYTES = 163840
WS_KV = 0; WS_KVF = 0x20000; WS_G = 0x30000; WS_DIAG = 0x40000; WS_F = 0x80000
WS_PART = 0x100000; WS_O = 0x400000; WS_L = 0x800000; WS_SIZE = 0x900000
KVF_STRIDE = 1152; PREC = 320
F_KV, F_F2, F_F3, F_OB, F_OA = 0, 1, 2, 3, 4
FP = 0x8000
pX, pWQ, pWK, pWV, pWOA, pBX, pWQKV, pWPHI, pWOB, pGATE, pOUT, pDBG, pWS = [4 + 2 * i for i in range(13)]
sX, sWQ, sWKV, sWB, sWOA, sWOB, sWS, sOUT, sDBG, sSM = [32 + 4 * i for i in range(10)]
sW, sRB, sHG, sL, sNON, sBUD, sS, sI, sP = 72, 73, 74, 75, 76, 77, 78, 79, 80
t0, t1, t2, t3, t4, t5 = 81, 82, 83, 84, 85, 86
sJ = 87; sRET = 88
sL2E = 90
sFL = 92
sD0, sD1 = 93, 94
sPF = 95
sST = 4
LOG2E = 0x3fb8aa3b
QSCALE = 0x3eb8aa3b
ONES = 0x3f803f80

a = Asm()
role = ["E"]
XST = os.environ.get("XST", "").split(",") if os.environ.get("XST") else []
def xs(name):
    if DIAG and name in XST: a(f"s_memrealtime {sr(sST + 2 * XST.index(name), 2)}")
YST = os.environ.get("YST", "").split(",") if os.environ.get("YST") else []
YB = 48
YREG = [48, 50, 52, 54, 60, 62, 88, 90, 96, 98]
def ys(name):
    if DIAG and name in YST: a(f"s_memrealtime {sr(YREG[YST.index(name)], 2)}")
def stamp(n):
    if DIAG and YST and role[0] == "A": ys(f"a{n}")
    elif DIAG and XST and role[0] == "S": xs(f"s{n}")
    elif DIAG: a(f"s_memrealtime {sr(sST + 2 * n, 2)}")
    if HOLDAT == f"{role[0]}{n}": a("s_memrealtime s[100:101]")
def hold():
    if HOLDAT and (HOLDAT[0] == role[0] or (HOLDAT[0] == "E" and role[0] == "S")):
        l = a.lab("hold")
        a(f"{l}:\ns_memrealtime s[96:97]\ns_waitcnt lgkmcnt(0)\ns_sub_u32 s96, s96, s100\ns_cmp_lt_u32 s96, 4000\ns_cbranch_scc1 {l}")
def srd(d, p, size):
    a(f"s_mov_b32 s{d}, s{p}\ns_mov_b32 s{d+1}, s{p+1}\ns_mov_b32 s{d+2}, {hex(size)}\ns_mov_b32 s{d+3}, 0x20000")
def budget(done):
    a(f"s_cmp_eq_u32 s{sBUD}, 0\ns_cbranch_scc1 {done}\ns_sub_u32 s{sBUD}, s{sBUD}, 1")
cold = []
def emit_cold():
    while cold: cold.pop(0)()
def poll_issue(vaddr, vtmp, plane):
    a(f"s_mov_b32 s{t0}, {WS_F + plane*FP}\nbuffer_load_dword v{vtmp}, v{vaddr}, {sr(sWS,4)}, s{t0} offen sc1")
def poll_check(vaddr, vtmp, plane, nap=4):
    lp, dn = a.lab("pf"), a.lab("pfd")
    a(f"v_cmp_ne_u32 vcc, s{sNON}, v{vtmp}\ns_cbranch_vccnz {lp}\n{dn}:")
    def slow():
        a(f"{lp}:"); budget(dn)
        if nap: a(f"s_sleep {nap}")
        poll_issue(vaddr, vtmp, plane)
        a(f"s_waitcnt vmcnt(0)\nv_cmp_ne_u32 vcc, s{sNON}, v{vtmp}\ns_cbranch_vccnz {lp}\ns_branch {dn}")
    cold.append(slow)
def put_flag(soff, vnon, vl4):
    a(f"s_mov_b32 exec_hi, 0\nbuffer_store_dword v{vnon}, v{vl4}, {sr(sWS,4)}, s{soff} offen sc1\ns_mov_b32 exec_hi, -1")
def diag_dump(n):
    if not DIAG: return
    a("s_waitcnt lgkmcnt(0)")
    a(f"s_lshl_b32 s{t0}, s{sL}, 3\ns_add_u32 s{t0}, s{t0}, s{sW}\ns_lshl_b32 s{t0}, s{t0}, 6\ns_add_u32 s{t0}, s{t0}, {WS_DIAG}")
    a("v_mov_b32 v8, 0")
    for i in range(14):
        a(f"v_writelane_b32 v8, s{YREG[i] if (YST and role[0] == 'A' and i < len(YST)) else sST+2*i}, {i}")
    a("v_writelane_b32 v8, s100, 14\nv_writelane_b32 v8, s31, 15")
    a(f"""v_mbcnt_lo_u32_b32 v9, -1, 0
    v_mbcnt_hi_u32_b32 v9, -1, v9
    v_lshlrev_b32 v9, 2, v9
    s_mov_b64 exec, 0xffff
    buffer_store_dword v8, v9, {sr(sWS,4)}, s{t0} offen
    s_mov_b64 exec, -1""")
def dma_lane_addrs():
    a(f"""v_lshrrev_b32 v11, 3, v0
    v_and_b32 v12, 7, v0
    v_lshrrev_b32 v13, 2, v0
    v_and_b32 v13, 4, v13
    v_xor_b32 v12, v12, v13
    v_lshlrev_b32 v12, 4, v12
    v_lshl_add_u32 v9, v11, 10, v12
    v_mul_u32_u24 v8, 3072, v11
    v_add_u32 v8, v8, v12""")
def xrows(n, mod=""):
    for r in range(n):
        a(f"s_add_u32 m0, s{sD0}, {X + (r//4)*4*XS + (r%4)*16}")
        if r % 4 == 0 and r: a(f"s_add_u32 s{sD1}, s{sD1}, 4096")
        a(f"buffer_load_dwordx4 v10, {sr(sX,4)}, s{sD1} offen offset:{(r%4)*1024} {mod} lds")
X0, X1, X2, X3 = X, X + 16384, X + 32768, X + 49152
R0, R1, R2 = RING, RING + 16384, RING + 32768
STG = [X0, X1, X2, X3, R0, R1, R2, X0,   X1, X2, X3, R0,   X0, R1, R2, R0]
W_KV, W_Q, W_G, W_OB = 0, 1, 2, 6
nword = [7]
G1 = MISC + 512

def fin_body(pk, fb, nap):
    FO, FL, vT, vONE, vGF, FOUT, vL16 = 104, 136, 3, 1, 233, 244, 10
    lp, dn = a.lab("fw"), a.lab("fwd")
    a(f"{lp}:\nds_read_b32 v{vT}, v14 offset:128\ns_waitcnt lgkmcnt(0)\nv_cmp_gt_u32 vcc, s{t1}, v{vT}\ns_cbranch_vccz {dn}")
    budget(dn)
    if nap: a(f"s_sleep {nap}")
    a(f"s_branch {lp}\n{dn}:")
    xs("f0")
    for w in range(4):
        a(f"ds_read_b128 {vr(FO+8*w,4)}, v{FL+4} offset:{w*2048}\nds_read_b128 {vr(FO+8*w+4,4)}, v{FL+4} offset:{w*2048+1024}\nds_read_b32 v{FL+w}, v15 offset:{w*256}")
    def add2(d, x, y):
        if pk: a(f"v_pk_add_f32 {vr(d,2)}, {vr(x,2)}, {vr(y,2)}")
        else: a(f"v_add_f32 v{d}, v{x}, v{y}\nv_add_f32 v{d+1}, v{x+1}, v{y+1}")
    if pk:
        a(f"ds_write_b32 v13, v{vONE}\ns_waitcnt lgkmcnt(1)")
        xs("f1")
        for r in range(0, 8, 2): add2(FO + r, FO + r, FO + 8 + r); add2(FO + 16 + r, FO + 16 + r, FO + 24 + r)
    else:
        a("s_waitcnt lgkmcnt(6)")
        for r in range(0, 8, 2): add2(FO + r, FO + r, FO + 8 + r)
        a("s_waitcnt lgkmcnt(0)")
        for r in range(0, 8, 2): add2(FO + 16 + r, FO + 16 + r, FO + 24 + r)
    add2(FL, FL, FL + 2)
    for r in range(0, 8, 2): add2(FO + r, FO + r, FO + 16 + r)
    a(f"v_add_f32 v{FO+8}, v{FL}, v{FL+1}")
    if pk:
        a(f"""v_pk_mul_f32 {vr(FO+10,2)}, {vr(FO,2)}, 0 op_sel_hi:[1,0]
        v_pk_fma_f32 {vr(FO+10,2)}, {vr(FO+2,2)}, 0, {vr(FO+10,2)} op_sel_hi:[1,0,1]
        v_pk_fma_f32 {vr(FO+10,2)}, {vr(FO+4,2)}, 0, {vr(FO+10,2)} op_sel_hi:[1,0,1]
        v_pk_fma_f32 {vr(FO+10,2)}, {vr(FO+6,2)}, 0, {vr(FO+10,2)} op_sel_hi:[1,0,1]
        v_add_f32 v{FO+10}, v{FO+10}, v{FO+11}
        v_add_f32 v{FO+10}, v{FO+10}, v{FO+8}""")
    else:
        a(f"v_fma_f32 v{FO+10}, v{FO}, 0, v{FO+8}")
        for r in range(1, 8): a(f"v_fma_f32 v{FO+10}, v{FO+r}, 0, v{FO+10}")
    a(f"""v_cmp_nle_f32 vcc, {hex((127-40)<<23)}, v{FO+10}
    s_cbranch_vccnz {fb}
    v_cmp_nge_f32 vcc, {hex((127+60)<<23)}, v{FO+10}
    s_cbranch_vccnz {fb}""")
    if FORCE_FB: a(f"s_branch {fb}")
    if pk: a("L_fin_norm:")
    a(f"v_rcp_f32 v{FO+8}, v{FO+8}\nv_mul_f32 v{FO+8}, v{FO+8}, v{vGF}")
    for r in range(0, 8, 2):
        if pk: a(f"v_pk_mul_f32 {vr(FO+r,2)}, {vr(FO+r,2)}, {vr(FO+8,2)} op_sel_hi:[1,0]")
        else: a(f"v_mul_f32 v{FO+r}, v{FO+r}, v{FO+8}\nv_mul_f32 v{FO+r+1}, v{FO+r+1}, v{FO+8}")
    for r in range(4): a(f"v_cvt_pk_bf16_f32 v{FOUT+r}, v{FO+2*r}, v{FO+2*r+1}")
    for r in range(4): a(f"v_min_u32 v{FOUT+r}, -2, v{FOUT+r}")
    xs("f2")
    if not pk: a(f"buffer_store_dwordx4 {vr(FOUT,4)}, v{vL16}, {sr(sWS,4)}, s{t2} offen offset:3072")
    a(f"buffer_store_dwordx4 {vr(FOUT,4)}, v{vL16}, {sr(sWS,4)}, s{t4} offen sc1")
    xs("f3")

if HOLDAT or DIAG: a("s_memrealtime s[100:101]")
a(f"""s_cmp_ge_u32 s2, 256
s_cbranch_scc1 L_exit
s_load_dwordx16 s[4:19], s[0:1], 0
s_load_dwordx8 s[20:27], s[0:1], 64
s_load_dwordx2 s[28:29], s[0:1], 96
v_lshrrev_b32 v1, 6, v0
v_and_b32 v0, 63, v0
v_readfirstlane_b32 s{sW}, v1""")
a(f"""s_and_b32 s{t0}, s2, 7
s_lshr_b32 s{t1}, s2, 3""")
if MAP == 0:
    a(f"""s_lshr_b32 s{t2}, s{t0}, 1
    s_lshl_b32 s{t2}, s{t2}, 3
    s_lshr_b32 s{t3}, s{t1}, 2
    s_add_u32 s{sRB}, s{t2}, s{t3}
    s_and_b32 s{t2}, s{t0}, 1
    s_lshl_b32 s{t2}, s{t2}, 2
    s_and_b32 s{t5}, s{t1}, 3
    s_add_u32 s{sHG}, s{t2}, s{t5}""")
else:
    a(f"""s_lshl_b32 s{t2}, s{t0}, 2
    s_lshr_b32 s{t3}, s{t1}, 3
    s_add_u32 s{sRB}, s{t2}, s{t3}
    s_and_b32 s{sHG}, s{t1}, 7
    s_and_b32 s{t5}, s{t1}, 3""")
def ids():
    a(f"""s_lshl_b32 s{sL}, s{sRB}, 3
    s_add_u32 s{sL}, s{sL}, s{sHG}
    s_mov_b32 s{sBUD}, 400000
    s_lshl_b32 s{sFL}, s{sL}, 7
    s_add_u32 s{sFL}, s{sFL}, {WS_F}""")
a(f"""v_lshlrev_b32 v10, 4, v0
s_cmp_lg_u32 s{sW}, 0
s_cbranch_scc1 L_w17""")
def others():
    a(f"L_w17:\ns_cmp_eq_u32 s{sW}, 3\ns_cbranch_scc1 L_aw3\ns_cmp_lt_u32 s{sW}, 3\ns_cbranch_scc1 L_aw12")
    if CPF:
        a(f"""s_getpc_b64 s[{sSM}:{sSM+1}]
        L_pc:
        s_lshl_b32 s{t0}, s{t1}, 2
        s_add_u32 s{t0}, s{t0}, s{sW}
        s_sub_u32 s{t0}, s{t0}, 3
        s_lshl_b32 s{t0}, s{t0}, 8
        s_min_u32 s{t0}, s{t0}, CODE_END - L_pc - 256
        s_add_u32 s{sSM}, s{sSM}, s{t0}
        s_addc_u32 s{sSM+1}, s{sSM+1}, 0
        s_load_dword s96, s[{sSM}:{sSM+1}], 0
        s_load_dword s97, s[{sSM}:{sSM+1}], 64
        s_load_dword s98, s[{sSM}:{sSM+1}], 128
        s_load_dword s99, s[{sSM}:{sSM+1}], 192""")
    a("s_branch L_sw")
    a(f"""L_aw3:
    s_cmp_lg_u32 s2, 0
    s_cbranch_scc1 L_nononce
    s_memrealtime s[{t1}:{t2}]
    v_mov_b32 v13, 0
    s_waitcnt lgkmcnt(0)
    s_or_b32 s{t1}, s{t1}, 1
    v_mov_b32 v14, s{t1}
    s_mov_b64 exec, 1
    global_store_dword v13, v14, s[{pDBG}:{pDBG+1}] sc1
    s_mov_b64 exec, -1
    L_nononce:
    s_lshl_b32 s{t0}, s{sHG}, 11
    v_add_u32 v11, s{t0}, v10
    s_lshl_b32 s{t0}, s2, 11
    v_lshl_add_u32 v12, v0, 7, s{t0}
    s_lshl_b32 s{t0}, s2, 7
    s_add_u32 s{t0}, s{t0}, {WS_KVF}
    v_lshl_add_u32 v13, v0, 15, s{t0}
    s_lshl_b32 s{t0}, s{sRB}, 7
    s_add_u32 s{t0}, s{t0}, {WS_F}
    v_writelane_b32 v13, s{t0}, 2
    s_waitcnt lgkmcnt(0)
    s_mov_b32 m0, {WPHI}
    s_mov_b64 exec, 0xffff""")
    if WQT == 1: a(f"global_load_dword v20, v12, s[{pWQ}:{pWQ+1}]")
    a(f"""s_mov_b64 exec, 7
    global_load_dword v21, v13, s[{pWS}:{pWS+1}]
    s_mov_b64 exec, -1
    global_load_lds_dwordx4 v11, s[{pWPHI}:{pWPHI+1}]
    global_load_lds_dwordx4 v11, s[{pWPHI}:{pWPHI+1}] offset:1024
    s_branch L_aw3b""")
role[0] = "A"
S0, S1, O_, QR, KR, VR = 12, 28, 44, 60, 64, 128
vIDX, vZ, vQA, vPA, vLA, vCA, vCV = 1, 2, 4, 5, 6, 7, 8
JX, JW, JA = KR, KR + 64, O_
aNON = O_ + 8
def vconst():
    a(f"""v_and_b32 v12, 11, v0
    v_cmp_eq_u32 vcc, 0, v12
    v_mov_b32 v13, {hex(ONES)}
    v_cndmask_b32 v12, 0, v13, vcc
    v_cndmask_b32 v13, 0, v13, vcc""")
    for t in range(16): a(f"v_mov_b64 {vr(VR+8*t+4,2)}, v[12:13]\nv_mov_b64 {vr(VR+8*t+6,2)}, v[12:13]")
a(f"""s_mul_i32 s{sD0}, s{t5}, {16*XS}
s_lshl_b32 s{sD1}, s{sRB}, 16
s_lshl_b32 s{t2}, s{t5}, 14
s_add_u32 s{sD1}, s{sD1}, s{t2}
s_mov_b32 m0, {GATE}
s_waitcnt lgkmcnt(0)""")
ys("ka")
a(f"global_load_lds_dwordx4 v10, s[{pGATE}:{pGATE+1}]")
srd(sX, pX, 0x200000)
xrows(16, "nt" if XNT else "")
ys("xi")
a(f"s_bitcmp1_b32 s{sHG}, 2\ns_cselect_b32 s{sWKV}, s{pWV}, s{pWK}\ns_cselect_b32 s{sWKV+1}, s{pWV+1}, s{pWK+1}\ns_mov_b32 s{sWKV+2}, 0x4000\ns_mov_b32 s{sWKV+3}, 0x20000")
for n in range(16):
    if n % 4 == 0: a(f"s_mov_b32 m0, {WKV + n*1024}\ns_mov_b32 s{t1}, {n*1024}")
    a(f"buffer_load_dwordx4 v10, {sr(sWKV,4)}, s{t1} offen offset:{(n%4)*1024} lds")
NTQ = 0
if WQT == 2:
    NTQ = 2 if MAP else 1
    a(f"""s_and_b32 s{t0}, s{sRB}, {3 if MAP else 7}
    s_lshl_b32 s{t0}, s{t0}, {17 if MAP else 16}
    s_lshl_b32 s{t1}, s{sHG}, 7
    s_add_u32 s{t0}, s{t0}, s{t1}
    v_lshl_add_u32 v12, v0, 10, s{t0}
    global_load_dword v24, v12, s[{pWQ}:{pWQ+1}]""")
    if MAP: a(f"v_add_u32 v12, 0x10000, v12\nglobal_load_dword v24, v12, s[{pWQ}:{pWQ+1}]")
a("s_branch L_aw0b")
others()
a("L_aw0b:")
ids()
srd(sWS, pWS, WS_SIZE); srd(sDBG, pDBG, 256)
stamp(0)
a(f"""v_and_b32 v16, 15, v0
v_lshrrev_b32 v14, 4, v0
s_lshl_b32 s{t0}, s{t5}, 4
v_add_u32 v13, s{t0}, v16
v_mul_u32_u24 v15, {XS}, v13
v_lshl_add_u32 v15, v14, 4, v15
v_lshlrev_b32 v19, 3, v16
v_lshl_add_u32 v19, v14, 8, v19
v_add_u32 v19, {WKV}, v19
s_lshr_b32 s{t0}, s{t5}, 1
s_lshl_b32 s{t1}, s{sRB}, 1
s_add_u32 s{t0}, s{t0}, s{t1}
s_lshl_b32 s{t0}, s{t0}, 11
s_and_b32 s{t1}, s{t5}, 1
s_lshl_b32 s{t1}, s{t1}, 8
s_add_u32 s{t4}, s{t0}, s{t1}
v_and_b32 v17, 1, v14
v_lshrrev_b32 v18, 1, v14
v_lshlrev_b32 v25, 4, v14
v_add_u32 v25, {GATE}, v25
v_lshlrev_b32 v26, 2, v0
s_lshl_b32 s{t3}, s{sL}, 6
s_add_u32 s{t3}, s{t3}, {WS_G}
s_waitcnt vmcnt({32 + NTQ})""")
JG = KR + 128
for n in range(16): a(f"ds_read_b128 {vr(JG+4*n,4)}, v25 offset:{n*64}")
a(f"s_bitcmp1_b32 s{sHG}, 2\ns_cbranch_scc1 L_job_v")
def job(isv):
    a(f"v_lshlrev_b32 v20, 9, v{18 if isv else 17}\nv_lshl_add_u32 v17, v16, 4, v20")
    if isv: a(f"s_add_u32 s{t4}, s{t4}, 1024")
    ys("j0")
    a(f"s_waitcnt vmcnt({16 + NTQ})")
    ys("xl")
    for n in range(16): a(f"ds_read_b128 {vr(JX+4*n,4)}, v15 offset:{n*64}")
    def grp(gq):
        a(f"s_waitcnt vmcnt({12 - 4*gq + NTQ})")
        if gq == 3: ys("wl")
        if gq == HAT: a("s_barrier")
        for n in range(4 * gq, 4 * gq + 4):
            a(f"ds_read_b64_tr_b16 {vr(JW+4*n,2)}, v19 offset:{n*1024}")
            a(f"ds_read_b64_tr_b16 {vr(JW+4*n+2,2)}, v19 offset:{n*1024+128}")
    def mm(gq):
        for n in range(4 * gq, 4 * gq + 4):
            A, B = (JX, JW) if isv else (JW, JX)
            a(f"v_mfma_f32_16x16x32_bf16 {vr(JA,4)}, {vr(A+4*n,4)}, {vr(B+4*n,4)}, {'0' if n == 0 else vr(JA,4)}")
        for n in {0: range(0, 8), 1: range(8, 16)}.get(gq, []):
            a(f"v_mfma_f32_16x16x32_bf16 {vr(JA+4,4)}, {vr(JG+4*n,4)}, {vr(JX+4*n,4)}, {'0' if n == 0 else vr(JA+4,4)}")
    grp(0)
    for gq in range(4):
        if gq < 3: grp(gq + 1); a("s_waitcnt lgkmcnt(8)")
        else: a(f"buffer_load_dword v{aNON}, off, {sr(sDBG,4)}, 0 sc1\ns_waitcnt lgkmcnt(0)")
        mm(gq)
    sw = "v_permlane16_swap_b32" if isv else "v_permlane32_swap_b32"
    a(f"""v_cvt_pk_bf16_f32 v20, v{JA}, v{JA+1}
    v_cvt_pk_bf16_f32 v21, v{JA+2}, v{JA+3}
    {sw} v20, v22
    {sw} v21, v23""")
    a("s_mov_b32 exec_lo, 0xffff\ns_mov_b32 exec_hi, 0xffff" if isv else "s_mov_b32 exec_hi, 0")
job(False)
a("s_branch L_job_st\nL_job_v:")
job(True)
a("L_job_st:")
a(f"""buffer_store_dwordx4 v[20:23], v17, {sr(sWS,4)}, s{t4} offen sc1
s_mov_b64 exec, 0xffff
buffer_store_dword v{JA+4}, v26, {sr(sWS,4)}, s{t3} offen sc1
s_mov_b64 exec, -1""")
stamp(8)
if HAT == 4: a("s_barrier")
def job_flag():
    lp, dn = a.lab("np"), a.lab("npd")
    a(f"""s_lshl_b32 s{t0}, s{sRB}, 7
    s_lshl_b32 s{t1}, s{sHG}, 2
    s_add_u32 s{t0}, s{t0}, s{t1}
    s_add_u32 s{t0}, s{t0}, {WS_F}""")
    if "nn" in YST: a("s_waitcnt vmcnt(1)"); ys("nn")
    a("s_waitcnt vmcnt(0)"); ys("ack")
    a(f"""v_cmp_eq_u32 vcc, 0, v{aNON}
    s_cbranch_vccnz {lp}
    {dn}:
    s_mov_b64 exec, 1
    buffer_store_dword v{aNON}, off, {sr(sWS,4)}, s{t0} sc1
    s_mov_b64 exec, -1""")
    a(f"v_mov_b32 v13, {NONCE}\nds_write_b32 v13, v{aNON}\ns_waitcnt lgkmcnt(0)")
    stamp(9)
    def slow():
        a(f"{lp}:"); budget(dn)
        a(f"""buffer_load_dword v{aNON}, off, {sr(sDBG,4)}, 0 sc1
        s_waitcnt vmcnt(0)
        v_cmp_eq_u32 vcc, 0, v{aNON}
        s_cbranch_vccnz {lp}
        s_branch {dn}""")
    cold.append(slow)
def aw_poll():
    a(f"s_lshl_b32 s{t1}, s{sW}, 10\nv_lshrrev_b32 v11, 3, v0\nv_lshl_add_u32 v11, v11, 7, s{t1}\nv_and_b32 v14, 7, v0\nv_lshl_add_u32 v11, v14, 2, v11")
    poll_issue(11, S1, F_KV)
def aw_wait(word, target, nap=0):
    lp, dn = a.lab("aw"), a.lab("awd")
    a(f"""{lp}:
    ds_read_b32 v14, v9 offset:{SYNC - NONCE + 4*word}
    s_waitcnt lgkmcnt(0)
    v_cmp_gt_u32 vcc, {target}, v14
    s_cbranch_vccz {dn}""")
    budget(dn)
    if nap: a(f"s_sleep {nap}")
    a(f"s_branch {lp}\n{dn}:")
def aw_signal(word):
    a(f"s_mov_b64 exec, 1\nds_add_u32 v9, v{vCV} offset:{SYNC - NONCE + 4*word}\ns_mov_b64 exec, -1")
if FLAG1: job_flag()
a("s_barrier")
stamp(1)
if not FLAG1: job_flag()
a("s_branch L_aw03")

a("L_aw12:")
ids()
dma_lane_addrs()
a(f"""v_mov_b32 v11, v9
s_sub_u32 s{sS}, s{sW}, 1
s_lshl_b32 s{t3}, s{sS}, 13
s_lshl_b32 s{t4}, s{sS}, 16
s_lshl_b32 s{t2}, s{sHG}, 7
s_add_u32 s{t4}, s{t4}, s{t2}
s_mul_i32 s{sP}, s{sS}, 3
s_lshl_b32 s{t0}, s{t5}, 1
s_add_u32 s{sP}, s{sP}, s{t0}
s_add_u32 s{sP}, s{sP}, 2
v_mov_b32 v9, {NONCE}
v_mov_b32 v{vCV}, 1
s_waitcnt lgkmcnt(0)""")
srd(sX, pX, 0x200000); srd(sWQ, pWQ, 0x80000); srd(sWS, pWS, WS_SIZE)
vconst()
AV = Cnt(63)
for gq in range(3):
    a(f"""s_add_u32 s{t0}, s{sP}, {gq}
    s_and_b32 s{t0}, s{t0}, 7
    s_lshl_b32 s{sD1}, s{sRB}, 16
    s_lshl_b32 s{t2}, s{t0}, 13
    s_add_u32 s{sD1}, s{sD1}, s{t2}
    s_mul_i32 s{sD0}, s{t0}, {8*XS}""")
    if gq == 0:
        a("s_barrier")
        stamp(0)
    xrows(8)
def ld_wq(g):
    for n in range(8):
        a(f"s_add_u32 m0, s{t3}, {WQB + ((g + 1) % 4)*16384 + n*1024}\ns_add_u32 s{t1}, s{t4}, {g*131072 + n*8192}")
        a(f"buffer_load_dwordx4 v11, {sr(sWQ,4)}, s{t1} offen lds")
    AV.issue(g, 8)
for g_ in range(WQE): ld_wq(g_)
ys("j0")
a(f"s_waitcnt vmcnt({AV.need(0) if G0H else 8*WQE})")
ys("xl")
a("s_barrier")
stamp(1)
for g_ in range(WQE, 2): ld_wq(g_)
for b in range(4):
    if not LATE and max(WQE, 2) + b < 4: ld_wq(max(WQE, 2) + b)
    if not (G0H and b == 0):
        a(f"s_waitcnt vmcnt({AV.need(b)})")
        aw_signal(W_G + b)
    ys(f"l{b}")
    if LATE and max(WQE, 2) + b < 4: ld_wq(max(WQE, 2) + b)
a("s_branch L_aw_all")

a("L_aw3b:")
ids()
srd(sWS, pWS, WS_SIZE)
stamp(0)
a(f"""v_mov_b32 v24, 0
v_mov_b32 v25, 0
v_mov_b32 v26, 0
v_mov_b32 v27, 0
v_add_u32 v13, {LT}, v10""")
for n in range(4): a(f"ds_write_b128 v13, v[24:27] offset:{n*1024}")
a(f"""v_lshlrev_b32 v13, 2, v0
v_add_u32 v13, {MISC}, v13
v_lshrrev_b32 v14, 2, v0
v_cmp_eq_u32 vcc, 1, v14
v_cndmask_b32 v14, 0, v14, vcc
ds_write_b32 v13, v14""")
a("s_waitcnt lgkmcnt(0)\ns_barrier")
a("s_waitcnt vmcnt(0)\ns_barrier")
stamp(1)
a("L_aw03:")
vconst()
a(f"v_mov_b32 v9, {NONCE}\nv_mov_b32 v{vCV}, 1")
aw_wait(W_G + POLLAT, 2, nap=2)

a("L_aw_all:")
aw_poll()
stamp(2)
aw_wait((NONCE - SYNC) // 4, 1)
a(f"s_lshl_b32 s{t4}, s{sW}, 15")
if ROT: a(f"s_lshr_b32 s{t2}, s2, 3\ns_and_b32 s{t2}, s{t2}, 7\ns_lshl_b32 s{t2}, s{t2}, 12\ns_add_u32 s{t4}, s{t4}, s{t2}")
a(f"v_readfirstlane_b32 s{sNON}, v14\ns_waitcnt vmcnt(0)")
poll_check(11, S1, F_KV, nap=2)
stamp(3)
kvn = [0]
def kvload(k):
    for _ in range(k):
        n = kvn[0]; t = n // 2
        if n == 32: return
        if n % 4 == 0: a(f"s_xor_b32 s{t3}, s{t4}, {t*2048}")
        a(f"buffer_load_dwordx4 {vr(VR+8*t if n % 2 else KR+4*t,4)}, v10, {sr(sWS,4)}, s{t3} offen offset:{(n%4)*1024} sc1")
        kvn[0] += 1
kvload(2 * PRE)
a(f"""s_lshl_b32 s{t0}, s{sW}, 11
s_add_u32 s{t0}, s{t0}, {OP}
v_add_u32 v{vPA}, s{t0}, v10
v_add_u32 v{vQA}, {Q}, v10
s_lshl_b32 s{t0}, s{sW}, 8
s_add_u32 s{t0}, s{t0}, {LT}
v_and_b32 v{vLA}, 31, v0
v_lshl_add_u32 v{vLA}, v{vLA}, 2, s{t0}
v_mov_b32 v{vCA}, {CONS}
v_mov_b32 v{vIDX}, 0xdddd
v_mov_b32 v{vZ}, 0
v_mov_b32 v{vZ+1}, 0""")
aw_wait(W_Q, 4, nap=E("QNAP", 1))
a(f"ds_read_b128 {vr(QR,4)}, v{vQA}\ns_setprio 1")
stamp(4)
def zero_o(): a(f"v_mfma_f32_32x32x8_bf16 {vr(O_,16)}, {vr(vZ,2)}, {vr(vZ,2)}, 0")
def qk(t, S): a(f"v_mfma_f32_32x32x16_bf16 {vr(S,16)}, {vr(KR+4*t,4)}, {vr(QR,4)}, 0")
def pv(t, s, S): a(f"v_smfmac_f32_32x32x32_bf16 {vr(O_,16)}, {vr(VR+8*t+4*s,4)}, {vr(S+8*s,8)}, v{vIDX}")
def flush():
    lp, dn = a.lab("cw"), a.lab("cwd")
    a(f"v_cmp_eq_u32 vcc, 0, v{vCV}\ns_cbranch_vccnz {lp}")
    def slow():
        a(f"{lp}:"); budget(dn)
        a(f"""s_sleep 1
        ds_read_b32 v{vCV}, v{vCA}
        s_waitcnt lgkmcnt(0)
        v_cmp_eq_u32 vcc, 0, v{vCV}
        s_cbranch_vccnz {lp}
        s_branch {dn}""")
    cold.append(slow)
    a(f"""{dn}:
    ds_write_b128 v{vPA}, {vr(O_,4)}
    ds_write_b128 v{vPA}, {vr(O_+4,4)} offset:1024
    ds_write2_b32 v{vLA}, v{O_+8}, v{vQA} offset0:0 offset1:32""")
def apass(first):
    for t in range(16):
        S, Sn = (S0, S1) if t % 2 == 0 else (S1, S0)
        for e in range(16):
            if e == 2 and not (first and t == 0): pv((t - 1) % 16, 1, Sn)
            if e == 5:
                if first and t < 15: assert kvn[0] > 2*(t+1); a(f"s_waitcnt vmcnt({kvn[0] - 1 - 2*(t + 1)})")
                if t == 15: a("s_waitcnt lgkmcnt(0)" if not first else "s_waitcnt vmcnt(0) lgkmcnt(0)")
                qk((t + 1) % 16, Sn)
                if t == 14:
                    a(f"v_add_u32 v{vQA}, 1024, v{vQA}\nds_read_b128 {vr(QR,4)}, v{vQA}\nds_read_b32 v{vCV}, v{vCA}")
            if e == 8 and first:
                for r in range(4): a(f"v_permlane16_swap_b32 v{VR+8*t+r}, v{VR+8*t+4+r}")
                kvload(LPT)
                if t == SIGT: aw_signal(W_KV)
            if e == 13 and t == 0 and not first:
                flush(); zero_o()
            if e == 15: pv(t, 0, S)
            a(f"v_exp_f32 v{S+e}, v{S+e}")
        if t == 0 and not first:
            a(f"""s_add_u32 s{sJ}, s{sJ}, 1
            s_cmp_eq_u32 s{sJ}, 4
            s_cselect_b32 s{t0}, -3, 1
            v_lshl_add_u32 v{vPA}, s{t0}, 13, v{vPA}
            v_lshl_add_u32 v{vLA}, s{t0}, 10, v{vLA}
            v_add_u32 v{vCA}, 4, v{vCA}""")
zero_o()
a(f"s_mov_b32 s{sJ}, 0\ns_waitcnt vmcnt({2*PRE-1}) lgkmcnt(0)")
qk(0, S0)
stamp(5)
apass(True)
stamp(6)
if DIAG and not YST: a(f"s_memtime s[96:97]\ns_mov_b32 s31, s{sBUD}")
a(".p2align 6\nL_aloop:")
apass(False)
if DIAG and os.environ.get("PASSST"):
    for n, sl in zip(range(1, 7), (0, 1, 2, 3, 4, 11)):
        l = a.lab("st")
        a(f"s_cmp_lg_u32 s{sJ}, {n}\ns_cbranch_scc1 {l}"); stamp(sl); a(f"{l}:")
a(f"s_cmp_lt_u32 s{sJ}, 7\ns_cbranch_scc1 L_aloop")
pv(15, 1, S1)
if not NOB:
    a(f"""v_lshlrev_b32 v251, 2, v0
    v_add_u32 v13, {G1}, v251
    ds_read_b32 v11, v9 offset:{SYNC - NONCE + 4*W_OB}
    ds_read_b32 v233, v13
    v_and_b32 v14, 3, v0
    v_lshlrev_b32 v14, 8, v14
    v_add_u32 v14, {LT + 3*1024}, v14
    v_and_b32 v15, 124, v251
    v_add_u32 v15, {LT + 3*1024}, v15
    v_add_u32 v140, {OP + 3*8192}, v10""")
else: a("s_nop 9")
flush()
stamp(7)
if DIAG and not YST: a("s_memtime s[98:99]\ns_waitcnt lgkmcnt(0)\ns_sub_u32 s30, s98, s96\ns_sub_u32 s31, s31, s77")
if not NOB:
    lp, dn = a.lab("ob"), a.lab("obd")
    a(f"""s_setprio 3
    s_cmp_lg_u32 s{sW}, {E("FINW", 3)}
    s_cbranch_scc1 L_aw_end
    s_lshl_b32 s{t0}, s{sRB}, 7
    s_lshl_b32 s{t1}, s{sHG}, 2
    s_add_u32 s{t0}, s{t0}, s{t1}
    s_lshl_b32 s{t4}, s{t0}, 10
    s_add_u32 s{t4}, s{t4}, {WS_O + 67*1024}
    s_mov_b32 s{t1}, {Q + 8*1024}
    s_lshl_b32 s{t2}, s{sL}, 12
    s_add_u32 s{t2}, s{t2}, {WS_L}
    s_waitcnt lgkmcnt(3)
    v_cmp_gt_u32 vcc, 4, v11
    s_cbranch_vccnz {lp}
    {dn}:""")
    fin_body(False, "L_aw_fb", 0)
    a("L_aw_end:")
    cold.append(lambda: a(f"L_aw_fb:\ns_call_b64 s[{sRET}:{sRET+1}], L_fb\ns_endpgm"))
    def slow():
        a(f"{lp}:"); budget(dn)
        a(f"""s_sleep 2
        ds_read_b32 v11, v9 offset:{SYNC - NONCE + 4*W_OB}
        ds_read_b32 v233, v13
        s_waitcnt lgkmcnt(0)
        v_cmp_gt_u32 vcc, 4, v11
        s_cbranch_vccnz {lp}
        s_branch {dn}""")
    cold.append(slow)
    stamp(10)
diag_dump(8)
hold()
a("s_endpgm")
emit_cold()

role[0] = "S"
vONE, vSY, vT = 1, 2, 3
vXA, vWX, vWO, vWOA, vD3, vD1, vL16, vGI, vGO = 4, 5, 6, 7, 8, 9, 10, 11, 12
WPH, PHQ, ACC, AC2, WB0, TMP = 16, 24, 40, 56, 72, 104
vNON, vGF, vLI, vPF = 232, 233, 234, 235
vSW, vSR, vSR2, vSV, vSVR = 236, 240, 241, 242, 243
FOUT = 244
vPO, vT2, vL4, vWP, vPR, vPC = 248, 249, 251, 252, 253, 254
XF = TMP; WR = WB0
VM, LG = Cnt(63), Cnt(15)
def wait(vm=None, lg=None):
    if isinstance(vm, tuple) and vm[0] == "st": assert (vm[1], 3) in issued, vm
    v = VM.need(vm) if vm is not None else None
    l = LG.need(lg) if lg is not None else None
    t = ([f"vmcnt({v})"] if v is not None else []) + ([f"lgkmcnt({l})"] if l is not None else [])
    if t: a("s_waitcnt " + " ".join(t))
def newword():
    nword[0] += 1; assert nword[0] <= 48; return nword[0] - 1
def arrive(w=None):
    w = newword() if w is None else w
    a(f"s_mov_b64 exec, 1\nds_add_u32 v{vSY}, v{vONE} offset:{4*w}\ns_mov_b64 exec, -1")
    LG.issue("arr")
    return w
def chk_read(w):
    a(f"ds_read_b32 v{vT}, v{vSY} offset:{4*w}"); LG.issue("chk")
def chk_test(w, target=4, lowprio=False, nap=0, near=False):
    dn, rt = a.lab("sbd"), a.lab("sbr")
    if near:
        wait(lg="chk")
        a(f"{rt}:\nv_readfirstlane_b32 s{t0}, v{vT}\ns_cmp_ge_u32 s{t0}, {target}\ns_cbranch_scc1 {dn}")
        budget(dn)
        a(f"ds_read_b32 v{vT}, v{vSY} offset:{4*w}\ns_waitcnt lgkmcnt(0)\ns_branch {rt}\n{dn}:")
        return
    if lowprio: a("s_setprio 2")
    wait(lg="chk")
    a(f"v_readfirstlane_b32 s{t0}, v{vT}\ns_cmp_lt_u32 s{t0}, {target}\ns_cbranch_scc1 {rt}\n{dn}:")
    if lowprio: a("s_setprio 0")
    def slow():
        a(f"{rt}:"); budget(dn)
        if nap: a(f"s_sleep {nap}")
        a(f"""ds_read_b32 v{vT}, v{vSY} offset:{4*w}
        s_waitcnt lgkmcnt(0)
        v_readfirstlane_b32 s{t0}, v{vT}
        s_cmp_lt_u32 s{t0}, {target}
        s_cbranch_scc1 {rt}
        s_branch {dn}""")
    cold.append(slow)
def check(w, target=4, nap=0): chk_read(w); chk_test(w, target, nap=nap)
class only:
    def __init__(s, reg, val): s.reg, s.val = reg, val
    def __enter__(s):
        s.l = a.lab("only"); a(f"s_cmp_lg_u32 s{s.reg}, {s.val}\ns_cbranch_scc1 {s.l}")
        s.sv = (list(VM.q), list(LG.q))
    def __exit__(s, *e):
        a(f"{s.l}:"); VM.q, LG.q = s.sv
def flag(plane): a(f"s_add_u32 s{t0}, s{sFL}, {plane*FP}"); put_flag(t0, vNON, vL4)
def call_fin(greg):
    a(f"v_mov_b32 v{vGF}, v{greg}\ns_call_b64 s[{sRET}:{sRET+1}], L_fin\ns_nop 1")
def dma_base(kind):
    a(f"s_lshl_b32 s{t1}, s{sHG}, 7")
    if kind == "kv":
        a(f"s_mul_i32 s{sD1}, s{sP}, {32*3072}\ns_add_u32 s{sD1}, s{sD1}, s{t1}\ns_lshl_b32 s{t1}, s{sI}, 10\ns_add_u32 s{sD1}, s{sD1}, s{t1}\ns_add_u32 s{sD1}, s{sD1}, 1024")
    elif kind == "q":
        a(f"s_mul_i32 s{sD1}, s{sS}, {32*3072}\ns_add_u32 s{sD1}, s{sD1}, s{t1}")
    else:
        a(f"s_lshl_b32 s{sD1}, s{sS}, 15\ns_add_u32 s{sD1}, s{sD1}, s{t1}")
def dma_one(c, n):
    if n == 0 and c in (8, 12): dma_base("q" if c == 8 else "o")
    if c < 8:   srdw, vo, base, step = sWB, vD3, c * 64 * 3072, 8 * 3072
    elif c < 12: srdw, vo, base, step = sWB, vD3, (c - 8) * 128 * 3072, 8 * 3072
    else:       srdw, vo, base, step = sWOB, vD1, (c - 12) * 128 * 1024, 8 * 1024
    a(f"s_add_u32 m0, s{sD0}, {STG[c] + n*1024}\ns_add_u32 s{t1}, s{sD1}, {base + n*step}")
    a(f"buffer_load_dwordx4 v{vo}, {sr(srdw,4)}, s{t1} offen lds")
    VM.issue(("st", c)); issued.add((c, n))
issued = set()
def dma_stage(c):
    for n in range(4): dma_one(c, n)
def rd_w(dst, vaddr, off, second, tag=None):
    a(f"ds_read_b64_tr_b16 {vr(dst,2)}, v{vaddr} offset:{off}\nds_read_b64_tr_b16 {vr(dst+2,2)}, v{vaddr} offset:{off+second}")
    LG.issue(tag, 2)
def rd_stage(dst, c, k, tag):
    if STG[c] < OP: rd_w(dst, vWX, STG[c] + k * 2048, 512, tag)
    else: rd_w(dst, vWP, STG[c] - WQB + k * 2048, 512, tag)

a(".p2align 6\nL_sw:")
ids()
a(f"""s_setprio 2
s_and_b32 s{sS}, s{sW}, 3
s_lshr_b32 s{sI}, s{sS}, 1
s_and_b32 s{sP}, s{sS}, 1""")
dma_lane_addrs()
SCP = R1
SCV = R2
assert SCP % 64 == 0 and X == 0
a(f"""v_and_b32 v11, 31, v0
s_lshl_b32 s{t0}, s{sI}, 5
v_add_u32 v13, s{t0}, v11
v_mul_u32_u24 v{vXA}, {XS}, v13
v_lshrrev_b32 v12, 5, v0
v_lshl_add_u32 v{vXA}, v12, 4, v{vXA}
v_and_b32 v13, 15, v0
v_lshrrev_b32 v16, 2, v13
v_lshlrev_b32 v14, 7, v16
v_lshrrev_b32 v15, 3, v13
v_xor_b32 v15, s{sP}, v15
v_lshl_add_u32 v14, v15, 6, v14
v_bfe_u32 v17, v0, 4, 1
v_lshl_add_u32 v14, v17, 5, v14
v_and_b32 v18, 3, v0
v_lshl_add_u32 v14, v18, 3, v14
v_lshl_add_u32 v{vWX}, v12, 10, v14
v_lshl_add_u32 v{vWOA}, v12, 9, v14
v_add_u32 v{vWP}, {WQB}, v{vWX}
v_add_u32 v{vWO}, {RING}, v{vWOA}
v_mov_b32 v{vONE}, 1
v_mov_b32 v{vSY}, {SYNC}
v_lshlrev_b32 v{vL4}, 2, v0
s_mov_b32 s{sL2E}, {hex(LOG2E)}
s_mov_b32 s{sL2E+1}, {hex(LOG2E)}
v_min_u32 v15, 16, v11
v_mad_u32_u24 v{vLI}, v12, 17, v15
v_lshlrev_b32 v{vLI}, 4, v{vLI}
v_mad_u32_u24 v15, v12, 20, v11
v_lshlrev_b32 v{vPR}, 3, v15
s_lshl_b32 s{t0}, s{sRB}, 10
v_and_b32 v{vPF}, 7, v0
v_lshlrev_b32 v{vPF}, 7, v{vPF}
v_add_u32 v{vPF}, s{t0}, v{vPF}
s_lshl_b32 s{t0}, s{sHG}, 7
v_lshlrev_b32 v{vPC}, 10, v11
v_add_u32 v{vPC}, s{t0}, v{vPC}
v_bfe_u32 v14, v0, 1, 3
v_xor_b32 v14, v14, v12
v_lshlrev_b32 v14, 3, v14
v_lshl_add_u32 v14, v11, 6, v14
s_lshl_b32 s{t0}, s{sI}, 11
s_lshl_b32 s{t1}, s{sP}, 13
s_add_u32 s{t0}, s{t0}, s{t1}
s_add_u32 s{t0}, s{t0}, {SCP}
v_add_u32 v{vSW}, s{t0}, v14
v_xor_b32 v{vSW+1}, 16, v{vSW}
v_xor_b32 v{vSW+2}, 32, v{vSW}
v_xor_b32 v{vSW+3}, 48, v{vSW}
v_lshl_add_u32 v15, v12, 2, v16
v_lshrrev_b32 v14, 1, v15
v_lshl_add_u32 v19, v17, 2, v18
v_xor_b32 v14, v14, v19
v_lshlrev_b32 v14, 3, v14
v_lshl_add_u32 v15, v15, 6, v14
s_lshl_b32 s{t3}, s{sP}, 1
s_add_u32 s{t3}, s{t3}, s{sI}
s_lshl_b32 s{t0}, s{t3}, 12
s_add_u32 s{t0}, s{t0}, {SCP}
v_add_u32 v{vSR}, s{t0}, v15
v_xor_b32 v{vSR2}, 32, v{vSR}
s_lshl_b32 s{t0}, s{sS}, 11
s_add_u32 s{t0}, s{t0}, {SCV}
v_add_u32 v{vSV}, s{t0}, v{vL16}
v_lshlrev_b32 v14, 4, v13
v_lshl_add_u32 v14, v12, 9, v14
s_lshl_b32 s{t0}, s{sP}, 11
s_lshl_b32 s{t1}, s{sI}, 8
s_add_u32 s{t0}, s{t0}, s{t1}
s_add_u32 s{t0}, s{t0}, {SCV}
v_add_u32 v{vSVR}, s{t0}, v14
v_lshlrev_b32 v{FOUT}, 3, v13
v_lshl_add_u32 v{FOUT}, v12, 7, v{FOUT}
s_lshl_b32 s{t0}, s{sP}, 10
s_add_u32 s{t0}, s{t0}, {WPHI}
v_add_u32 v{FOUT}, s{t0}, v{FOUT}
v_mul_u32_u24 v{FOUT+1}, 0x8000, v17
v_lshl_add_u32 v{FOUT+1}, v17, 31, v{FOUT+1}
s_lshl_b32 s{t0}, s{sS}, 11
s_add_u32 s{t0}, s{t0}, {Q}
v_add_u32 v{FOUT+2}, s{t0}, v{vL16}
s_lshl_b32 s{sD0}, s{sS}, 12""")
a("s_waitcnt lgkmcnt(0)")
srd(sWS, pWS, WS_SIZE); srd(sWB, pWQKV, 0x180000); srd(sWOA, pWOA, 0x80000); srd(sWOB, pWOB, 0x80000); srd(sOUT, pOUT, 0x200000)
dma_base("kv")
if SPF:
    a(f"""s_lshr_b32 s{t0}, s2, 2
    s_mul_i32 s{t0}, s{t0}, 3072
    s_and_b32 s{t1}, s2, 3
    s_lshl_b32 s{t1}, s{t1}, 2
    s_add_u32 s{t1}, s{t1}, s{sS}
    s_lshl_b32 s{t1}, s{t1}, 7
    s_add_u32 s{t0}, s{t0}, s{t1}
    s_add_u32 s{t0}, s{t0}, 1024
    s_add_u32 s{sSM}, s{pWQKV}, s{t0}
    s_addc_u32 s{sSM+1}, s{pWQKV+1}, 0
    s_add_u32 s{sSM+2}, s{sSM}, {4*64*3072}
    s_addc_u32 s{sSM+3}, s{sSM+1}, 0""")
stamp(0)
a("s_barrier")
def spf(k):
    for n in range(k): a(f"s_load_dword s96, s[{sSM + 2*(n//8)}:{sSM + 2*(n//8) + 1}], {((n//2) % 4)*64*3072 + 64*(n%2)}")
if SPF == 1: spf(15)
a("s_barrier")
stamp(1)
for hh in range(2): rd_w(WPH + 4 * hh, FOUT, hh * 512, 256, "x")
xn = [0]
def xread(k):
    for _ in range(k):
        if xn[0] < 32:
            a(f"ds_read_b128 {vr(XF+4*xn[0],4)}, v{vXA} offset:{xn[0]*32}"); LG.issue("x"); xn[0] += 1
xread(4 if XJ else 32)
DQ = 3
def qreads(ks):
    if ks % 8 == 0 and (ks or not G0H): chk_test(W_G + ks // 8, 2, near=bool(E('NEAR', 1)))
    rd_w(WR + 4 * (ks % 8), vWP, ((ks + 8) % 32) * 2048, 512, ("w", ks))
    if ks % 8 == 6 and ks < 24: chk_read(W_G + ks // 8 + 1)
edq = [] if NOB else [(c, n) for c in range(NST) for n in range(4)]
if not G0H: chk_read(W_G)
for ks in range(DQ): qreads(ks)
for ks in range(32):
    xread(XJ)
    if ks + DQ < 32: qreads(ks + DQ)
    wait(lg=("w", ks))
    a(f"v_mfma_f32_32x32x16_bf16 {vr(ACC,16)}, {vr(WR+4*(ks%8),4)}, {vr(XF+4*ks,4)}, {'0' if ks == 0 else vr(ACC,16)}")
    if ks < 8: a(f"v_xor_b32 v{WPH+ks}, v{FOUT+1}, v{WPH+ks}")
    xs(f"q{ks}")
    if ks == 2: wx = arrive()
    if ks == 21: chk_read(wx)
    if ks == 22: chk_test(wx)
a(f"s_mov_b32 s{t1}, {hex(QSCALE)}\ns_mov_b32 s{t2}, {hex(QSCALE)}")
for r in range(0, 16, 2): a(f"v_pk_mul_f32 {vr(ACC+r,2)}, {vr(ACC+r,2)}, s[{t1}:{t2}]")
for r in range(8): a(f"v_cvt_pk_bf16_f32 v{PHQ+r}, v{ACC+2*r}, v{ACC+2*r+1}")
a(f"""ds_write_b128 v{FOUT+2}, {vr(PHQ,4)}
ds_write_b128 v{FOUT+2}, {vr(PHQ+4,4)} offset:1024""")
arrive(W_Q)
stamp(2)
if SPF == 2: spf(16)
DA = 2
def rd_a(n):
    rd_stage(WR + 8 * (n % 4), n // 4, n % 4, ("w", n)); rd_stage(WR + 8 * (n % 4) + 4, n // 4, 4 + n % 4, ("w", n))
def wgemm(items, slots, ahead, events=None, pre=None, extra=None, primed=0):
    N = len(items); events = events or {}; pre = pre or {}
    def rd(i):
        for f in pre.get(i, []): f()
        if items[i][0]: items[i][0](slots[i % len(slots)], ("w", i))
    assert ahead + PW <= len(slots)
    for i in range(primed, min(ahead, N)): rd(i)
    a("s_setprio 0")
    for g0 in range(0, N, PW):
        grp = list(range(g0, min(g0 + PW, N)))
        lgs = [i for i in grp if items[i][0]]
        wait(vm=items[grp[-1]][2], lg=("w", lgs[-1]) if lgs else None)
        for i in grp:
            t = items[i][1](slots[i % len(slots)])
            if PUSH and i == g0 + 2: a(f"s_setprio 2\n{t}\ns_setprio 0")
            else: a(t)
        for i in grp:
            if i + ahead < N: rd(i + ahead)
        for i in grp:
            if extra: extra(i)
            for f in events.get(i, []): f()
    a("s_setprio 2")
def mm_a(n, mid=None):
    wait(lg=("w", n))
    w = WR + 8 * (n % 4)
    em = a
    em(f"v_mfma_f32_32x32x16_bf16 {vr(ACC,16)}, {vr(w,4)}, {vr(XF+4*n,4)}, {'0' if n == 0 else vr(ACC,16)}")
    if mid: mid()
    em(f"v_mfma_f32_32x32x16_bf16 {vr(AC2,16)}, {vr(XF+4*n,4)}, {vr(w+4,4)}, {'0' if n == 0 else vr(AC2,16)}")
a(f"""v_and_b32 v13, 124, v{vL4}
s_lshl_b32 s{t2}, s{sRB}, 9
s_add_u32 s{t2}, s{t2}, {WS_G}
s_lshl_b32 s{t1}, s{sI}, 7
s_add_u32 s{t2}, s{t2}, s{t1}
s_xor_b32 s{t3}, s{t2}, 128""")
check(W_KV, 4, nap=2)
xs("a13")
a(f"""v_mov_b32 v14, {NONCE}
ds_read_b32 v{vNON}, v14
buffer_load_dword v{vGI}, v13, {sr(sWS,4)}, s{t2} offen sc1
buffer_load_dword v{vGO}, v13, {sr(sWS,4)}, s{t3} offen sc1""")
VM.issue("g", 2)
def gates():
    for d in (vGI, vGO):
        a(f"v_mul_f32 v{d}, {hex(LOG2E | 0x80000000)}, v{d}\nv_exp_f32 v{d}, v{d}\nv_add_f32 v{d}, 1.0, v{d}\nv_rcp_f32 v{d}, v{d}")
if NOB:
    wait(vm="g"); gates()
    a(f"s_mov_b32 s{sJ}, s{sS}"); call_fin(vGI)
    stamp(4)
    a(f"s_add_u32 s{sJ}, s{sS}, 4"); call_fin(vGI)
    stamp(5)
    diag_dump(13)
    a("s_endpgm")
NST = 0; N1 = 0
for c in range(3): dma_stage(c)
a("v_lshlrev_b32 v13, 7, v0")
def wot():
    a(f"""s_lshl_b32 s{t0}, s2, 2
    s_add_u32 s{t0}, s{t0}, s{sS}
    s_lshl_b32 s{t0}, s{t0}, 9
    s_mov_b64 exec, 15
    buffer_load_dword v{vT2}, v13, {sr(sWOB,4)}, s{t0} offen
    buffer_load_dword v{vT2}, v13, {sr(sWOA,4)}, s{t0} offen
    s_lshr_b32 s{t1}, s{t0}, 10
    s_lshl_b32 s{t1}, s{t1}, 11
    s_add_u32 s{t0}, s{t0}, s{t1}
    buffer_load_dword v{vT2}, v13, {sr(sWB,4)}, s{t0} offen
    s_mov_b64 exec, -1""")
    VM.issue("wot", 3)
wait(vm=("st", NST)); w = arrive()
gates()
check(w)
a(f"v_readfirstlane_b32 s{sNON}, v{vNON}")
stamp(3)
SL = [WR + 4 * n for n in range(8)] + [PHQ + 4 * n for n in range(4)]
AH = 6
its = []
for n in range(N1, 32):
    its.append((lambda d, tg, n=n: rd_stage(d, n // 4, n % 4, tg), lambda w_, n=n: f"v_mfma_f32_32x32x16_bf16 {vr(ACC,16)}, {vr(w_,4)}, {vr(XF+4*n,4)}, {vr(ACC,16) if n else 0}", None))
    its.append((lambda d, tg, n=n: rd_stage(d, n // 4, 4 + n % 4, tg), lambda w_, n=n: f"v_mfma_f32_32x32x16_bf16 {vr(AC2,16)}, {vr(XF+4*n,4)}, {vr(w_,4)}, {vr(AC2,16) if n else 0}", None))
pre, tested = {}, set(range(NST))
cur = {}
for c in range(NST + 1, 9):
    i0_ = 8 * (c - NST)
    def arr(c=c):
        if c < 8: wait(vm=("st", c))
        cur[c] = arrive()
    def tst(c=c): chk_test(cur[c], lowprio=True); tested.add(c - 2)
    if c < 8:
        pre.setdefault(max(i0_ - PW - 2, AH), []).append(arr)
        pre.setdefault(max(i0_ - 2, AH), []).append(lambda c=c: chk_read(cur[c]))
        pre.setdefault(i0_, []).append(tst)
dq = [(c, n) for c in range(NST + 3, 12) for n in range(4)]
def dma_next(i):
    if dq:
        prev = [k for k in range(dq[0][0]) if STG[k] == STG[dq[0][0]]]
        if not prev or prev[-1] in tested: dma_one(*dq.pop(0))
wgemm(its, SL, AH, pre=pre, extra=lambda i: dma_next(i) if i % 3 != 2 else None, events={len(its) - AH - 1: [arr], WOTAT: [wot] if WOT else []})
assert not dq
w = cur[8]
stamp(4)

def features(B, W, out, D, tm):
    m1, m2 = tm, tm + 1
    a(f"v_mfma_f32_32x32x16_bf16 {vr(D,16)}, {vr(W,4)}, {vr(B,4)}, 0")
    for (m, b) in ((m1, D), (m2, D + 8)):
        a(f"v_max3_f32 v{m}, v{b}, v{b+1}, v{b+2}\nv_max3_f32 v{m}, v{m}, v{b+3}, v{b+4}\nv_max3_f32 v{m}, v{m}, v{b+5}, v{b+6}\nv_max_f32 v{m}, v{m}, v{b+7}")
    a(f"""v_permlane32_swap_b32 v{m1}, v{m2}
    v_max_f32 v{m1}, v{m1}, v{m2}
    v_mul_f32 v{m1}, {hex(LOG2E | 0x80000000)}, v{m1}
    v_mov_b32 v{m2}, v{m1}
    v_permlane32_swap_b32 v{m1}, v{m2}""")
    for r in range(0, 16, 2):
        sel = "op_sel_hi:[1,1,0]" if r < 8 else "op_sel:[0,0,1]"
        a(f"v_pk_fma_f32 {vr(D+r,2)}, {vr(D+r,2)}, s[{sL2E}:{sL2E+1}], {vr(m1,2)} {sel}")
    for r in range(16): a(f"v_exp_f32 v{D+r}, v{D+r}")
    for (m, b) in ((m1, D), (m2, D + 8)):
        a(f"""v_pk_add_f32 {vr(tm+2,2)}, {vr(b,2)}, {vr(b+2,2)}
        v_pk_add_f32 {vr(tm+4,2)}, {vr(b+4,2)}, {vr(b+6,2)}
        v_pk_add_f32 {vr(tm+2,2)}, {vr(tm+2,2)}, {vr(tm+4,2)}
        v_add_f32 v{m}, v{tm+2}, v{tm+3}""")
    a(f"""v_permlane32_swap_b32 v{m1}, v{m2}
    v_add_f32 v{m1}, v{m1}, v{m2}
    v_rcp_f32 v{m1}, v{m1}
    v_mov_b32 v{m2}, v{m1}
    v_permlane32_swap_b32 v{m1}, v{m2}""")
    for r in range(0, 16, 2):
        sel = "op_sel_hi:[1,0]" if r < 8 else "op_sel:[0,1]"
        a(f"v_pk_mul_f32 {vr(D+r,2)}, {vr(D+r,2)}, {vr(m1,2)} {sel}")
    for r in range(8): a(f"v_cvt_pk_bf16_f32 v{out+r}, v{D+2*r}, v{D+2*r+1}")

KB, VB, DD, TM, PH = PHQ, PHQ + 8, WR, WR + 16, WR + 24
chk_read(w)
a(f"""s_lshl_b32 s{t3}, s{sP}, 1
s_add_u32 s{t3}, s{t3}, s{sI}
s_lshl_b32 s{t2}, s{sHG}, 2
s_add_u32 s{t2}, s{t2}, s{t3}
s_lshl_b32 s{t2}, s{t2}, 8
s_add_u32 s{t2}, s{t2}, s{sRB}
s_mul_i32 s{t4}, s{t2}, {PREC}
s_add_u32 s{t4}, s{t4}, {WS_PART}""")
for r in range(8): a(f"v_cvt_pk_bf16_f32 v{KB+r}, v{ACC+2*r}, v{ACC+2*r+1}")
for r in range(8): a(f"v_cvt_pk_bf16_f32 v{VB+r}, v{AC2+2*r}, v{AC2+2*r+1}")
chk_test(w)
xs("k1")
a(f"ds_write_b128 v{vSV}, {vr(VB,4)}\nds_write_b128 v{vSV}, {vr(VB+4,4)} offset:1024")
dma_stage(12)
for hh in range(2):
    features(KB + 4 * hh, WPH + 4 * hh, PH, DD, TM)
    for aa in range(4): a(f"ds_write_b64 v{vSW+aa}, {vr(PH+2*aa,2)} offset:{hh*4096}")
    xs(f"k3{hh}")
wait(vm=("st", 12)); w = arrive()
KA, KBv, KD = WR, AC2, ACC
a(f"s_mov_b32 s{t1}, {hex(ONES)}\ns_mov_b32 s{t2}, {hex(ONES)}")
for r in range(0, 16, 2): a(f"v_mov_b64 {vr(KBv+r,2)}, s[{t1}:{t2}]")
check(w)
xs("k4")
for u in range(4):
    a(f"ds_read_b64_tr_b16 {vr(KA+4*u,2)}, v{vSR} offset:{u*1024}\nds_read_b64_tr_b16 {vr(KA+4*u+2,2)}, v{vSR2} offset:{u*1024+512}")
a(f"s_mov_b32 exec_lo, 0xffff\ns_mov_b32 exec_hi, 0xffff")
for u in range(4):
    a(f"ds_read_b128 {vr(KBv+4*u,4)}, v{vSVR} offset:{(u//2)*4096 + (u%2)*1024}")
a("s_mov_b64 exec, -1")
LG.issue("kv", 12)
SL = [WR + 16 + 4 * n for n in range(4)] + [PHQ + 4 * n for n in range(4)] + [WR + 4 * n for n in range(4)]
wait(lg="kv")
for u in range(4):
    a(f"v_mfma_f32_32x32x16_bf16 {vr(KD,16)}, {vr(KA+4*u,4)}, {vr(KBv+4*u,4)}, {'0' if u == 0 else vr(KD,16)}")
FIL = FOUT
def kvf_addr():
    a(f"""s_and_b32 s{t0}, s{sRB}, 3
    s_lshl_b32 s{t1}, s{sHG}, 2
    s_add_u32 s{t0}, s{t0}, s{t1}
    s_mul_i32 s{t0}, s{t0}, {KVF_STRIDE}
    s_lshr_b32 s{t1}, s{sRB}, 4
    s_mul_i32 s{t1}, s{t1}, 544
    s_add_u32 s{t0}, s{t0}, s{t1}
    s_and_b32 s{t1}, s{sRB}, 12
    s_add_u32 s{t0}, s{t0}, s{t1}
    s_add_u32 s{t0}, s{t0}, {WS_KVF}""")
a(f"""s_lshl_b32 s{t0}, s{sRB}, 2
s_add_u32 s{t0}, s{t0}, s{sS}
s_lshl_b32 s{t0}, s{t0}, 15
s_lshl_b32 s{t1}, s{sHG}, 12
s_add_u32 s{t0}, s{t0}, s{t1}
s_add_u32 s{t0}, s{t0}, {WS_O}""")
for r in range(4): a(f"v_mov_b32 v{FIL+r}, -1")
for r in range(4): a(f"buffer_store_dwordx4 {vr(FIL,4)}, v{vL16}, {sr(sWS,4)}, s{t0} offen offset:{r*1024} sc1")
with only(sS, 3):
    a(f"s_lshl_b32 s{t0}, s{sL}, 12\ns_add_u32 s{t0}, s{t0}, {WS_L}\nbuffer_store_dwordx4 {vr(FIL,4)}, v{vL16}, {sr(sWS,4)}, s{t0} offen offset:3072 sc1")
with only(sS, 2):
    kvf_addr()
    a(f"s_mov_b32 exec_lo, 0x1ffff\ns_mov_b32 exec_hi, 0x1ffff\nbuffer_store_dword v{FIL}, v{vLI}, {sr(sWS,4)}, s{t0} offen sc1")
a(f"s_mov_b32 exec_lo, 0xfffff\ns_mov_b32 exec_hi, 0xfffff")
for e in range(8):
    a(f"buffer_store_dwordx2 {vr(KD+2*e,2)}, v{vPR}, {sr(sWS,4)}, s{t4} offen sc1"); VM.issue("part")
    if e < 7: a(f"s_add_u32 s{t4}, s{t4}, {32*PREC}")
a("s_mov_b64 exec, -1")
stamp(5)
dq = [(c, n) for c in (13, 14) for n in range(4)]
its = [(lambda d, tg, n=n: rd_stage(d, 8 + n // 8, n % 8, tg),
        lambda w_, n=n: f"v_mfma_f32_32x32x16_bf16 {vr(AC2,16)}, {vr(w_,4)}, {vr(XF+4*n,4)}, {'0' if n == 0 else vr(AC2,16)}", None) for n in range(32)]
def e1(): wait(vm="part"); cur["p"] = arrive()
def e2():
    chk_read(cur["p"]); chk_test(cur["p"], lowprio=True)
    with only(sS, 2): flag(F_F2)
def e3():
    with only(sS, 2): poll_issue(vPC, vT2, F_F2)
    with only(sS, 0): poll_issue(vPF, vT2, F_F2)
wgemm(its, SL, AH, events={9: [e1], 12: [e2], 27: [e3]}, extra=lambda i: dma_one(*dq.pop(0)) if i > 14 and dq else None)
vWA0, vWA1, vWB0, vWB1 = vXA, vWX, vWO, vWP
a(f"""s_lshl_b32 s{t0}, s{sP}, 13
v_add_u32 v{vWA0}, s{t0}, v{vWOA}
v_xor_b32 v{vWA1}, 64, v{vWA0}
v_add_u32 v{vWB0}, s{t0}, v{vWO}
v_xor_b32 v{vWB1}, 64, v{vWB0}""")
assert RING % 128 == 0 and STG[12] == 0
for k in range(8): rd_w(WB0 + 4 * k, (vWA0, vWA1)[k % 2], (k // 2) * 2048, 1024, "wb0")
stamp(6)
KB, DD, TM = TMP, TMP + 16, TMP + 32
RD = TMP + 64
with only(sS, 2):
    a("s_waitcnt vmcnt(0)")
    poll_check(vPC, vT2, F_F2)
    xs("r1")
    a(f"""s_and_b32 s{t3}, s{sRB}, 3
    s_lshl_b32 s{t0}, s{sHG}, 2
    s_add_u32 s{t3}, s{t0}, s{t3}
    s_lshl_b32 s{t0}, s{t3}, 3
    s_lshr_b32 s{t2}, s{sRB}, 2
    s_add_u32 s{t0}, s{t0}, s{t2}
    s_mul_i32 s{t0}, s{t0}, {32*PREC}
    s_add_u32 s{t0}, s{t0}, {WS_PART}
    s_mov_b32 exec_lo, 0x1ffff
    s_mov_b32 exec_hi, 0x1ffff""")
    for n in range(32):
        if n and n % 8 == 0: a(f"s_add_u32 s{t0}, s{t0}, {8*PREC}")
        a(f"buffer_load_dwordx2 {vr(RD+2*n,2)}, v{vPR}, {sr(sWS,4)}, s{t0} offen offset:{(n%8)*PREC} sc1")
    a("s_mov_b64 exec, -1")
xs("r2")
def fin(j, g): a(f"s_mov_b32 s{sJ}, {j}"); call_fin(g)
with only(sI, 0): fin(f"s{sP}", vGI)
with only(sS, 3): fin(2, vGO)
for r in range(8): a(f"v_cvt_pk_bf16_f32 v{KB+r}, v{AC2+2*r}, v{AC2+2*r+1}")
features(KB, WPH, PHQ, DD, TM)
with only(sS, 2):
    kvf_addr()
    a("s_waitcnt vmcnt(0)")
    st = 16
    while st >= 1:
        for n in range(st): a(f"v_pk_add_f32 {vr(RD+2*n,2)}, {vr(RD+2*n,2)}, {vr(RD+2*(n+st),2)}")
        st //= 2
    a(f"""v_cvt_pk_bf16_f32 v15, v{RD}, v{RD+1}
    v_min_u32 v15, -2, v15
    s_mov_b32 exec_lo, 0x1ffff
    s_mov_b32 exec_hi, 0x1ffff
    buffer_store_dword v15, v{vLI}, {sr(sWS,4)}, s{t0} offen sc1
    s_mov_b64 exec, -1""")
xs("r3")
with only(sS, 0):
    a("s_waitcnt vmcnt(0)"); poll_check(vPF, vT2, F_F2)
w = arrive()
features(KB + 4, WPH + 4, PHQ + 8, DD, TM)
stamp(7)
with only(sS, 3): fin(3, vGO)
with only(sS, 2): a(f"v_add_u32 v13, {G1}, v{vL4}\nds_write_b32 v13, v{vGI}")
xs("l1")
check(w, nap=1)
xs("l2")
dma_stage(15)
a(f"s_lshl_b32 s{t2}, s{sS}, 14\ns_lshl_b32 s{t3}, s{sS}, 17\ns_lshl_b32 s{t1}, s{sHG}, 7\ns_add_u32 s{t3}, s{t3}, s{t1}")
for n in range(16):
    a(f"s_add_u32 m0, s{t2}, {X + n*1024}\ns_add_u32 s{t1}, s{t3}, {n*8192}")
    a(f"buffer_load_dwordx4 v{vD1}, {sr(sWOA,4)}, s{t1} offen lds")
with only(sS, 1): fin(4, vGO)
def take(loads, regs, nap, issued=False):
    lp, dn, l2 = a.lab("tk"), a.lab("tkd"), a.lab("tkw")
    if issued: a(f"s_branch {l2}")
    a(f"{lp}:"); loads()
    a(f"{l2}:\ns_waitcnt vmcnt(0)\nv_max_u32 v{vT}, v{regs[0]}, v{regs[1]}")
    for k in range(2, len(regs), 2): a(f"v_max3_u32 v{vT}, v{vT}, v{regs[k]}, v{regs[k+1]}")
    a(f"v_cmp_eq_u32 vcc, -1, v{vT}\ns_cbranch_vccz {dn}")
    budget(dn)
    if nap: a(f"s_sleep {nap}")
    a(f"s_branch {lp}\n{dn}:")
a(f"""s_lshl_b32 s{t3}, s{sHG}, 2
s_lshl_b32 s{t1}, s{sP}, 1
s_add_u32 s{t3}, s{t3}, s{t1}
s_mul_i32 s{t4}, s{t3}, {KVF_STRIDE}
s_add_u32 s{t4}, s{t4}, {WS_KVF}
s_lshl_b32 s{sPF}, s{sRB}, 1
s_add_u32 s{sPF}, s{sPF}, s{sI}
s_lshl_b32 s{sPF}, s{sPF}, 16
s_add_u32 s{sPF}, s{sPF}, {WS_O}
s_lshl_b32 s{t3}, s{t3}, 10
s_add_u32 s{t3}, s{t3}, s{sPF}
s_add_u32 s{t3}, s{t3}, 32768
v_sub_f32 v15, 1.0, v{vGI}""")
def kvf_loads():
    for hh in range(2):
        for u in range(2):
            a(f"buffer_load_dwordx4 {vr(TMP+8*hh+4*u,4)}, v{vLI}, {sr(sWS,4)}, s{t4} offen offset:{hh*KVF_STRIDE + u*544} sc1")
take(kvf_loads, list(range(TMP, TMP + 16)), E("KNAP", 6))
arrive(W_OB)
stamp(8)
for hh in range(2):
    D = TMP + 16 + 16 * hh
    a(f"v_mfma_f32_32x32x16_bf16 {vr(D,16)}, {vr(TMP+8*hh,4)}, {vr(PHQ+8*hh,4)}, 0")
    a(f"v_mfma_f32_32x32x16_bf16 {vr(D,16)}, {vr(TMP+8*hh+4,4)}, {vr(PHQ+8*hh+4,4)}, {vr(D,16)}")
for hh in range(2):
    D = TMP + 16 + 16 * hh
    a(f"v_add_f32 v{D+8}, 0x358637bd, v{D+8}\nv_rcp_f32 v{D+8}, v{D+8}\nv_mul_f32 v{D+8}, v{D+8}, v15")
    for r in range(0, 8, 2): a(f"v_pk_mul_f32 {vr(D+r,2)}, {vr(D+r,2)}, {vr(D+8,2)} op_sel_hi:[1,0]")
    for r in range(4): a(f"v_cvt_pk_bf16_f32 v{D+12+r}, v{D+2*r}, v{D+2*r+1}")
    a(f"v_min_u32 v{D+12}, -2, v{D+12}")
    a(f"buffer_store_dwordx4 {vr(D+12,4)}, v{vL16}, {sr(sWS,4)}, s{t3} offen offset:{hh*1024} sc1")
wo = arrive()
a(f"""s_mov_b32 s{sD0}, s{sPF}
v_bfe_u32 v13, v0, 2, 2
v_and_b32 v14, 3, v0
v_lshl_add_u32 v13, v13, 3, v14
v_lshlrev_b32 v{vPO}, 10, v13""")
stamp(9)
def probe(off):
    lp, dn = a.lab("pb"), a.lab("pbd")
    a(f"""s_add_u32 s{t1}, s{sD1}, {off}
    {lp}:
    buffer_load_dword v{vT2}, v{vPO}, {sr(sWS,4)}, s{t1} offen offset:1008 sc1
    s_waitcnt vmcnt(0)
    v_cmp_eq_u32 vcc, -1, v{vT2}
    s_cbranch_vccz {dn}""")
    budget(dn)
    a(f"s_sleep {RNAP}\ns_branch {lp}\n{dn}:")

def out_addr():
    a(f"""v_and_b32 v14, 31, v0
    v_lshlrev_b32 v14, 10, v14
    v_lshrrev_b32 v15, 5, v0
    v_lshl_add_u32 v14, v15, 4, v14
    s_lshl_b32 s{t4}, s{sRB}, 16
    s_lshl_b32 s{t1}, s{sI}, 15
    s_add_u32 s{t4}, s{t4}, s{t1}
    s_lshl_b32 s{t1}, s{sHG}, 7
    s_add_u32 s{t4}, s{t4}, s{t1}
    s_lshl_b32 s{t1}, s{sP}, 6
    s_add_u32 s{t4}, s{t4}, s{t1}""")
def store_out():
    for r in range(8): a(f"v_cvt_pk_bf16_f32 v{PHQ+r}, v{ACC+2*r}, v{ACC+2*r+1}")
    for kk in range(2):
        b = PHQ + 4 * kk
        a(f"v_permlane32_swap_b32 v{b}, v{b+2}\nv_permlane32_swap_b32 v{b+1}, v{b+3}")
        a(f"buffer_store_dwordx4 {vr(b,4)}, v14, {sr(sOUT,4)}, s{t4} offen offset:{kk*32} {OUTF}")

TS = [WPH + 4 * n for n in range(6)] + [vSW, vSW + 4]
assert vSW == 236
def steps_a(hs, reg): return [(h * 1024, ((vWA0, vWA1), h * 2048), reg + 4 * k) for k, h in enumerate(hs)]
def steps_b(reg):
    o = []
    for k, h in enumerate(8 * m + r for m in range(4) for r in range(4)):
        o.append((32768 + h * 1024, WB0 + 8 * k if k < 4 else ((vWB0, vWB1), STG[12 + h // 8] - RING + (h % 8) * 2048), reg + 4 * k))
    return o
def rec_loads(steps, base):
    for k, (ro, _, reg) in enumerate(steps):
        hi, lo = ro & ~4095, ro & 4095
        if k == 0 or hi != (steps[k-1][0] & ~4095): a(f"s_add_u32 s{t1}, s{base}, {hi}")
        a(f"buffer_load_dwordx4 {vr(reg,4)}, v{vL16}, {sr(sWS,4)}, s{t1} offen offset:{lo} sc1")
def run_items(its, first, windows, hooks=None, prime_only=None):
    hooks = hooks or {}
    slot = {}; cnt = [0]
    def rd(n):
        w_, _, c = its[n]
        if isinstance(w_, int): slot[n] = w_ + 4 * c
        else:
            slot[n] = TS[cnt[0] % 8]; cnt[0] += 1
            rd_w(slot[n], w_[0][c], w_[1], 1024, ("w", n))
    LG.clear()
    nr = 0
    while nr < len(its) and cnt[0] < 6: rd(nr); nr += 1
    if prime_only: prime_only()
    if windows: a("s_setprio 0")
    seen = set()
    step = 2 if windows else 1
    for g0 in range(0, len(its), step):
        grp = range(g0, min(g0 + step, len(its)))
        for n in grp:
            for f in hooks.get(n, []): f()
        wait(lg=("w", grp[-1]))
        for n in grp:
            acc = (ACC, AC2)[its[n][2]]
            wait(lg=("w", n))
            a(f"v_mfma_f32_32x32x16_bf16 {vr(acc,16)}, {vr(slot[n],4)}, {vr(its[n][1],4)}, {0 if first and acc not in seen else vr(acc,16)}")
            seen.add(acc)
        for n in grp:
            if not isinstance(its[n][0], int):
                while nr < len(its):
                    rd(nr); nr += 1
                    if not isinstance(its[nr-1][0], int): break
    assert nr == len(its)
    if windows: a("s_setprio 2")
items = lambda steps: [(w_, reg, c) for (_, w_, reg) in steps for c in range(2)]
def tail(its, late, last):
    n0 = len(its)
    its = its + items(late)
    k = 12
    its = its[:-k] + [x for x in its[-k:] if x[2] == 1] + [x for x in its[-k:] if x[2] == 0]
    LW = TMP
    def gate():
        out_addr()
        lp, dn = a.lab("tw"), a.lab("twd")
        a(f"""s_lshl_b32 s{t2}, s{sS}, 12
        s_add_u32 s{t0}, s{t2}, {OP}
        v_add_u32 v{vPC}, s{t0}, v{vL16}
        s_xor_b32 s{t2}, s{t2}, 4096
        s_add_u32 s{t0}, s{t2}, {OP}
        v_add_u32 v{vPR}, s{t0}, v{vL16}
        s_lshl_b32 s{t0}, s{sS}, 8
        s_add_u32 s{t0}, s{t0}, {LT + 3*1024 + 128}
        v_mov_b32 v13, s{t0}""")
        if last:
            for q_, (_, w_, _) in enumerate(last): rd_w(LW + 4 * q_, vWOA, w_, 1024, "lw")
            a(f"s_lshl_b32 s{sPF}, s{sRB}, 15\ns_add_u32 s{sPF}, s{sPF}, {WS_L}\ns_mov_b32 s{sJ}, 0")
        xs("t0")
        a(f"""{lp}:
        ds_read_b32 v{vT}, v13
        s_waitcnt lgkmcnt(0)
        v_cmp_gt_u32 vcc, {Q + 8*1024}, v{vT}
        s_cbranch_vccz {dn}""")
        budget(dn)
        a(f"s_sleep 2\ns_branch {lp}\n{dn}:")
        LG.clear()
        stamp(11)
        if late: rec_loads(late, sD1)
    hooks = {}
    if late:
        lr = [reg for (_, _, reg) in late]
        nl = min(n for n, x in enumerate(its) if x[1] in lr)
        hooks.setdefault(nl, []).append(lambda: (take(lambda: rec_loads(late, sD1), list(range(lr[0], lr[0] + 4 * len(lr))), 0, issued=True), xs("n6")))
    if last: hooks.setdefault(len(its) - R7AT, []).append(lambda: rec_loads(last, sPF))
    ww = newword()
    def x1():
        for q4 in range(4): a(f"ds_write_b128 v{vPC}, {vr(AC2+4*q4,4)} offset:{q4*1024}")
        LG.issue("xw", 4); arrive(ww)
    hooks.setdefault(len(its) - k // 2 + 2, []).append(x1)
    hooks.setdefault(len(its) - 1, []).append(lambda: chk_read(ww))
    run_items(its, False, False, hooks, gate)
    chk_test(ww, 2)
    for q4 in range(4): a(f"ds_read_b128 {vr(AC2+4*q4,4)}, v{vPR} offset:{q4*1024}")
    xs("t1")
    if last:
        D7 = TMP + 32
        l2, rt, d2 = a.lab("r7"), a.lab("r7r"), a.lab("r7d")
        a(f"s_waitcnt lgkmcnt(0)\ns_branch {l2}\n{rt}:")
        budget(d2)
        a(f"s_add_u32 s{sJ}, s{sJ}, 1\ns_and_b32 s{t0}, s{sJ}, 15\ns_cselect_b32 s{t2}, s{sPF}, s{sD0}")
        rec_loads(last, t2)
        a(f"{l2}:")
        for q_, (_, _, reg) in enumerate(last):
            a(f"s_waitcnt vmcnt({7 - q_})")
            a(f"v_mfma_f32_32x32x16_bf16 {vr(D7,16)}, {vr(LW+4*q_,4)}, {vr(reg,4)}, {vr(D7 if q_ else AC2,16)}")
            a(f"v_max_u32 v{vT}, v{reg}, v{reg+1}\nv_max3_u32 v{vT}, v{vT}, v{reg+2}, v{reg+3}\nv_cmp_eq_u32 vcc, -1, v{vT}\ns_cbranch_vccnz {rt}")
        a(f"{d2}:")
        xs("n7")
    else:
        D7 = AC2
        a("s_waitcnt lgkmcnt(0)")
    for r in range(0, 16, 2): a(f"v_pk_add_f32 {vr(ACC+r,2)}, {vr(ACC+r,2)}, {vr(D7+r,2)}")
    store_out()
def slot_free(j):
    lp, dn = a.lab("cf"), a.lab("cfd")
    a(f"v_mov_b32 v13, {CONS + 16 + 4*j}\n{lp}:\nds_read_b32 v{vT}, v13\ns_waitcnt lgkmcnt(0)\nv_cmp_eq_u32 vcc, 0, v{vT}\ns_cbranch_vccz {dn}")
    budget(dn)
    a(f"s_sleep 2\ns_branch {lp}\n{dn}:")

a(f"s_lshl_b32 s{t0}, s{sP}, 12\ns_add_u32 s{sD1}, s{sD0}, s{t0}")
a(f"s_cmp_eq_u32 s{sI}, 1\ns_cbranch_scc1 L_half1")
sa, sb = steps_a([8 * m + r for m in range(4) for r in range(4)], TMP + 64), steps_b(TMP)
first_words = lambda st: [reg for (_, _, reg) in st]
PRET0 = E("PRET0", PRET)
assert 16 <= PRET <= 32 and PRET % 2 == 0
take(lambda: rec_loads(sa, sD1), first_words(sa), RNAP)
check(W_OB, nap=2)
xs("m0")
run_items(items(sa)[:PRET0], True, True)
xs("m2")
with only(sS, 1): probe(32768)
with only(sS, 0): fin(6, vGO)
take(lambda: rec_loads(sb, sD1), first_words(sb), RNAP)
stamp(10)
slot_free(4)
tail(items(sb) + items(sa)[PRET0:], [], None)
if E("WBL", 0) == 1:
    with only(sS, 0): a("s_waitcnt vmcnt(0)\nbuffer_wbl2 sc1")
if E("WBL", 0) == 2: a("s_waitcnt vmcnt(0)\nbuffer_wbl2 sc1")
stamp(12)
diag_dump(13)
a("s_endpgm")
a("L_half1:")
LG.clear(); VM.clear()
with only(sS, 2): fin(5, vGI)
check(wo, nap=2)
probe(32768)
take(lambda: rec_loads(sb, sD1), first_words(sb), RNAP)
xs("m0")
s45, s6 = steps_a([8 * m + r for m in range(4) for r in range(2)], TMP + 64), steps_a([8 * m + 2 for m in range(4)], TMP + 96)
slot_free(5)
run_items(items(sb)[:PRET], True, True, hooks={PRET - 8: [lambda: rec_loads(s45, sD1)]})
xs("m2")
take(lambda: rec_loads(s45, sD1), first_words(s45), RNAP, issued=True)
stamp(10)
tail(items(sb)[PRET:] + items(s45), s6, [((4*k + 3) * 1024, (4*k + 3) * 2048, WB0 + 4 * k) for k in range(8)])
stamp(12)
diag_dump(13)
hold()
a("L_exit:\ns_endpgm")

FO = TMP
FL = TMP + 32
a("L_fin:\ns_nop 1")
a(f"""s_and_b32 s{t2}, s{sJ}, 3
s_lshl_b32 s{t0}, s{t2}, 10
s_add_u32 s{t0}, s{t0}, {LT}
v_and_b32 v14, 3, v0
v_lshl_add_u32 v14, v14, 8, s{t0}
v_and_b32 v15, 124, v{vL4}
v_add_u32 v15, s{t0}, v15
s_lshl_b32 s{t1}, s{sJ}, 10
s_add_u32 s{t1}, s{t1}, {Q + 1024}
s_lshl_b32 s{t2}, s{t2}, 13
s_add_u32 s{t2}, s{t2}, {OP}
v_add_u32 v{FL+4}, s{t2}, v{vL16}
s_lshl_b32 s{t0}, s{sJ}, 2
s_add_u32 s{t0}, s{t0}, {CONS + 16}
v_mov_b32 v13, s{t0}
s_lshr_b32 s{t0}, s{sJ}, 2
s_lshl_b32 s{t2}, s{sRB}, 1
s_add_u32 s{t0}, s{t0}, s{t2}
s_lshl_b32 s{t0}, s{t0}, 6
s_lshl_b32 s{t2}, s{sHG}, 2
s_add_u32 s{t0}, s{t0}, s{t2}
s_and_b32 s{t2}, s{sJ}, 3
s_add_u32 s{t0}, s{t0}, s{t2}
s_lshl_b32 s{t4}, s{t0}, 10
s_add_u32 s{t4}, s{t4}, {WS_O}
""")
assert FP == 1 << 15 and CONS + 16 + 32 <= SYNC and (TMP, vGF, vL4, vONE, vL16, vT, FOUT) == (104, 233, 251, 1, 10, 3, 244)
fin_body(True, "L_fb", FNAP)
if DIAG: a("s_waitcnt lgkmcnt(0)")
a(f"s_setpc_b64 s[{sRET}:{sRET+1}]")
emit_cold()
a("CODE_END:")
BS, BC, BK, BV, BQ, BM = TMP + 16, TMP + 32, TMP + 48, TMP + 52, TMP + 60, FOUT
a(f"""L_fb:
s_sub_u32 s{t1}, s{t1}, 1024
v_add_u32 v14, s{t1}, v{vL16}
ds_read_b128 {vr(BQ,4)}, v14
v_mov_b32 v{BM}, 0xff800000
s_mov_b32 s{t0}, 0
s_waitcnt lgkmcnt(0)
L_fb1:
buffer_load_dwordx4 {vr(BK,4)}, v{vL16}, {sr(sWS,4)}, s{t0} offen sc1
s_waitcnt vmcnt(0)
v_mfma_f32_32x32x16_bf16 {vr(BS,16)}, {vr(BK,4)}, {vr(BQ,4)}, 0""")
for r in range(0, 16, 2): a(f"v_max3_f32 v{BM}, v{BM}, v{BS+r}, v{BS+r+1}")
a(f"""s_add_u32 s{t0}, s{t0}, 2048
s_cmp_lt_u32 s{t0}, 131072
s_cbranch_scc1 L_fb1
v_mov_b32 v{BM+1}, v{BM}
v_permlane32_swap_b32 v{BM}, v{BM+1}
v_max_f32 v{BM}, v{BM}, v{BM+1}""")
for r in range(16): a(f"v_sub_f32 v{BC+r}, 0, v{BM}\nv_mov_b32 v{FO+r}, 0")
a(f"""v_mov_b32 v15, 0xdddd
s_mov_b32 s{t0}, 0
L_fb2:
buffer_load_dwordx4 {vr(BK,4)}, v{vL16}, {sr(sWS,4)}, s{t0} offen sc1
buffer_load_dwordx4 {vr(BV,4)}, v{vL16}, {sr(sWS,4)}, s{t0} offen offset:1024 sc1""")
for r in range(4): a(f"v_mov_b32 v{BV+4+r}, {hex(ONES)}")
a(f"""s_waitcnt vmcnt(0)
v_mfma_f32_32x32x16_bf16 {vr(BS,16)}, {vr(BK,4)}, {vr(BQ,4)}, {vr(BC,16)}""")
for r in range(4): a(f"v_permlane16_swap_b32 v{BV+r}, v{BV+4+r}")
for r in range(16): a(f"v_exp_f32 v{BS+r}, v{BS+r}")
a(f"""v_smfmac_f32_32x32x32_bf16 {vr(FO,16)}, {vr(BV,4)}, {vr(BS,8)}, v15
v_smfmac_f32_32x32x32_bf16 {vr(FO,16)}, {vr(BV+4,4)}, {vr(BS+8,8)}, v15
s_add_u32 s{t0}, s{t0}, 2048
s_cmp_lt_u32 s{t0}, 131072
s_cbranch_scc1 L_fb2
s_nop 9
s_branch L_fin_norm""")

body = a.finish(verbose=bool(os.environ.get("VERBOSE")))
ref = open("cdna_kernels/" + NAME + ".s.ref").read().split("\n")
hdr = [l for l in ref if l.startswith(";") and "@launch" not in l and "Override" not in l and "grid=ceil" not in l]
out = "\n".join(hdr) + f"""
; @launch grid=(256,1,1) block=(512,1,1) lds={LDS_BYTES}
.amdgcn_target "amdgcn-amd-amdhsa--gfx950"
.text
.p2align 12
.fill {PAD // 4}, 4, 0xbf810000
.globl {NAME}_kernel
.p2align 8
.type {NAME}_kernel,@function
{NAME}_kernel:
{body}.section .rodata,"a"
.p2align 6
.amdhsa_kernel {NAME}_kernel
  .amdhsa_next_free_vgpr 256
  .amdhsa_next_free_sgpr 102
  .amdhsa_accum_offset 256
  .amdhsa_group_segment_fixed_size 0
  .amdhsa_kernarg_size 104
  .amdhsa_user_sgpr_count 2
  .amdhsa_user_sgpr_kernarg_segment_ptr 1
  .amdhsa_system_sgpr_workgroup_id_x 1
.end_amdhsa_kernel
"""
dst = sys.argv[1] if len(sys.argv) > 1 else "cdna_kernels/" + NAME + ".s"
open(dst, "w").write(out)
print("wrote", dst, len(a.lines), "lines,", len(a.inserted), "nops inserted, words", nword[0])
```

```python
import sys, os
from asmlib import Asm, Cnt, vr, sr

NAME = "gated_mix__grouped_kv_mqa__linear_kernel_hedgehog__prompt"
E = lambda k, d: int(os.environ.get(k, d))
DIAG = E("DIAG", 0); FORCE_FB = E("FORCE_FB", 0); TOUCH = E("TOUCH", 0); NOB = E("NOB", 0); PRE = E("PRE", 4)
FNAP = E("FNAP", 2); SIGT = E("SIGT", 6); QFIN = E("QFIN", 1); NEARJ = E("NEARJ", 5); NEARB = E("NEARB", 0); SAE = E("SAE", 0); DMAAT = E("DMAAT", 0); WAT = E("WAT", 0); RED1 = E("RED1", 1); EARLYA = E("EARLYA", 2); POLLAT = E("POLLAT", 3); NST = E("NST", 2); MAP = E("MAP", 1); PW = E("PW", 2); PRET = E("PRET", 32); WOTAT = E("WOTAT", 20); R7AT = E("R7AT", 6); RNAP = E("RNAP", 8); DEFER = E("DEFER", 1); ROT = E("ROT", 1); PUSH = E("PUSH", 1); WQE = E("WQE", 2); CPF = E("CPF", 1); WQT = E("WQT", 1); SPF = E("SPF", 2); HAT = E("HAT", 0); WOT = E("WOT", 1); XJ = E("XJ", 0); XNT = E("XNT", 1); G0H = E("G0H", 0); PKS = E("PKS", -1); FST = E("FST", 4); FLAG1 = E("FLAG1", 0); LPT = E("LPT", 4); LATE = E("LATE", 1); VMASK = E("VMASK", 0); PAD = E("PAD", 0xd00); NOMAX = E("NOMAX", 1); FORCE_FF = E("FORCE_FF", 0)
OUTF = os.environ.get("OUTF", "")
HOLDAT = os.environ.get("HOLDAT")

X = 0; XS = 1040
Q = 66560
OP = 74752
RING = 107520
LT = 156672
MISC = 160768
WKV = OP; WQB = OP + 16384
WPHI = Q
NONCE = MISC; CONS = MISC + 16; SYNC = MISC + 64
GATE = MISC + 2048
LDS_BYTES = 163840
WS_KV = 0; WS_KVF = 0x20000; WS_G = 0x30000; WS_DIAG = 0x40000; WS_F = 0x80000
WS_PART = 0x100000; WS_O = 0x400000; WS_SIZE = 0x800000
KVF_STRIDE = 2048; PREC = 320
F_KV, F_F2, F_F3, F_OB, F_OA = 0, 1, 2, 3, 4
FP = 0x8000
pX, pWQ, pWK, pWV, pWOA, pBX, pWQKV, pWPHI, pWOB, pGATE, pOUT, pDBG, pWS = [4 + 2 * i for i in range(13)]
sX, sWQ, sWKV, sWB, sWOA, sWOB, sWS, sOUT, sDBG, sSM = [32 + 4 * i for i in range(10)]
sW, sRB, sHG, sL, sNON, sBUD, sS, sI, sP = 72, 73, 74, 75, 76, 77, 78, 79, 80
t0, t1, t2, t3, t4, t5 = 81, 82, 83, 84, 85, 86
sJ = 87; sRET = 88
sL2E = 90
sFL = 92
sD0, sD1 = 93, 94
sPF = 95
sFAR = 91
sST = 4
LOG2E = 0x3fb8aa3b
QSCALE = 0x3eb8aa3b
ONES = 0x3f803f80

a = Asm()
role = ["E"]
XST = os.environ.get("XST", "").split(",") if os.environ.get("XST") else []
def xs(name):
    if os.environ.get("MARK"): a(f"; @@ {name}")
    if DIAG and name in XST: a(f"s_memrealtime {sr(sST + 2 * XST.index(name), 2)}")
    if DIAG and "c" + name in XST: a(f"s_memtime {sr(sST + 2 * XST.index('c' + name), 2)}")
YST = os.environ.get("YST", "").split(",") if os.environ.get("YST") else []
YB = 48
YREG = [48, 50, 52, 54, 60, 62, 88, 90, 96, 98]
def ys(name):
    if DIAG and name in YST: a(f"s_memrealtime {sr(YREG[YST.index(name)], 2)}")
def stamp(n):
    if os.environ.get("MARK"): a(f"; @@ s{n}")
    if DIAG and YST and role[0] == "A": ys(f"a{n}")
    elif DIAG and XST and role[0] == "S": xs(f"s{n}")
    elif DIAG: a(f"s_memrealtime {sr(sST + 2 * n, 2)}")
    if HOLDAT == f"{role[0]}{n}": a("s_memrealtime s[100:101]")
def hold():
    if HOLDAT and (HOLDAT[0] == role[0] or (HOLDAT[0] == "E" and role[0] == "S")):
        l = a.lab("hold")
        a(f"{l}:\ns_memrealtime s[96:97]\ns_waitcnt lgkmcnt(0)\ns_sub_u32 s96, s96, s100\ns_cmp_lt_u32 s96, 4000\ns_cbranch_scc1 {l}")
def srd(d, p, size):
    a(f"s_mov_b32 s{d}, s{p}\ns_mov_b32 s{d+1}, s{p+1}\ns_mov_b32 s{d+2}, {hex(size)}\ns_mov_b32 s{d+3}, 0x20000")
def budget(done):
    a(f"s_cmp_eq_u32 s{sBUD}, 0\ns_cbranch_scc1 {done}\ns_sub_u32 s{sBUD}, s{sBUD}, 1")
cold = []
def emit_cold():
    while cold: cold.pop(0)()
def poll_issue(vaddr, vtmp, plane, n=1):
    a(f"s_mov_b32 s{t0}, {WS_F + plane*FP}\nbuffer_load_dword{'x2' if n == 2 else ''} {vr(vtmp,n)}, v{vaddr}, {sr(sWS,4)}, s{t0} offen sc1")
def poll_check(vaddr, vtmp, plane, nap=4, n=1):
    lp, dn = a.lab("pf"), a.lab("pfd")
    a(f"v_cmp_ne_u32 vcc, s{sNON}, v{vtmp}\ns_cbranch_vccnz {lp}\n{dn}:")
    def slow():
        a(f"{lp}:"); budget(dn)
        if nap: a(f"s_sleep {nap}")
        a("s_mov_b64 exec, vcc")
        poll_issue(vaddr, vtmp, plane, n)
        a(f"s_mov_b64 exec, -1\ns_waitcnt vmcnt(0)\nv_cmp_ne_u32 vcc, s{sNON}, v{vtmp}\ns_cbranch_vccnz {lp}\ns_branch {dn}")
    cold.append(slow)
def put_flag(soff, vnon, vl4):
    a(f"s_mov_b32 exec_hi, 0\nbuffer_store_dword v{vnon}, v{vl4}, {sr(sWS,4)}, s{soff} offen sc1\ns_mov_b32 exec_hi, -1")
def diag_dump(n):
    if not DIAG: return
    a("s_waitcnt lgkmcnt(0)")
    a(f"s_lshl_b32 s{t0}, s{sL}, 3\ns_add_u32 s{t0}, s{t0}, s{sW}\ns_lshl_b32 s{t0}, s{t0}, 6\ns_add_u32 s{t0}, s{t0}, {WS_DIAG}")
    a("v_mov_b32 v8, 0")
    for i in range(14):
        a(f"v_writelane_b32 v8, s{YREG[i] if (YST and role[0] == 'A' and i < len(YST)) else sST+2*i}, {i}")
    a("v_writelane_b32 v8, s100, 14\nv_writelane_b32 v8, s31, 15")
    a(f"""v_mbcnt_lo_u32_b32 v9, -1, 0
    v_mbcnt_hi_u32_b32 v9, -1, v9
    v_lshlrev_b32 v9, 2, v9
    s_mov_b64 exec, 0xffff
    buffer_store_dword v8, v9, {sr(sWS,4)}, s{t0} offen
    s_mov_b64 exec, -1""")
def dma_lane_addrs():
    a(f"""v_lshrrev_b32 v11, 3, v0
    v_and_b32 v12, 7, v0
    v_lshrrev_b32 v13, 2, v0
    v_and_b32 v13, 4, v13
    v_xor_b32 v12, v12, v13
    v_lshlrev_b32 v12, 4, v12
    v_lshl_add_u32 v9, v11, 10, v12
    v_mul_u32_u24 v8, 3072, v11
    v_add_u32 v8, v8, v12""")
def xrows(n, mod=""):
    for r in range(n):
        a(f"s_add_u32 m0, s{sD0}, {X + (r//4)*4*XS + (r%4)*16}")
        if r % 4 == 0 and r: a(f"s_add_u32 s{sD1}, s{sD1}, 4096")
        a(f"buffer_load_dwordx4 v10, {sr(sX,4)}, s{sD1} offen offset:{(r%4)*1024} {mod} lds")
X0, X1, X2, X3 = X, X + 16384, X + 32768, X + 49152
R0, R1, R2 = RING, RING + 16384, RING + 32768
STG = [X0, X1, X2, X3, R0, R1, R2, X0,   X1, X2, X3, R0,   X0, R1, R2, R0,   X0, X1, X2, X3]
W_KV, W_Q, W_G, W_OB, W_FAR, W_P = 0, 1, 2, 6, 7, 8
nword = [9]
G1 = MISC + 512

def fin_body(pk, fb, nap):
    FO, FL, vT, vONE, vGF, FOUT, vL16 = 104, 136, 3, 1, 233, 244, 10
    lp, dn = a.lab("fw"), a.lab("fwd")
    a(f"{lp}:\nds_read_b32 v{vT}, v14 offset:128\ns_waitcnt lgkmcnt(0)\nv_cmp_gt_u32 vcc, s{t1}, v{vT}\ns_cbranch_vccz {dn}")
    budget(dn)
    if nap: a(f"s_sleep {nap}")
    a(f"s_branch {lp}\n{dn}:")
    xs("f0")
    for w in range(4):
        a(f"ds_read_b128 {vr(FO+8*w,4)}, v{FL+4} offset:{w*2048}\nds_read_b128 {vr(FO+8*w+4,4)}, v{FL+4} offset:{w*2048+1024}\nds_read_b32 v{FL+w}, v15 offset:{w*256}")
    def add2(d, x, y):
        if pk: a(f"v_pk_add_f32 {vr(d,2)}, {vr(x,2)}, {vr(y,2)}")
        else: a(f"v_add_f32 v{d}, v{x}, v{y}\nv_add_f32 v{d+1}, v{x+1}, v{y+1}")
    if pk:
        a(f"ds_write_b32 v13, v{vONE}\ns_waitcnt lgkmcnt(1)")
        xs("f1")
        for r in range(0, 8, 2): add2(FO + r, FO + r, FO + 8 + r); add2(FO + 16 + r, FO + 16 + r, FO + 24 + r)
    else:
        a("s_waitcnt lgkmcnt(6)")
        for r in range(0, 8, 2): add2(FO + r, FO + r, FO + 8 + r)
        a("s_waitcnt lgkmcnt(0)")
        for r in range(0, 8, 2): add2(FO + 16 + r, FO + 16 + r, FO + 24 + r)
    add2(FL, FL, FL + 2)
    for r in range(0, 8, 2): add2(FO + r, FO + r, FO + 16 + r)
    a(f"v_add_f32 v{FO+8}, v{FL}, v{FL+1}")
    if pk:
        a(f"""v_pk_mul_f32 {vr(FO+10,2)}, {vr(FO,2)}, 0 op_sel_hi:[1,0]
        v_pk_fma_f32 {vr(FO+10,2)}, {vr(FO+2,2)}, 0, {vr(FO+10,2)} op_sel_hi:[1,0,1]
        v_pk_fma_f32 {vr(FO+10,2)}, {vr(FO+4,2)}, 0, {vr(FO+10,2)} op_sel_hi:[1,0,1]
        v_pk_fma_f32 {vr(FO+10,2)}, {vr(FO+6,2)}, 0, {vr(FO+10,2)} op_sel_hi:[1,0,1]
        v_add_f32 v{FO+10}, v{FO+10}, v{FO+11}
        v_add_f32 v{FO+10}, v{FO+10}, v{FO+8}""")
    else:
        a(f"v_fma_f32 v{FO+10}, v{FO}, 0, v{FO+8}")
        for r in range(1, 8): a(f"v_fma_f32 v{FO+10}, v{FO+r}, 0, v{FO+10}")
    a(f"""v_cmp_nle_f32 vcc, {hex((127-40)<<23)}, v{FO+10}
    s_cbranch_vccnz {fb}
    v_cmp_nge_f32 vcc, {hex((127+60)<<23)}, v{FO+10}
    s_cbranch_vccnz {fb}""")
    if FORCE_FB: a(f"s_branch {fb}")
    if pk: a("L_fin_norm:")
    a(f"v_rcp_f32 v{FO+8}, v{FO+8}\nv_mul_f32 v{FO+8}, v{FO+8}, v{vGF}")
    for r in range(0, 8, 2):
        if pk: a(f"v_pk_mul_f32 {vr(FO+r,2)}, {vr(FO+r,2)}, {vr(FO+8,2)} op_sel_hi:[1,0]")
        else: a(f"v_mul_f32 v{FO+r}, v{FO+r}, v{FO+8}\nv_mul_f32 v{FO+r+1}, v{FO+r+1}, v{FO+8}")
    for r in range(4): a(f"v_cvt_pk_bf16_f32 v{FOUT+r}, v{FO+2*r}, v{FO+2*r+1}")
    for r in range(4): a(f"v_min_u32 v{FOUT+r}, -2, v{FOUT+r}")
    xs("f2")
    l1, l2 = a.lab("st"), a.lab("st")
    a(f"""s_cmp_ge_u32 s{sJ}, s{sFAR}
    s_cbranch_scc1 {l1}
    buffer_store_dwordx4 {vr(FOUT,4)}, v{vL16}, {sr(sWS,4)}, s{t4} offen sc1
    s_branch {l2}
    {l1}:
    buffer_store_dwordx4 {vr(FOUT,4)}, v{vL16}, {sr(sWS,4)}, s{t4} offen
    {l2}:""")
    xs("f3")

if HOLDAT or DIAG: a("s_memrealtime s[100:101]")
a(f"""s_cmp_ge_u32 s2, 256
s_cbranch_scc1 L_exit
s_load_dwordx16 s[4:19], s[0:1], 0
s_load_dwordx8 s[20:27], s[0:1], 64
s_load_dwordx2 s[28:29], s[0:1], 96
v_lshrrev_b32 v1, 6, v0
v_and_b32 v0, 63, v0
v_readfirstlane_b32 s{sW}, v1""")
a(f"""s_and_b32 s{t0}, s2, 7
s_lshr_b32 s{t1}, s2, 3""")
if MAP == 0:
    a(f"""s_lshr_b32 s{t2}, s{t0}, 1
    s_lshl_b32 s{t2}, s{t2}, 3
    s_lshr_b32 s{t3}, s{t1}, 2
    s_add_u32 s{sRB}, s{t2}, s{t3}
    s_and_b32 s{t2}, s{t0}, 1
    s_lshl_b32 s{t2}, s{t2}, 2
    s_and_b32 s{t5}, s{t1}, 3
    s_add_u32 s{sHG}, s{t2}, s{t5}""")
else:
    a(f"""s_lshl_b32 s{t2}, s{t0}, 2
    s_lshr_b32 s{t3}, s{t1}, 3
    s_add_u32 s{sRB}, s{t2}, s{t3}
    s_and_b32 s{sHG}, s{t1}, 7
    s_and_b32 s{t5}, s{t1}, 3""")
def ids():
    a(f"""s_lshl_b32 s{sL}, s{sRB}, 3
    s_add_u32 s{sL}, s{sL}, s{sHG}
    s_mov_b32 s{sBUD}, 400000
    s_lshl_b32 s{sFL}, s{sL}, 7
    s_add_u32 s{sFL}, s{sFL}, {WS_F}""")
a(f"""v_lshlrev_b32 v10, 4, v0
s_cmp_lg_u32 s{sW}, 0
s_cbranch_scc1 L_w17""")
def others():
    a(f"L_w17:\ns_cmp_eq_u32 s{sW}, 3\ns_cbranch_scc1 L_aw3\ns_cmp_lt_u32 s{sW}, 3\ns_cbranch_scc1 L_aw12")
    if CPF:
        a(f"""s_getpc_b64 s[{sSM}:{sSM+1}]
        L_pc:
        s_lshl_b32 s{t0}, s{t1}, 2
        s_add_u32 s{t0}, s{t0}, s{sW}
        s_sub_u32 s{t0}, s{t0}, 3
        s_lshl_b32 s{t0}, s{t0}, 8
        s_min_u32 s{t0}, s{t0}, CODE_END - L_pc - 256
        s_add_u32 s{sSM}, s{sSM}, s{t0}
        s_addc_u32 s{sSM+1}, s{sSM+1}, 0
        s_load_dword s96, s[{sSM}:{sSM+1}], 0
        s_load_dword s97, s[{sSM}:{sSM+1}], 64
        s_load_dword s98, s[{sSM}:{sSM+1}], 128
        s_load_dword s99, s[{sSM}:{sSM+1}], 192""")
    a("s_branch L_sw")
    a(f"""L_aw3:
    s_cmp_lg_u32 s2, 0
    s_cbranch_scc1 L_nononce
    s_memrealtime s[{t1}:{t2}]
    v_mov_b32 v13, 0
    s_waitcnt lgkmcnt(0)
    s_or_b32 s{t1}, s{t1}, 1
    v_mov_b32 v14, s{t1}
    s_mov_b64 exec, 1
    global_store_dword v13, v14, s[{pDBG}:{pDBG+1}] sc1
    s_mov_b64 exec, -1
    L_nononce:
    s_lshl_b32 s{t0}, s{sHG}, 11
    v_add_u32 v11, s{t0}, v10
    s_lshl_b32 s{t0}, s2, 11
    v_lshl_add_u32 v12, v0, 7, s{t0}
    s_lshl_b32 s{t0}, s{sRB}, 7
    s_add_u32 s{t0}, s{t0}, {WS_F}
    v_mov_b32 v13, s{t0}
    s_waitcnt lgkmcnt(0)
    s_mov_b32 m0, {WPHI}
    s_mov_b64 exec, 0xffff""")
    if WQT == 1: a(f"global_load_dword v20, v12, s[{pWQ}:{pWQ+1}]")
    a(f"""s_mov_b64 exec, 1
    global_load_dword v21, v13, s[{pWS}:{pWS+1}]
    s_mov_b64 exec, -1
    global_load_lds_dwordx4 v11, s[{pWPHI}:{pWPHI+1}]
    global_load_lds_dwordx4 v11, s[{pWPHI}:{pWPHI+1}] offset:1024
    s_branch L_aw3b""")
role[0] = "A"
S0, S1, O_, QR, KR, VR = 12, 28, 44, 60, 64, 128
vIDX, vZ, vQA, vPA, vLA, vCA, vCV = 1, 2, 4, 5, 6, 7, 8
JX, JW, JA = KR, KR + 64, O_
aNON = O_ + 8
def vconst():
    a(f"""v_and_b32 v12, 11, v0
    v_cmp_eq_u32 vcc, 0, v12
    v_mov_b32 v13, {hex(ONES)}
    v_cndmask_b32 v12, 0, v13, vcc
    v_cndmask_b32 v13, 0, v13, vcc""")
    for t in range(16):
        a(f"v_mov_b64 {vr(VR+8*t+4,2)}, v[12:13]\nv_mov_b64 {vr(VR+8*t+6,2)}, v[12:13]")
        if VMASK: a(f"v_mov_b64 {vr(VR+8*t,2)}, v[12:13]\nv_mov_b64 {vr(VR+8*t+2,2)}, v[12:13]")
a(f"""s_mul_i32 s{sD0}, s{t5}, {16*XS}
s_lshl_b32 s{sD1}, s{sRB}, 16
s_lshl_b32 s{t2}, s{t5}, 14
s_add_u32 s{sD1}, s{sD1}, s{t2}
s_mov_b32 m0, {GATE}
s_waitcnt lgkmcnt(0)""")
ys("ka")
a(f"global_load_lds_dwordx4 v10, s[{pGATE}:{pGATE+1}]")
srd(sX, pX, 0x200000)
xrows(16, "nt" if XNT else "")
ys("xi")
a(f"s_bitcmp1_b32 s{sHG}, 2\ns_cselect_b32 s{sWKV}, s{pWV}, s{pWK}\ns_cselect_b32 s{sWKV+1}, s{pWV+1}, s{pWK+1}\ns_mov_b32 s{sWKV+2}, 0x4000\ns_mov_b32 s{sWKV+3}, 0x20000")
for n in range(16):
    if n % 4 == 0: a(f"s_mov_b32 m0, {WKV + n*1024}\ns_mov_b32 s{t1}, {n*1024}")
    a(f"buffer_load_dwordx4 v10, {sr(sWKV,4)}, s{t1} offen offset:{(n%4)*1024} lds")
NTQ = 0
if WQT == 2:
    NTQ = 2 if MAP else 1
    a(f"""s_and_b32 s{t0}, s{sRB}, {3 if MAP else 7}
    s_lshl_b32 s{t0}, s{t0}, {17 if MAP else 16}
    s_lshl_b32 s{t1}, s{sHG}, 7
    s_add_u32 s{t0}, s{t0}, s{t1}
    v_lshl_add_u32 v12, v0, 10, s{t0}
    global_load_dword v24, v12, s[{pWQ}:{pWQ+1}]""")
    if MAP: a(f"v_add_u32 v12, 0x10000, v12\nglobal_load_dword v24, v12, s[{pWQ}:{pWQ+1}]")
a("s_branch L_aw0b")
others()
a("L_aw0b:")
ids()
srd(sWS, pWS, WS_SIZE); srd(sDBG, pDBG, 256)
stamp(0)
a(f"""v_and_b32 v16, 15, v0
v_lshrrev_b32 v14, 4, v0
s_lshl_b32 s{t0}, s{t5}, 4
v_add_u32 v13, s{t0}, v16
v_mul_u32_u24 v15, {XS}, v13
v_lshl_add_u32 v15, v14, 4, v15
v_lshlrev_b32 v19, 3, v16
v_lshl_add_u32 v19, v14, 8, v19
v_add_u32 v19, {WKV}, v19
s_lshr_b32 s{t0}, s{t5}, 1
s_lshl_b32 s{t1}, s{sRB}, 1
s_add_u32 s{t0}, s{t0}, s{t1}
s_lshl_b32 s{t0}, s{t0}, 11
s_and_b32 s{t1}, s{t5}, 1
s_lshl_b32 s{t1}, s{t1}, 8
s_add_u32 s{t4}, s{t0}, s{t1}
v_and_b32 v17, 1, v14
v_lshrrev_b32 v18, 1, v14
v_lshlrev_b32 v25, 4, v14
v_add_u32 v25, {GATE}, v25
v_lshlrev_b32 v26, 2, v0
s_lshl_b32 s{t3}, s{sL}, 6
s_add_u32 s{t3}, s{t3}, {WS_G}
s_waitcnt vmcnt({32 + NTQ})""")
if HAT == -2: a("s_barrier")
JG = KR + 128
for n in range(16): a(f"ds_read_b128 {vr(JG+4*n,4)}, v25 offset:{n*64}")
a(f"s_bitcmp1_b32 s{sHG}, 2\ns_cbranch_scc1 L_job_v")
def job(isv):
    a(f"v_lshlrev_b32 v20, 9, v{18 if isv else 17}\nv_lshl_add_u32 v17, v16, 4, v20")
    if isv: a(f"s_add_u32 s{t4}, s{t4}, 1024")
    ys("j0")
    a(f"s_waitcnt vmcnt({16 + NTQ})")
    ys("xl")
    if HAT == -1: a("s_barrier")
    for n in range(16): a(f"ds_read_b128 {vr(JX+4*n,4)}, v15 offset:{n*64}")
    def grp(gq):
        a(f"s_waitcnt vmcnt({12 - 4*gq + NTQ})")
        if gq == 3: ys("wl")
        if gq == HAT: a("s_barrier")
        for n in range(4 * gq, 4 * gq + 4):
            a(f"ds_read_b64_tr_b16 {vr(JW+4*n,2)}, v19 offset:{n*1024}")
            a(f"ds_read_b64_tr_b16 {vr(JW+4*n+2,2)}, v19 offset:{n*1024+128}")
    def mm(gq):
        for n in range(4 * gq, 4 * gq + 4):
            A, B = (JX, JW) if isv else (JW, JX)
            a(f"v_mfma_f32_16x16x32_bf16 {vr(JA,4)}, {vr(A+4*n,4)}, {vr(B+4*n,4)}, {'0' if n == 0 else vr(JA,4)}")
        for n in {0: range(0, 8), 1: range(8, 16)}.get(gq, []):
            a(f"v_mfma_f32_16x16x32_bf16 {vr(JA+4,4)}, {vr(JG+4*n,4)}, {vr(JX+4*n,4)}, {'0' if n == 0 else vr(JA+4,4)}")
    grp(0)
    for gq in range(4):
        if gq < 3: grp(gq + 1); a("s_waitcnt lgkmcnt(8)")
        else: a(f"buffer_load_dword v{aNON}, off, {sr(sDBG,4)}, 0 sc1\ns_waitcnt lgkmcnt(0)")
        mm(gq)
    sw = "v_permlane16_swap_b32" if isv else "v_permlane32_swap_b32"
    a(f"""v_cvt_pk_bf16_f32 v20, v{JA}, v{JA+1}
    v_cvt_pk_bf16_f32 v21, v{JA+2}, v{JA+3}
    {sw} v20, v22
    {sw} v21, v23""")
    a("s_mov_b32 exec_lo, 0xffff\ns_mov_b32 exec_hi, 0xffff" if isv else "s_mov_b32 exec_hi, 0")
job(False)
a("s_branch L_job_st\nL_job_v:")
job(True)
a("L_job_st:")
a(f"""buffer_store_dwordx4 v[20:23], v17, {sr(sWS,4)}, s{t4} offen sc1
s_mov_b64 exec, 0xffff
buffer_store_dword v{JA+4}, v26, {sr(sWS,4)}, s{t3} offen sc1
s_mov_b64 exec, -1""")
stamp(8)
if HAT == 4: a("s_barrier")
def job_flag():
    lp, dn = a.lab("np"), a.lab("npd")
    if FST == 4:
        a(f"""s_lshl_b32 s{t0}, s{sRB}, 7
        s_lshl_b32 s{t1}, s{sHG}, 2
        s_add_u32 s{t0}, s{t0}, s{t1}
        s_add_u32 s{t0}, s{t0}, {WS_F}""")
    else: a(f"s_mul_i32 s{t0}, s{sL}, {FST}\ns_add_u32 s{t0}, s{t0}, {WS_F}")
    if "nn" in YST: a("s_waitcnt vmcnt(1)"); ys("nn")
    a("s_waitcnt vmcnt(0)"); ys("ack")
    a(f"""v_cmp_eq_u32 vcc, 0, v{aNON}
    s_cbranch_vccnz {lp}
    {dn}:
    s_mov_b32 exec_lo, {hex((1 << (FST // 4)) - 1)}
    s_mov_b32 exec_hi, 0
    buffer_store_dword v{aNON}, v26, {sr(sWS,4)}, s{t0} offen sc1
    s_mov_b64 exec, -1""")
    a(f"v_mov_b32 v13, {NONCE}\nds_write_b32 v13, v{aNON}\ns_waitcnt lgkmcnt(0)")
    stamp(9)
    def slow():
        a(f"{lp}:"); budget(dn)
        a(f"""buffer_load_dword v{aNON}, off, {sr(sDBG,4)}, 0 sc1
        s_waitcnt vmcnt(0)
        v_cmp_eq_u32 vcc, 0, v{aNON}
        s_cbranch_vccnz {lp}
        s_branch {dn}""")
    cold.append(slow)
def aw_poll():
    if FST > 4: a(f"s_mul_i32 s{t1}, s{sW}, {64*FST}\nv_mul_u32_u24 v11, {FST}, v0\nv_add_u32 v11, s{t1}, v11")
    else: a(f"s_lshl_b32 s{t1}, s{sW}, 10\nv_lshrrev_b32 v11, 3, v0\nv_lshl_add_u32 v11, v11, 7, s{t1}\nv_and_b32 v14, 7, v0\nv_lshl_add_u32 v11, v14, 2, v11")
    poll_issue(11, S1, F_KV)
def aw_wait(word, target, nap=0):
    lp, dn = a.lab("aw"), a.lab("awd")
    a(f"""{lp}:
    ds_read_b32 v14, v9 offset:{SYNC - NONCE + 4*word}
    s_waitcnt lgkmcnt(0)
    v_cmp_gt_u32 vcc, {target}, v14
    s_cbranch_vccz {dn}""")
    budget(dn)
    if nap: a(f"s_sleep {nap}")
    a(f"s_branch {lp}\n{dn}:")
def aw_signal(word):
    a(f"s_mov_b64 exec, 1\nds_add_u32 v9, v{vCV} offset:{SYNC - NONCE + 4*word}\ns_mov_b64 exec, -1")
if FLAG1: job_flag()
a("s_barrier")
stamp(1)
if not FLAG1: job_flag()
a("s_branch L_aw03")

a("L_aw12:")
ids()
dma_lane_addrs()
a(f"""v_mov_b32 v11, v9
s_sub_u32 s{sS}, s{sW}, 1
s_lshl_b32 s{t3}, s{sS}, 13
s_lshl_b32 s{t4}, s{sS}, 16
s_lshl_b32 s{t2}, s{sHG}, 7
s_add_u32 s{t4}, s{t4}, s{t2}
s_mul_i32 s{sP}, s{sS}, 3
s_lshl_b32 s{t0}, s{t5}, 1
s_add_u32 s{sP}, s{sP}, s{t0}
s_add_u32 s{sP}, s{sP}, 2
v_mov_b32 v9, {NONCE}
v_mov_b32 v{vCV}, 1
s_waitcnt lgkmcnt(0)""")
srd(sX, pX, 0x200000); srd(sWQ, pWQ, 0x80000); srd(sWS, pWS, WS_SIZE)
vconst()
AV = Cnt(63)
for gq in range(3):
    a(f"""s_add_u32 s{t0}, s{sP}, {gq}
    s_and_b32 s{t0}, s{t0}, 7
    s_lshl_b32 s{sD1}, s{sRB}, 16
    s_lshl_b32 s{t2}, s{t0}, 13
    s_add_u32 s{sD1}, s{sD1}, s{t2}
    s_mul_i32 s{sD0}, s{t0}, {8*XS}""")
    if gq == 0:
        a("s_barrier")
        stamp(0)
    xrows(8)
def ld_wq(g):
    for n in range(8):
        a(f"s_add_u32 m0, s{t3}, {WQB + ((g + 1) % 4)*16384 + n*1024}\ns_add_u32 s{t1}, s{t4}, {g*131072 + n*8192}")
        a(f"buffer_load_dwordx4 v11, {sr(sWQ,4)}, s{t1} offen lds")
    AV.issue(g, 8)
for g_ in range(WQE): ld_wq(g_)
ys("j0")
a(f"s_waitcnt vmcnt({AV.need(0) if G0H else 8*WQE})")
ys("xl")
a("s_barrier")
stamp(1)
for g_ in range(WQE, 2): ld_wq(g_)
for b in range(4):
    if not LATE and max(WQE, 2) + b < 4: ld_wq(max(WQE, 2) + b)
    if not (G0H and b == 0):
        a(f"s_waitcnt vmcnt({AV.need(b)})")
        aw_signal(W_G + b)
    ys(f"l{b}")
    if LATE and max(WQE, 2) + b < 4: ld_wq(max(WQE, 2) + b)
a("s_branch L_aw_all")

a("L_aw3b:")
ids()
srd(sWS, pWS, WS_SIZE)
stamp(0)
a(f"""v_mov_b32 v24, 0
v_mov_b32 v25, 0
v_mov_b32 v26, 0
v_mov_b32 v27, 0
v_add_u32 v13, {LT}, v10""")
for n in range(4): a(f"ds_write_b128 v13, v[24:27] offset:{n*1024}")
a(f"""v_lshlrev_b32 v13, 2, v0
v_add_u32 v13, {MISC}, v13
v_lshrrev_b32 v14, 2, v0
v_cmp_eq_u32 vcc, 1, v14
v_cndmask_b32 v14, 0, v14, vcc
ds_write_b32 v13, v14""")
a("s_waitcnt lgkmcnt(0)\ns_barrier")
a("s_waitcnt vmcnt(0)\ns_barrier")
stamp(1)
a("L_aw03:")
vconst()
a(f"v_mov_b32 v9, {NONCE}\nv_mov_b32 v{vCV}, 1")
if PKS < 0: aw_wait(W_G + POLLAT, 2, nap=2)
a("L_aw_all:")
if PKS >= 0: aw_wait(W_P, 1, nap=1)
aw_poll()
stamp(2)
aw_wait((NONCE - SYNC) // 4, 1)
a(f"s_lshl_b32 s{t4}, s{sW}, 15")
if ROT: a(f"s_lshr_b32 s{t2}, s2, 3\ns_and_b32 s{t2}, s{t2}, 7\ns_lshl_b32 s{t2}, s{t2}, 12\ns_add_u32 s{t4}, s{t4}, s{t2}")
a(f"v_readfirstlane_b32 s{sNON}, v14\ns_waitcnt vmcnt(0)")
poll_check(11, S1, F_KV, nap=E('ANAP', 2))
stamp(3)
kvn = [0]
KC = Cnt(63)
def kvload(k):
    if VMASK:
        for _ in range(k // 4):
            t = kvn[0] // 2
            if t == 16: return
            a(f"s_xor_b32 s{t3}, s{t4}, {t*2048}")
            for u in range(2):
                a(f"buffer_load_dwordx4 {vr(KR+4*(t+u),4)}, v10, {sr(sWS,4)}, s{t3} offen offset:{u*2048} sc1"); KC.issue(("k", t + u))
            a(f"s_mov_b64 exec, s[{sL2E}:{sL2E+1}]")
            for u in range(4):
                a(f"buffer_load_dwordx4 {vr(VR+8*t+4*u,4)}, v10, {sr(sWS,4)}, s{t3} offen offset:{(u//2)*2048 + 1024 + (u%2)*256} sc1"); KC.issue(("v", t + u // 2))
            a("s_mov_b64 exec, -1")
            kvn[0] += 4
        return
    for _ in range(k):
        n = kvn[0]; t = n // 2
        if n == 32: return
        if n % 4 == 0: a(f"s_xor_b32 s{t3}, s{t4}, {t*2048}")
        a(f"buffer_load_dwordx4 {vr(VR+8*t if n % 2 else KR+4*t,4)}, v10, {sr(sWS,4)}, s{t3} offen offset:{(n%4)*1024} sc1")
        KC.issue(("v" if n % 2 else "k", t))
        kvn[0] += 1
def kvwait(*tags):
    n = [x for x in (KC.need(t) for t in tags) if x is not None]
    if n: a(f"s_waitcnt vmcnt({min(n)})")
if VMASK: a(f"s_mov_b32 s{sL2E}, 0xffff\ns_mov_b32 s{sL2E+1}, 0xffff")
kvload(2 * PRE)
a(f"""s_lshl_b32 s{t0}, s{sW}, 11
s_add_u32 s{t0}, s{t0}, {OP}
v_add_u32 v{vPA}, s{t0}, v10
v_add_u32 v{vQA}, {Q}, v10
s_lshl_b32 s{t0}, s{sW}, 8
s_add_u32 s{t0}, s{t0}, {LT}
v_and_b32 v{vLA}, 31, v0
v_lshl_add_u32 v{vLA}, v{vLA}, 2, s{t0}
v_mov_b32 v{vCA}, {CONS}
v_mov_b32 v{vIDX}, 0xdddd
v_mov_b32 v{vZ}, 0
v_mov_b32 v{vZ+1}, 0""")
aw_wait(W_Q, 4, nap=E("QNAP", 1))
a(f"ds_read_b128 {vr(QR,4)}, v{vQA}\ns_setprio 1")
stamp(4)
def zero_o(): a(f"v_mfma_f32_32x32x8_bf16 {vr(O_,16)}, {vr(vZ,2)}, {vr(vZ,2)}, 0")
def qk(t, S): a(f"v_mfma_f32_32x32x16_bf16 {vr(S,16)}, {vr(KR+4*t,4)}, {vr(QR,4)}, 0")
def pv(t, s, S): a(f"v_smfmac_f32_32x32x32_bf16 {vr(O_,16)}, {vr(VR+8*t+4*s,4)}, {vr(S+8*s,8)}, v{vIDX}")
def flush():
    lp, dn = a.lab("cw"), a.lab("cwd")
    a(f"v_cmp_eq_u32 vcc, 0, v{vCV}\ns_cbranch_vccnz {lp}")
    def slow():
        a(f"{lp}:"); budget(dn)
        a(f"""s_sleep 1
        ds_read_b32 v{vCV}, v{vCA}
        s_waitcnt lgkmcnt(0)
        v_cmp_eq_u32 vcc, 0, v{vCV}
        s_cbranch_vccnz {lp}
        s_branch {dn}""")
    cold.append(slow)
    a(f"""{dn}:
    ds_write_b128 v{vPA}, {vr(O_,4)}
    ds_write_b128 v{vPA}, {vr(O_+4,4)} offset:1024
    ds_write2_b32 v{vLA}, v{O_+8}, v{vQA} offset0:0 offset1:32""")
def apass(first):
    for t in range(16):
        S, Sn = (S0, S1) if t % 2 == 0 else (S1, S0)
        for e in range(16):
            if e == 2 and not (first and t == 0): pv((t - 1) % 16, 1, Sn)
            if e == 5:
                if first and t < 15: assert kvn[0] > 2*(t+1); kvwait(("k", t + 1), ("v", t))
                if t == 15: a("s_waitcnt lgkmcnt(0)" if not first else "s_waitcnt vmcnt(0) lgkmcnt(0)")
                qk((t + 1) % 16, Sn)
                if t == 14:
                    a(f"v_add_u32 v{vQA}, 1024, v{vQA}\nds_read_b128 {vr(QR,4)}, v{vQA}\nds_read_b32 v{vCV}, v{vCA}")
            if e == 8 and first:
                if not VMASK:
                    for r in range(4): a(f"v_permlane16_swap_b32 v{VR+8*t+r}, v{VR+8*t+4+r}")
                if not VMASK or t % 3 != E("VSK", 5): kvload(LPT)
                if t == SIGT: aw_signal(W_KV)
            if e == 13 and t == 0 and not first:
                flush(); zero_o()
            if e == 15: pv(t, 0, S)
            a(f"v_exp_f32 v{S+e}, v{S+e}")
        if t == 0 and not first:
            a(f"""s_add_u32 s{sJ}, s{sJ}, 1
            s_cmp_eq_u32 s{sJ}, 4
            s_cselect_b32 s{t0}, -3, 1
            v_lshl_add_u32 v{vPA}, s{t0}, 13, v{vPA}
            v_lshl_add_u32 v{vLA}, s{t0}, 10, v{vLA}
            v_add_u32 v{vCA}, 4, v{vCA}""")
a(f"""s_lshr_b32 s{sD0}, s{sW}, 1
s_lshl_b32 s{sD0}, s{sD0}, 10
s_and_b32 s{t0}, s{sW}, 1
s_lshl_b32 s{t0}, s{t0}, 3
s_add_u32 s{sD0}, s{sD0}, s{t0}""" if QFIN else f"s_mov_b32 s{sD0}, 0")
a(f"""s_add_u32 s{sD0}, s{sD0}, {OP + 3*8192}
s_lshl_b32 s{t0}, s{sRB}, 7
s_lshl_b32 s{t1}, s{sHG}, 2
s_add_u32 s{t0}, s{t0}, s{t1}
s_lshl_b32 s{sD1}, s{t0}, 10
s_add_u32 s{sD1}, s{sD1}, {WS_O + 67*1024}
s_mov_b32 s{t1}, {Q + 8*1024}""")
zero_o()
a(f"s_mov_b32 s{sJ}, 0\ns_waitcnt lgkmcnt(0)")
kvwait(("k", 0))
qk(0, S0)
stamp(5)
apass(True)
stamp(6)
if DIAG and not YST: a(f"s_memtime s[96:97]\ns_mov_b32 s31, s{sBUD}")
a(".p2align 6\nL_aloop:")
apass(False)
if DIAG and os.environ.get("PASSST"):
    for n, sl in zip(range(1, 7), (0, 1, 2, 3, 4, 11)):
        l = a.lab("st")
        a(f"s_cmp_lg_u32 s{sJ}, {n}\ns_cbranch_scc1 {l}"); stamp(sl); a(f"{l}:")
a(f"s_cmp_lt_u32 s{sJ}, 7\ns_cbranch_scc1 L_aloop")
pv(15, 1, S1)
if not NOB:
    a(f"""v_lshlrev_b32 v251, 2, v0
    v_add_u32 v13, {G1}, v251
    ds_read_b64 v[18:19], v9 offset:{SYNC - NONCE + 4*W_OB}
    ds_read_b32 v233, v13
    v_and_b32 v14, 3, v0
    v_lshlrev_b32 v14, 8, v14
    v_add_u32 v14, {LT + 3*1024}, v14
    v_and_b32 v15, 124, v251
    v_add_u32 v15, {LT + 3*1024}, v15
    v_add_u32 v140, s{sD0}, v10""")
else: a("s_nop 9")
flush()
stamp(7)
if DIAG and not YST: a("s_memtime s[98:99]\ns_waitcnt lgkmcnt(0)\ns_sub_u32 s30, s98, s96\ns_sub_u32 s31, s31, s77")
if not NOB:
    lp, dn = a.lab("ob"), a.lab("obd")
    a(f"s_setprio 3\ns_mov_b32 s{t4}, s{sD1}")
    if not QFIN: a(f"s_cmp_lg_u32 s{sW}, 3\ns_cbranch_scc1 L_aw_end")
    a(f"""s_waitcnt lgkmcnt(3)
    v_cmp_gt_u32 vcc, 4, v18
    s_cbranch_vccnz {lp}
    {dn}:
    v_readfirstlane_b32 s{sFAR}, v19
    s_lshl_b32 s{sFAR}, s{sFAR}, 6""")
    if not QFIN: fin_body(False, "L_aw_fb", 0)
    else:
        l1, d1 = a.lab("fw"), a.lab("fwd")
        a(f"v_lshl_add_u32 v16, s{sW}, 2, v10\n{l1}:\nds_read_b32 v3, v14 offset:128\ns_waitcnt lgkmcnt(0)\nv_cmp_gt_u32 vcc, s{t1}, v3\ns_cbranch_vccz {d1}")
        budget(d1)
        a(f"s_branch {l1}\n{d1}:")
        a("ds_read2st64_b32 v[20:21], v15 offset0:0 offset1:1\nds_read2st64_b32 v[22:23], v15 offset0:2 offset1:3")
        for w_ in range(4): a(f"ds_read_b64 v[{24+2*w_}:{25+2*w_}], v140 offset:{w_*2048}")
        a(f"""s_waitcnt lgkmcnt(4)
        v_add_f32 v20, v20, v22
        v_add_f32 v21, v21, v23
        v_add_f32 v20, v20, v21
        v_rcp_f32 v21, v20
        s_waitcnt lgkmcnt(0)
        v_add_f32 v24, v24, v26
        v_add_f32 v28, v28, v30
        v_add_f32 v25, v25, v27
        v_add_f32 v29, v29, v31
        v_mul_f32 v21, v21, v233
        v_add_f32 v24, v24, v28
        v_add_f32 v25, v25, v29
        v_fma_f32 v20, v24, 0, v20
        v_fma_f32 v20, v25, 0, v20
        v_mul_f32 v24, v24, v21
        v_mul_f32 v25, v25, v21
        v_subrev_u32 v20, {hex((127-40)<<23)}, v20
        v_cmp_lt_u32 vcc, {hex(100<<23)}, v20
        v_cvt_pk_bf16_f32 v24, v24, v25
        s_cbranch_vccnz L_aw_fb""")
        if FORCE_FB: a("s_branch L_aw_fb")
        a(f"""v_min_u32 v24, -2, v24
        s_cmp_ge_u32 s{sJ}, s{sFAR}
        s_cbranch_scc0 L_aw_far
        buffer_store_dword v24, v16, {sr(sWS,4)}, s{t4} offen""")
        cold.append(lambda: a(f"L_aw_far:\nbuffer_store_dword v24, v16, {sr(sWS,4)}, s{t4} offen sc1\ns_endpgm"))
    a("L_aw_end:")
    cold.append(lambda: a(f"L_aw_fb:\ns_call_b64 s[{sRET}:{sRET+1}], L_fb\ns_endpgm"))
    def slow():
        a(f"{lp}:"); budget(dn)
        a(f"""s_sleep 2
        ds_read_b64 v[18:19], v9 offset:{SYNC - NONCE + 4*W_OB}
        ds_read_b32 v233, v13
        s_waitcnt lgkmcnt(0)
        v_cmp_gt_u32 vcc, 4, v18
        s_cbranch_vccnz {lp}
        s_branch {dn}""")
    cold.append(slow)
    stamp(10)
diag_dump(8)
hold()
a("s_endpgm")
emit_cold()

role[0] = "S"
vONE, vSY, vT = 1, 2, 3
vXA, vWX, vWO, vWOA, vD3, vD1, vL16, vGI, vGO = 4, 5, 6, 7, 8, 9, 10, 11, 12
WPH, PHQ, ACC, AC2, WB0, TMP = 16, 24, 40, 56, 72, 104
vNON, vGF, vLI, vPF = 232, 233, 234, 235
vSW, vSR, vSR2, vSV, vSVR = 236, 240, 241, 242, 243
FOUT = 244
vPO, vT2, vL4, vWP, vPR, vPC = 248, 249, 251, 252, 253, 254
XF = TMP; WR = WB0
VM, LG = Cnt(63), Cnt(15)
def wait(vm=None, lg=None):
    if isinstance(vm, tuple) and vm[0] == "st": assert (vm[1], 3) in issued, vm
    v = VM.need(vm) if vm is not None else None
    l = LG.need(lg) if lg is not None else None
    t = ([f"vmcnt({v})"] if v is not None else []) + ([f"lgkmcnt({l})"] if l is not None else [])
    if t: a("s_waitcnt " + " ".join(t))
def newword():
    nword[0] += 1; assert nword[0] <= 48; return nword[0] - 1
def arrive(w=None):
    w = newword() if w is None else w
    a(f"s_mov_b64 exec, 1\nds_add_u32 v{vSY}, v{vONE} offset:{4*w}\ns_mov_b64 exec, -1")
    LG.issue("arr")
    return w
def chk_read(w):
    a(f"ds_read_b32 v{vT}, v{vSY} offset:{4*w}"); LG.issue("chk")
def chk_test(w, target=4, lowprio=False, nap=0, near=False):
    dn, rt = a.lab("sbd"), a.lab("sbr")
    if near:
        wait(lg="chk")
        a(f"{rt}:\nv_readfirstlane_b32 s{t0}, v{vT}\ns_cmp_ge_u32 s{t0}, {target}\ns_cbranch_scc1 {dn}")
        budget(dn)
        a(f"ds_read_b32 v{vT}, v{vSY} offset:{4*w}\ns_waitcnt lgkmcnt(0)\ns_branch {rt}\n{dn}:")
        return
    if lowprio: a("s_setprio 2")
    wait(lg="chk")
    a(f"v_readfirstlane_b32 s{t0}, v{vT}\ns_cmp_lt_u32 s{t0}, {target}\ns_cbranch_scc1 {rt}\n{dn}:")
    if lowprio: a("s_setprio 0")
    def slow():
        a(f"{rt}:"); budget(dn)
        if nap: a(f"s_sleep {nap}")
        a(f"""ds_read_b32 v{vT}, v{vSY} offset:{4*w}
        s_waitcnt lgkmcnt(0)
        v_readfirstlane_b32 s{t0}, v{vT}
        s_cmp_lt_u32 s{t0}, {target}
        s_cbranch_scc1 {rt}
        s_branch {dn}""")
    cold.append(slow)
def check(w, target=4, nap=0): chk_read(w); chk_test(w, target, nap=nap)
class only:
    def __init__(s, reg, val): s.reg, s.val = reg, val
    def __enter__(s):
        s.l = a.lab("only"); a(f"s_cmp_lg_u32 s{s.reg}, {s.val}\ns_cbranch_scc1 {s.l}")
        s.sv = (list(VM.q), list(LG.q))
    def __exit__(s, *e):
        a(f"{s.l}:"); VM.q, LG.q = s.sv
def flag(plane): a(f"s_add_u32 s{t0}, s{sFL}, {plane*FP}"); put_flag(t0, vNON, vL4)
def call_fin(greg):
    a(f"v_mov_b32 v{vGF}, v{greg}\ns_call_b64 s[{sRET}:{sRET+1}], L_fin\ns_nop 1")
def dma_base(kind):
    a(f"s_lshl_b32 s{t1}, s{sHG}, 7")
    if kind == "kv":
        a(f"s_mul_i32 s{sD1}, s{sP}, {32*3072}\ns_add_u32 s{sD1}, s{sD1}, s{t1}\ns_lshl_b32 s{t1}, s{sI}, 10\ns_add_u32 s{sD1}, s{sD1}, s{t1}\ns_add_u32 s{sD1}, s{sD1}, 1024")
    elif kind == "q":
        a(f"s_mul_i32 s{sD1}, s{sS}, {32*3072}\ns_add_u32 s{sD1}, s{sD1}, s{t1}")
    else:
        a(f"s_lshl_b32 s{sD1}, s{sS}, 15\ns_add_u32 s{sD1}, s{sD1}, s{t1}")
def dma_one(c, n):
    if n == 0 and c in (8, 12): dma_base("q" if c == 8 else "o")
    if c < 8:   srdw, vo, base, step = sWB, vD3, c * 64 * 3072, 8 * 3072
    elif c < 12: srdw, vo, base, step = sWB, vD3, (c - 8) * 128 * 3072, 8 * 3072
    else:       srdw, vo, base, step = sWOB if c < 16 else sWOA, vD1, (c % 4) * 128 * 1024, 8 * 1024
    a(f"s_add_u32 m0, s{sD0}, {STG[c] + n*1024}\ns_add_u32 s{t1}, s{sD1}, {base + n*step}")
    a(f"buffer_load_dwordx4 v{vo}, {sr(srdw,4)}, s{t1} offen lds")
    VM.issue(("st", c)); issued.add((c, n))
issued = set()
def dma_stage(c):
    for n in range(4): dma_one(c, n)
def rd_w(dst, vaddr, off, second, tag=None):
    a(f"ds_read_b64_tr_b16 {vr(dst,2)}, v{vaddr} offset:{off}\nds_read_b64_tr_b16 {vr(dst+2,2)}, v{vaddr} offset:{off+second}")
    LG.issue(tag, 2)
def rd_stage(dst, c, k, tag):
    if STG[c] < OP: rd_w(dst, vWX, STG[c] + k * 2048, 512, tag)
    else: rd_w(dst, vWP, STG[c] - WQB + k * 2048, 512, tag)

a(".p2align 6\nL_sw:")
ids()
a(f"""s_setprio 2
s_and_b32 s{sS}, s{sW}, 3
s_lshr_b32 s{sI}, s{sS}, 1
s_and_b32 s{sP}, s{sS}, 1""")
dma_lane_addrs()
SCP = R1
SCV = R2
assert SCP % 64 == 0 and X == 0
a(f"""v_and_b32 v11, 31, v0
s_lshl_b32 s{t0}, s{sI}, 5
v_add_u32 v13, s{t0}, v11
v_mul_u32_u24 v{vXA}, {XS}, v13
v_lshrrev_b32 v12, 5, v0
v_lshl_add_u32 v{vXA}, v12, 4, v{vXA}
v_and_b32 v13, 15, v0
v_lshrrev_b32 v16, 2, v13
v_lshlrev_b32 v14, 7, v16
v_lshrrev_b32 v15, 3, v13
v_xor_b32 v15, s{sP}, v15
v_lshl_add_u32 v14, v15, 6, v14
v_bfe_u32 v17, v0, 4, 1
v_lshl_add_u32 v14, v17, 5, v14
v_and_b32 v18, 3, v0
v_lshl_add_u32 v14, v18, 3, v14
v_lshl_add_u32 v{vWX}, v12, 10, v14
v_lshl_add_u32 v{vWOA}, v12, 9, v14
v_add_u32 v{vWP}, {WQB}, v{vWX}
v_add_u32 v{vWO}, {RING}, v{vWOA}
v_mov_b32 v{vONE}, 1
v_mov_b32 v{vSY}, {SYNC}
v_lshlrev_b32 v{vL4}, 2, v0
v_min_u32 v15, 16, v11
v_mad_u32_u24 v{vLI}, v12, 20, v15
v_lshlrev_b32 v{vLI}, 3, v{vLI}
v_mad_u32_u24 v15, v12, 20, v11
v_lshlrev_b32 v{vPR}, 3, v15
s_lshl_b32 s{t0}, s{sRB}, 10
v_and_b32 v{vPF}, 7, v0
v_lshlrev_b32 v{vPF}, 7, v{vPF}
v_add_u32 v{vPF}, s{t0}, v{vPF}
s_lshl_b32 s{t0}, s{sHG}, 7
v_lshlrev_b32 v{vPC}, 10, v11
v_add_u32 v{vPC}, s{t0}, v{vPC}
v_bfe_u32 v14, v0, 1, 3
v_xor_b32 v14, v14, v12
v_lshlrev_b32 v14, 3, v14
v_lshl_add_u32 v14, v11, 6, v14
s_lshl_b32 s{t0}, s{sI}, 11
s_lshl_b32 s{t1}, s{sP}, 13
s_add_u32 s{t0}, s{t0}, s{t1}
s_add_u32 s{t0}, s{t0}, {SCP}
v_add_u32 v{vSW}, s{t0}, v14
v_xor_b32 v{vSW+1}, 16, v{vSW}
v_xor_b32 v{vSW+2}, 32, v{vSW}
v_xor_b32 v{vSW+3}, 48, v{vSW}
v_lshl_add_u32 v15, v12, 2, v16
v_lshrrev_b32 v14, 1, v15
v_lshl_add_u32 v19, v17, 2, v18
v_xor_b32 v14, v14, v19
v_lshlrev_b32 v14, 3, v14
v_lshl_add_u32 v15, v15, 6, v14
s_lshl_b32 s{t3}, s{sP}, 1
s_add_u32 s{t3}, s{t3}, s{sI}
s_lshl_b32 s{t0}, s{t3}, 12
s_add_u32 s{t0}, s{t0}, {SCP}
v_add_u32 v{vSR}, s{t0}, v15
v_xor_b32 v{vSR2}, 32, v{vSR}
s_lshl_b32 s{t0}, s{sS}, 11
s_add_u32 s{t0}, s{t0}, {SCV}
v_add_u32 v{vSV}, s{t0}, v{vL16}
v_lshlrev_b32 v14, 4, v13
v_lshl_add_u32 v14, v12, 9, v14
s_lshl_b32 s{t0}, s{sP}, 11
s_lshl_b32 s{t1}, s{sI}, 8
s_add_u32 s{t0}, s{t0}, s{t1}
s_add_u32 s{t0}, s{t0}, {SCV}
v_add_u32 v{vSVR}, s{t0}, v14
v_lshrrev_b32 v14, 1, v18
v_lshl_add_u32 v14, v17, 1, v14
v_lshlrev_b32 v14, 3, v14
v_lshl_add_u32 v{FOUT}, v16, 5, v14
v_lshl_add_u32 v{FOUT}, v12, 7, v{FOUT}
s_lshl_b32 s{t0}, s{sP}, 10
s_add_u32 s{t0}, s{t0}, {WPHI}
v_add_u32 v{FOUT}, s{t0}, v{FOUT}
v_lshlrev_b32 v{FOUT+1}, 31, v16
v_or_b32 v{FOUT+1}, {hex(LOG2E)}, v{FOUT+1}
s_lshl_b32 s{t0}, s{sS}, 11
s_add_u32 s{t0}, s{t0}, {Q}
v_add_u32 v{FOUT+2}, s{t0}, v{vL16}
s_lshl_b32 s{sD0}, s{sS}, 12""")
a("s_waitcnt lgkmcnt(0)")
srd(sWS, pWS, WS_SIZE); srd(sWB, pWQKV, 0x180000); srd(sWOA, pWOA, 0x80000); srd(sWOB, pWOB, 0x80000); srd(sOUT, pOUT, 0x200000)
dma_base("kv")
if SPF:
    a(f"""s_lshr_b32 s{t0}, s2, 2
    s_mul_i32 s{t0}, s{t0}, 3072
    s_and_b32 s{t1}, s2, 3
    s_lshl_b32 s{t1}, s{t1}, 2
    s_add_u32 s{t1}, s{t1}, s{sS}
    s_lshl_b32 s{t1}, s{t1}, 7
    s_add_u32 s{t0}, s{t0}, s{t1}
    s_add_u32 s{t0}, s{t0}, 1024
    s_add_u32 s{sSM}, s{pWQKV}, s{t0}
    s_addc_u32 s{sSM+1}, s{pWQKV+1}, 0
    s_add_u32 s{sSM+2}, s{sSM}, {4*64*3072}
    s_addc_u32 s{sSM+3}, s{sSM+1}, 0""")
SWQ = os.environ.get("SWQ", "")
def swq(groups):
    for g_ in groups:
        for n in range(16): a(f"s_load_dword s96, s[{sWKV}:{sWKV+1}], {int(g_)*131072 + (n//2)*1024 + (n%2)*64}")
if SWQ:
    assert MAP == 1
    a(f"""s_and_b32 s{t0}, s{sRB}, 3
    s_lshl_b32 s{t0}, s{t0}, 2
    s_add_u32 s{t0}, s{t0}, s{sS}
    s_lshl_b32 s{t0}, s{t0}, 13
    s_lshl_b32 s{t1}, s{sHG}, 7
    s_add_u32 s{t0}, s{t0}, s{t1}
    s_add_u32 s{sWKV}, s{pWQ}, s{t0}
    s_addc_u32 s{sWKV+1}, s{pWQ+1}, 0""")
    swq(SWQ.split("/")[0])
stamp(0)
a("s_barrier")
if SWQ: swq(SWQ.split("/")[1])
def spf(k):
    for n in range(k): a(f"s_load_dword s96, s[{sSM + 2*(n//8)}:{sSM + 2*(n//8) + 1}], {((n//2) % 4)*64*3072 + 64*(n%2)}")
if SPF == 1: spf(15)
a("s_barrier")
stamp(1)
for hh in range(2): rd_w(WPH + 4 * hh, FOUT, hh * 512, 256, "x")
xn = [0]
def xread(k):
    for _ in range(k):
        if xn[0] < 32:
            a(f"ds_read_b128 {vr(XF+4*xn[0],4)}, v{vXA} offset:{xn[0]*32}"); LG.issue("x"); xn[0] += 1
xread(4 if XJ else 32)
DQ = 3
def qreads(ks):
    if ks % 8 == 0 and (ks or not G0H): chk_test(W_G + ks // 8, 2, near=bool(E('NEAR', 1)))
    rd_w(WR + 4 * (ks % 8), vWP, ((ks + 8) % 32) * 2048, 512, ("w", ks))
    if ks % 8 == 6 and ks < 24: chk_read(W_G + ks // 8 + 1)
edq = [] if NOB else [(c, n) for c in range(NST) for n in range(4)]
if not G0H: chk_read(W_G)
for ks in range(DQ): qreads(ks)
for ks in range(32):
    xread(XJ)
    if ks + DQ < 32: qreads(ks + DQ)
    wait(lg=("w", ks))
    a(f"v_mfma_f32_32x32x16_bf16 {vr(ACC,16)}, {vr(WR+4*(ks%8),4)}, {vr(XF+4*ks,4)}, {'0' if ks == 0 else vr(ACC,16)}")
    if ks == PKS: arrive(W_P)
    xs(f"q{ks}")
    if ks == 2: wx = arrive()
    if ks == 21: chk_read(wx)
    if ks == 22: chk_test(wx)
a(f"s_mov_b32 s{t1}, {hex(QSCALE)}\ns_mov_b32 s{t2}, {hex(QSCALE)}")
for r in range(0, 16, 2): a(f"v_pk_mul_f32 {vr(ACC+r,2)}, {vr(ACC+r,2)}, s[{t1}:{t2}]")
for r in range(8): a(f"v_cvt_pk_bf16_f32 v{PHQ+r}, v{ACC+2*r}, v{ACC+2*r+1}")
a(f"""ds_write_b128 v{FOUT+2}, {vr(PHQ,4)}
ds_write_b128 v{FOUT+2}, {vr(PHQ+4,4)} offset:1024""")
arrive(W_Q)
stamp(2)
if SPF == 2: spf(16)
for r in range(8):
    a(f"""v_lshlrev_b32 v14, 16, v{WPH+r}
    v_and_b32 v15, 0xffff0000, v{WPH+r}
    v_mul_f32 v14, v14, v{FOUT+1}
    v_mul_f32 v15, v15, v{FOUT+1}
    v_cvt_pk_bf16_f32 v{WPH+r}, v14, v15""")
DA = 2
def rd_a(n):
    rd_stage(WR + 8 * (n % 4), n // 4, n % 4, ("w", n)); rd_stage(WR + 8 * (n % 4) + 4, n // 4, 4 + n % 4, ("w", n))
def wgemm(items, slots, ahead, events=None, pre=None, extra=None, primed=0):
    N = len(items); events = events or {}; pre = pre or {}
    def rd(i):
        for f in pre.get(i, []): f()
        if items[i][0]: items[i][0](slots[i % len(slots)], ("w", i))
    assert ahead + PW <= len(slots)
    for i in range(primed, min(ahead, N)): rd(i)
    a("s_setprio 0")
    for g0 in range(0, N, PW):
        grp = list(range(g0, min(g0 + PW, N)))
        lgs = [i for i in grp if items[i][0]]
        wait(vm=items[grp[-1]][2], lg=("w", lgs[-1]) if lgs else None)
        for i in grp:
            t = items[i][1](slots[i % len(slots)])
            if PUSH and i == g0 + 2: a(f"s_setprio 2\n{t}\ns_setprio 0")
            else: a(t)
        for i in grp:
            if i + ahead < N: rd(i + ahead)
        for i in grp:
            if extra: extra(i)
            for f in events.get(i, []): f()
    a("s_setprio 2")
def mm_a(n, mid=None):
    wait(lg=("w", n))
    w = WR + 8 * (n % 4)
    em = a
    em(f"v_mfma_f32_32x32x16_bf16 {vr(ACC,16)}, {vr(w,4)}, {vr(XF+4*n,4)}, {'0' if n == 0 else vr(ACC,16)}")
    if mid: mid()
    em(f"v_mfma_f32_32x32x16_bf16 {vr(AC2,16)}, {vr(XF+4*n,4)}, {vr(w+4,4)}, {'0' if n == 0 else vr(AC2,16)}")
a(f"""v_and_b32 v13, 124, v{vL4}
s_lshl_b32 s{t2}, s{sRB}, 9
s_add_u32 s{t2}, s{t2}, {WS_G}
s_lshl_b32 s{t1}, s{sI}, 7
s_add_u32 s{t2}, s{t2}, s{t1}
s_xor_b32 s{t3}, s{t2}, 128""")
check(W_KV, 4, nap=2)
xs("a13")
a(f"""v_mov_b32 v14, {NONCE}
ds_read_b32 v{vNON}, v14
buffer_load_dword v{vGI}, v13, {sr(sWS,4)}, s{t2} offen sc1
buffer_load_dword v{vGO}, v13, {sr(sWS,4)}, s{t3} offen sc1""")
VM.issue("g", 2)
def gates():
    for d in (vGI, vGO):
        a(f"v_mul_f32 v{d}, {hex(LOG2E | 0x80000000)}, v{d}\nv_exp_f32 v{d}, v{d}\nv_add_f32 v{d}, 1.0, v{d}\nv_rcp_f32 v{d}, v{d}")
if NOB:
    wait(vm="g"); gates()
    a(f"s_mov_b32 s{sJ}, s{sS}"); call_fin(vGI)
    stamp(4)
    a(f"s_add_u32 s{sJ}, s{sS}, 4"); call_fin(vGI)
    stamp(5)
    diag_dump(13)
    a("s_endpgm")
NST = 0; N1 = 0
for c in range(3): dma_stage(c)
a("v_lshlrev_b32 v13, 7, v0")
def wot():
    a(f"""s_lshl_b32 s{t0}, s2, 2
    s_add_u32 s{t0}, s{t0}, s{sS}
    s_lshl_b32 s{t0}, s{t0}, 9
    s_mov_b64 exec, 15
    buffer_load_dword v{vT2}, v13, {sr(sWOB,4)}, s{t0} offen
    buffer_load_dword v{vT2}, v13, {sr(sWOA,4)}, s{t0} offen
    s_lshr_b32 s{t1}, s{t0}, 10
    s_lshl_b32 s{t1}, s{t1}, 11
    s_add_u32 s{t0}, s{t0}, s{t1}
    buffer_load_dword v{vT2}, v13, {sr(sWB,4)}, s{t0} offen
    s_mov_b64 exec, -1""")
    VM.issue("wot", 3)
wait(vm=("st", NST)); w = arrive()
gates()
check(w)
a(f"""v_readfirstlane_b32 s{sNON}, v{vNON}
s_getreg_b32 s{sL2E}, hwreg(HW_REG_XCC_ID)
s_mov_b32 s{sFAR}, 64
v_writelane_b32 v{vNON}, s{sL2E}, 1""")
stamp(3)
SL = [WR + 4 * n for n in range(8)] + [PHQ + 4 * n for n in range(4)]
AH = 6
its = []
for n in range(N1, 32):
    its.append((lambda d, tg, n=n: rd_stage(d, n // 4, n % 4, tg), lambda w_, n=n: f"v_mfma_f32_32x32x16_bf16 {vr(ACC,16)}, {vr(w_,4)}, {vr(XF+4*n,4)}, {vr(ACC,16) if n else 0}", None))
    its.append((lambda d, tg, n=n: rd_stage(d, n // 4, 4 + n % 4, tg), lambda w_, n=n: f"v_mfma_f32_32x32x16_bf16 {vr(AC2,16)}, {vr(XF+4*n,4)}, {vr(w_,4)}, {vr(AC2,16) if n else 0}", None))
pre, tested = {}, set(range(NST))
cur = {}
for c in range(NST + 1, 9):
    i0_ = 8 * (c - NST)
    def arr(c=c):
        if c < 8: wait(vm=("st", c))
        cur[c] = arrive()
    def tst(c=c): chk_test(cur[c], lowprio=True); tested.add(c - 2)
    if c < 8:
        pre.setdefault(max(i0_ - PW - 2, AH), []).append(arr)
        pre.setdefault(max(i0_ - 2, AH), []).append(lambda c=c: chk_read(cur[c]))
        pre.setdefault(i0_, []).append(tst)
dq = [(c, n) for c in range(NST + 3, 12) for n in range(4)]
def dma_next(i):
    if dq:
        prev = [k for k in range(dq[0][0]) if STG[k] == STG[dq[0][0]]]
        if not prev or prev[-1] in tested: dma_one(*dq.pop(0))
wgemm(its, SL, AH, pre=pre, extra=lambda i: dma_next(i) if i % 3 != 2 else None, events={len(its) - AH - 1: [arr], WOTAT: [wot] if WOT else []})
assert not dq
w = cur[8]
stamp(4)

far = []
def features(B, W, out, D, tm):
    def mm(): a(f"v_mfma_f32_32x32x16_bf16 {vr(D,16)}, {vr(W,4)}, {vr(B,4)}, 0")
    def shift():
        a(f"v_max_f32 v{tm}, v{D}, v{D+1}")
        for r in range(2, 16, 2): a(f"v_max3_f32 v{tm}, v{tm}, v{D+r}, v{D+r+1}")
        for r in range(0, 16, 2): a(f"v_pk_add_f32 {vr(D+r,2)}, {vr(D+r,2)}, {vr(tm,2)} op_sel_hi:[1,0] neg_lo:[0,1] neg_hi:[0,1]")
    def expsum():
        for r in range(16): a(f"v_exp_f32 v{D+r}, v{D+r}")
        a(f"v_pk_add_f32 {vr(tm,2)}, {vr(D,2)}, {vr(D+2,2)}\nv_pk_add_f32 {vr(tm+2,2)}, {vr(D+4,2)}, {vr(D+6,2)}")
        for r in range(8, 16, 2): a(f"v_pk_add_f32 {vr(tm+r%4,2)}, {vr(tm+r%4,2)}, {vr(D+r,2)}")
        a(f"v_pk_add_f32 {vr(tm,2)}, {vr(tm,2)}, {vr(tm+2,2)}\nv_add_f32 v{tm}, v{tm}, v{tm+1}")
    mm()
    if not NOMAX: shift()
    expsum()
    if NOMAX:
        fb, bk = a.lab("ff"), a.lab("ffb")
        a(f"v_subrev_u32 v{tm+1}, {hex((127-40)<<23)}, v{tm}\nv_cmp_lt_u32 vcc, {hex(100<<23)}, v{tm+1}\ns_cbranch_vccnz {fb}")
        if FORCE_FF: a(f"s_branch {fb}")
        a(f"{bk}:")
        def slow():
            a(f"{fb}:"); mm(); shift(); expsum(); a(f"s_branch {bk}")
        far.append(slow)
    a(f"v_rcp_f32 v{tm}, v{tm}")
    for r in range(0, 16, 2): a(f"v_pk_mul_f32 {vr(D+r,2)}, {vr(D+r,2)}, {vr(tm,2)} op_sel_hi:[1,0]")
    for r in range(8): a(f"v_cvt_pk_bf16_f32 v{out+r}, v{D+2*r}, v{D+2*r+1}")

KB, VB, DD, TM, PH = PHQ, PHQ + 8, WR, WR + 16, WR + 24
chk_read(w)
a(f"""s_lshl_b32 s{t3}, s{sP}, 1
s_add_u32 s{t3}, s{t3}, s{sI}
s_lshl_b32 s{t2}, s{sHG}, 2
s_add_u32 s{t2}, s{t2}, s{t3}
s_lshl_b32 s{t2}, s{t2}, 8
s_add_u32 s{t2}, s{t2}, s{sRB}
s_mul_i32 s{t4}, s{t2}, {PREC}
s_add_u32 s{t4}, s{t4}, {WS_PART}""")
for r in range(8): a(f"v_cvt_pk_bf16_f32 v{KB+r}, v{ACC+2*r}, v{ACC+2*r+1}")
for r in range(8): a(f"v_cvt_pk_bf16_f32 v{VB+r}, v{AC2+2*r}, v{AC2+2*r+1}")
chk_test(w)
xs("k1")
a(f"ds_write_b128 v{vSV}, {vr(VB,4)}\nds_write_b128 v{vSV}, {vr(VB+4,4)} offset:1024")
dma_stage(12)
for hh in range(2):
    features(KB + 4 * hh, WPH + 4 * hh, PH, DD, TM)
    for aa in range(4): a(f"ds_write_b64 v{vSW+aa}, {vr(PH+2*aa,2)} offset:{hh*4096}")
    xs(f"k3{hh}")
wait(vm=("st", 12)); w = arrive()
KA, KBv, KD = WR, AC2, ACC
a(f"s_mov_b32 s{t1}, {hex(ONES)}\ns_mov_b32 s{t2}, {hex(ONES)}")
for r in range(0, 16, 2): a(f"v_mov_b64 {vr(KBv+r,2)}, s[{t1}:{t2}]")
check(w)
xs("k4")
for u in range(4):
    a(f"ds_read_b64_tr_b16 {vr(KA+4*u,2)}, v{vSR} offset:{u*1024}\nds_read_b64_tr_b16 {vr(KA+4*u+2,2)}, v{vSR2} offset:{u*1024+512}")
a(f"s_mov_b32 exec_lo, 0xffff\ns_mov_b32 exec_hi, 0xffff")
for u in range(4):
    a(f"ds_read_b128 {vr(KBv+4*u,4)}, v{vSVR} offset:{(u//2)*4096 + (u%2)*1024}")
a("s_mov_b64 exec, -1")
LG.issue("kv", 12)
SL = [WR + 16 + 4 * n for n in range(4)] + [PHQ + 4 * n for n in range(4)] + [WR + 4 * n for n in range(4)]
wait(lg="kv")
for u in range(4):
    a(f"v_mfma_f32_32x32x16_bf16 {vr(KD,16)}, {vr(KA+4*u,4)}, {vr(KBv+4*u,4)}, {'0' if u == 0 else vr(KD,16)}")
FIL = FOUT
def kvf_addr():
    a(f"""s_and_b32 s{t0}, s{sRB}, 3
    s_lshl_b32 s{t1}, s{sHG}, 2
    s_add_u32 s{t0}, s{t0}, s{t1}
    s_lshl_b32 s{t0}, s{t0}, 3
    s_lshr_b32 s{t1}, s{sRB}, 2
    s_add_u32 s{t0}, s{t0}, s{t1}
    s_lshl_b32 s{t0}, s{t0}, 8
    s_add_u32 s{t0}, s{t0}, {WS_KVF}""")
a(f"""s_lshl_b32 s{t0}, s{sRB}, 2
s_add_u32 s{t0}, s{t0}, s{sS}
s_lshl_b32 s{t0}, s{t0}, 15
s_lshl_b32 s{t1}, s{sHG}, 12
s_add_u32 s{t0}, s{t0}, s{t1}
s_add_u32 s{t0}, s{t0}, {WS_O}""")
for r in range(4): a(f"v_mov_b32 v{FIL+r}, -1")
for r in range(4): a(f"buffer_store_dwordx4 {vr(FIL,4)}, v{vL16}, {sr(sWS,4)}, s{t0} offen offset:{r*1024} sc1")
with only(sS, 2):
    kvf_addr()
    a(f"buffer_store_dword v{FIL}, v{vL4}, {sr(sWS,4)}, s{t0} offen sc1")
a(f"s_mov_b32 exec_lo, 0xfffff\ns_mov_b32 exec_hi, 0xfffff")
for e in range(8):
    a(f"buffer_store_dwordx2 {vr(KD+2*e,2)}, v{vPR}, {sr(sWS,4)}, s{t4} offen sc1"); VM.issue("part")
    if e < 7: a(f"s_add_u32 s{t4}, s{t4}, {32*PREC}")
a("s_mov_b64 exec, -1")
stamp(5)
dq = [(c, n) for c in (13, 14, 17, 18, 19)[:2 + EARLYA] for n in range(4)]
its = [(lambda d, tg, n=n: rd_stage(d, 8 + n // 8, n % 8, tg),
        lambda w_, n=n: f"v_mfma_f32_32x32x16_bf16 {vr(AC2,16)}, {vr(w_,4)}, {vr(XF+4*n,4)}, {'0' if n == 0 else vr(AC2,16)}", None) for n in range(32)]
def e1(): wait(vm="part"); cur["p"] = arrive()
def e2():
    chk_read(cur["p"]); chk_test(cur["p"], lowprio=True)
    with only(sS, 2): flag(F_F2)
def e5():
    if WAT:
        a(f"""s_and_b32 s{t0}, s{sRB}, 3
        s_lshl_b32 s{t0}, s{t0}, 2
        s_add_u32 s{t0}, s{t0}, s{sS}
        s_lshl_b32 s{t0}, s{t0}, 15
        s_mov_b32 exec_hi, 0
        buffer_load_dword v250, v{vPC}, {sr(sWOA,4)}, s{t0} offen
        s_mov_b32 exec_hi, -1""")
        VM.issue("wat")
def e3():
    with only(sS, 2): poll_issue(vPC, vT2, F_F2)
    with only(sS, 0): poll_issue(vPF, vPO, F_F2, 2)
def fin(j, g): a(f"s_mov_b32 s{sJ}, {j}"); call_fin(g)
def fins012():
    with only(sI, 0): fin(f"s{sP}", vGI)
    with only(sS, 3): fin(2, vGO)
FMID = E("FMID", 1)
def e4():
    if FMID: a("s_setprio 2"); fins012(); a("s_setprio 0")
ok19 = []
def e6(): cur["x3"] = arrive()
def e7(): chk_read(cur["x3"]); chk_test(cur["x3"], lowprio=True); ok19.append(1)
def dma_b(i):
    for _ in range(2 if len(dq) > 31 - i else 1):
        if i > 13 and dq and (dq[0][0] != 19 or ok19): dma_one(*dq.pop(0))
ev = {9: [e1], 12: [e2], 15: [e4], 21: [e5], 27: [e3]}
if EARLYA == 3: ev[17] = [e6]; ev[28] = [e7]
wgemm(its, SL, AH, events=ev, extra=dma_b)
assert not dq
vWA0, vWA1, vWB0, vWB1 = vXA, vWX, vWO, vWP
a(f"""s_lshl_b32 s{t0}, s{sP}, 13
v_add_u32 v{vWA0}, s{t0}, v{vWOA}
v_xor_b32 v{vWA1}, 64, v{vWA0}
v_add_u32 v{vWB0}, s{t0}, v{vWO}
v_xor_b32 v{vWB1}, 64, v{vWB0}""")
assert RING % 128 == 0 and STG[12] == 0
for k in range(8): rd_w(WB0 + 4 * k, (vWA0, vWA1)[k % 2], (k // 2) * 2048, 1024, "wb0")
stamp(6)
KB, DD, TM = TMP, TMP + 16, TMP + 32
RD = TMP + 64
with only(sS, 2):
    a("s_waitcnt vmcnt(0)")
    poll_check(vPC, vT2, F_F2)
    xs("r1")
    a(f"""s_and_b32 s{t3}, s{sRB}, 3
    s_lshl_b32 s{t0}, s{sHG}, 2
    s_add_u32 s{t3}, s{t0}, s{t3}
    s_lshl_b32 s{t0}, s{t3}, 3
    s_lshr_b32 s{t2}, s{sRB}, 2
    s_add_u32 s{t0}, s{t0}, s{t2}
    s_mul_i32 s{t0}, s{t0}, {32*PREC}
    s_add_u32 s{t0}, s{t0}, {WS_PART}""")
    for n in range(32):
        if n and n % 8 == 0: a(f"s_add_u32 s{t0}, s{t0}, {8*PREC}")
        a(f"buffer_load_dwordx2 {vr(RD+2*n,2)}, v{vLI}, {sr(sWS,4)}, s{t0} offen offset:{(n%8)*PREC} sc1")
    a("s_mov_b64 exec, -1")
xs("r2")
if not FMID: fins012()
for r in range(8): a(f"v_cvt_pk_bf16_f32 v{KB+r}, v{AC2+2*r}, v{AC2+2*r+1}")
if not RED1: features(KB, WPH, PHQ, DD, TM)
with only(sS, 2):
    kvf_addr()
    a("s_waitcnt vmcnt(0)")
    st = 16
    while st >= 1:
        for n in range(st): a(f"v_pk_add_f32 {vr(RD+2*n,2)}, {vr(RD+2*n,2)}, {vr(RD+2*(n+st),2)}")
        st //= 2
    a(f"""v_cvt_pk_bf16_f32 v15, v{RD}, v{RD+1}
    v_min_u32 v15, -2, v15
    buffer_store_dword v15, v{vL4}, {sr(sWS,4)}, s{t0} offen sc1""")
xs("r3")
if RED1: features(KB, WPH, PHQ, DD, TM)
with only(sS, 0):
    a("s_waitcnt vmcnt(0)"); poll_check(vPF, vPO, F_F2, n=2)
    l_ = a.lab("near")
    a(f"v_cmp_ne_u32 vcc, s{sL2E}, v{vPO+1}\ns_cbranch_vccz {l_}"); arrive(W_FAR); a(f"{l_}:")
w = arrive()
features(KB + 4, WPH + 4, PHQ + 8, DD, TM)
stamp(7)
with only(sS, 3): fin(3, vGO)
with only(sS, 2): a(f"v_add_u32 v13, {G1}, v{vL4}\nds_write_b32 v13, v{vGI}")
xs("l1")
check(w, nap=1)
xs("l2")
chk_read(W_FAR)
dma_stage(15)
wait(lg="chk")
a(f"v_readfirstlane_b32 s{t0}, v{vT}\ns_cmp_eq_u32 s{t0}, 0\ns_cselect_b32 s{sFAR}, {NEARJ}, 64")
def woa_dma():
    for c in range(16, 20):
        if (c, 0) not in issued: dma_stage(c)
assert not DMAAT
if not DMAAT: woa_dma()
xs("l3")
with only(sS, 1): fin(4, vGO)
def take(loads, regs, nap, issued=False, before=None, landed=False):
    lp, dn, l2 = a.lab("tk"), a.lab("tkd"), a.lab("tkw")
    if issued: a(f"s_branch {l2}")
    a(f"{lp}:")
    if before: before()
    loads()
    a(f"s_waitcnt vmcnt(0)\n{l2}:" if landed else f"{l2}:\ns_waitcnt vmcnt(0)")
    a(f"v_max_u32 v{vT}, v{regs[0]}, v{regs[1]}")
    for k in range(2, len(regs), 2): a(f"v_max3_u32 v{vT}, v{vT}, v{regs[k]}, v{regs[k+1]}")
    a(f"v_cmp_eq_u32 vcc, -1, v{vT}\ns_cbranch_vccz {dn}")
    budget(dn)
    if nap: a(f"s_sleep {nap}")
    a(f"s_branch {lp}\n{dn}:")
a(f"""s_lshl_b32 s{t3}, s{sHG}, 2
s_lshl_b32 s{t1}, s{sP}, 1
s_add_u32 s{t3}, s{t3}, s{t1}
s_mul_i32 s{t4}, s{t3}, {KVF_STRIDE}
s_add_u32 s{t4}, s{t4}, {WS_KVF}
s_lshl_b32 s{sPF}, s{sRB}, 1
s_add_u32 s{sPF}, s{sPF}, s{sI}
s_lshl_b32 s{sPF}, s{sPF}, 16
s_add_u32 s{sPF}, s{sPF}, {WS_O}
s_lshl_b32 s{t3}, s{t3}, 10
s_add_u32 s{t3}, s{t3}, s{sPF}
s_add_u32 s{t3}, s{t3}, 32768
v_sub_f32 v15, 1.0, v{vGI}""")
def steps_a(hs, reg): return [(h * 1024, ((vWA0, vWA1), h * 2048), reg + 4 * k) for k, h in enumerate(hs)]
def steps_b(reg):
    o = []
    for k, h in enumerate(8 * m + r for m in range(4) for r in range(4)):
        o.append((32768 + h * 1024, WB0 + 8 * k if k < 4 else ((vWB0, vWB1), STG[12 + h // 8] - RING + (h % 8) * 2048), reg + 4 * k))
    return o
def rec_loads(steps, base):
    for k, (ro, _, reg) in enumerate(steps):
        hi, lo = ro & ~4095, ro & 4095
        if k == 0 or hi != (steps[k-1][0] & ~4095): a(f"s_add_u32 s{t1}, s{base}, {hi}")
        a(f"buffer_load_dwordx4 {vr(reg,4)}, v{vL16}, {sr(sWS,4)}, s{t1} offen offset:{lo} sc1")
OBT = TMP + 64
a(f"s_mov_b32 s{sD0}, s{sPF}\ns_lshl_b32 s{t0}, s{sP}, 12\ns_add_u32 s{sD1}, s{sD0}, s{t0}")
sa = steps_a([8 * m + r for m in range(4) for r in range(4)], TMP)
if SAE:
    with only(sI, 0): rec_loads(sa, sD1)
def kvf_loads():
    for r in range(16): a(f"buffer_load_dword v{OBT+r}, v{vL4}, {sr(sWS,4)}, s{t4} offen offset:{r*256} sc1")
take(kvf_loads, list(range(OBT, OBT + 16)), E("KNAP", 6))
if not DMAAT: arrive(W_OB)
stamp(8)
for hh in range(2):
    D = OBT + 16 + 16 * hh
    a(f"v_mfma_f32_32x32x16_bf16 {vr(D,16)}, {vr(OBT+8*hh,4)}, {vr(PHQ+8*hh,4)}, 0")
    a(f"v_mfma_f32_32x32x16_bf16 {vr(D,16)}, {vr(OBT+8*hh+4,4)}, {vr(PHQ+8*hh+4,4)}, {vr(D,16)}")
for hh in range(2):
    D = OBT + 16 + 16 * hh
    a(f"v_add_f32 v{D+8}, 0x358637bd, v{D+8}\nv_rcp_f32 v{D+8}, v{D+8}\nv_mul_f32 v{D+8}, v{D+8}, v15")
    for r in range(0, 8, 2): a(f"v_pk_mul_f32 {vr(D+r,2)}, {vr(D+r,2)}, {vr(D+8,2)} op_sel_hi:[1,0]")
    for r in range(4): a(f"v_cvt_pk_bf16_f32 v{D+12+r}, v{D+2*r}, v{D+2*r+1}")
    a(f"v_min_u32 v{D+12}, -2, v{D+12}")
    if NEARB:
        l1, l2 = a.lab("st"), a.lab("st")
        a(f"s_cmp_lt_u32 s{sFAR}, 64\ns_cbranch_scc1 {l1}")
    a(f"buffer_store_dwordx4 {vr(D+12,4)}, v{vL16}, {sr(sWS,4)}, s{t3} offen offset:{hh*1024} sc1")
    if NEARB: a(f"s_branch {l2}\n{l1}:\nbuffer_store_dwordx4 {vr(D+12,4)}, v{vL16}, {sr(sWS,4)}, s{t3} offen offset:{hh*1024}\n{l2}:")
wo = arrive()
a(f"""v_bfe_u32 v13, v0, 2, 2
v_and_b32 v14, 3, v0
v_lshl_add_u32 v13, v13, 3, v14
v_lshlrev_b32 v{vPO}, 10, v13""")
stamp(9)
if DMAAT:
    check(wo, nap=1)
    woa_dma()
def probe(off):
    lp, dn = a.lab("pb"), a.lab("pbd")
    a(f"""s_add_u32 s{t1}, s{sD1}, {off}
    {lp}:
    buffer_load_dword v{vT2}, v{vPO}, {sr(sWS,4)}, s{t1} offen offset:1008 sc1
    s_waitcnt vmcnt(0)
    v_cmp_eq_u32 vcc, -1, v{vT2}
    s_cbranch_vccz {dn}""")
    budget(dn)
    a(f"s_sleep {RNAP}\ns_branch {lp}\n{dn}:")

def out_addr():
    a(f"""v_and_b32 v14, 31, v0
    v_lshlrev_b32 v14, 10, v14
    v_lshrrev_b32 v15, 5, v0
    v_lshl_add_u32 v14, v15, 4, v14
    s_lshl_b32 s{t4}, s{sRB}, 16
    s_lshl_b32 s{t1}, s{sI}, 15
    s_add_u32 s{t4}, s{t4}, s{t1}
    s_lshl_b32 s{t1}, s{sHG}, 7
    s_add_u32 s{t4}, s{t4}, s{t1}
    s_lshl_b32 s{t1}, s{sP}, 6
    s_add_u32 s{t4}, s{t4}, s{t1}""")
def store_out():
    for r in range(8): a(f"v_cvt_pk_bf16_f32 v{PHQ+r}, v{ACC+2*r}, v{ACC+2*r+1}")
    for kk in range(2):
        b = PHQ + 4 * kk
        a(f"v_permlane32_swap_b32 v{b}, v{b+2}\nv_permlane32_swap_b32 v{b+1}, v{b+3}")
        a(f"buffer_store_dwordx4 {vr(b,4)}, v14, {sr(sOUT,4)}, s{t4} offen offset:{kk*32} {OUTF}")

TS = [WPH + 4 * n for n in range(6)] + [vSW, vSW + 4]
assert vSW == 236
def run_items(its, first, windows, hooks=None, prime_only=None):
    hooks = hooks or {}
    slot = {}; cnt = [0]
    def rd(n):
        w_, _, c = its[n]
        if isinstance(w_, int): slot[n] = w_ + 4 * c
        else:
            slot[n] = TS[cnt[0] % 8]; cnt[0] += 1
            rd_w(slot[n], w_[0][c], w_[1], 1024, ("w", n))
    LG.clear()
    nr = 0
    while nr < len(its) and cnt[0] < 6: rd(nr); nr += 1
    if prime_only: prime_only()
    if windows: a("s_setprio 0")
    seen = set()
    step = 2 if windows else 1
    for g0 in range(0, len(its), step):
        grp = range(g0, min(g0 + step, len(its)))
        for n in grp:
            for f in hooks.get(n, []): f()
        wait(lg=("w", grp[-1]))
        for n in grp:
            acc = (ACC, AC2)[its[n][2]]
            wait(lg=("w", n))
            a(f"v_mfma_f32_32x32x16_bf16 {vr(acc,16)}, {vr(slot[n],4)}, {vr(its[n][1],4)}, {0 if first and acc not in seen else vr(acc,16)}")
            seen.add(acc)
        for n in grp:
            if not isinstance(its[n][0], int):
                while nr < len(its):
                    rd(nr); nr += 1
                    if not isinstance(its[nr-1][0], int): break
    assert nr == len(its)
    if windows: a("s_setprio 2")
items = lambda steps: [(w_, reg, c) for (_, w_, reg) in steps for c in range(2)]
def tail(its, late, last):
    n0 = len(its)
    its = its + items(late)
    k = len(its)
    its = its[:-k] + [x for x in its[-k:] if x[2] == 1] + [x for x in its[-k:] if x[2] == 0]
    LW = TMP
    def gate():
        out_addr()
        lp, dn = a.lab("tw"), a.lab("twd")
        a(f"""s_lshl_b32 s{t2}, s{sS}, 12
        s_add_u32 s{t0}, s{t2}, {OP}
        v_add_u32 v{vPC}, s{t0}, v{vL16}
        s_xor_b32 s{t2}, s{t2}, 4096
        s_add_u32 s{t0}, s{t2}, {OP}
        v_add_u32 v{vPR}, s{t0}, v{vL16}
        s_lshl_b32 s{t0}, s{sS}, 8
        s_add_u32 s{t0}, s{t0}, {LT + 3*1024 + 128}
        v_mov_b32 v13, s{t0}""")
        if last:
            for q_, (_, w_, _) in enumerate(last): rd_w(LW + 4 * q_, vWOA, w_, 1024, "lw")
        xs("t0")
        a(f"""{lp}:
        ds_read_b32 v{vT}, v13
        s_waitcnt lgkmcnt(0)
        v_cmp_gt_u32 vcc, {Q + 8*1024}, v{vT}
        s_cbranch_vccz {dn}""")
        budget(dn)
        a(f"s_sleep 1\ns_branch {lp}\n{dn}:")
        LG.clear()
        stamp(11)
        if late: rec_loads(late, sD1)
    hooks = {}
    if late:
        lr = [reg for (_, _, reg) in late]
        nl = min(n for n, x in enumerate(its) if x[1] in lr)
        hooks.setdefault(nl, []).append(lambda: (take(lambda: rec_loads(late, sD1), list(range(lr[0], lr[0] + 4 * len(lr))), 0, issued=True), xs("n6")))
    if last:
        for q_ in range(4): hooks.setdefault(len(its) - R7AT + q_, []).append(lambda q_=q_: rec_loads(last[2*q_:2*q_+2], sD0))
    ww = newword()
    def x1():
        for q4 in range(4): a(f"ds_write_b128 v{vPC}, {vr(AC2+4*q4,4)} offset:{q4*1024}")
        LG.issue("xw", 4); arrive(ww)
    hooks.setdefault(len(its) - k // 2 + 2, []).append(x1)
    hooks.setdefault(len(its) - 5, []).append(lambda: chk_read(ww))
    def x2():
        chk_test(ww, 2, near=True)
        for q4 in range(4): a(f"ds_read_b128 {vr(AC2+4*q4,4)}, v{vPR} offset:{q4*1024}")
        LG.issue("xr", 4)
    hooks.setdefault(len(its) - 3, []).append(x2)
    run_items(its, False, False, hooks, gate)
    xs("t1")
    if last:
        D7 = TMP + 32
        l2, rt, d2 = a.lab("r7"), a.lab("r7r"), a.lab("r7d")
        a(f"s_waitcnt lgkmcnt(0)\ns_branch {l2}\n{rt}:")
        budget(d2)
        rec_loads(last, sD0)
        a(f"{l2}:")
        for q_, (_, _, reg) in enumerate(last):
            a(f"s_waitcnt vmcnt({7 - q_})")
            a(f"v_mfma_f32_32x32x16_bf16 {vr(D7,16)}, {vr(LW+4*q_,4)}, {vr(reg,4)}, {vr(D7 if q_ else AC2,16)}")
            a(f"v_max_u32 v{vT}, v{reg}, v{reg+1}" if q_ == 0 else f"v_max3_u32 v{vT}, v{vT}, v{reg}, v{reg+1}")
            a(f"v_max3_u32 v{vT}, v{vT}, v{reg+2}, v{reg+3}")
            if q_ in (3, 7): a(f"v_cmp_eq_u32 vcc, -1, v{vT}\ns_cbranch_vccnz {rt}")
        a(f"{d2}:")
        xs("n7")
    else:
        D7 = AC2
        a("s_waitcnt lgkmcnt(0)")
    for r in range(0, 16, 2): a(f"v_pk_add_f32 {vr(ACC+r,2)}, {vr(ACC+r,2)}, {vr(D7+r,2)}")
    store_out()
def slot_free(j):
    lp, dn = a.lab("cf"), a.lab("cfd")
    a(f"v_mov_b32 v13, {CONS + 16 + 4*j}\n{lp}:\nds_read_b32 v{vT}, v13\ns_waitcnt lgkmcnt(0)\nv_cmp_eq_u32 vcc, 0, v{vT}\ns_cbranch_vccz {dn}")
    budget(dn)
    a(f"s_sleep 2\ns_branch {lp}\n{dn}:")

a(f"s_cmp_eq_u32 s{sI}, 1\ns_cbranch_scc1 L_half1")
sa, sb = steps_a([8 * m + r for m in range(4) for r in range(4)], TMP), steps_b(TMP + 64)
first_words = lambda st: [reg for (_, _, reg) in st]
assert 16 <= PRET <= 32 and PRET % 2 == 0
take(lambda: rec_loads(sa, sD1), first_words(sa), RNAP, issued=bool(SAE), landed=bool(SAE))
if DMAAT: arrive(W_OB)
check(W_OB, nap=2)
xs("m0")
run_items(items(sa), True, True, hooks={22: [lambda: rec_loads(sb, sD1)]})
xs("m2")
with only(sS, 0): fin(6, vGO)
take(lambda: rec_loads(sb, sD1), first_words(sb), 0, issued=True, before=lambda: probe(32768))
stamp(10)
slot_free(4)
tail(items(sb), [], None)
stamp(12)
diag_dump(13)
a("s_endpgm")
a("L_half1:")
LG.clear(); VM.clear()
sb = steps_b(TMP)
with only(sS, 2): fin(5, vGI)
xs("p0")
if DMAAT:
    a("s_waitcnt vmcnt(0)"); arrive(W_OB)
    xs("p1")
    rec_loads(sb, sD1)
    take(lambda: rec_loads(sb, sD1), first_words(sb), 0, issued=True, before=lambda: probe(32768))
else:
    check(wo, nap=2)
    xs("p1")
    probe(32768)
    xs("p2")
    take(lambda: rec_loads(sb, sD1), first_words(sb), RNAP)
xs("m0")
s456 = steps_a([8 * m + r for m in range(4) for r in range(3)], TMP + 64)
slot_free(5)
run_items(items(sb)[:PRET], True, True, hooks={PRET - E("L6AT", 6): [lambda: rec_loads(s456, sD1)]})
xs("m2")
def wait6():
    a(f"v_bfe_u32 v13, v0, 2, 2\nv_lshlrev_b32 v13, 13, v13\nv_add_u32 v{vPO}, 2048, v13")
    slot_free(6); probe(0)
take(lambda: rec_loads(s456, sD1), first_words(s456), 0, issued=True, before=wait6)
if DMAAT: check(W_OB, nap=1)
stamp(10)
tail(items(sb)[PRET:] + items(s456), [], [((4*k + 3) * 1024, (4*k + 3) * 2048, WB0 + 4 * k) for k in range(8)])
stamp(12)
diag_dump(13)
hold()
a("L_exit:\ns_endpgm")

FO = TMP
FL = TMP + 32
a("L_fin:\ns_nop 1")
a(f"""s_and_b32 s{t2}, s{sJ}, 3
s_lshl_b32 s{t0}, s{t2}, 10
s_add_u32 s{t0}, s{t0}, {LT}
v_and_b32 v14, 3, v0
v_lshl_add_u32 v14, v14, 8, s{t0}
v_and_b32 v15, 124, v{vL4}
v_add_u32 v15, s{t0}, v15
s_lshl_b32 s{t1}, s{sJ}, 10
s_add_u32 s{t1}, s{t1}, {Q + 1024}
s_lshl_b32 s{t2}, s{t2}, 13
s_add_u32 s{t2}, s{t2}, {OP}
v_add_u32 v{FL+4}, s{t2}, v{vL16}
s_lshl_b32 s{t0}, s{sJ}, 2
s_add_u32 s{t0}, s{t0}, {CONS + 16}
v_mov_b32 v13, s{t0}
s_lshr_b32 s{t0}, s{sJ}, 2
s_lshl_b32 s{t2}, s{sRB}, 1
s_add_u32 s{t0}, s{t0}, s{t2}
s_lshl_b32 s{t0}, s{t0}, 6
s_lshl_b32 s{t2}, s{sHG}, 2
s_add_u32 s{t0}, s{t0}, s{t2}
s_and_b32 s{t2}, s{sJ}, 3
s_add_u32 s{t0}, s{t0}, s{t2}
s_lshl_b32 s{t4}, s{t0}, 10
s_add_u32 s{t4}, s{t4}, {WS_O}
""")
assert FP == 1 << 15 and CONS + 16 + 32 <= SYNC and (TMP, vGF, vL4, vONE, vL16, vT, FOUT) == (104, 233, 251, 1, 10, 3, 244)
fin_body(True, "L_fb", FNAP)
if DIAG: a("s_waitcnt lgkmcnt(0)")
a(f"s_setpc_b64 s[{sRET}:{sRET+1}]")
emit_cold()
a("CODE_END:")
for f_ in far: f_()
BS, BC, BK, BV, BQ, BM = TMP + 16, TMP + 32, TMP + 48, TMP + 52, TMP + 60, FOUT
a(f"""L_fb:
s_sub_u32 s{t1}, s{t1}, 1024
v_add_u32 v14, s{t1}, v{vL16}
ds_read_b128 {vr(BQ,4)}, v14
v_mov_b32 v{BM}, 0xff800000
s_mov_b32 s{t0}, 0
s_waitcnt lgkmcnt(0)
L_fb1:
buffer_load_dwordx4 {vr(BK,4)}, v{vL16}, {sr(sWS,4)}, s{t0} offen sc1
s_waitcnt vmcnt(0)
v_mfma_f32_32x32x16_bf16 {vr(BS,16)}, {vr(BK,4)}, {vr(BQ,4)}, 0""")
for r in range(0, 16, 2): a(f"v_max3_f32 v{BM}, v{BM}, v{BS+r}, v{BS+r+1}")
a(f"""s_add_u32 s{t0}, s{t0}, 2048
s_cmp_lt_u32 s{t0}, 131072
s_cbranch_scc1 L_fb1
v_mov_b32 v{BM+1}, v{BM}
v_permlane32_swap_b32 v{BM}, v{BM+1}
v_max_f32 v{BM}, v{BM}, v{BM+1}""")
for r in range(16): a(f"v_sub_f32 v{BC+r}, 0, v{BM}\nv_mov_b32 v{FO+r}, 0")
a(f"""v_mov_b32 v15, 0xdddd
s_mov_b32 s{t0}, 0
L_fb2:
buffer_load_dwordx4 {vr(BK,4)}, v{vL16}, {sr(sWS,4)}, s{t0} offen sc1
buffer_load_dwordx4 {vr(BV,4)}, v{vL16}, {sr(sWS,4)}, s{t0} offen offset:1024 sc1""")
for r in range(4): a(f"v_mov_b32 v{BV+4+r}, {hex(ONES)}")
a(f"""s_waitcnt vmcnt(0)
v_mfma_f32_32x32x16_bf16 {vr(BS,16)}, {vr(BK,4)}, {vr(BQ,4)}, {vr(BC,16)}""")
for r in range(4): a(f"v_permlane16_swap_b32 v{BV+r}, v{BV+4+r}")
for r in range(16): a(f"v_exp_f32 v{BS+r}, v{BS+r}")
a(f"""v_smfmac_f32_32x32x32_bf16 {vr(FO,16)}, {vr(BV,4)}, {vr(BS,8)}, v15
v_smfmac_f32_32x32x32_bf16 {vr(FO,16)}, {vr(BV+4,4)}, {vr(BS+8,8)}, v15
s_add_u32 s{t0}, s{t0}, 2048
s_cmp_lt_u32 s{t0}, 131072
s_cbranch_scc1 L_fb2
s_nop 9
s_branch L_fin_norm""")

body = a.finish(verbose=bool(os.environ.get("VERBOSE")))
ref = open("cdna_kernels/" + NAME + ".s.ref").read().split("\n")
hdr = [l for l in ref if l.startswith(";") and "@launch" not in l and "Override" not in l and "grid=ceil" not in l]
out = "\n".join(hdr) + f"""
; @launch grid=(256,1,1) block=(512,1,1) lds={LDS_BYTES}
.amdgcn_target "amdgcn-amd-amdhsa--gfx950"
.text
.p2align 12
.fill {PAD // 4}, 4, 0xbf810000
.globl {NAME}_kernel
.p2align 8
.type {NAME}_kernel,@function
{NAME}_kernel:
{body}.section .rodata,"a"
.p2align 6
.amdhsa_kernel {NAME}_kernel
  .amdhsa_next_free_vgpr 256
  .amdhsa_next_free_sgpr 102
  .amdhsa_accum_offset 256
  .amdhsa_group_segment_fixed_size 0
  .amdhsa_kernarg_size 104
  .amdhsa_user_sgpr_count 2
  .amdhsa_user_sgpr_kernarg_segment_ptr 1
  .amdhsa_system_sgpr_workgroup_id_x 1
.end_amdhsa_kernel
"""
dst = sys.argv[1] if len(sys.argv) > 1 else "cdna_kernels/" + NAME + ".s"
open(dst, "w").write(out)
print("wrote", dst, len(a.lines), "lines,", len(a.inserted), "nops inserted, words", nword[0])
```

```python
import sys, os
from asmlib import Asm, Cnt, vr, sr

NAME = "gated_mix__grouped_kv_mqa__linear_kernel_hedgehog__prompt"
E = lambda k, d: int(os.environ.get(k, d))
DIAG = E("DIAG", 0); FORCE_FB = E("FORCE_FB", 0); TOUCH = E("TOUCH", 0); NOB = E("NOB", 0); PRE = E("PRE", 4)
FNAP = E("FNAP", 2); SIGT = E("SIGT", 6); QFIN = E("QFIN", 1); NEARJ = E("NEARJ", 4); NEARB = E("NEARB", 0); SAE = E("SAE", 0); DMAAT = E("DMAAT", 0); WAT = E("WAT", 0); RED1 = E("RED1", 1); EARLYA = E("EARLYA", 2); POLLAT = E("POLLAT", 3); NST = E("NST", 2); MAP = E("MAP", 1); PW = E("PW", 2); PRET = E("PRET", 32); WOTAT = E("WOTAT", 30); SP2 = E("SP2", 0); FILE_ = E("FILE", 0); G2 = E("G2", 1); RAT = E("RAT", 0); F4L = E("F4L", 1); A1ST = E("A1ST", 1); ST0 = E("ST0", 1); NPK = E("NPK", 4); R7AT = E("R7AT", 4); RNAP = E("RNAP", 8); DEFER = E("DEFER", 1); ROT = E("ROT", 1); PUSH = E("PUSH", 1); WQE = E("WQE", 2); CPF = E("CPF", 1); WQT = E("WQT", 1); SPF = E("SPF", 2); HAT = E("HAT", 0); WOT = E("WOT", 1); XJ = E("XJ", 0); XNT = E("XNT", 1); G0H = E("G0H", 0); PKS = E("PKS", -1); FST = E("FST", 4); FLAG1 = E("FLAG1", 0); LPT = E("LPT", 4); LATE = E("LATE", 1); VMASK = E("VMASK", 0); PAD = E("PAD", 0xd00); NOMAX = E("NOMAX", 1); FORCE_FF = E("FORCE_FF", 0)
OUTF = os.environ.get("OUTF", "")
HOLDAT = os.environ.get("HOLDAT")

X = 0; XS = 1040
Q = 66560
OP = 74752
RING = 107520
LT = 156672
MISC = 160768
WKV = OP; WQB = OP + 16384
WPHI = Q
NONCE = MISC; CONS = MISC + 16; SYNC = MISC + 64
GATE = MISC + 2048
LDS_BYTES = 163840
WS_KV = 0; WS_KVF = 0x20000; WS_G = 0x30000; WS_DIAG = 0x40000; WS_F = 0x80000
WS_PART = 0x100000; WS_O = 0x400000; WS_SIZE = 0x800000
KVF_STRIDE = 2048; PREC = 320
F_KV, F_F2, F_F3, F_OB, F_OA = 0, 1, 2, 3, 4
FP = 0x8000
pX, pWQ, pWK, pWV, pWOA, pBX, pWQKV, pWPHI, pWOB, pGATE, pOUT, pDBG, pWS = [4 + 2 * i for i in range(13)]
sX, sWQ, sWKV, sWB, sWOA, sWOB, sWS, sOUT, sDBG, sSM = [32 + 4 * i for i in range(10)]
sW, sRB, sHG, sL, sNON, sBUD, sS, sI, sP = 72, 73, 74, 75, 76, 77, 78, 79, 80
t0, t1, t2, t3, t4, t5 = 81, 82, 83, 84, 85, 86
sJ = 87; sRET = 88
sL2E = 90
sFL = 92
sD0, sD1 = 93, 94
sPF = 95
sFAR = 91
sST = 4
LOG2E = 0x3fb8aa3b
QSCALE = 0x3eb8aa3b
ONES = 0x3f803f80

a = Asm()
role = ["E"]
XST = os.environ.get("XST", "").split(",") if os.environ.get("XST") else []
def xs(name):
    if os.environ.get("MARK"): a(f"; @@ {name}")
    if DIAG and name in XST: a(f"s_memrealtime {sr(sST + 2 * XST.index(name), 2)}")
    if DIAG and "c" + name in XST: a(f"s_memtime {sr(sST + 2 * XST.index('c' + name), 2)}")
YST = os.environ.get("YST", "").split(",") if os.environ.get("YST") else []
YB = 48
YREG = [48, 50, 52, 54, 60, 62, 88, 90, 96, 98]
def ys(name):
    if DIAG and name in YST: a(f"s_memrealtime {sr(YREG[YST.index(name)], 2)}")
def stamp(n):
    if os.environ.get("MARK"): a(f"; @@ s{n}")
    if DIAG and YST and role[0] == "A": ys(f"a{n}")
    elif DIAG and XST and role[0] == "S": xs(f"s{n}")
    elif DIAG: a(f"s_memrealtime {sr(sST + 2 * n, 2)}")
    if HOLDAT == f"{role[0]}{n}": a("s_memrealtime s[100:101]")
def hold():
    if HOLDAT and (HOLDAT[0] == role[0] or (HOLDAT[0] == "E" and role[0] == "S")):
        l = a.lab("hold")
        a(f"{l}:\ns_memrealtime s[96:97]\ns_waitcnt lgkmcnt(0)\ns_sub_u32 s96, s96, s100\ns_cmp_lt_u32 s96, 4000\ns_cbranch_scc1 {l}")
def srd(d, p, size):
    a(f"s_mov_b32 s{d}, s{p}\ns_mov_b32 s{d+1}, s{p+1}\ns_mov_b32 s{d+2}, {hex(size)}\ns_mov_b32 s{d+3}, 0x20000")
def budget(done):
    a(f"s_cmp_eq_u32 s{sBUD}, 0\ns_cbranch_scc1 {done}\ns_sub_u32 s{sBUD}, s{sBUD}, 1")
cold = []
def emit_cold():
    while cold: cold.pop(0)()
def poll_issue(vaddr, vtmp, plane, n=1):
    a(f"s_mov_b32 s{t0}, {WS_F + plane*FP}\nbuffer_load_dword{'x2' if n == 2 else ''} {vr(vtmp,n)}, v{vaddr}, {sr(sWS,4)}, s{t0} offen sc1")
def poll_check(vaddr, vtmp, plane, nap=4, n=1):
    lp, dn = a.lab("pf"), a.lab("pfd")
    a(f"v_cmp_ne_u32 vcc, s{sNON}, v{vtmp}\ns_cbranch_vccnz {lp}\n{dn}:")
    def slow():
        a(f"{lp}:"); budget(dn)
        if nap: a(f"s_sleep {nap}")
        a("s_mov_b64 exec, vcc")
        poll_issue(vaddr, vtmp, plane, n)
        a(f"s_mov_b64 exec, -1\ns_waitcnt vmcnt(0)\nv_cmp_ne_u32 vcc, s{sNON}, v{vtmp}\ns_cbranch_vccnz {lp}\ns_branch {dn}")
    cold.append(slow)
def put_flag(soff, vnon, vl4):
    a(f"s_mov_b32 exec_hi, 0\nbuffer_store_dword v{vnon}, v{vl4}, {sr(sWS,4)}, s{soff} offen sc1\ns_mov_b32 exec_hi, -1")
def diag_dump(n):
    if not DIAG: return
    a("s_sleep 80\ns_waitcnt lgkmcnt(0)")
    a(f"s_lshl_b32 s{t0}, s{sL}, 3\ns_add_u32 s{t0}, s{t0}, s{sW}\ns_lshl_b32 s{t0}, s{t0}, 6\ns_add_u32 s{t0}, s{t0}, {WS_DIAG}")
    a("v_mov_b32 v8, 0")
    for i in range(14):
        a(f"v_writelane_b32 v8, s{YREG[i] if (YST and role[0] == 'A' and i < len(YST)) else sST+2*i}, {i}")
    a("v_writelane_b32 v8, s100, 14\nv_writelane_b32 v8, s31, 15")
    a(f"""v_mbcnt_lo_u32_b32 v9, -1, 0
    v_mbcnt_hi_u32_b32 v9, -1, v9
    v_lshlrev_b32 v9, 2, v9
    s_mov_b64 exec, 0xffff
    buffer_store_dword v8, v9, {sr(sWS,4)}, s{t0} offen
    s_mov_b64 exec, -1""")
def dma_lane_addrs():
    a(f"""v_lshrrev_b32 v11, 3, v0
    v_and_b32 v12, 7, v0
    v_lshrrev_b32 v13, 2, v0
    v_and_b32 v13, 4, v13
    v_xor_b32 v12, v12, v13
    v_lshlrev_b32 v12, 4, v12
    v_lshl_add_u32 v9, v11, 10, v12
    v_mul_u32_u24 v8, 3072, v11
    v_add_u32 v8, v8, v12""")
def xrows(n, mod=""):
    for r in range(n):
        a(f"s_add_u32 m0, s{sD0}, {X + (r//4)*4*XS + (r%4)*16}")
        if r % 4 == 0 and r: a(f"s_add_u32 s{sD1}, s{sD1}, 4096")
        a(f"buffer_load_dwordx4 v10, {sr(sX,4)}, s{sD1} offen offset:{(r%4)*1024} {mod} lds")
X0, X1, X2, X3 = X, X + 16384, X + 32768, X + 49152
R0, R1, R2 = RING, RING + 16384, RING + 32768
STG = [X0, X1, X2, X3, R0, R1, R2, X0,   X1, X2, X3, R0,   X0, R1, R2, R0,   X0, X1, X2, X3]
W_KV, W_Q, W_G, W_OB, W_FAR, W_P = 0, 1, 2, 6, 7, 8
nword = [9]
G1 = MISC + 512

def fin_body(pk, fb, nap):
    FO, FL, vT, vONE, vGF, FOUT, vL16 = 104, 136, 3, 1, 233, 244, 10
    lp, dn = a.lab("fw"), a.lab("fwd")
    a(f"{lp}:\nds_read_b32 v{vT}, v14 offset:128\ns_waitcnt lgkmcnt(0)\nv_cmp_gt_u32 vcc, s{t1}, v{vT}\ns_cbranch_vccz {dn}")
    budget(dn)
    if nap: a(f"s_sleep {nap}")
    a(f"s_branch {lp}\n{dn}:")
    xs("f0")
    for w in range(4):
        a(f"ds_read_b128 {vr(FO+8*w,4)}, v{FL+4} offset:{w*2048}\nds_read_b128 {vr(FO+8*w+4,4)}, v{FL+4} offset:{w*2048+1024}\nds_read_b32 v{FL+w}, v15 offset:{w*256}")
    def add2(d, x, y):
        if pk: a(f"v_pk_add_f32 {vr(d,2)}, {vr(x,2)}, {vr(y,2)}")
        else: a(f"v_add_f32 v{d}, v{x}, v{y}\nv_add_f32 v{d+1}, v{x+1}, v{y+1}")
    if pk:
        a(f"ds_write_b32 v13, v{vONE}\ns_waitcnt lgkmcnt(1)")
        xs("f1")
        for r in range(0, 8, 2): add2(FO + r, FO + r, FO + 8 + r); add2(FO + 16 + r, FO + 16 + r, FO + 24 + r)
    else:
        a("s_waitcnt lgkmcnt(6)")
        for r in range(0, 8, 2): add2(FO + r, FO + r, FO + 8 + r)
        a("s_waitcnt lgkmcnt(0)")
        for r in range(0, 8, 2): add2(FO + 16 + r, FO + 16 + r, FO + 24 + r)
    add2(FL, FL, FL + 2)
    for r in range(0, 8, 2): add2(FO + r, FO + r, FO + 16 + r)
    a(f"v_add_f32 v{FO+8}, v{FL}, v{FL+1}")
    if pk:
        a(f"""v_pk_mul_f32 {vr(FO+10,2)}, {vr(FO,2)}, 0 op_sel_hi:[1,0]
        v_pk_fma_f32 {vr(FO+10,2)}, {vr(FO+2,2)}, 0, {vr(FO+10,2)} op_sel_hi:[1,0,1]
        v_pk_fma_f32 {vr(FO+10,2)}, {vr(FO+4,2)}, 0, {vr(FO+10,2)} op_sel_hi:[1,0,1]
        v_pk_fma_f32 {vr(FO+10,2)}, {vr(FO+6,2)}, 0, {vr(FO+10,2)} op_sel_hi:[1,0,1]
        v_add_f32 v{FO+10}, v{FO+10}, v{FO+11}
        v_add_f32 v{FO+10}, v{FO+10}, v{FO+8}""")
    else:
        a(f"v_fma_f32 v{FO+10}, v{FO}, 0, v{FO+8}")
        for r in range(1, 8): a(f"v_fma_f32 v{FO+10}, v{FO+r}, 0, v{FO+10}")
    a(f"""v_cmp_nle_f32 vcc, {hex((127-40)<<23)}, v{FO+10}
    s_cbranch_vccnz {fb}
    v_cmp_nge_f32 vcc, {hex((127+60)<<23)}, v{FO+10}
    s_cbranch_vccnz {fb}""")
    if FORCE_FB: a(f"s_branch {fb}")
    if pk: a("L_fin_norm:")
    a(f"v_rcp_f32 v{FO+8}, v{FO+8}\nv_mul_f32 v{FO+8}, v{FO+8}, v{vGF}")
    for r in range(0, 8, 2):
        if pk: a(f"v_pk_mul_f32 {vr(FO+r,2)}, {vr(FO+r,2)}, {vr(FO+8,2)} op_sel_hi:[1,0]")
        else: a(f"v_mul_f32 v{FO+r}, v{FO+r}, v{FO+8}\nv_mul_f32 v{FO+r+1}, v{FO+r+1}, v{FO+8}")
    for r in range(4): a(f"v_cvt_pk_bf16_f32 v{FOUT+r}, v{FO+2*r}, v{FO+2*r+1}")
    for r in range(4): a(f"v_min_u32 v{FOUT+r}, -2, v{FOUT+r}")
    xs("f2")
    l1, l2 = a.lab("st"), a.lab("st")
    a(f"""s_cmp_ge_u32 s{sJ}, s{sFAR}
    s_cbranch_scc1 {l1}
    buffer_store_dwordx4 {vr(FOUT,4)}, v{vL16}, {sr(sWS,4)}, s{t4} offen sc1
    s_branch {l2}
    {l1}:
    buffer_store_dwordx4 {vr(FOUT,4)}, v{vL16}, {sr(sWS,4)}, s{t4} offen
    {l2}:""")
    xs("f3")

if HOLDAT or DIAG: a("s_memrealtime s[100:101]")
a(f"""s_cmp_ge_u32 s2, 256
s_cbranch_scc1 L_exit
s_load_dwordx16 s[4:19], s[0:1], 0
s_load_dwordx8 s[20:27], s[0:1], 64
s_load_dwordx2 s[28:29], s[0:1], 96
v_lshrrev_b32 v1, 6, v0
v_and_b32 v0, 63, v0
v_readfirstlane_b32 s{sW}, v1""")
a(f"""s_and_b32 s{t0}, s2, 7
s_lshr_b32 s{t1}, s2, 3""")
if MAP == 0:
    a(f"""s_lshr_b32 s{t2}, s{t0}, 1
    s_lshl_b32 s{t2}, s{t2}, 3
    s_lshr_b32 s{t3}, s{t1}, 2
    s_add_u32 s{sRB}, s{t2}, s{t3}
    s_and_b32 s{t2}, s{t0}, 1
    s_lshl_b32 s{t2}, s{t2}, 2
    s_and_b32 s{t5}, s{t1}, 3
    s_add_u32 s{sHG}, s{t2}, s{t5}""")
else:
    a(f"""s_lshl_b32 s{t2}, s{t0}, 2
    s_lshr_b32 s{t3}, s{t1}, 3
    s_add_u32 s{sRB}, s{t2}, s{t3}
    s_and_b32 s{sHG}, s{t1}, 7
    s_and_b32 s{t5}, s{t1}, 3""")
def ids():
    a(f"""s_lshl_b32 s{sL}, s{sRB}, 3
    s_add_u32 s{sL}, s{sL}, s{sHG}
    s_mov_b32 s{sBUD}, 400000
    s_lshl_b32 s{sFL}, s{sL}, 7
    s_add_u32 s{sFL}, s{sFL}, {WS_F}""")
a(f"""v_lshlrev_b32 v10, 4, v0
s_cmp_lg_u32 s{sW}, 0
s_cbranch_scc1 L_w17""")
def others():
    a(f"L_w17:\ns_cmp_eq_u32 s{sW}, 3\ns_cbranch_scc1 L_aw3\ns_cmp_lt_u32 s{sW}, 3\ns_cbranch_scc1 L_aw12")
    if CPF:
        a(f"""s_getpc_b64 s[{sSM}:{sSM+1}]
        L_pc:
        s_lshl_b32 s{t0}, s{t1}, 2
        s_add_u32 s{t0}, s{t0}, s{sW}
        s_sub_u32 s{t0}, s{t0}, 3
        s_lshl_b32 s{t0}, s{t0}, 8
        s_min_u32 s{t0}, s{t0}, CODE_END - L_pc - 256
        s_add_u32 s{sSM}, s{sSM}, s{t0}
        s_addc_u32 s{sSM+1}, s{sSM+1}, 0
        s_load_dword s96, s[{sSM}:{sSM+1}], 0
        s_load_dword s97, s[{sSM}:{sSM+1}], 64
        s_load_dword s98, s[{sSM}:{sSM+1}], 128
        s_load_dword s99, s[{sSM}:{sSM+1}], 192""")
    a("s_branch L_sw")
    a(f"""L_aw3:
    s_cmp_lg_u32 s2, 0
    s_cbranch_scc1 L_nononce
    s_memrealtime s[{t1}:{t2}]
    v_mov_b32 v13, 0
    s_waitcnt lgkmcnt(0)
    s_or_b32 s{t1}, s{t1}, 1
    v_mov_b32 v14, s{t1}
    s_mov_b64 exec, 1
    global_store_dword v13, v14, s[{pDBG}:{pDBG+1}] sc1
    s_mov_b64 exec, -1
    L_nononce:
    s_lshl_b32 s{t0}, s{sHG}, 11
    v_add_u32 v11, s{t0}, v10
    s_lshl_b32 s{t0}, s2, 11
    v_lshl_add_u32 v12, v0, 7, s{t0}
    s_lshl_b32 s{t0}, s{sRB}, 7
    s_add_u32 s{t0}, s{t0}, {WS_F}
    v_mov_b32 v13, s{t0}
    s_waitcnt lgkmcnt(0)
    s_mov_b32 m0, {WPHI}
    s_mov_b64 exec, 0xffff""")
    if WQT == 1: a(f"global_load_dword v20, v12, s[{pWQ}:{pWQ+1}]")
    a(f"""s_mov_b64 exec, 1
    global_load_dword v21, v13, s[{pWS}:{pWS+1}]
    s_mov_b64 exec, -1
    global_load_lds_dwordx4 v11, s[{pWPHI}:{pWPHI+1}]
    global_load_lds_dwordx4 v11, s[{pWPHI}:{pWPHI+1}] offset:1024
    s_branch L_aw3b""")
role[0] = "A"
S0, S1, O_, QR, KR, VR = 12, 28, 44, 60, 64, 128
vIDX, vZ, vQA, vPA, vLA, vCA, vCV = 1, 2, 4, 5, 6, 7, 8
JX, JW, JA = KR, KR + 64, O_
aNON = O_ + 8
def vconst():
    a(f"""v_and_b32 v12, 11, v0
    v_cmp_eq_u32 vcc, 0, v12
    v_mov_b32 v13, {hex(ONES)}
    v_cndmask_b32 v12, 0, v13, vcc
    v_cndmask_b32 v13, 0, v13, vcc""")
    for t in range(16):
        a(f"v_mov_b64 {vr(VR+8*t+4,2)}, v[12:13]\nv_mov_b64 {vr(VR+8*t+6,2)}, v[12:13]")
        if VMASK: a(f"v_mov_b64 {vr(VR+8*t,2)}, v[12:13]\nv_mov_b64 {vr(VR+8*t+2,2)}, v[12:13]")
a(f"""s_mul_i32 s{sD0}, s{t5}, {16*XS}
s_lshl_b32 s{sD1}, s{sRB}, 16
s_lshl_b32 s{t2}, s{t5}, 14
s_add_u32 s{sD1}, s{sD1}, s{t2}
s_mov_b32 m0, {GATE}
s_waitcnt lgkmcnt(0)""")
ys("ka")
a(f"global_load_lds_dwordx4 v10, s[{pGATE}:{pGATE+1}]")
srd(sX, pX, 0x200000)
xrows(16, "nt" if XNT else "")
ys("xi")
a(f"s_bitcmp1_b32 s{sHG}, 2\ns_cselect_b32 s{sWKV}, s{pWV}, s{pWK}\ns_cselect_b32 s{sWKV+1}, s{pWV+1}, s{pWK+1}\ns_mov_b32 s{sWKV+2}, 0x4000\ns_mov_b32 s{sWKV+3}, 0x20000")
for n in range(16):
    if n % 4 == 0: a(f"s_mov_b32 m0, {WKV + n*1024}\ns_mov_b32 s{t1}, {n*1024}")
    a(f"buffer_load_dwordx4 v10, {sr(sWKV,4)}, s{t1} offen offset:{(n%4)*1024} lds")
NTQ = 0
if WQT == 2:
    NTQ = 2 if MAP else 1
    a(f"""s_and_b32 s{t0}, s{sRB}, {3 if MAP else 7}
    s_lshl_b32 s{t0}, s{t0}, {17 if MAP else 16}
    s_lshl_b32 s{t1}, s{sHG}, 7
    s_add_u32 s{t0}, s{t0}, s{t1}
    v_lshl_add_u32 v12, v0, 10, s{t0}
    global_load_dword v24, v12, s[{pWQ}:{pWQ+1}]""")
    if MAP: a(f"v_add_u32 v12, 0x10000, v12\nglobal_load_dword v24, v12, s[{pWQ}:{pWQ+1}]")
a("s_branch L_aw0b")
others()
a("L_aw0b:")
ids()
srd(sWS, pWS, WS_SIZE); srd(sDBG, pDBG, 256)
stamp(0)
a(f"""v_and_b32 v16, 15, v0
v_lshrrev_b32 v14, 4, v0
s_lshl_b32 s{t0}, s{t5}, 4
v_add_u32 v13, s{t0}, v16
v_mul_u32_u24 v15, {XS}, v13
v_lshl_add_u32 v15, v14, 4, v15
v_lshlrev_b32 v19, 3, v16
v_lshl_add_u32 v19, v14, 8, v19
v_add_u32 v19, {WKV}, v19
s_lshr_b32 s{t0}, s{t5}, 1
s_lshl_b32 s{t1}, s{sRB}, 1
s_add_u32 s{t0}, s{t0}, s{t1}
s_lshl_b32 s{t0}, s{t0}, 11
s_and_b32 s{t1}, s{t5}, 1
s_lshl_b32 s{t1}, s{t1}, 8
s_add_u32 s{t4}, s{t0}, s{t1}
v_and_b32 v17, 1, v14
v_lshrrev_b32 v18, 1, v14
v_lshlrev_b32 v25, 4, v14
v_add_u32 v25, {GATE}, v25
v_lshlrev_b32 v26, 2, v0
s_lshl_b32 s{t3}, s{sL}, 6
s_add_u32 s{t3}, s{t3}, {WS_G}
s_waitcnt vmcnt({32 + NTQ})""")
if HAT == -2: a("s_barrier")
JG = KR + 128
for n in range(16): a(f"ds_read_b128 {vr(JG+4*n,4)}, v25 offset:{n*64}")
a(f"s_bitcmp1_b32 s{sHG}, 2\ns_cbranch_scc1 L_job_v")
def job(isv):
    a(f"v_lshlrev_b32 v20, 9, v{18 if isv else 17}\nv_lshl_add_u32 v17, v16, 4, v20")
    if isv: a(f"s_add_u32 s{t4}, s{t4}, 1024")
    ys("j0")
    a(f"s_waitcnt vmcnt({16 + NTQ})")
    ys("xl")
    if HAT == -1: a("s_barrier")
    for n in range(16): a(f"ds_read_b128 {vr(JX+4*n,4)}, v15 offset:{n*64}")
    def grp(gq):
        a(f"s_waitcnt vmcnt({12 - 4*gq + NTQ})")
        if gq == 3: ys("wl")
        if gq == HAT: a("s_barrier")
        for n in range(4 * gq, 4 * gq + 4):
            a(f"ds_read_b64_tr_b16 {vr(JW+4*n,2)}, v19 offset:{n*1024}")
            a(f"ds_read_b64_tr_b16 {vr(JW+4*n+2,2)}, v19 offset:{n*1024+128}")
    def mm(gq):
        for n in range(4 * gq, 4 * gq + 4):
            A, B = (JX, JW) if isv else (JW, JX)
            a(f"v_mfma_f32_16x16x32_bf16 {vr(JA,4)}, {vr(A+4*n,4)}, {vr(B+4*n,4)}, {'0' if n == 0 else vr(JA,4)}")
        for n in {0: range(0, 8), 1: range(8, 16)}.get(gq, []):
            a(f"v_mfma_f32_16x16x32_bf16 {vr(JA+4,4)}, {vr(JG+4*n,4)}, {vr(JX+4*n,4)}, {'0' if n == 0 else vr(JA+4,4)}")
    grp(0)
    for gq in range(4):
        if gq < 3: grp(gq + 1); a("s_waitcnt lgkmcnt(8)")
        else: a(f"buffer_load_dword v{aNON}, off, {sr(sDBG,4)}, 0 sc1\ns_waitcnt lgkmcnt(0)")
        mm(gq)
    sw = "v_permlane16_swap_b32" if isv else "v_permlane32_swap_b32"
    a(f"""v_cvt_pk_bf16_f32 v20, v{JA}, v{JA+1}
    v_cvt_pk_bf16_f32 v21, v{JA+2}, v{JA+3}
    {sw} v20, v22
    {sw} v21, v23""")
    a("s_mov_b32 exec_lo, 0xffff\ns_mov_b32 exec_hi, 0xffff" if isv else "s_mov_b32 exec_hi, 0")
job(False)
a("s_branch L_job_st\nL_job_v:")
job(True)
a("L_job_st:")
a(f"""buffer_store_dwordx4 v[20:23], v17, {sr(sWS,4)}, s{t4} offen sc1
s_mov_b64 exec, 0xffff
buffer_store_dword v{JA+4}, v26, {sr(sWS,4)}, s{t3} offen sc1
s_mov_b64 exec, -1""")
stamp(8)
if HAT == 4: a("s_barrier")
def job_flag():
    lp, dn = a.lab("np"), a.lab("npd")
    if FST == 4:
        a(f"""s_lshl_b32 s{t0}, s{sRB}, 7
        s_lshl_b32 s{t1}, s{sHG}, 2
        s_add_u32 s{t0}, s{t0}, s{t1}
        s_add_u32 s{t0}, s{t0}, {WS_F}""")
    else: a(f"s_mul_i32 s{t0}, s{sL}, {FST}\ns_add_u32 s{t0}, s{t0}, {WS_F}")
    if "nn" in YST: a("s_waitcnt vmcnt(1)"); ys("nn")
    a("s_waitcnt vmcnt(0)"); ys("ack")
    a(f"""v_cmp_eq_u32 vcc, 0, v{aNON}
    s_cbranch_vccnz {lp}
    {dn}:
    s_mov_b32 exec_lo, {hex((1 << (FST // 4)) - 1)}
    s_mov_b32 exec_hi, 0
    buffer_store_dword v{aNON}, v26, {sr(sWS,4)}, s{t0} offen sc1
    s_mov_b64 exec, -1""")
    a(f"v_mov_b32 v13, {NONCE}\nds_write_b32 v13, v{aNON}\ns_waitcnt lgkmcnt(0)")
    stamp(9)
    def slow():
        a(f"{lp}:"); budget(dn)
        a(f"""buffer_load_dword v{aNON}, off, {sr(sDBG,4)}, 0 sc1
        s_waitcnt vmcnt(0)
        v_cmp_eq_u32 vcc, 0, v{aNON}
        s_cbranch_vccnz {lp}
        s_branch {dn}""")
    cold.append(slow)
def aw_poll():
    if FST > 4: a(f"s_mul_i32 s{t1}, s{sW}, {64*FST}\nv_mul_u32_u24 v11, {FST}, v0\nv_add_u32 v11, s{t1}, v11")
    else: a(f"s_lshl_b32 s{t1}, s{sW}, 10\nv_lshrrev_b32 v11, 3, v0\nv_lshl_add_u32 v11, v11, 7, s{t1}\nv_and_b32 v14, 7, v0\nv_lshl_add_u32 v11, v14, 2, v11")
    poll_issue(11, S1, F_KV)
def aw_wait(word, target, nap=0):
    lp, dn = a.lab("aw"), a.lab("awd")
    a(f"""{lp}:
    ds_read_b32 v14, v9 offset:{SYNC - NONCE + 4*word}
    s_waitcnt lgkmcnt(0)
    v_cmp_gt_u32 vcc, {target}, v14
    s_cbranch_vccz {dn}""")
    budget(dn)
    if nap: a(f"s_sleep {nap}")
    a(f"s_branch {lp}\n{dn}:")
def aw_signal(word):
    a(f"s_mov_b64 exec, 1\nds_add_u32 v9, v{vCV} offset:{SYNC - NONCE + 4*word}\ns_mov_b64 exec, -1")
if FLAG1: job_flag()
a("s_barrier")
stamp(1)
if not FLAG1: job_flag()
a("s_branch L_aw03")

a("L_aw12:")
ids()
dma_lane_addrs()
a(f"""v_mov_b32 v11, v9
s_sub_u32 s{sS}, s{sW}, 1
s_lshl_b32 s{t3}, s{sS}, 13
s_lshl_b32 s{t4}, s{sS}, 16
s_lshl_b32 s{t2}, s{sHG}, 7
s_add_u32 s{t4}, s{t4}, s{t2}
s_mul_i32 s{sP}, s{sS}, 3
s_lshl_b32 s{t0}, s{t5}, 1
s_add_u32 s{sP}, s{sP}, s{t0}
s_add_u32 s{sP}, s{sP}, 2
v_mov_b32 v9, {NONCE}
v_mov_b32 v{vCV}, 1
s_waitcnt lgkmcnt(0)""")
srd(sX, pX, 0x200000); srd(sWQ, pWQ, 0x80000); srd(sWS, pWS, WS_SIZE)
vconst()
AV = Cnt(63)
for gq in range(3):
    a(f"""s_add_u32 s{t0}, s{sP}, {gq}
    s_and_b32 s{t0}, s{t0}, 7
    s_lshl_b32 s{sD1}, s{sRB}, 16
    s_lshl_b32 s{t2}, s{t0}, 13
    s_add_u32 s{sD1}, s{sD1}, s{t2}
    s_mul_i32 s{sD0}, s{t0}, {8*XS}""")
    if gq == 0:
        a("s_barrier")
        stamp(0)
    xrows(8)
def ld_wq(g):
    for n in range(8):
        a(f"s_add_u32 m0, s{t3}, {WQB + ((g + 1) % 4)*16384 + n*1024}\ns_add_u32 s{t1}, s{t4}, {g*131072 + n*8192}")
        a(f"buffer_load_dwordx4 v11, {sr(sWQ,4)}, s{t1} offen lds")
    AV.issue(g, 8)
for g_ in range(WQE): ld_wq(g_)
ys("j0")
a(f"s_waitcnt vmcnt({AV.need(0) if G0H else 8*WQE})")
ys("xl")
a("s_barrier")
stamp(1)
for g_ in range(WQE, 2): ld_wq(g_)
for b in range(4):
    if not LATE and max(WQE, 2) + b < 4: ld_wq(max(WQE, 2) + b)
    if not (G0H and b == 0):
        a(f"s_waitcnt vmcnt({AV.need(b)})")
        aw_signal(W_G + b)
    ys(f"l{b}")
    if LATE and max(WQE, 2) + b < 4: ld_wq(max(WQE, 2) + b)
a("s_branch L_aw_all")

a("L_aw3b:")
ids()
srd(sWS, pWS, WS_SIZE)
stamp(0)
a(f"""v_mov_b32 v24, 0
v_mov_b32 v25, 0
v_mov_b32 v26, 0
v_mov_b32 v27, 0
v_add_u32 v13, {LT}, v10""")
for n in range(4): a(f"ds_write_b128 v13, v[24:27] offset:{n*1024}")
a(f"""v_lshlrev_b32 v13, 2, v0
v_add_u32 v13, {MISC}, v13
v_lshrrev_b32 v14, 2, v0
v_cmp_eq_u32 vcc, 1, v14
v_cndmask_b32 v14, 0, v14, vcc
ds_write_b32 v13, v14""")
a("s_waitcnt lgkmcnt(0)\ns_barrier")
a("s_waitcnt vmcnt(0)\ns_barrier")
stamp(1)
if E("ALN", 1): a("s_branch L_aw_visit\nL_aw_back:")
a("L_aw03:")
vconst()
a(f"v_mov_b32 v9, {NONCE}\nv_mov_b32 v{vCV}, 1")
if PKS < 0: aw_wait(W_G + POLLAT, 2, nap=2)
a("L_aw_all:")
if PKS >= 0: aw_wait(W_P, 1, nap=1)
aw_poll()
stamp(2)
aw_wait((NONCE - SYNC) // 4, 1)
a(f"s_lshl_b32 s{t4}, s{sW}, 15")
if ROT: a(f"s_lshr_b32 s{t2}, s2, 3\ns_and_b32 s{t2}, s{t2}, 7\ns_lshl_b32 s{t2}, s{t2}, 12\ns_add_u32 s{t4}, s{t4}, s{t2}")
a(f"v_readfirstlane_b32 s{sNON}, v14\ns_waitcnt vmcnt(0)")
poll_check(11, S1, F_KV, nap=E('ANAP', 2))
stamp(3)
kvn = [0]
KC = Cnt(63)
def kvload(k):
    if VMASK:
        for _ in range(k // 4):
            t = kvn[0] // 2
            if t == 16: return
            a(f"s_xor_b32 s{t3}, s{t4}, {t*2048}")
            for u in range(2):
                a(f"buffer_load_dwordx4 {vr(KR+4*(t+u),4)}, v10, {sr(sWS,4)}, s{t3} offen offset:{u*2048} sc1"); KC.issue(("k", t + u))
            a(f"s_mov_b64 exec, s[{sL2E}:{sL2E+1}]")
            for u in range(4):
                a(f"buffer_load_dwordx4 {vr(VR+8*t+4*u,4)}, v10, {sr(sWS,4)}, s{t3} offen offset:{(u//2)*2048 + 1024 + (u%2)*256} sc1"); KC.issue(("v", t + u // 2))
            a("s_mov_b64 exec, -1")
            kvn[0] += 4
        return
    for _ in range(k):
        n = kvn[0]; t = n // 2
        if n == 32: return
        if n % 4 == 0: a(f"s_xor_b32 s{t3}, s{t4}, {t*2048}")
        a(f"buffer_load_dwordx4 {vr(VR+8*t if n % 2 else KR+4*t,4)}, v10, {sr(sWS,4)}, s{t3} offen offset:{(n%4)*1024} sc1")
        KC.issue(("v" if n % 2 else "k", t))
        kvn[0] += 1
def kvwait(*tags):
    n = [x for x in (KC.need(t) for t in tags) if x is not None]
    if n: a(f"s_waitcnt vmcnt({min(n)})")
if VMASK: a(f"s_mov_b32 s{sL2E}, 0xffff\ns_mov_b32 s{sL2E+1}, 0xffff")
kvload(2 * PRE)
a(f"""s_lshl_b32 s{t0}, s{sW}, 11
s_add_u32 s{t0}, s{t0}, {OP}
v_add_u32 v{vPA}, s{t0}, v10
v_add_u32 v{vQA}, {Q}, v10
s_lshl_b32 s{t0}, s{sW}, 8
s_add_u32 s{t0}, s{t0}, {LT}
v_and_b32 v{vLA}, 31, v0
v_lshl_add_u32 v{vLA}, v{vLA}, 2, s{t0}
v_mov_b32 v{vCA}, {CONS}
v_mov_b32 v{vIDX}, 0xdddd
v_mov_b32 v{vZ}, 0
v_mov_b32 v{vZ+1}, 0""")
if E("ALN", 1):
    a("s_branch L_aw_pg")
    emit_cold()
    a(".p2align 12\nL_aw_visit:\ns_branch L_aw_back\nL_aw_pg:")
aw_wait(W_Q, 4, nap=E("QNAP", 1))
a(f"ds_read_b128 {vr(QR,4)}, v{vQA}\ns_setprio 1")
stamp(4)
def zero_o(): a(f"v_mfma_f32_32x32x8_bf16 {vr(O_,16)}, {vr(vZ,2)}, {vr(vZ,2)}, 0")
def qk(t, S): a(f"v_mfma_f32_32x32x16_bf16 {vr(S,16)}, {vr(KR+4*t,4)}, {vr(QR,4)}, 0")
def pv(t, s, S): a(f"v_smfmac_f32_32x32x32_bf16 {vr(O_,16)}, {vr(VR+8*t+4*s,4)}, {vr(S+8*s,8)}, v{vIDX}")
def flush_parts():
    lp, dn = a.lab("cw"), a.lab("cwd")
    def slow():
        a(f"{lp}:"); budget(dn)
        a(f"""s_sleep 1
        ds_read_b32 v{vCV}, v{vCA}
        s_waitcnt lgkmcnt(0)
        v_cmp_eq_u32 vcc, 0, v{vCV}
        s_cbranch_vccnz {lp}
        s_branch {dn}""")
    cold.append(slow)
    return (f"v_cmp_eq_u32 vcc, 0, v{vCV}",
            f"s_cbranch_vccnz {lp}\n{dn}:\nds_write_b128 v{vPA}, {vr(O_,4)}",
            f"ds_write_b128 v{vPA}, {vr(O_+4,4)} offset:1024",
            f"ds_write2_b32 v{vLA}, v{O_+8}, v{vQA} offset0:0 offset1:32")
def flush():
    for x in flush_parts(): a(x)
def apass(first):
    fl = None if first else flush_parts()
    for t in range(16):
        S, Sn = (S0, S1) if t % 2 == 0 else (S1, S0)
        d = 3 if (t == 1 and not first) else 0
        for e in range(16):
            if t == 0 and not first and e in (6, 11, 13, 15):
                a(fl[(6, 11, 13, 15).index(e)])
                if e == 15: zero_o()
            if d and e == d - 1: pv(0, 0, Sn)
            if e == 2 + d and not (first and t == 0): pv((t - 1) % 16, 1, Sn)
            if e == 5 + d:
                if first and t < 15: assert kvn[0] > 2*(t+1); kvwait(("k", t + 1), ("v", t))
                if t == 15: a("s_waitcnt lgkmcnt(0)" if not first else "s_waitcnt vmcnt(0) lgkmcnt(0)")
                qk((t + 1) % 16, Sn)
                if t == 14:
                    a(f"v_add_u32 v{vQA}, 1024, v{vQA}\nds_read_b128 {vr(QR,4)}, v{vQA}\nds_read_b32 v{vCV}, v{vCA}")
                if d:
                    a(f"""s_add_u32 s{sJ}, s{sJ}, 1
                    s_cmp_eq_u32 s{sJ}, 4
                    s_cselect_b32 s{t0}, -3, 1
                    v_lshl_add_u32 v{vPA}, s{t0}, 13, v{vPA}
                    v_lshl_add_u32 v{vLA}, s{t0}, 10, v{vLA}
                    v_add_u32 v{vCA}, 4, v{vCA}""")
            if e == 8 and first:
                if not VMASK:
                    for r in range(4): a(f"v_permlane16_swap_b32 v{VR+8*t+r}, v{VR+8*t+4+r}")
                if not VMASK or t % 3 != E("VSK", 5): kvload(LPT)
                if SPF == 3 and t == E("SPT", 0): aw_signal(W_P)
                if t == SIGT: aw_signal(W_KV)
            if e == 15 and not (t == 0 and not first): pv(t, 0, S)
            a(f"v_exp_f32 v{S+e}, v{S+e}")
a(f"""s_lshr_b32 s{sD0}, s{sW}, 1
s_lshl_b32 s{sD0}, s{sD0}, 10
s_and_b32 s{t0}, s{sW}, 1
s_lshl_b32 s{t0}, s{t0}, 3
s_add_u32 s{sD0}, s{sD0}, s{t0}""" if QFIN else f"s_mov_b32 s{sD0}, 0")
a(f"""s_add_u32 s{sD0}, s{sD0}, {OP + 3*8192}
s_lshl_b32 s{t0}, s{sRB}, 7
s_lshl_b32 s{t1}, s{sHG}, 2
s_add_u32 s{t0}, s{t0}, s{t1}
s_lshl_b32 s{sD1}, s{t0}, 10
s_add_u32 s{sD1}, s{sD1}, {WS_O + 67*1024}
s_mov_b32 s{t1}, {Q + 8*1024}""")
zero_o()
a(f"s_mov_b32 s{sJ}, 0\ns_waitcnt lgkmcnt(0)")
kvwait(("k", 0))
qk(0, S0)
stamp(5)
apass(True)
stamp(6)
if DIAG and not YST: a(f"s_memtime s[96:97]\ns_mov_b32 s31, s{sBUD}")
a(".p2align 6\nL_aloop:")
apass(False)
if DIAG and os.environ.get("PASSST"):
    for n, sl in zip(range(1, 7), (0, 1, 2, 3, 4, 11)):
        l = a.lab("st")
        a(f"s_cmp_lg_u32 s{sJ}, {n}\ns_cbranch_scc1 {l}"); stamp(sl); a(f"{l}:")
a(f"s_cmp_lt_u32 s{sJ}, 7\ns_cbranch_scc1 L_aloop")
pv(15, 1, S1)
if not NOB:
    a(f"""v_lshlrev_b32 v251, 2, v0
    v_add_u32 v13, {G1}, v251
    ds_read_b64 v[18:19], v9 offset:{SYNC - NONCE + 4*W_OB}
    ds_read_b32 v233, v13
    v_and_b32 v14, 3, v0
    v_lshlrev_b32 v14, 8, v14
    v_add_u32 v14, {LT + 3*1024}, v14
    v_and_b32 v15, 124, v251
    v_add_u32 v15, {LT + 3*1024}, v15
    v_add_u32 v140, s{sD0}, v10""")
else: a("s_nop 9")
flush()
stamp(7)
if DIAG and not YST: a("s_memtime s[98:99]\ns_waitcnt lgkmcnt(0)\ns_sub_u32 s30, s98, s96\ns_sub_u32 s31, s31, s77")
if not NOB:
    lp, dn = a.lab("ob"), a.lab("obd")
    a(f"s_setprio 3\ns_mov_b32 s{t4}, s{sD1}")
    if not QFIN: a(f"s_cmp_lg_u32 s{sW}, 3\ns_cbranch_scc1 L_aw_end")
    a(f"""s_waitcnt lgkmcnt(3)
    v_cmp_gt_u32 vcc, 4, v18
    s_cbranch_vccnz {lp}
    {dn}:
    v_readfirstlane_b32 s{sFAR}, v19
    s_lshl_b32 s{sFAR}, s{sFAR}, 6""")
    if not QFIN: fin_body(False, "L_aw_fb", 0)
    else:
        l1, d1 = a.lab("fw"), a.lab("fwd")
        a(f"v_lshl_add_u32 v16, s{sW}, 2, v10\n{l1}:\nds_read_b32 v3, v14 offset:128\ns_waitcnt lgkmcnt(0)\nv_cmp_gt_u32 vcc, s{t1}, v3\ns_cbranch_vccz {d1}")
        budget(d1)
        a(f"s_branch {l1}\n{d1}:")
        a("ds_read2st64_b32 v[20:21], v15 offset0:0 offset1:1\nds_read2st64_b32 v[22:23], v15 offset0:2 offset1:3")
        for w_ in range(4): a(f"ds_read_b64 v[{24+2*w_}:{25+2*w_}], v140 offset:{w_*2048}")
        a(f"""s_waitcnt lgkmcnt(4)
        v_add_f32 v20, v20, v22
        v_add_f32 v21, v21, v23
        v_add_f32 v20, v20, v21
        v_rcp_f32 v21, v20
        s_waitcnt lgkmcnt(0)
        v_add_f32 v24, v24, v26
        v_add_f32 v28, v28, v30
        v_add_f32 v25, v25, v27
        v_add_f32 v29, v29, v31
        v_mul_f32 v21, v21, v233
        v_add_f32 v24, v24, v28
        v_add_f32 v25, v25, v29
        v_fma_f32 v20, v24, 0, v20
        v_fma_f32 v20, v25, 0, v20
        v_mul_f32 v24, v24, v21
        v_mul_f32 v25, v25, v21
        v_subrev_u32 v20, {hex((127-40)<<23)}, v20
        v_cmp_lt_u32 vcc, {hex(100<<23)}, v20
        v_cvt_pk_bf16_f32 v24, v24, v25
        s_cbranch_vccnz L_aw_fb""")
        if FORCE_FB: a("s_branch L_aw_fb")
        a(f"""v_min_u32 v24, -2, v24
        s_cmp_ge_u32 s{sJ}, s{sFAR}
        s_cbranch_scc0 L_aw_far
        buffer_store_dword v24, v16, {sr(sWS,4)}, s{t4} offen""")
        cold.append(lambda: a(f"L_aw_far:\nbuffer_store_dword v24, v16, {sr(sWS,4)}, s{t4} offen sc1\ns_endpgm"))
    a("L_aw_end:")
    cold.append(lambda: a(f"L_aw_fb:\ns_call_b64 s[{sRET}:{sRET+1}], L_fb\ns_endpgm"))
    def slow():
        a(f"{lp}:"); budget(dn)
        a(f"""s_sleep 2
        ds_read_b64 v[18:19], v9 offset:{SYNC - NONCE + 4*W_OB}
        ds_read_b32 v233, v13
        s_waitcnt lgkmcnt(0)
        v_cmp_gt_u32 vcc, 4, v18
        s_cbranch_vccnz {lp}
        s_branch {dn}""")
    cold.append(slow)
    stamp(10)
diag_dump(8)
hold()
a("s_endpgm")
emit_cold()

role[0] = "S"
vONE, vSY, vT = 1, 2, 3
vXA, vWX, vWO, vWOA, vD3, vD1, vL16, vGI, vGO = 4, 5, 6, 7, 8, 9, 10, 11, 12
WPH, PHQ, ACC, AC2, WB0, TMP = 16, 24, 40, 56, 72, 104
vNON, vGF, vLI, vPF = 232, 233, 234, 235
vSW, vSR, vSR2, vSV, vSVR = 236, 240, 241, 242, 243
FOUT = 244
vPO, vT2, vL4, vWP, vPR, vPC, vKS = 248, 249, 251, 252, 253, 254, 255
XF = TMP; WR = WB0
VM, LG = Cnt(63), Cnt(15)
def wait(vm=None, lg=None):
    if isinstance(vm, tuple) and vm[0] == "st": assert (vm[1], 3) in issued, vm
    v = VM.need(vm) if vm is not None else None
    l = LG.need(lg) if lg is not None else None
    t = ([f"vmcnt({v})"] if v is not None else []) + ([f"lgkmcnt({l})"] if l is not None else [])
    if t: a("s_waitcnt " + " ".join(t))
def newword():
    nword[0] += 1; assert nword[0] <= 48; return nword[0] - 1
def arrive(w=None):
    w = newword() if w is None else w
    a(f"s_mov_b64 exec, 1\nds_add_u32 v{vSY}, v{vONE} offset:{4*w}\ns_mov_b64 exec, -1")
    LG.issue("arr")
    return w
def chk_read(w):
    a(f"ds_read_b32 v{vT}, v{vSY} offset:{4*w}"); LG.issue("chk")
def chk_test(w, target=4, lowprio=False, nap=0, near=False):
    dn, rt = a.lab("sbd"), a.lab("sbr")
    if near:
        wait(lg="chk")
        a(f"{rt}:\nv_readfirstlane_b32 s{t0}, v{vT}\ns_cmp_ge_u32 s{t0}, {target}\ns_cbranch_scc1 {dn}")
        budget(dn)
        a(f"ds_read_b32 v{vT}, v{vSY} offset:{4*w}\ns_waitcnt lgkmcnt(0)\ns_branch {rt}\n{dn}:")
        return
    if lowprio: a("s_setprio 2")
    wait(lg="chk")
    a(f"v_readfirstlane_b32 s{t0}, v{vT}\ns_cmp_lt_u32 s{t0}, {target}\ns_cbranch_scc1 {rt}\n{dn}:")
    if lowprio: a("s_setprio 0")
    def slow():
        a(f"{rt}:"); budget(dn)
        if nap: a(f"s_sleep {nap}")
        a(f"""ds_read_b32 v{vT}, v{vSY} offset:{4*w}
        s_waitcnt lgkmcnt(0)
        v_readfirstlane_b32 s{t0}, v{vT}
        s_cmp_lt_u32 s{t0}, {target}
        s_cbranch_scc1 {rt}
        s_branch {dn}""")
    cold.append(slow)
def check(w, target=4, nap=0): chk_read(w); chk_test(w, target, nap=nap)
class only:
    def __init__(s, reg, val): s.reg, s.val = reg, val
    def __enter__(s):
        s.l = a.lab("only"); a(f"s_cmp_lg_u32 s{s.reg}, {s.val}\ns_cbranch_scc1 {s.l}")
        s.sv = (list(VM.q), list(LG.q))
    def __exit__(s, *e):
        a(f"{s.l}:"); VM.q, LG.q = s.sv
def flag(plane): a(f"s_add_u32 s{t0}, s{sFL}, {plane*FP}"); put_flag(t0, vNON, vL4)
def call_fin(greg):
    a(f"v_mov_b32 v{vGF}, v{greg}\ns_call_b64 s[{sRET}:{sRET+1}], L_fin\ns_nop 1")
def dma_base(kind):
    a(f"s_lshl_b32 s{t1}, s{sHG}, 7")
    if kind == "kv":
        a(f"s_mul_i32 s{sD1}, s{sP}, {32*3072}\ns_add_u32 s{sD1}, s{sD1}, s{t1}\ns_lshl_b32 s{t1}, s{sI}, 10\ns_add_u32 s{sD1}, s{sD1}, s{t1}\ns_add_u32 s{sD1}, s{sD1}, 1024")
    elif kind == "q":
        a(f"s_mul_i32 s{sD1}, s{sS}, {32*3072}\ns_add_u32 s{sD1}, s{sD1}, s{t1}")
    else:
        a(f"s_lshl_b32 s{sD1}, s{sS}, 15\ns_add_u32 s{sD1}, s{sD1}, s{t1}")
def dma_one(c, n):
    if n == 0 and c in (8, 12): dma_base("q" if c == 8 else "o")
    if c < 8:   srdw, vo, base, step = sWB, vD3, c * 64 * 3072, 8 * 3072
    elif c < 12: srdw, vo, base, step = sWB, vD3, (c - 8) * 128 * 3072, 8 * 3072
    else:       srdw, vo, base, step = sWOB if c < 16 else sWOA, vD1, (c % 4) * 128 * 1024, 8 * 1024
    a(f"s_add_u32 m0, s{sD0}, {STG[c] + n*1024}\ns_add_u32 s{t1}, s{sD1}, {base + n*step}")
    a(f"buffer_load_dwordx4 v{vo}, {sr(srdw,4)}, s{t1} offen lds")
    VM.issue(("st", c)); issued.add((c, n))
issued = set()
def dma_stage(c):
    for n in range(4): dma_one(c, n)
def rd_w(dst, vaddr, off, second, tag=None):
    a(f"ds_read_b64_tr_b16 {vr(dst,2)}, v{vaddr} offset:{off}\nds_read_b64_tr_b16 {vr(dst+2,2)}, v{vaddr} offset:{off+second}")
    LG.issue(tag, 2)
def rd_stage(dst, c, k, tag):
    if STG[c] < OP: rd_w(dst, vWX, STG[c] + k * 2048, 512, tag)
    else: rd_w(dst, vWP, STG[c] - WQB + k * 2048, 512, tag)

a(".p2align 6\nL_sw:")
ids()
a(f"""s_setprio 2
s_and_b32 s{sS}, s{sW}, 3
s_lshr_b32 s{sI}, s{sS}, 1
s_and_b32 s{sP}, s{sS}, 1""")
dma_lane_addrs()
SCP = R1
SCV = R2
assert SCP % 64 == 0 and X == 0
a(f"""v_and_b32 v11, 31, v0
s_lshl_b32 s{t0}, s{sI}, 5
v_add_u32 v13, s{t0}, v11
v_mul_u32_u24 v{vXA}, {XS}, v13
v_lshrrev_b32 v12, 5, v0
v_lshl_add_u32 v{vXA}, v12, 4, v{vXA}
v_and_b32 v13, 15, v0
v_lshrrev_b32 v16, 2, v13
v_lshlrev_b32 v14, 7, v16
v_lshrrev_b32 v15, 3, v13
v_xor_b32 v15, s{sP}, v15
v_lshl_add_u32 v14, v15, 6, v14
v_bfe_u32 v17, v0, 4, 1
v_lshl_add_u32 v14, v17, 5, v14
v_and_b32 v18, 3, v0
v_lshl_add_u32 v14, v18, 3, v14
v_lshl_add_u32 v{vWX}, v12, 10, v14
v_lshl_add_u32 v{vWOA}, v12, 9, v14
v_add_u32 v{vWP}, {WQB}, v{vWX}
v_add_u32 v{vWO}, {RING}, v{vWOA}
v_mov_b32 v{vONE}, 1
v_mov_b32 v{vSY}, {SYNC}
v_lshlrev_b32 v{vL4}, 2, v0
v_min_u32 v15, 16, v11
v_mad_u32_u24 v{vLI}, v12, 20, v15
v_lshlrev_b32 v{vLI}, 4, v{vLI}
v_mul_u32_u24 v15, {32*PREC}, v12
v_lshl_add_u32 v{vPR}, v11, 4, v15
v_lshl_add_u32 v{vKS}, v12, 7, v{vL4}
s_lshl_b32 s{t0}, s{sRB}, 10
v_and_b32 v{vPF}, 7, v0
v_lshlrev_b32 v{vPF}, 7, v{vPF}
v_add_u32 v{vPF}, s{t0}, v{vPF}
s_lshl_b32 s{t0}, s{sHG}, 7
v_lshlrev_b32 v{vPC}, 10, v11
v_add_u32 v{vPC}, s{t0}, v{vPC}
v_bfe_u32 v14, v0, 1, 3
v_xor_b32 v14, v14, v12
v_lshlrev_b32 v14, 3, v14
v_lshl_add_u32 v14, v11, 6, v14
s_lshl_b32 s{t0}, s{sI}, 11
s_lshl_b32 s{t1}, s{sP}, 13
s_add_u32 s{t0}, s{t0}, s{t1}
s_add_u32 s{t0}, s{t0}, {SCP}
v_add_u32 v{vSW}, s{t0}, v14
v_xor_b32 v{vSW+1}, 16, v{vSW}
v_xor_b32 v{vSW+2}, 32, v{vSW}
v_xor_b32 v{vSW+3}, 48, v{vSW}
v_lshl_add_u32 v15, v12, 2, v16
v_lshrrev_b32 v14, 1, v15
v_lshl_add_u32 v19, v17, 2, v18
v_xor_b32 v14, v14, v19
v_lshlrev_b32 v14, 3, v14
v_lshl_add_u32 v15, v15, 6, v14
s_lshl_b32 s{t3}, s{sP}, 1
s_add_u32 s{t3}, s{t3}, s{sI}
s_lshl_b32 s{t0}, s{t3}, 12
s_add_u32 s{t0}, s{t0}, {SCP}
v_add_u32 v{vSR}, s{t0}, v15
v_xor_b32 v{vSR2}, 32, v{vSR}
s_lshl_b32 s{t0}, s{sS}, 11
s_add_u32 s{t0}, s{t0}, {SCV}
v_add_u32 v{vSV}, s{t0}, v{vL16}
v_lshlrev_b32 v14, 4, v13
v_lshl_add_u32 v14, v12, 9, v14
s_lshl_b32 s{t0}, s{sP}, 11
s_lshl_b32 s{t1}, s{sI}, 8
s_add_u32 s{t0}, s{t0}, s{t1}
s_add_u32 s{t0}, s{t0}, {SCV}
v_add_u32 v{vSVR}, s{t0}, v14
v_lshrrev_b32 v14, 1, v18
v_lshl_add_u32 v14, v17, 1, v14
v_lshlrev_b32 v14, 3, v14
v_lshl_add_u32 v{FOUT}, v16, 5, v14
v_lshl_add_u32 v{FOUT}, v12, 7, v{FOUT}
s_lshl_b32 s{t0}, s{sP}, 10
s_add_u32 s{t0}, s{t0}, {WPHI}
v_add_u32 v{FOUT}, s{t0}, v{FOUT}
v_lshlrev_b32 v{FOUT+1}, 31, v16
v_or_b32 v{FOUT+1}, {hex(LOG2E)}, v{FOUT+1}
s_lshl_b32 s{t0}, s{sS}, 11
s_add_u32 s{t0}, s{t0}, {Q}
v_add_u32 v{FOUT+2}, s{t0}, v{vL16}
s_lshl_b32 s{sD0}, s{sS}, 12""")
a("s_waitcnt lgkmcnt(0)")
srd(sWS, pWS, WS_SIZE); srd(sWB, pWQKV, 0x180000); srd(sWOA, pWOA, 0x80000); srd(sWOB, pWOB, 0x80000); srd(sOUT, pOUT, 0x200000)
dma_base("kv")
if SPF:
    a(f"""s_lshr_b32 s{t0}, s2, 2
    s_mul_i32 s{t0}, s{t0}, 3072
    s_and_b32 s{t1}, s2, 3
    s_lshl_b32 s{t1}, s{t1}, 2
    s_add_u32 s{t1}, s{t1}, s{sS}
    s_lshl_b32 s{t1}, s{t1}, 7
    s_add_u32 s{t0}, s{t0}, s{t1}
    s_add_u32 s{t0}, s{t0}, 1024
    s_add_u32 s{sSM}, s{pWQKV}, s{t0}
    s_addc_u32 s{sSM+1}, s{pWQKV+1}, 0
    s_add_u32 s{sSM+2}, s{sSM}, {4*64*3072}
    s_addc_u32 s{sSM+3}, s{sSM+1}, 0""")
SWQ = os.environ.get("SWQ", "")
def swq(groups):
    for g_ in groups:
        for n in range(16): a(f"s_load_dword s96, s[{sWKV}:{sWKV+1}], {int(g_)*131072 + (n//2)*1024 + (n%2)*64}")
if SWQ:
    assert MAP == 1
    a(f"""s_and_b32 s{t0}, s{sRB}, 3
    s_lshl_b32 s{t0}, s{t0}, 2
    s_add_u32 s{t0}, s{t0}, s{sS}
    s_lshl_b32 s{t0}, s{t0}, 13
    s_lshl_b32 s{t1}, s{sHG}, 7
    s_add_u32 s{t0}, s{t0}, s{t1}
    s_add_u32 s{sWKV}, s{pWQ}, s{t0}
    s_addc_u32 s{sWKV+1}, s{pWQ+1}, 0""")
    swq(SWQ.split("/")[0])
stamp(0)
a("s_barrier")
if SWQ: swq(SWQ.split("/")[1])
def spf(k):
    for n in range(k): a(f"s_load_dword s96, s[{sSM + 2*(n//8)}:{sSM + 2*(n//8) + 1}], {((n//2) % 4)*64*3072 + 64*(n%2)}")
if SPF == 1: spf(15)
a("s_barrier")
stamp(1)
for hh in range(2): rd_w(WPH + 4 * hh, FOUT, hh * 512, 256, "x")
xn = [0]
def xread(k):
    for _ in range(k):
        if xn[0] < 32:
            a(f"ds_read_b128 {vr(XF+4*xn[0],4)}, v{vXA} offset:{xn[0]*32}"); LG.issue("x"); xn[0] += 1
xread(4 if XJ else 32)
DQ = 3
def qreads(ks):
    if ks % 8 == 0 and (ks or not G0H): chk_test(W_G + ks // 8, 2, near=bool(E('NEAR', 1)))
    rd_w(WR + 4 * (ks % 8), vWP, ((ks + 8) % 32) * 2048, 512, ("w", ks))
    if ks % 8 == 6 and ks < 24: chk_read(W_G + ks // 8 + 1)
edq = [] if NOB else [(c, n) for c in range(NST) for n in range(4)]
if not G0H: chk_read(W_G)
for ks in range(DQ): qreads(ks)
for ks in range(32):
    xread(XJ)
    if ks + DQ < 32: qreads(ks + DQ)
    wait(lg=("w", ks))
    a(f"v_mfma_f32_32x32x16_bf16 {vr(ACC,16)}, {vr(WR+4*(ks%8),4)}, {vr(XF+4*ks,4)}, {'0' if ks == 0 else vr(ACC,16)}")
    if ks == PKS: arrive(W_P)
    xs(f"q{ks}")
    if ks == 2: wx = arrive()
    if ks == 21: chk_read(wx)
    if ks == 22: chk_test(wx)
a(f"s_mov_b32 s{t1}, {hex(QSCALE)}\ns_mov_b32 s{t2}, {hex(QSCALE)}")
for r in range(0, 16, 2): a(f"v_pk_mul_f32 {vr(ACC+r,2)}, {vr(ACC+r,2)}, s[{t1}:{t2}]")
for r in range(8): a(f"v_cvt_pk_bf16_f32 v{PHQ+r}, v{ACC+2*r}, v{ACC+2*r+1}")
a(f"""ds_write_b128 v{FOUT+2}, {vr(PHQ,4)}
ds_write_b128 v{FOUT+2}, {vr(PHQ+4,4)} offset:1024""")
arrive(W_Q)
stamp(2)
if SPF == 2: spf(16)
for r in range(8):
    a(f"""v_lshlrev_b32 v14, 16, v{WPH+r}
    v_and_b32 v15, 0xffff0000, v{WPH+r}
    v_mul_f32 v14, v14, v{FOUT+1}
    v_mul_f32 v15, v15, v{FOUT+1}
    v_cvt_pk_bf16_f32 v{WPH+r}, v14, v15""")
if SPF == 3:
    check(W_P, E("SPN", 4), nap=2); spf(16)
if SP2:
    a(f"""s_lshl_b32 s{t0}, s2, 2
    s_add_u32 s{t0}, s{t0}, s{sS}
    s_lshl_b32 s{t0}, s{t0}, 9
    s_lshr_b32 s{t1}, s{t0}, 10
    s_lshl_b32 s{t1}, s{t1}, 11
    s_add_u32 s{t1}, s{t1}, s{t0}""")
    for (q_, o_) in ((sWB, t1), (sWOB, t0), (sWOA, t0))[:SP2]:
        a(f"s_add_u32 s{sX}, s{q_}, s{o_}\ns_addc_u32 s{sX+1}, s{q_+1}, 0")
        for n in range(8): a(f"s_load_dword s96, s[{sX}:{sX+1}], {64*n}")
DA = 2
def rd_a(n):
    rd_stage(WR + 8 * (n % 4), n // 4, n % 4, ("w", n)); rd_stage(WR + 8 * (n % 4) + 4, n // 4, 4 + n % 4, ("w", n))
def wgemm(items, slots, ahead, events=None, pre=None, extra=None, primed=0):
    N = len(items); events = events or {}; pre = pre or {}
    def rd(i):
        for f in pre.get(i, []): f()
        if items[i][0]: items[i][0](slots[i % len(slots)], ("w", i))
    assert ahead + PW <= len(slots)
    for i in range(primed, min(ahead, N)): rd(i)
    a("s_setprio 0")
    for g0 in range(0, N, PW):
        grp = list(range(g0, min(g0 + PW, N)))
        lgs = [i for i in grp if items[i][0]]
        wait(vm=items[grp[-1]][2], lg=("w", lgs[-1]) if lgs else None)
        for i in grp:
            t = items[i][1](slots[i % len(slots)])
            if PUSH and i == g0 + 2: a(f"s_setprio 2\n{t}\ns_setprio 0")
            else: a(t)
        for i in grp:
            if i + ahead < N: rd(i + ahead)
        for i in grp:
            if extra: extra(i)
            for f in events.get(i, []): f()
    a("s_setprio 2")
def mm_a(n, mid=None):
    wait(lg=("w", n))
    w = WR + 8 * (n % 4)
    em = a
    em(f"v_mfma_f32_32x32x16_bf16 {vr(ACC,16)}, {vr(w,4)}, {vr(XF+4*n,4)}, {'0' if n == 0 else vr(ACC,16)}")
    if mid: mid()
    em(f"v_mfma_f32_32x32x16_bf16 {vr(AC2,16)}, {vr(XF+4*n,4)}, {vr(w+4,4)}, {'0' if n == 0 else vr(AC2,16)}")
a(f"""v_and_b32 v13, 124, v{vL4}
s_lshl_b32 s{t2}, s{sRB}, 9
s_add_u32 s{t2}, s{t2}, {WS_G}
s_lshl_b32 s{t1}, s{sI}, 7
s_add_u32 s{t2}, s{t2}, s{t1}
s_xor_b32 s{t3}, s{t2}, 128""")
check(W_KV, 4, nap=2)
xs("a13")
if ST0 and not NOB: dma_stage(0)
a(f"""v_mov_b32 v14, {NONCE}
ds_read_b32 v{vNON}, v14
buffer_load_dword v{vGI}, v13, {sr(sWS,4)}, s{t2} offen sc1
buffer_load_dword v{vGO}, v13, {sr(sWS,4)}, s{t3} offen sc1""")
VM.issue("g", 2)
def gates():
    for d in (vGI, vGO):
        a(f"v_mul_f32 v{d}, {hex(LOG2E | 0x80000000)}, v{d}\nv_exp_f32 v{d}, v{d}\nv_add_f32 v{d}, 1.0, v{d}\nv_rcp_f32 v{d}, v{d}")
if NOB:
    wait(vm="g"); gates()
    a(f"s_mov_b32 s{sJ}, s{sS}"); call_fin(vGI)
    stamp(4)
    a(f"s_add_u32 s{sJ}, s{sS}, 4"); call_fin(vGI)
    stamp(5)
    diag_dump(13)
    a("s_endpgm")
NST = 0; N1 = 0
for c in range(ST0, 3): dma_stage(c)
a("v_lshlrev_b32 v13, 7, v0")
def wot():
    if SP2 == 3: return
    a(f"""s_lshl_b32 s{t0}, s2, 2
    s_add_u32 s{t0}, s{t0}, s{sS}
    s_lshl_b32 s{t0}, s{t0}, 9
    s_mov_b64 exec, 15
    buffer_load_dword v{vT2}, v13, {sr(sWOA,4)}, s{t0} offen""")
    if SP2 < 2: a(f"buffer_load_dword v{vT2}, v13, {sr(sWOB,4)}, s{t0} offen")
    if SP2 < 1: a(f"""s_lshr_b32 s{t1}, s{t0}, 10
    s_lshl_b32 s{t1}, s{t1}, 11
    s_add_u32 s{t0}, s{t0}, s{t1}
    buffer_load_dword v{vT2}, v13, {sr(sWB,4)}, s{t0} offen""")
    a("s_mov_b64 exec, -1")
    VM.issue("wot", 3 - SP2)
wait(vm=("st", NST)); w = arrive()
wait(vm="g"); gates()
check(w)
a(f"""v_readfirstlane_b32 s{sNON}, v{vNON}
s_getreg_b32 s{sL2E}, hwreg(HW_REG_XCC_ID)
s_mov_b32 s{sFAR}, 64
v_writelane_b32 v{vNON}, s{sL2E}, 1""")
stamp(3)
FIL = FOUT
def kvf_addr():
    a(f"""s_and_b32 s{t0}, s{sRB}, 3
    s_lshl_b32 s{t1}, s{sHG}, 2
    s_add_u32 s{t0}, s{t0}, s{t1}
    s_lshl_b32 s{t0}, s{t0}, 2
    s_lshr_b32 s{t1}, s{sRB}, 3
    s_add_u32 s{t0}, s{t0}, s{t1}
    s_lshl_b32 s{t0}, s{t0}, 9
    s_and_b32 s{t1}, s{sRB}, 4
    s_lshl_b32 s{t1}, s{t1}, 5
    s_add_u32 s{t0}, s{t0}, s{t1}
    s_add_u32 s{t0}, s{t0}, {WS_KVF}""")
for r in range(4): a(f"v_mov_b32 v{FIL+r}, -1")
a(f"""s_lshl_b32 s{sPF}, s{sRB}, 2
s_add_u32 s{sPF}, s{sPF}, s{sS}
s_lshl_b32 s{sPF}, s{sPF}, 15
s_lshl_b32 s{t1}, s{sHG}, 12
s_add_u32 s{sPF}, s{sPF}, s{t1}
s_add_u32 s{sPF}, s{sPF}, {WS_O}""")
def filler(r):
    if r < 4: a(f"buffer_store_dwordx4 {vr(FIL,4)}, v{vL16}, {sr(sWS,4)}, s{sPF} offen offset:{r*1024} sc1"); VM.issue("fil")
    else:
        with only(sS, 2):
            kvf_addr()
            a(f"buffer_store_dword v{FIL}, v{vKS}, {sr(sWS,4)}, s{t0} offen sc1")
SL = [WR + 4 * n for n in range(8)] + [PHQ + 4 * n for n in range(4)]
AH = 6
its = []
for n in range(N1, 32):
    its.append((lambda d, tg, n=n: rd_stage(d, n // 4, n % 4, tg), lambda w_, n=n: f"v_mfma_f32_32x32x16_bf16 {vr(ACC,16)}, {vr(w_,4)}, {vr(XF+4*n,4)}, {vr(ACC,16) if n else 0}", None))
    its.append((lambda d, tg, n=n: rd_stage(d, n // 4, 4 + n % 4, tg), lambda w_, n=n: f"v_mfma_f32_32x32x16_bf16 {vr(AC2,16)}, {vr(XF+4*n,4)}, {vr(w_,4)}, {vr(AC2,16) if n else 0}", None))
pre, tested = {}, set(range(NST))
cur = {}
for c in range(NST + 1, 9):
    i0_ = 8 * (c - NST)
    def arr(c=c):
        if c < 8: wait(vm=("st", c + 1 if (G2 and c >= 2) else c))
        cur[c] = arrive()
    def tst(c=c): chk_test(cur[c], lowprio=True); tested.update((c - 2, c - 3))
    if c < 8 and not (G2 and c >= 3 and c % 2):
        pre.setdefault(max(i0_ - PW - 2, AH), []).append(arr)
        pre.setdefault(max(i0_ - 2, AH), []).append(lambda c=c: chk_read(cur[c]))
        pre.setdefault(i0_, []).append(tst)
dq = [(c, n) for c in range(NST + 3, 12) for n in range(4)]
def dma_next(i):
    if dq:
        prev = [k for k in range(dq[0][0]) if STG[k] == STG[dq[0][0]]]
        if not prev or prev[-1] in tested: dma_one(*dq.pop(0))
ev = {len(its) - AH - 1: [arr]}
if WOT: ev.setdefault(WOTAT, []).append(wot)
if FILE_:
    for r in range(5): ev.setdefault(FILE_ + E("FILS", 8) * r, []).append(lambda r=r: filler(r))
wgemm(its, SL, AH, pre=pre, extra=lambda i: dma_next(i) if (i % 3 != 2 or G2) else None, events=ev)
assert not dq
w = cur[8]
stamp(4)

far = []
def features(B, W, out, D, tm):
    def mm(): a(f"v_mfma_f32_32x32x16_bf16 {vr(D,16)}, {vr(W,4)}, {vr(B,4)}, 0")
    def shift():
        a(f"v_max_f32 v{tm}, v{D}, v{D+1}")
        for r in range(2, 16, 2): a(f"v_max3_f32 v{tm}, v{tm}, v{D+r}, v{D+r+1}")
        for r in range(0, 16, 2): a(f"v_pk_add_f32 {vr(D+r,2)}, {vr(D+r,2)}, {vr(tm,2)} op_sel_hi:[1,0] neg_lo:[0,1] neg_hi:[0,1]")
    def expsum():
        for r in range(16): a(f"v_exp_f32 v{D+r}, v{D+r}")
        a(f"v_pk_add_f32 {vr(tm,2)}, {vr(D,2)}, {vr(D+2,2)}\nv_pk_add_f32 {vr(tm+2,2)}, {vr(D+4,2)}, {vr(D+6,2)}")
        for r in range(8, 16, 2): a(f"v_pk_add_f32 {vr(tm+r%4,2)}, {vr(tm+r%4,2)}, {vr(D+r,2)}")
        a(f"v_pk_add_f32 {vr(tm,2)}, {vr(tm,2)}, {vr(tm+2,2)}\nv_add_f32 v{tm}, v{tm}, v{tm+1}")
    mm()
    if not NOMAX: shift()
    expsum()
    if NOMAX:
        fb, bk = a.lab("ff"), a.lab("ffb")
        a(f"v_subrev_u32 v{tm+1}, {hex((127-40)<<23)}, v{tm}\nv_cmp_lt_u32 vcc, {hex(100<<23)}, v{tm+1}\ns_cbranch_vccnz {fb}")
        if FORCE_FF: a(f"s_branch {fb}")
        a(f"{bk}:")
        def slow():
            a(f"{fb}:"); mm(); shift(); expsum(); a(f"s_branch {bk}")
        far.append(slow)
    a(f"v_rcp_f32 v{tm}, v{tm}")
    for r in range(0, 16, 2): a(f"v_pk_mul_f32 {vr(D+r,2)}, {vr(D+r,2)}, {vr(tm,2)} op_sel_hi:[1,0]")
    for r in range(8): a(f"v_cvt_pk_bf16_f32 v{out+r}, v{D+2*r}, v{D+2*r+1}")

KB, VB, DD, TM, PH = PHQ, PHQ + 8, WR, WR + 16, WR + 24
chk_read(w)
a(f"""s_lshl_b32 s{t3}, s{sP}, 1
s_add_u32 s{t3}, s{t3}, s{sI}
s_lshl_b32 s{t2}, s{sHG}, 2
s_add_u32 s{t2}, s{t2}, s{t3}
s_lshl_b32 s{t2}, s{t2}, 8
s_add_u32 s{t2}, s{t2}, s{sRB}
s_mul_i32 s{t4}, s{t2}, {PREC}
s_add_u32 s{t4}, s{t4}, {WS_PART}""")
for r in range(8): a(f"v_cvt_pk_bf16_f32 v{KB+r}, v{ACC+2*r}, v{ACC+2*r+1}")
for r in range(8): a(f"v_cvt_pk_bf16_f32 v{VB+r}, v{AC2+2*r}, v{AC2+2*r+1}")
chk_test(w)
xs("k1")
a(f"ds_write_b128 v{vSV}, {vr(VB,4)}\nds_write_b128 v{vSV}, {vr(VB+4,4)} offset:1024")
dma_stage(12)
for hh in range(2):
    features(KB + 4 * hh, WPH + 4 * hh, PH, DD, TM)
    for aa in range(4): a(f"ds_write_b64 v{vSW+aa}, {vr(PH+2*aa,2)} offset:{hh*4096}")
    xs(f"k3{hh}")
wait(vm=("st", 12)); w = arrive()
KA, KBv, KD = WR, AC2, ACC
a(f"s_mov_b32 s{t1}, {hex(ONES)}\ns_mov_b32 s{t2}, {hex(ONES)}")
for r in range(0, 16, 2): a(f"v_mov_b64 {vr(KBv+r,2)}, s[{t1}:{t2}]")
check(w)
xs("k4")
for u in range(4):
    a(f"ds_read_b64_tr_b16 {vr(KA+4*u,2)}, v{vSR} offset:{u*1024}\nds_read_b64_tr_b16 {vr(KA+4*u+2,2)}, v{vSR2} offset:{u*1024+512}")
a(f"s_mov_b32 exec_lo, 0xffff\ns_mov_b32 exec_hi, 0xffff")
for u in range(4):
    a(f"ds_read_b128 {vr(KBv+4*u,4)}, v{vSVR} offset:{(u//2)*4096 + (u%2)*1024}")
a("s_mov_b64 exec, -1")
LG.issue("kv", 12)
SL = [WR + 16 + 4 * n for n in range(4)] + [PHQ + 4 * n for n in range(4)] + [WR + 4 * n for n in range(4)]
wait(lg="kv")
for u in range(4):
    a(f"v_mfma_f32_32x32x16_bf16 {vr(KD,16)}, {vr(KA+4*u,4)}, {vr(KBv+4*u,4)}, {'0' if u == 0 else vr(KD,16)}")
if not FILE_:
    for r in range(5): filler(r)
a(f"s_mov_b32 exec_lo, 0xfffff\ns_mov_b32 exec_hi, 0xfffff")
for e in range(4):
    a(f"buffer_store_dwordx4 {vr(KD+4*e,4)}, v{vPR}, {sr(sWS,4)}, s{t4} offen sc1"); VM.issue("part")
    if e < 3: a(f"s_add_u32 s{t4}, s{t4}, {64*PREC}")
a("s_mov_b64 exec, -1")
stamp(5)
dq = [(c, n) for c in (13, 14, 17, 18, 19)[:2 + EARLYA] for n in range(4)]
its = [(lambda d, tg, n=n: rd_stage(d, 8 + n // 8, n % 8, tg),
        lambda w_, n=n: f"v_mfma_f32_32x32x16_bf16 {vr(AC2,16)}, {vr(w_,4)}, {vr(XF+4*n,4)}, {'0' if n == 0 else vr(AC2,16)}", None) for n in range(32)]
def e1(): wait(vm="part"); cur["p"] = arrive()
def e2():
    chk_read(cur["p"]); chk_test(cur["p"], lowprio=True)
    with only(sS, 2): flag(F_F2)
def e5():
    if WAT:
        a(f"""s_and_b32 s{t0}, s{sRB}, 3
        s_lshl_b32 s{t0}, s{t0}, 2
        s_add_u32 s{t0}, s{t0}, s{sS}
        s_lshl_b32 s{t0}, s{t0}, 15
        s_mov_b32 exec_hi, 0
        buffer_load_dword v250, v{vPC}, {sr(sWOA,4)}, s{t0} offen
        s_mov_b32 exec_hi, -1""")
        VM.issue("wat")
def e3():
    with only(sS, 2): poll_issue(vPC, vT2, F_F2)
    with only(sS, 0): poll_issue(vPF, vPO, F_F2, 2)
def fin(j, g): a(f"s_mov_b32 s{sJ}, {j}"); call_fin(g)
def fins012():
    with only(sI, 0): fin(f"s{sP}", vGI)
    with only(sS, 3): fin(2, vGO)
FMID = E("FMID", 1)
def e4():
    if FMID: a("s_setprio 2"); fins012(); a("s_setprio 0")
RD = TMP + (16 if RAT else 64)
def red_loads():
    with only(sS, 2):
        if RAT: a("s_setprio 2")
        a("s_waitcnt vmcnt(0)")
        poll_check(vPC, vT2, F_F2)
        xs("r1")
        if RAT: a("s_setprio 0")
        a(f"""s_and_b32 s{t3}, s{sRB}, 3
        s_lshl_b32 s{t0}, s{sHG}, 2
        s_add_u32 s{t3}, s{t0}, s{t3}
        s_lshl_b32 s{t0}, s{t3}, 3
        s_lshr_b32 s{t2}, s{sRB}, 2
        s_add_u32 s{t0}, s{t0}, s{t2}
        s_mul_i32 s{t0}, s{t0}, {32*PREC}
        s_add_u32 s{t0}, s{t0}, {WS_PART}""")
        for n in range(16):
            if n and n % 4 == 0: a(f"s_add_u32 s{t0}, s{t0}, {8*PREC}")
            a(f"buffer_load_dwordx4 {vr(RD+4*n,4)}, v{vLI}, {sr(sWS,4)}, s{t0} offen offset:{(n%4)*2*PREC} sc1")
ok19 = []
def e6(): cur["x3"] = arrive()
def e7(): chk_read(cur["x3"]); chk_test(cur["x3"], lowprio=True); ok19.append(1)
def dma_b(i):
    for _ in range(2 if len(dq) > 31 - i else 1):
        if i > 13 and dq and (dq[0][0] != 19 or ok19): dma_one(*dq.pop(0))
ev = {E('E1', 9): [e1], E('E2', 12): [e2], 15: [e4], (RAT - 5 if RAT else 27): [e3]}
if RAT:
    assert RED1 and RAT >= 21; ev[RAT] = [red_loads]
if EARLYA == 3: ev[17] = [e6]; ev[28] = [e7]
wgemm(its, SL, AH, events=ev, extra=dma_b)
assert not dq
vWA0, vWA1, vWB0, vWB1 = vXA, vWX, vWO, vWP
a(f"""s_lshl_b32 s{t0}, s{sP}, 13
v_add_u32 v{vWA0}, s{t0}, v{vWOA}
v_xor_b32 v{vWA1}, 64, v{vWA0}
v_add_u32 v{vWB0}, s{t0}, v{vWO}
v_xor_b32 v{vWB1}, 64, v{vWB0}""")
assert RING % 128 == 0 and STG[12] == 0
for k in range(8): rd_w(WB0 + 4 * k, (vWA0, vWA1)[k % 2], (k // 2) * 2048, 1024, "wb0")
stamp(6)
KB, DD, TM = TMP, TMP + 16, TMP + 32
if not RAT: red_loads()
xs("r2")
if not FMID: fins012()
for r in range(8): a(f"v_cvt_pk_bf16_f32 v{KB+r}, v{AC2+2*r}, v{AC2+2*r+1}")
if not RED1: features(KB, WPH, PHQ, DD, TM)
with only(sS, 2):
    kvf_addr()
    a("s_waitcnt vmcnt(0)")
    st = 16
    while st >= 2:
        for n in range(st):
            if st >= NPK: a(f"v_pk_add_f32 {vr(RD+2*n,2)}, {vr(RD+2*n,2)}, {vr(RD+2*(n+st),2)}")
            else: a(f"v_add_f32 v{RD+2*n}, v{RD+2*n}, v{RD+2*(n+st)}\nv_add_f32 v{RD+2*n+1}, v{RD+2*n+1}, v{RD+2*(n+st)+1}")
        st //= 2
    a(f"""v_permlane32_swap_b32 v{RD}, v{RD+2}
    v_permlane32_swap_b32 v{RD+1}, v{RD+3}
    v_add_f32 v{RD}, v{RD}, v{RD+2}
    v_add_f32 v{RD+1}, v{RD+1}, v{RD+3}
    v_cvt_pk_bf16_f32 v15, v{RD}, v{RD+1}
    v_min_u32 v15, -2, v15
    buffer_store_dword v15, v{vKS}, {sr(sWS,4)}, s{t0} offen sc1""")
xs("r3")
if RED1: features(KB, WPH, PHQ, DD, TM)
with only(sS, 0):
    a("s_waitcnt vmcnt(0)"); poll_check(vPF, vPO, F_F2, n=2)
    l_ = a.lab("near")
    a(f"v_cmp_ne_u32 vcc, s{sL2E}, v{vPO+1}\ns_cbranch_vccz {l_}"); arrive(W_FAR); a(f"{l_}:")
w = arrive()
features(KB + 4, WPH + 4, PHQ + 8, DD, TM)
stamp(7)
with only(sS, 3): fin(3, vGO)
with only(sS, 2): a(f"v_add_u32 v13, {G1}, v{vL4}\nds_write_b32 v13, v{vGI}")
xs("l1")
check(w, nap=1)
xs("l2")
chk_read(W_FAR)
dma_stage(15)
wait(lg="chk")
a(f"v_readfirstlane_b32 s{t0}, v{vT}\ns_cmp_eq_u32 s{t0}, 0\ns_cselect_b32 s{sFAR}, {NEARJ}, 64")
def woa_dma():
    for c in range(16, 20):
        if (c, 0) not in issued: dma_stage(c)
assert not DMAAT
if not DMAAT: woa_dma()
xs("l3")
if not F4L:
    with only(sS, 1): fin(4, vGO)
def take(loads, regs, nap, issued=False, before=None, landed=False):
    lp, dn, l2 = a.lab("tk"), a.lab("tkd"), a.lab("tkw")
    if issued: a(f"s_branch {l2}")
    a(f"{lp}:")
    if before: before()
    loads()
    a(f"s_waitcnt vmcnt(0)\n{l2}:" if landed else f"{l2}:\ns_waitcnt vmcnt(0)")
    a(f"v_max_u32 v{vT}, v{regs[0]}, v{regs[1]}")
    for k in range(2, len(regs), 2): a(f"v_max3_u32 v{vT}, v{vT}, v{regs[k]}, v{regs[k+1]}")
    a(f"v_cmp_eq_u32 vcc, -1, v{vT}\ns_cbranch_vccz {dn}")
    budget(dn)
    if nap: a(f"s_sleep {nap}")
    a(f"s_branch {lp}\n{dn}:")
a(f"""s_lshl_b32 s{t3}, s{sHG}, 2
s_lshl_b32 s{t1}, s{sP}, 1
s_add_u32 s{t3}, s{t3}, s{t1}
s_mul_i32 s{t4}, s{t3}, {KVF_STRIDE}
s_add_u32 s{t4}, s{t4}, {WS_KVF}
s_lshl_b32 s{sPF}, s{sRB}, 1
s_add_u32 s{sPF}, s{sPF}, s{sI}
s_lshl_b32 s{sPF}, s{sPF}, 16
s_add_u32 s{sPF}, s{sPF}, {WS_O}
s_lshl_b32 s{t3}, s{t3}, 10
s_add_u32 s{t3}, s{t3}, s{sPF}
s_add_u32 s{t3}, s{t3}, 32768
v_sub_f32 v15, 1.0, v{vGI}""")
def steps_a(hs, reg): return [(h * 1024, ((vWA0, vWA1), h * 2048), reg + 4 * k) for k, h in enumerate(hs)]
def steps_b(reg):
    o = []
    for k, h in enumerate(8 * m + r for m in range(4) for r in range(4)):
        o.append((32768 + h * 1024, WB0 + 8 * k if k < 4 else ((vWB0, vWB1), STG[12 + h // 8] - RING + (h % 8) * 2048), reg + 4 * k))
    return o
def rec_loads(steps, base):
    for k, (ro, _, reg) in enumerate(steps):
        hi, lo = ro & ~4095, ro & 4095
        if k == 0 or hi != (steps[k-1][0] & ~4095): a(f"s_add_u32 s{t1}, s{base}, {hi}")
        a(f"buffer_load_dwordx4 {vr(reg,4)}, v{vL16}, {sr(sWS,4)}, s{t1} offen offset:{lo} sc1")
OBT = TMP + 64
a(f"s_mov_b32 s{sD0}, s{sPF}\ns_lshl_b32 s{t0}, s{sP}, 12\ns_add_u32 s{sD1}, s{sD0}, s{t0}")
sa = steps_a([8 * m + r for m in range(4) for r in range(4)], TMP)
if SAE:
    with only(sI, 0): rec_loads(sa, sD1)
def kvf_loads():
    for r in range(16): a(f"buffer_load_dword v{OBT+r}, v{vL4}, {sr(sWS,4)}, s{t4} offen offset:{r*256} sc1")
take(kvf_loads, list(range(OBT, OBT + 16)), E("KNAP", 6))
if not DMAAT: arrive(W_OB)
stamp(8)
for hh in range(2):
    D = OBT + 16 + 16 * hh
    a(f"v_mfma_f32_32x32x16_bf16 {vr(D,16)}, {vr(OBT+8*hh,4)}, {vr(PHQ+8*hh,4)}, 0")
    a(f"v_mfma_f32_32x32x16_bf16 {vr(D,16)}, {vr(OBT+8*hh+4,4)}, {vr(PHQ+8*hh+4,4)}, {vr(D,16)}")
for hh in range(2):
    D = OBT + 16 + 16 * hh
    a(f"v_add_f32 v{D+8}, 0x358637bd, v{D+8}\nv_rcp_f32 v{D+8}, v{D+8}\nv_mul_f32 v{D+8}, v{D+8}, v15")
    for r in range(0, 8, 2): a(f"v_pk_mul_f32 {vr(D+r,2)}, {vr(D+r,2)}, {vr(D+8,2)} op_sel_hi:[1,0]")
    for r in range(4): a(f"v_cvt_pk_bf16_f32 v{D+12+r}, v{D+2*r}, v{D+2*r+1}")
    a(f"v_min_u32 v{D+12}, -2, v{D+12}")
    if NEARB:
        l1, l2 = a.lab("st"), a.lab("st")
        a(f"s_cmp_lt_u32 s{sFAR}, 64\ns_cbranch_scc1 {l1}")
    a(f"buffer_store_dwordx4 {vr(D+12,4)}, v{vL16}, {sr(sWS,4)}, s{t3} offen offset:{hh*1024} sc1")
    if NEARB: a(f"s_branch {l2}\n{l1}:\nbuffer_store_dwordx4 {vr(D+12,4)}, v{vL16}, {sr(sWS,4)}, s{t3} offen offset:{hh*1024}\n{l2}:")
wo = arrive()
a(f"""v_bfe_u32 v13, v0, 2, 2
v_and_b32 v14, 3, v0
v_lshl_add_u32 v13, v13, 3, v14
v_lshlrev_b32 v{vPO}, 10, v13""")
stamp(9)
if DMAAT:
    check(wo, nap=1)
    woa_dma()
def probe(off, va=None):
    lp, dn = a.lab("pb"), a.lab("pbd")
    a(f"""s_add_u32 s{t1}, s{sD1}, {off}
    {lp}:
    buffer_load_dword v{vT2}, v{va or vPO}, {sr(sWS,4)}, s{t1} offen offset:1008 sc1
    s_waitcnt vmcnt(0)
    v_cmp_eq_u32 vcc, -1, v{vT2}
    s_cbranch_vccz {dn}""")
    budget(dn)
    a(f"s_sleep {RNAP}\ns_branch {lp}\n{dn}:")

def out_addr():
    a(f"""v_and_b32 v14, 31, v0
    v_lshlrev_b32 v14, 10, v14
    v_lshrrev_b32 v15, 5, v0
    v_lshl_add_u32 v14, v15, 4, v14
    s_lshl_b32 s{t4}, s{sRB}, 16
    s_lshl_b32 s{t1}, s{sI}, 15
    s_add_u32 s{t4}, s{t4}, s{t1}
    s_lshl_b32 s{t1}, s{sHG}, 7
    s_add_u32 s{t4}, s{t4}, s{t1}
    s_lshl_b32 s{t1}, s{sP}, 6
    s_add_u32 s{t4}, s{t4}, s{t1}""")
def store_out(pre=None):
    for r in range(8): a(f"v_cvt_pk_bf16_f32 v{PHQ+r}, v{ACC+2*r}, v{ACC+2*r+1}")
    for kk in range(2):
        b = PHQ + 4 * kk
        a(f"v_permlane32_swap_b32 v{b}, v{b+2}\nv_permlane32_swap_b32 v{b+1}, v{b+3}")
        if pre and kk == 0: pre()
        a(f"buffer_store_dwordx4 {vr(b,4)}, v14, {sr(sOUT,4)}, s{t4} offen offset:{kk*32} {OUTF}")

TS = [WPH + 4 * n for n in range(6)] + [vSW, vSW + 4]
assert vSW == 236
def run_items(its, first, windows, hooks=None, prime_only=None):
    hooks = hooks or {}
    slot = {}; cnt = [0]
    def rd(n):
        w_, _, c = its[n]
        if isinstance(w_, int): slot[n] = w_ + 4 * c
        else:
            slot[n] = TS[cnt[0] % 8]; cnt[0] += 1
            rd_w(slot[n], w_[0][c], w_[1], 1024, ("w", n))
    LG.clear()
    nr = 0
    while nr < len(its) and cnt[0] < 6: rd(nr); nr += 1
    if prime_only: prime_only()
    if windows: a("s_setprio 0")
    seen = set()
    step = 2 if windows else 1
    for g0 in range(0, len(its), step):
        grp = range(g0, min(g0 + step, len(its)))
        for n in grp:
            for f in hooks.get(n, []): f()
        wait(lg=("w", grp[-1]))
        for n in grp:
            acc = (ACC, AC2)[its[n][2]]
            wait(lg=("w", n))
            a(f"v_mfma_f32_32x32x16_bf16 {vr(acc,16)}, {vr(slot[n],4)}, {vr(its[n][1],4)}, {0 if first and acc not in seen else vr(acc,16)}")
            seen.add(acc)
        for n in grp:
            if not isinstance(its[n][0], int):
                while nr < len(its):
                    rd(nr); nr += 1
                    if not isinstance(its[nr-1][0], int): break
    assert nr == len(its)
    if windows: a("s_setprio 2")
after = []
HOLD0 = E('HOLD0', 1); w7 = newword()
items = lambda steps: [(w_, reg, c) for (_, w_, reg) in steps for c in range(2)]
def tail(its, late, last, LW=TMP):
    n0 = len(its)
    its = its + items(late)
    k = len(its)
    its = its[:-k] + [x for x in its[-k:] if x[2] == 1] + [x for x in its[-k:] if x[2] == 0]
    def gate():
        out_addr()
        lp, dn = a.lab("tw"), a.lab("twd")
        a(f"""s_lshl_b32 s{t2}, s{sS}, 12
        s_add_u32 s{t0}, s{t2}, {OP}
        v_add_u32 v{vPC}, s{t0}, v{vL16}
        s_xor_b32 s{t2}, s{t2}, 4096
        s_add_u32 s{t0}, s{t2}, {OP}
        v_add_u32 v{vPR}, s{t0}, v{vL16}
        s_lshl_b32 s{t0}, s{sS}, 8
        s_add_u32 s{t0}, s{t0}, {LT + 3*1024 + 128}
        v_mov_b32 v13, s{t0}""")
        if last:
            for q_, (_, w_, _) in enumerate(last): rd_w(LW + 4 * q_, vWOA, w_, 1024, "lw")
            if E("PW7", 0):
                a(f"s_lshl_b32 s{t0}, s{sHG}, 12\ns_add_u32 s{t0}, s{t0}, s{sD0}\nbuffer_load_dword v{vT2}, v{vL16}, {sr(sWS,4)}, s{t0} offen offset:3072 sc1")
        xs("t0")
        if E("ALN", 1): a(f"s_branch {lp}\n.p2align 12, , {1800 if last else 1100}")
        a(f"""{lp}:
        ds_read_b32 v{vT}, v13
        s_waitcnt lgkmcnt(0)
        v_cmp_gt_u32 vcc, {Q + 8*1024}, v{vT}
        s_cbranch_vccz {dn}""")
        budget(dn)
        a(f"s_sleep 1\ns_branch {lp}\n{dn}:")
        LG.clear()
        stamp(11)
        if late: rec_loads(late, sD1)
    hooks = {}
    if late:
        lr = [reg for (_, _, reg) in late]
        nl = min(n for n, x in enumerate(its) if x[1] in lr)
        hooks.setdefault(nl, []).append(lambda: (take(lambda: rec_loads(late, sD1), list(range(lr[0], lr[0] + 4 * len(lr))), 0, issued=True), xs("n6")))
    if last:
        for q_ in range(4): hooks.setdefault(len(its) - R7AT + q_, []).append(lambda q_=q_: rec_loads(last[2*q_:2*q_+2], sD0))
    ww = newword()
    def x1():
        for q4 in range(4): a(f"ds_write_b128 v{vPC}, {vr(AC2+4*q4,4)} offset:{q4*1024}")
        LG.issue("xw", 4); arrive(ww)
    hooks.setdefault(len(its) - k // 2 + 2, []).append(x1)
    hooks.setdefault(len(its) - 5, []).append(lambda: chk_read(ww))
    def x2():
        chk_test(ww, 2, near=True)
        for q4 in range(4): a(f"ds_read_b128 {vr(AC2+4*q4,4)}, v{vPR} offset:{q4*1024}")
        LG.issue("xr", 4)
    hooks.setdefault(len(its) - 3, []).append(x2)
    run_items(its, False, False, hooks, gate)
    xs("t1")
    if last:
        D7 = TMP + 32
        l2, rt, d2 = a.lab("r7"), a.lab("r7r"), a.lab("r7d")
        R = last[0][2]
        def again():
            a(f"{rt}:"); budget(d2)
            rec_loads(last, sD0)
            if E("CK7", 0):
                a(f"s_waitcnt vmcnt(4)\nv_max_u32 v{vT}, v{R}, v{R+1}")
                for r in range(2, 32, 2):
                    if r == 16: a("s_waitcnt vmcnt(0)")
                    a(f"v_max3_u32 v{vT}, v{vT}, v{R+r}, v{R+r+1}")
                a(f"v_cmp_eq_u32 vcc, -1, v{vT}\ns_cbranch_vccnz {rt}")
            a(f"s_branch {l2}")
        after.append(again)
        a(f"s_waitcnt lgkmcnt(0)\n{l2}:")
        xs("u0")
        for q_, (_, _, reg) in enumerate(last):
            a(f"s_waitcnt vmcnt({7 - q_})")
            if q_ == 0: xs("u1")
            a(f"v_mfma_f32_32x32x16_bf16 {vr(D7,16)}, {vr(LW+4*q_,4)}, {vr(reg,4)}, {vr(D7 if q_ else AC2,16)}")
            a(f"v_max_u32 v{vT}, v{reg}, v{reg+1}" if q_ == 0 else f"v_max3_u32 v{vT}, v{vT}, v{reg}, v{reg+1}")
            a(f"v_max3_u32 v{vT}, v{vT}, v{reg+2}, v{reg+3}")
            if q_ in (3, 7): a(f"v_cmp_eq_u32 vcc, -1, v{vT}\ns_cbranch_vccnz {rt}")
        a(f"{d2}:")
        if HOLD0: arrive(w7)
        xs("n7")
    else:
        D7 = AC2
        a("s_waitcnt lgkmcnt(0)")
    for r in range(0, 16, 2): a(f"v_pk_add_f32 {vr(ACC+r,2)}, {vr(ACC+r,2)}, {vr(D7+r,2)}")
    store_out((lambda: (chk_read(w7), chk_test(w7, 2, near=True))) if HOLD0 and not last else None)
def slot_free(j):
    lp, dn = a.lab("cf"), a.lab("cfd")
    a(f"v_mov_b32 v13, {CONS + 16 + 4*j}\n{lp}:\nds_read_b32 v{vT}, v13\ns_waitcnt lgkmcnt(0)\nv_cmp_eq_u32 vcc, 0, v{vT}\ns_cbranch_vccz {dn}")
    budget(dn)
    a(f"s_sleep 2\ns_branch {lp}\n{dn}:")

a(f"s_cmp_eq_u32 s{sI}, 1\ns_cbranch_scc1 L_half1")
sa, sb = steps_a([8 * m + r for m in range(4) for r in range(4)], TMP), steps_b(TMP + 64)
first_words = lambda st: [reg for (_, _, reg) in st]
assert (24 <= PRET <= 40 if A1ST else 16 <= PRET <= 32) and PRET % 2 == 0
if F4L:
    with only(sS, 1): fin(4, vGO)
take(lambda: rec_loads(sa, sD1), first_words(sa), RNAP, issued=bool(SAE), landed=bool(SAE))
if DMAAT: arrive(W_OB)
check(W_OB, nap=2)
xs("m0")
run_items(items(sa), True, True, hooks={22: [lambda: rec_loads(sb, sD1)]})
xs("m2")
with only(sS, 0): fin(6, vGO)
take(lambda: rec_loads(sb, sD1), first_words(sb), 0, issued=True, before=lambda: probe(32768))
stamp(10)
slot_free(4)
tail(items(sb), [], None)
stamp(12)
diag_dump(13)
a("s_endpgm")
a("L_half1:")
LG.clear(); VM.clear()
sb = steps_b(TMP)
with only(sS, 2): fin(5, vGI)
if A1ST:
    s7 = [((4*k + 3) * 1024, (4*k + 3) * 2048, WB0 + 4 * k) for k in range(8)]
    s45, s6 = steps_a([8 * m + r for m in range(4) for r in range(2)], TMP + 64), steps_a([8 * m + 2 for m in range(4)], TMP + 96)
    vP2 = vLI
    def probe2(mask, add):
        a(f"v_and_b32 v{vP2}, {hex(mask)}, v{vPO}")
        if add: a(f"v_add_u32 v{vP2}, {add}, v{vP2}")
        probe(0, vP2)
    xs("p0")
    check(wo, nap=2)
    slot_free(5)
    xs("p1")
    take(lambda: rec_loads(s45, sD1), first_words(s45), E("N45", 3))
    xs("p2")
    run_items(items(s45), True, True, hooks={E("SBAT", 4): [lambda: rec_loads(sb, sD1)]})
    take(lambda: rec_loads(sb, sD1), first_words(sb), 0, issued=True, before=lambda: probe(32768))
    xs("m0")
    run_items(items(sb)[:PRET - 16], False, True, hooks={PRET - 22: [lambda: rec_loads(s6, sD1)]})
    xs("m2")
    take(lambda: rec_loads(s6, sD1), first_words(s6), E("N45", 3), issued=True, before=lambda: slot_free(6))
    stamp(10)
    tail(items(sb)[PRET - 16:] + items(s6), [], s7, TMP + 64)
else:
    xs("p0")
    if DMAAT:
        a("s_waitcnt vmcnt(0)"); arrive(W_OB)
        xs("p1")
        rec_loads(sb, sD1)
        take(lambda: rec_loads(sb, sD1), first_words(sb), 0, issued=True, before=lambda: probe(32768))
    else:
        check(wo, nap=2)
        xs("p1")
        probe(32768)
        xs("p2")
        take(lambda: rec_loads(sb, sD1), first_words(sb), RNAP)
    xs("m0")
    s456 = steps_a([8 * m + r for m in range(4) for r in range(3)], TMP + 64)
    slot_free(5)
    run_items(items(sb)[:PRET], True, True, hooks={PRET - E("L6AT", 6): [lambda: rec_loads(s456, sD1)]})
    xs("m2")
    def wait6():
        a(f"v_bfe_u32 v13, v0, 2, 2\nv_lshlrev_b32 v13, 13, v13\nv_add_u32 v{vPO}, 2048, v13")
        slot_free(6); probe(0)
    take(lambda: rec_loads(s456, sD1), first_words(s456), 0, issued=True, before=wait6)
    if DMAAT: check(W_OB, nap=1)
    stamp(10)
    tail(items(sb)[PRET:] + items(s456), [], [((4*k + 3) * 1024, (4*k + 3) * 2048, WB0 + 4 * k) for k in range(8)])
stamp(12)
if DIAG or HOLDAT:
    a("s_branch L_dd")
    for f_ in after: f_()
    after = []
    a("L_dd:")
diag_dump(13)
hold()
a("L_exit:\ns_endpgm")
for f_ in after: f_()

FO = TMP
FL = TMP + 32
a("L_fin:\ns_nop 1")
a(f"""s_and_b32 s{t2}, s{sJ}, 3
s_lshl_b32 s{t0}, s{t2}, 10
s_add_u32 s{t0}, s{t0}, {LT}
v_and_b32 v14, 3, v0
v_lshl_add_u32 v14, v14, 8, s{t0}
v_and_b32 v15, 124, v{vL4}
v_add_u32 v15, s{t0}, v15
s_lshl_b32 s{t1}, s{sJ}, 10
s_add_u32 s{t1}, s{t1}, {Q + 1024}
s_lshl_b32 s{t2}, s{t2}, 13
s_add_u32 s{t2}, s{t2}, {OP}
v_add_u32 v{FL+4}, s{t2}, v{vL16}
s_lshl_b32 s{t0}, s{sJ}, 2
s_add_u32 s{t0}, s{t0}, {CONS + 16}
v_mov_b32 v13, s{t0}
s_lshr_b32 s{t0}, s{sJ}, 2
s_lshl_b32 s{t2}, s{sRB}, 1
s_add_u32 s{t0}, s{t0}, s{t2}
s_lshl_b32 s{t0}, s{t0}, 6
s_lshl_b32 s{t2}, s{sHG}, 2
s_add_u32 s{t0}, s{t0}, s{t2}
s_and_b32 s{t2}, s{sJ}, 3
s_add_u32 s{t0}, s{t0}, s{t2}
s_lshl_b32 s{t4}, s{t0}, 10
s_add_u32 s{t4}, s{t4}, {WS_O}
""")
assert FP == 1 << 15 and CONS + 16 + 32 <= SYNC and (TMP, vGF, vL4, vONE, vL16, vT, FOUT) == (104, 233, 251, 1, 10, 3, 244)
fin_body(True, "L_fb", FNAP)
if DIAG: a("s_waitcnt lgkmcnt(0)")
a(f"s_setpc_b64 s[{sRET}:{sRET+1}]")
emit_cold()
a("CODE_END:")
for f_ in far: f_()
BS, BC, BK, BV, BQ, BM = TMP + 16, TMP + 32, TMP + 48, TMP + 52, TMP + 60, FOUT
a(f"""L_fb:
s_sub_u32 s{t1}, s{t1}, 1024
v_add_u32 v14, s{t1}, v{vL16}
ds_read_b128 {vr(BQ,4)}, v14
v_mov_b32 v{BM}, 0xff800000
s_mov_b32 s{t0}, 0
s_waitcnt lgkmcnt(0)
L_fb1:
buffer_load_dwordx4 {vr(BK,4)}, v{vL16}, {sr(sWS,4)}, s{t0} offen sc1
s_waitcnt vmcnt(0)
v_mfma_f32_32x32x16_bf16 {vr(BS,16)}, {vr(BK,4)}, {vr(BQ,4)}, 0""")
for r in range(0, 16, 2): a(f"v_max3_f32 v{BM}, v{BM}, v{BS+r}, v{BS+r+1}")
a(f"""s_add_u32 s{t0}, s{t0}, 2048
s_cmp_lt_u32 s{t0}, 131072
s_cbranch_scc1 L_fb1
v_mov_b32 v{BM+1}, v{BM}
v_permlane32_swap_b32 v{BM}, v{BM+1}
v_max_f32 v{BM}, v{BM}, v{BM+1}""")
for r in range(16): a(f"v_sub_f32 v{BC+r}, 0, v{BM}\nv_mov_b32 v{FO+r}, 0")
a(f"""v_mov_b32 v15, 0xdddd
s_mov_b32 s{t0}, 0
L_fb2:
buffer_load_dwordx4 {vr(BK,4)}, v{vL16}, {sr(sWS,4)}, s{t0} offen sc1
buffer_load_dwordx4 {vr(BV,4)}, v{vL16}, {sr(sWS,4)}, s{t0} offen offset:1024 sc1""")
for r in range(4): a(f"v_mov_b32 v{BV+4+r}, {hex(ONES)}")
a(f"""s_waitcnt vmcnt(0)
v_mfma_f32_32x32x16_bf16 {vr(BS,16)}, {vr(BK,4)}, {vr(BQ,4)}, {vr(BC,16)}""")
for r in range(4): a(f"v_permlane16_swap_b32 v{BV+r}, v{BV+4+r}")
for r in range(16): a(f"v_exp_f32 v{BS+r}, v{BS+r}")
a(f"""v_smfmac_f32_32x32x32_bf16 {vr(FO,16)}, {vr(BV,4)}, {vr(BS,8)}, v15
v_smfmac_f32_32x32x32_bf16 {vr(FO,16)}, {vr(BV+4,4)}, {vr(BS+8,8)}, v15
s_add_u32 s{t0}, s{t0}, 2048
s_cmp_lt_u32 s{t0}, 131072
s_cbranch_scc1 L_fb2
s_nop 9
s_branch L_fin_norm""")

body = a.finish(verbose=bool(os.environ.get("VERBOSE")))
ref = open("cdna_kernels/" + NAME + ".s.ref").read().split("\n")
hdr = [l for l in ref if l.startswith(";") and "@launch" not in l and "Override" not in l and "grid=ceil" not in l]
out = "\n".join(hdr) + f"""
; @launch grid=(256,1,1) block=(512,1,1) lds={LDS_BYTES}
.amdgcn_target "amdgcn-amd-amdhsa--gfx950"
.text
.p2align 12
.fill {PAD // 4}, 4, 0xbf810000
.globl {NAME}_kernel
.p2align 8
.type {NAME}_kernel,@function
{NAME}_kernel:
{body}.section .rodata,"a"
.p2align 6
.amdhsa_kernel {NAME}_kernel
  .amdhsa_next_free_vgpr 256
  .amdhsa_next_free_sgpr 102
  .amdhsa_accum_offset 256
  .amdhsa_group_segment_fixed_size 0
  .amdhsa_kernarg_size 104
  .amdhsa_user_sgpr_count 2
  .amdhsa_user_sgpr_kernarg_segment_ptr 1
  .amdhsa_system_sgpr_workgroup_id_x 1
.end_amdhsa_kernel
"""
dst = sys.argv[1] if len(sys.argv) > 1 else "cdna_kernels/" + NAME + ".s"
open(dst, "w").write(out)
print("wrote", dst, len(a.lines), "lines,", len(a.inserted), "nops inserted, words", nword[0])
```

```python
import re

TRANS = ("v_exp_f32", "v_log_f32", "v_rcp_f32", "v_rsq_f32", "v_sqrt_f32", "v_sin_f32", "v_cos_f32")

def regs_of(op):
    op = op.strip()
    op = op.replace("abs(", "").replace(")", "").replace("|", "")
    if op.startswith("-"): op = op[1:]
    m = re.fullmatch(r"([vs])(\d+)", op)
    if m: return {(m.group(1), int(m.group(2)))}
    m = re.fullmatch(r"([vs])\[(\d+):(\d+)\]", op)
    if m: return {(m.group(1), i) for i in range(int(m.group(2)), int(m.group(3)) + 1)}
    if op in ("vcc", "vcc_lo", "vcc_hi"): return {("x", "vcc")}
    if op in ("exec", "exec_lo", "exec_hi"): return {("x", "exec")}
    if op == "m0": return {("x", "m0")}
    return set()

class Ins:
    def __init__(self, text):
        self.text = text
        t = text.split(";")[0].strip()
        self.label = None; self.mn = None; self.ops = []
        self.dst = set(); self.src = set(); self.srcC = set(); self.srcAB = set(); self.data = set()
        if not t or t.startswith("."):
            self.kind = "dir"; return
        if t.endswith(":"):
            self.kind = "label"; self.label = t[:-1]; return
        parts = t.split(None, 1)
        mn = self.mn = parts[0]
        rest = parts[1] if len(parts) > 1 else ""
        ops = [o.strip() for o in re.split(r",(?![^\[]*\])", rest)] if rest else []
        mods = ""
        if ops:
            sp = ops[-1].split(None, 1)
            ops[-1] = sp[0]
            if len(sp) > 1: mods = sp[1]
        self.ops = ops; self.mods = mods
        R = [regs_of(o) for o in ops]
        U = lambda l: set().union(*l) if l else set()
        if mn.startswith("v_mfma") or mn.startswith("v_smfmac"):
            self.kind = "mfma"
            self.passes = 8 if "32x32" in mn else 4
            self.dst = R[0]
            if mn.startswith("v_mfma"):
                self.srcAB = R[1] | R[2]; self.srcC = R[3]
            else:
                self.srcAB = R[1] | R[2] | R[3]; self.srcC = R[0]
            self.src = self.srcAB | self.srcC
        elif mn.startswith("v_"):
            self.kind = "valu"
            if mn.startswith("v_permlane"):
                self.dst = R[0] | R[1]; self.src = R[0] | R[1]
            elif mn.startswith("v_nop"):
                pass
            else:
                self.dst = R[0]; self.src = U(R[1:])
                if mn.startswith("v_add_co") or mn.startswith("v_addc_co") or mn.startswith("v_sub_co"):
                    self.dst = R[0] | R[1]; self.src = U(R[2:])
                if "fmac" in mn or mn.startswith("v_writelane") or "dot2c" in mn or "_dpp" in mn or "_sdwa" in mn: self.src |= R[0]
                if mn.startswith("v_cmpx"): self.dst |= {("x", "exec")}
        elif mn.startswith("ds_"):
            self.kind = "ds"
            if mn.startswith("ds_read") or "_rtn" in mn or "permute" in mn or "swizzle" in mn:
                self.dst = R[0]; self.src = U(R[1:])
            else:
                self.src = U(R)
        elif mn.startswith("buffer_") or mn.startswith("global_"):
            self.kind = "vmem"
            words = mods.split()
            if mn.startswith("buffer_wbl2") or mn.startswith("buffer_inv"): return
            if "load" in mn and ("lds" in words or "_lds_" in mn):
                self.src = U(R) | {("x", "m0")}; self.ldsdma = True
            elif "load" in mn:
                self.dst = R[0]; self.src = U(R[1:])
            else:
                self.src = U(R)
                if mn.startswith("buffer_store_dwordx4") or mn.startswith("buffer_store_dwordx3"): self.data = R[0]
                if "atomic" in mn and "sc0" in words: self.dst = R[0]
        elif mn.startswith("s_"):
            self.kind = "salu"
            nod = ("s_cmp", "s_waitcnt", "s_branch", "s_cbranch", "s_barrier", "s_nop", "s_setprio", "s_sleep", "s_endpgm", "s_bitcmp", "s_setpc")
            if mn.startswith(nod): self.src = U(R)
            else:
                self.dst = R[0] if R else set(); self.src = U(R[1:])
                if "saveexec" in mn: self.dst |= {("x", "exec")}
        else:
            raise ValueError("unknown instr " + text)
    def ws(self):
        if self.kind in ("dir", "label"): return 0
        if self.mn == "s_nop": return int(self.ops[0], 0) + 1
        return 1

def need(p, c):
    n = 0
    vg = lambda s: {r for r in s if r[0] == "v"}
    sg = lambda s: {r for r in s if r[0] == "s" or r == ("x", "vcc")}
    if p.kind == "valu":
        pv = vg(p.dst); ps = sg(p.dst)
        if c.kind == "mfma" and pv & c.src: n = max(n, 2)
        if c.kind == "valu":
            if p.mn.startswith(TRANS) and not c.mn.startswith(TRANS) and pv & c.src: n = max(n, 1)
            if c.mn.startswith(("v_readlane", "v_readfirstlane")) and pv & c.src: n = max(n, 1)
            if (c.mn.startswith("v_permlane") or "_dpp" in c.mn) and pv & c.src: n = max(n, 2)
            if ps & c.src: n = max(n, 4 if c.mn.startswith(("v_readlane", "v_writelane")) else 2)
            if ("op_sel" in getattr(p, "mods", "") and not p.mn.startswith("v_pk_") or "_sdwa" in p.mn) and pv & (c.src | c.dst): n = max(n, 1)
        if p.mn.startswith("v_dot") and c.mn != p.mn and pv & (c.src | c.dst): n = max(n, 3)
        if c.kind == "vmem" and ps & c.src: n = max(n, 5)
        if ("x", "exec") in p.dst and c.kind in ("mfma", "valu"): n = max(n, 5)
        if p.mn.startswith(TRANS) and c.kind in ("ds", "vmem") and pv & c.src: n = max(n, 1)
    if p.kind == "mfma":
        big = {8: 12, 4: 8}[p.passes]
        if c.kind == "mfma":
            if p.dst & c.srcAB: n = max(n, big)
            if p.dst & c.srcC:
                if not (p.dst == c.srcC and p.passes == c.passes): n = max(n, {8: 10, 4: 6}[p.passes])
            elif p.dst & c.dst and p.passes != c.passes: n = max(n, big)
        if c.kind == "valu":
            if p.dst & (c.src | c.dst): n = max(n, big)
            if p.srcC & c.dst: n = max(n, {8: 7, 4: 3}[p.passes])
        if c.kind in ("ds", "vmem") and p.dst & (c.src | c.dst): n = max(n, big)
    if p.kind == "salu" and ("x", "m0") in p.dst and getattr(c, "ldsdma", False): n = max(n, 1)
    if p.kind == "vmem" and p.data and c.kind in ("valu", "mfma", "ds", "vmem") and p.data & c.dst: n = max(n, 2)
    return n

class Asm:
    def __init__(self):
        self.lines = []
        self.uid = 0
        self.tr2 = False
    def __call__(self, s):
        for l in s.split("\n"):
            l = l.strip()
            if l: self.lines.append(l)
    def lab(self, base):
        self.uid += 1
        return f"L{base}_{self.uid}"
    def finish(self, verbose=False):
        ins = [Ins(l) for l in self.lines]
        def build():
            lab = {x.label: i for i, x in enumerate(ins) if x.kind == "label"}
            pred = [[] for _ in ins]
            for i, x in enumerate(ins):
                fall = True
                if x.kind == "salu":
                    if x.mn in ("s_branch", "s_endpgm", "s_setpc_b64"): fall = False
                    if x.mn == "s_branch" or x.mn.startswith("s_cbranch"):
                        pred[lab[x.ops[0]]].append(i)
                if fall and i + 1 < len(ins): pred[i + 1].append(i)
            return pred
        inserted = []
        pred = build()
        i = 0
        while i < len(ins):
            c = ins[i]
            if c.kind in ("dir", "label", "salu"):
                i += 1; continue
            deficit = 0; why = None
            stack = [(j, 0, 0) for j in pred[i]]
            seen = {}
            while stack:
                j, d, nt = stack.pop()
                if d >= 12 or seen.get(j, (99, 99)) <= (d, nt): continue
                seen[j] = (d, nt)
                p = ins[j]
                if p.kind not in ("dir", "label"):
                    k = need(p, c) - d - (nt // 2 if (p.kind == "mfma" and self.tr2) else 0)
                    if k > deficit: deficit = k; why = p.text
                for q in pred[j]: stack.append((q, d + p.ws(), nt + (1 if p.mn == "v_exp_f32" else 0)))
            if deficit > 0:
                ins.insert(i, Ins(f"s_nop {deficit-1}"))
                inserted.append((c.text, why, deficit))
                pred = build()
                i += 1
            i += 1
        self.inserted = inserted
        if verbose:
            for t, w, d in inserted: print(f"nop {d}: [{w}] -> [{t}]")
        out = []
        for x in ins:
            out.append(x.text if x.kind in ("label", "dir") else "    " + x.text)
        return "\n".join(out) + "\n"

def vr(a, n=1): return f"v{a}" if n == 1 else f"v[{a}:{a+n-1}]"
def sr(a, n=1): return f"s{a}" if n == 1 else f"s[{a}:{a+n-1}]"

class Cnt:
    def __init__(self, cap): self.q = []; self.cap = cap
    def issue(self, tag, n=1): self.q += [tag] * n
    def need(self, tag):
        idx = [i for i, t in enumerate(self.q) if t == tag]
        if not idx: return None
        n = len(self.q) - 1 - idx[-1]
        n = min(n, self.cap)
        self.q = self.q[len(self.q) - n:] if n else []
        return n
    def clear(self): self.q = []
```

```python
import sys, os
from asmlib import Asm, Cnt, vr, sr

NAME = "gated_mix__grouped_kv_mqa__linear_kernel_hedgehog__prompt"
E = lambda k, d: int(os.environ.get(k, d))
DIAG = E("DIAG", 0); FORCE_FB = E("FORCE_FB", 0); TOUCH = E("TOUCH", 0); NOB = E("NOB", 0); PRE = E("PRE", 4)
FNAP = E("FNAP", 2); SIGT = E("SIGT", 6); QFIN = E("QFIN", 1); NEARJ = E("NEARJ", 4); NEARB = E("NEARB", 0); SAE = E("SAE", 0); DMAAT = E("DMAAT", 0); WAT = E("WAT", 0); RED1 = E("RED1", 1); EARLYA = E("EARLYA", 2); POLLAT = E("POLLAT", 2); NST = E("NST", 2); MAP = E("MAP", 1); PW = E("PW", 2); PRET = E("PRET", 32); WOTAT = E("WOTAT", 30); SP2 = E("SP2", 0); FILE_ = E("FILE", 0); G2 = E("G2", 1); RAT = E("RAT", 0); F4L = E("F4L", 1); A1ST = E("A1ST", 1); ST0 = E("ST0", 1); NOACK = E("NOACK", 1); PAIRB = E("PAIRB", 1); DQ = E("DQ", 3); PSW = E("PSW", 0); EPOLL = E("EPOLL", 1); LSP = E("LSP", 0); UNR = E("UNR", 1); FORCE_RD = E("FORCE_RD", 0); NPK = E("NPK", 4); R7AT = E("R7AT", 4); RNAP = E("RNAP", 8); DEFER = E("DEFER", 1); ROT = E("ROT", 1); PUSH = E("PUSH", 1); WQE = E("WQE", 2); CPF = E("CPF", 1); WQT = E("WQT", 1); SPF = E("SPF", 2); HAT = E("HAT", -2); WOT = E("WOT", 1); XJ = E("XJ", 0); XNT = E("XNT", 1); G0H = E("G0H", 0); PKS = E("PKS", -1); FST = E("FST", 4); FLAG1 = E("FLAG1", 0); LPT = E("LPT", 4); LATE = E("LATE", 1); VMASK = E("VMASK", 0); PAD = E("PAD", 0xd00); NOMAX = E("NOMAX", 1); FORCE_FF = E("FORCE_FF", 0)
OUTF = os.environ.get("OUTF", "")
HOLDAT = os.environ.get("HOLDAT")

X = 0; XS = 1040
Q = 66560
OP = 74752
RING = 107520
LT = 156672
MISC = 160768
WKV = OP; WQB = OP + 16384
GATE = Q
NONCE = MISC; CONS = MISC + 16; SYNC = MISC + 64
WPHI = MISC + 1024
LDS_BYTES = 163840
WS_KV = 0; WS_KVF = 0x20000; WS_G = 0x30000; WS_DIAG = 0x40000; WS_F = 0x80000
WS_PART = 0x100000; WS_O = 0x400000; WS_SIZE = 0x800000
KVF_STRIDE = 2048; PREC = 320
F_KV, F_F2, F_F3, F_OB, F_OA = 0, 1, 2, 3, 4
FP = 0x8000
pX, pWQ, pWK, pWV, pWOA, pBX, pWQKV, pWPHI, pWOB, pGATE, pOUT, pDBG, pWS = [4 + 2 * i for i in range(13)]
sX, sWQ, sWKV, sWB, sWOA, sWOB, sWS, sOUT, sDBG, sSM = [32 + 4 * i for i in range(10)]
sW, sRB, sHG, sL, sNON, sBUD, sS, sI, sP = 72, 73, 74, 75, 76, 77, 78, 79, 80
t0, t1, t2, t3, t4, t5 = 81, 82, 83, 84, 85, 86
sJ = 87; sRET = 88
sL2E = 90
sFL = 92
sD0, sD1 = 93, 94
sPF = 95
sFAR = 91
sST = 4
LOG2E = 0x3fb8aa3b
QSCALE = 0x3eb8aa3b
ONES = 0x3f803f80

a = Asm()
a.tr2 = bool(E('TR2', 1))
role = ["E"]
XST = os.environ.get("XST", "").split(",") if os.environ.get("XST") else []
def xs(name):
    if os.environ.get("MARK"): a(f"; @@ {name}")
    if DIAG and name in XST: a(f"s_memrealtime {sr(sST + 2 * XST.index(name), 2)}")
    if DIAG and "c" + name in XST: a(f"s_memtime {sr(sST + 2 * XST.index('c' + name), 2)}")
YST = os.environ.get("YST", "").split(",") if os.environ.get("YST") else []
YB = 48
YREG = [48, 50, 52, 54, 60, 62, 88, 90, 96, 98]
def ys(name):
    if DIAG and name in YST: a(f"s_memrealtime {sr(YREG[YST.index(name)], 2)}")
    if DIAG and "c" + name in YST: a(f"s_memtime {sr(YREG[YST.index('c' + name)], 2)}")
def stamp(n):
    if os.environ.get("MARK"): a(f"; @@ s{n}")
    if DIAG and YST and role[0] == "A": ys(f"a{n}")
    elif DIAG and XST and role[0] == "S": xs(f"s{n}")
    elif DIAG: a(f"s_memrealtime {sr(sST + 2 * n, 2)}")
    if HOLDAT == f"{role[0]}{n}": a("s_memrealtime s[100:101]")
def hold():
    if HOLDAT and (HOLDAT[0] == role[0] or (HOLDAT[0] == "E" and role[0] == "S")):
        l = a.lab("hold")
        a(f"{l}:\ns_memrealtime s[96:97]\ns_waitcnt lgkmcnt(0)\ns_sub_u32 s96, s96, s100\ns_cmp_lt_u32 s96, 4000\ns_cbranch_scc1 {l}")
def srd(d, p, size):
    a(f"s_mov_b32 s{d}, s{p}\ns_mov_b32 s{d+1}, s{p+1}\ns_mov_b32 s{d+2}, {hex(size)}\ns_mov_b32 s{d+3}, 0x20000")
def budget(done):
    a(f"s_cmp_eq_u32 s{sBUD}, 0\ns_cbranch_scc1 {done}\ns_sub_u32 s{sBUD}, s{sBUD}, 1")
cold = []
def emit_cold():
    while cold: cold.pop(0)()
def poll_issue(vaddr, vtmp, plane, n=1):
    a(f"s_mov_b32 s{t0}, {WS_F + plane*FP}\nbuffer_load_dword{'x2' if n == 2 else ''} {vr(vtmp,n)}, v{vaddr}, {sr(sWS,4)}, s{t0} offen sc1")
def poll_check(vaddr, vtmp, plane, nap=4, n=1):
    lp, dn = a.lab("pf"), a.lab("pfd")
    a(f"v_cmp_ne_u32 vcc, s{sNON}, v{vtmp}\ns_cbranch_vccnz {lp}\n{dn}:")
    def slow():
        a(f"{lp}:"); budget(dn)
        if nap: a(f"s_sleep {nap}")
        a("s_mov_b64 exec, vcc")
        poll_issue(vaddr, vtmp, plane, n)
        a(f"s_mov_b64 exec, -1\ns_waitcnt vmcnt(0)\nv_cmp_ne_u32 vcc, s{sNON}, v{vtmp}\ns_cbranch_vccnz {lp}\ns_branch {dn}")
    cold.append(slow)
def put_flag(soff, vnon, vl4):
    a(f"s_mov_b32 exec_hi, 0\nbuffer_store_dword v{vnon}, v{vl4}, {sr(sWS,4)}, s{soff} offen sc1\ns_mov_b32 exec_hi, -1")
def diag_dump(n):
    if not DIAG: return
    a("s_sleep 80\ns_waitcnt lgkmcnt(0)")
    a(f"s_lshl_b32 s{t0}, s{sL}, 3\ns_add_u32 s{t0}, s{t0}, s{sW}\ns_lshl_b32 s{t0}, s{t0}, 6\ns_add_u32 s{t0}, s{t0}, {WS_DIAG}")
    a("v_mov_b32 v8, 0")
    for i in range(14):
        a(f"v_writelane_b32 v8, s{YREG[i] if (YST and role[0] == 'A' and i < len(YST)) else sST+2*i}, {i}")
    a("v_writelane_b32 v8, s100, 14\nv_writelane_b32 v8, s31, 15")
    a(f"""v_mbcnt_lo_u32_b32 v9, -1, 0
    v_mbcnt_hi_u32_b32 v9, -1, v9
    v_lshlrev_b32 v9, 2, v9
    s_mov_b64 exec, 0xffff
    buffer_store_dword v8, v9, {sr(sWS,4)}, s{t0} offen
    s_mov_b64 exec, -1""")
def dma_lane_addrs():
    a(f"""v_lshrrev_b32 v11, 3, v0
    v_and_b32 v12, 7, v0
    v_lshrrev_b32 v13, 2, v0
    v_and_b32 v13, 4, v13
    v_xor_b32 v12, v12, v13
    v_lshlrev_b32 v12, 4, v12
    v_lshl_add_u32 v9, v11, 10, v12
    v_mul_u32_u24 v8, 3072, v11
    v_add_u32 v8, v8, v12""")
def xrows(n, mod=""):
    for r in range(n):
        a(f"s_add_u32 m0, s{sD0}, {X + (r//4)*4*XS + (r%4)*16}")
        if r % 4 == 0 and r: a(f"s_add_u32 s{sD1}, s{sD1}, 4096")
        a(f"buffer_load_dwordx4 v10, {sr(sX,4)}, s{sD1} offen offset:{(r%4)*1024} {mod} lds")
X0, X1, X2, X3 = X, X + 16384, X + 32768, X + 49152
R0, R1, R2 = RING, RING + 16384, RING + 32768
STG = [X0, X1, X2, X3, R0, R1, R2, X0,   X1, X2, X3, R0,   X0, R1, R2, R0,   X0, X1, X2, X3]
W_KV, W_Q, W_G, W_OB, W_FAR, W_P = 0, 1, 2, 6, 7, 8
nword = [9]
G1 = MISC + 512

def fin_body(pk, fb, nap):
    FO, FL, vT, vONE, vGF, FOUT, vL16 = 104, 136, 3, 1, 233, 244, 10
    lp, dn = a.lab("fw"), a.lab("fwd")
    a(f"{lp}:\nds_read_b32 v{vT}, v14 offset:208\ns_waitcnt lgkmcnt(0)\nv_cmp_eq_u32 vcc, 0, v{vT}\ns_cbranch_vccz {dn}")
    budget(dn)
    if nap: a(f"s_sleep {nap}")
    a(f"s_branch {lp}\n{dn}:")
    xs("f0")
    for w in range(4):
        a(f"ds_read_b128 {vr(FO+8*w,4)}, v{FL+4} offset:{w*2048}\nds_read_b128 {vr(FO+8*w+4,4)}, v{FL+4} offset:{w*2048+1024}\nds_read_b32 v{FL+w}, v15 offset:{w*256}")
    def add2(d, x, y):
        if pk: a(f"v_pk_add_f32 {vr(d,2)}, {vr(x,2)}, {vr(y,2)}")
        else: a(f"v_add_f32 v{d}, v{x}, v{y}\nv_add_f32 v{d+1}, v{x+1}, v{y+1}")
    if pk:
        a(f"ds_write_b32 v14, v250 offset:208\nds_write_b32 v13, v{vONE}\ns_waitcnt lgkmcnt(2)")
        xs("f1")
        for r in range(0, 8, 2): add2(FO + r, FO + r, FO + 8 + r); add2(FO + 16 + r, FO + 16 + r, FO + 24 + r)
    else:
        a("s_waitcnt lgkmcnt(6)")
        for r in range(0, 8, 2): add2(FO + r, FO + r, FO + 8 + r)
        a("s_waitcnt lgkmcnt(0)")
        for r in range(0, 8, 2): add2(FO + 16 + r, FO + 16 + r, FO + 24 + r)
    add2(FL, FL, FL + 2)
    for r in range(0, 8, 2): add2(FO + r, FO + r, FO + 16 + r)
    a(f"v_add_f32 v{FO+8}, v{FL}, v{FL+1}")
    if pk:
        a(f"""v_pk_mul_f32 {vr(FO+10,2)}, {vr(FO,2)}, 0 op_sel_hi:[1,0]
        v_pk_fma_f32 {vr(FO+10,2)}, {vr(FO+2,2)}, 0, {vr(FO+10,2)} op_sel_hi:[1,0,1]
        v_pk_fma_f32 {vr(FO+10,2)}, {vr(FO+4,2)}, 0, {vr(FO+10,2)} op_sel_hi:[1,0,1]
        v_pk_fma_f32 {vr(FO+10,2)}, {vr(FO+6,2)}, 0, {vr(FO+10,2)} op_sel_hi:[1,0,1]
        v_add_f32 v{FO+10}, v{FO+10}, v{FO+11}
        v_add_f32 v{FO+10}, v{FO+10}, v{FO+8}""")
    else:
        a(f"v_fma_f32 v{FO+10}, v{FO}, 0, v{FO+8}")
        for r in range(1, 8): a(f"v_fma_f32 v{FO+10}, v{FO+r}, 0, v{FO+10}")
    a(f"""v_cmp_nle_f32 vcc, {hex((127-40)<<23)}, v{FO+10}
    s_cbranch_vccnz {fb}
    v_cmp_nge_f32 vcc, {hex((127+60)<<23)}, v{FO+10}
    s_cbranch_vccnz {fb}""")
    if FORCE_FB: a(f"s_branch {fb}")
    if pk: a("L_fin_norm:")
    a(f"v_rcp_f32 v{FO+8}, v{FO+8}\nv_mul_f32 v{FO+8}, v{FO+8}, v{vGF}")
    for r in range(0, 8, 2):
        if pk: a(f"v_pk_mul_f32 {vr(FO+r,2)}, {vr(FO+r,2)}, {vr(FO+8,2)} op_sel_hi:[1,0]")
        else: a(f"v_mul_f32 v{FO+r}, v{FO+r}, v{FO+8}\nv_mul_f32 v{FO+r+1}, v{FO+r+1}, v{FO+8}")
    for r in range(4): a(f"v_cvt_pk_bf16_f32 v{FOUT+r}, v{FO+2*r}, v{FO+2*r+1}")
    l0 = a.lab("mn")
    a(f"v_min_u32 v{FOUT}, -2, v{FOUT}\ns_cmp_lg_u32 s{sJ}, 7\ns_cbranch_scc1 {l0}")
    for r in range(1, 4): a(f"v_min_u32 v{FOUT+r}, -2, v{FOUT+r}")
    a(f"{l0}:")
    xs("f2")
    l1, l2 = a.lab("st"), a.lab("st")
    a(f"""s_cmp_ge_u32 s{sJ}, s{sFAR}
    s_cbranch_scc1 {l1}
    buffer_store_dwordx4 {vr(FOUT,4)}, v{vL16}, {sr(sWS,4)}, s{t4} offen sc1
    s_branch {l2}
    {l1}:
    buffer_store_dwordx4 {vr(FOUT,4)}, v{vL16}, {sr(sWS,4)}, s{t4} offen
    {l2}:""")
    xs("f3")

if HOLDAT or DIAG: a("s_memrealtime s[100:101]")
a(f"""s_cmp_ge_u32 s2, 256
s_cbranch_scc1 L_exit
s_load_dwordx16 s[4:19], s[0:1], 0
s_load_dwordx8 s[20:27], s[0:1], 64
s_load_dwordx2 s[28:29], s[0:1], 96
v_lshrrev_b32 v1, 6, v0
v_and_b32 v0, 63, v0
v_readfirstlane_b32 s{sW}, v1""")
a(f"""s_and_b32 s{t0}, s2, 7
s_lshr_b32 s{t1}, s2, 3""")
if MAP == 0:
    a(f"""s_lshr_b32 s{t2}, s{t0}, 1
    s_lshl_b32 s{t2}, s{t2}, 3
    s_lshr_b32 s{t3}, s{t1}, 2
    s_add_u32 s{sRB}, s{t2}, s{t3}
    s_and_b32 s{t2}, s{t0}, 1
    s_lshl_b32 s{t2}, s{t2}, 2
    s_and_b32 s{t5}, s{t1}, 3
    s_add_u32 s{sHG}, s{t2}, s{t5}""")
else:
    a(f"""s_lshl_b32 s{t2}, s{t0}, 2
    s_lshr_b32 s{t3}, s{t1}, 3
    s_add_u32 s{sRB}, s{t2}, s{t3}
    s_and_b32 s{sHG}, s{t1}, 7
    s_and_b32 s{t5}, s{t1}, 3""")
def ids():
    a(f"""s_lshl_b32 s{sL}, s{sRB}, 3
    s_add_u32 s{sL}, s{sL}, s{sHG}
    s_mov_b32 s{sBUD}, 400000
    s_lshl_b32 s{sFL}, s{sL}, 7
    s_add_u32 s{sFL}, s{sFL}, {WS_F}""")
a(f"""v_lshlrev_b32 v10, 4, v0
s_cmp_lg_u32 s{sW}, 0
s_cbranch_scc1 L_w17""")
def others():
    a(f"L_w17:\ns_cmp_eq_u32 s{sW}, 3\ns_cbranch_scc1 L_aw3\ns_cmp_lt_u32 s{sW}, 3\ns_cbranch_scc1 L_aw12")
    if CPF:
        a(f"""s_getpc_b64 s[{sSM}:{sSM+1}]
        L_pc:
        s_lshl_b32 s{t0}, s{t1}, 2
        s_add_u32 s{t0}, s{t0}, s{sW}
        s_sub_u32 s{t0}, s{t0}, 3
        s_mul_i32 s{t0}, s{t0}, {384 if UNR else 256}
        s_min_u32 s{t0}, s{t0}, CODE_END - L_pc - 384
        s_add_u32 s{sSM}, s{sSM}, s{t0}
        s_addc_u32 s{sSM+1}, s{sSM+1}, 0
        s_load_dword s96, s[{sSM}:{sSM+1}], 0
        s_load_dword s97, s[{sSM}:{sSM+1}], 64
        s_load_dword s98, s[{sSM}:{sSM+1}], 128
        s_load_dword s99, s[{sSM}:{sSM+1}], 192""")
        if UNR: a(f"s_load_dword s98, s[{sSM}:{sSM+1}], 256\ns_load_dword s99, s[{sSM}:{sSM+1}], 320")
    a("s_branch L_sw")
    a(f"""L_aw3:
    s_cmp_lg_u32 s2, 0
    s_cbranch_scc1 L_nononce
    s_memrealtime s[{t1}:{t2}]
    v_mov_b32 v13, 0
    s_waitcnt lgkmcnt(0)
    s_or_b32 s{t1}, s{t1}, 1
    v_mov_b32 v14, s{t1}
    s_mov_b64 exec, 1
    global_store_dword v13, v14, s[{pDBG}:{pDBG+1}] sc1
    s_mov_b64 exec, -1
    L_nononce:
    s_lshl_b32 s{t0}, s{sHG}, 11
    v_add_u32 v11, s{t0}, v10
    s_lshl_b32 s{t0}, s2, 11
    v_lshl_add_u32 v12, v0, 7, s{t0}
    s_lshl_b32 s{t0}, s{sRB}, 7
    s_add_u32 s{t0}, s{t0}, {WS_F}
    v_mov_b32 v13, s{t0}
    s_waitcnt lgkmcnt(0)
    s_mov_b32 m0, {WPHI}
    s_mov_b64 exec, 0xffff""")
    if WQT == 1: a(f"global_load_dword v20, v12, s[{pWQ}:{pWQ+1}]")
    a(f"""s_mov_b64 exec, 1
    global_load_dword v21, v13, s[{pWS}:{pWS+1}]
    s_mov_b64 exec, -1
    global_load_lds_dwordx4 v11, s[{pWPHI}:{pWPHI+1}]
    global_load_lds_dwordx4 v11, s[{pWPHI}:{pWPHI+1}] offset:1024
    s_branch L_aw3b""")
role[0] = "A"
S0, S1, O_, QR, KR, VR = 12, 28, 44, 60, 64, 128
vIDX, vZ, vQA, vPA, vLA, vCA, vCV = 1, 2, 4, 5, 6, 7, 8
JX, JW, JA = KR, KR + 64, O_
aNON = O_ + 8
def wq_setup():
    dma_lane_addrs()
    a(f"""v_mov_b32 v11, v9
    s_lshr_b32 s{sS}, s{sW}, 1
    s_lshl_b32 s{sI}, s{sS}, 13
    s_lshl_b32 s{sJ}, s{sS}, 16
    s_lshl_b32 s{t2}, s{sHG}, 7
    s_add_u32 s{sJ}, s{sJ}, s{t2}""")
def vconst():
    a(f"""v_and_b32 v12, 15, v0
    v_cmp_eq_u32 vcc, 0, v12
    v_mov_b32 v13, {hex(ONES)}
    v_cndmask_b32 v12, 0, v13, vcc
    v_cndmask_b32 v13, 0, v13, vcc""")
    for t in range(16):
        a(f"v_mov_b64 {vr(VR+8*t+4,2)}, v[12:13]\nv_mov_b64 {vr(VR+8*t+6,2)}, v[12:13]")
        if VMASK: a(f"v_mov_b64 {vr(VR+8*t,2)}, v[12:13]\nv_mov_b64 {vr(VR+8*t+2,2)}, v[12:13]")
a(f"""s_mul_i32 s{sD0}, s{t5}, {16*XS}
s_lshl_b32 s{sD1}, s{sRB}, 16
s_lshl_b32 s{t2}, s{t5}, 14
s_add_u32 s{sD1}, s{sD1}, s{t2}
s_mov_b32 m0, {GATE}
s_waitcnt lgkmcnt(0)""")
ys("ka")
a(f"global_load_lds_dwordx4 v10, s[{pGATE}:{pGATE+1}]")
srd(sX, pX, 0x200000)
xrows(16, "nt" if XNT else "")
ys("xi")
a(f"s_bitcmp1_b32 s{sHG}, 2\ns_cselect_b32 s{sWKV}, s{pWV}, s{pWK}\ns_cselect_b32 s{sWKV+1}, s{pWV+1}, s{pWK+1}\ns_mov_b32 s{sWKV+2}, 0x4000\ns_mov_b32 s{sWKV+3}, 0x20000")
for n in range(16):
    if n % 4 == 0: a(f"s_mov_b32 m0, {WKV + n*1024}\ns_mov_b32 s{t1}, {n*1024}")
    a(f"buffer_load_dwordx4 v10, {sr(sWKV,4)}, s{t1} offen offset:{(n%4)*1024} lds")
NTQ = 0
if WQT == 2:
    NTQ = 2 if MAP else 1
    a(f"""s_and_b32 s{t0}, s{sRB}, {3 if MAP else 7}
    s_lshl_b32 s{t0}, s{t0}, {17 if MAP else 16}
    s_lshl_b32 s{t1}, s{sHG}, 7
    s_add_u32 s{t0}, s{t0}, s{t1}
    v_lshl_add_u32 v12, v0, 10, s{t0}
    global_load_dword v24, v12, s[{pWQ}:{pWQ+1}]""")
    if MAP: a(f"v_add_u32 v12, 0x10000, v12\nglobal_load_dword v24, v12, s[{pWQ}:{pWQ+1}]")
a("s_branch L_aw0b")
others()
a("L_aw0b:")
if PAIRB: wq_setup(); srd(sWQ, pWQ, 0x80000)
ids()
srd(sWS, pWS, WS_SIZE); srd(sDBG, pDBG, 256)
stamp(0)
a(f"""v_and_b32 v16, 15, v0
v_lshrrev_b32 v14, 4, v0
s_lshl_b32 s{t0}, s{t5}, 4
v_add_u32 v13, s{t0}, v16
v_mul_u32_u24 v15, {XS}, v13
v_lshl_add_u32 v15, v14, 4, v15
v_lshlrev_b32 v19, 3, v16
v_lshl_add_u32 v19, v14, 8, v19
v_add_u32 v19, {WKV}, v19
s_lshr_b32 s{t0}, s{t5}, 1
s_lshl_b32 s{t1}, s{sRB}, 1
s_add_u32 s{t0}, s{t0}, s{t1}
s_lshl_b32 s{t0}, s{t0}, 11
s_and_b32 s{t1}, s{t5}, 1
s_lshl_b32 s{t1}, s{t1}, 8
s_add_u32 s{t4}, s{t0}, s{t1}
v_and_b32 v17, 1, v14
v_lshrrev_b32 v18, 1, v14
v_lshlrev_b32 v25, 4, v14
v_add_u32 v25, {GATE}, v25
v_lshlrev_b32 v26, 2, v0
s_lshl_b32 s{t3}, s{sL}, 6
s_add_u32 s{t3}, s{t3}, {WS_G}
""")
if NOACK:
    NTQ += 2
    a(f"""s_bitcmp1_b32 s{sHG}, 2
    s_cselect_b32 s{t0}, 1024, 0
    s_add_u32 s{t0}, s{t0}, s{t4}
    v_lshlrev_b32 v27, 9, v14
    v_lshl_add_u32 v27, v16, 4, v27
    v_mov_b32 v28, -1
    v_mov_b32 v29, -1
    v_mov_b32 v30, -1
    v_mov_b32 v31, -1
    s_mov_b32 exec_hi, 0
    buffer_store_dwordx4 v[28:31], v27, {sr(sWS,4)}, s{t0} offen sc1
    s_mov_b32 exec_lo, 0xffff
    buffer_store_dword v28, v26, {sr(sWS,4)}, s{t3} offen sc1
    s_mov_b64 exec, -1""")
if HAT == -3: a("s_barrier")
a(f"s_waitcnt vmcnt({32 + NTQ})")
NE = E("NE", 0)
if NE: a(f"buffer_load_dword v{aNON}, off, {sr(sDBG,4)}, 0 sc1"); NTQ += 1
if HAT == -2: a("s_barrier")
JG = KR + 128
for n in range(16): a(f"ds_read_b128 {vr(JG+4*n,4)}, v25 offset:{n*64}")
a(f"s_bitcmp1_b32 s{sHG}, 2\ns_cbranch_scc1 L_job_v")
def job(isv):
    a(f"v_lshlrev_b32 v20, 9, v{18 if isv else 17}\nv_lshl_add_u32 v17, v16, 4, v20")
    if isv: a(f"s_add_u32 s{t4}, s{t4}, 1024")
    ys("j0")
    a(f"s_waitcnt vmcnt({16 + NTQ})")
    if NOACK and not NE: a(f"buffer_load_dword v{aNON}, off, {sr(sDBG,4)}, 0 sc1")
    ys("xl")
    if HAT == -1: a("s_barrier")
    for n in range(16): a(f"ds_read_b128 {vr(JX+4*n,4)}, v15 offset:{n*64}")
    def grp(gq):
        a(f"s_waitcnt vmcnt({12 - 4*gq + NTQ + NOACK - NE})")
        if gq == 3: ys("wl")
        if gq == HAT: a("s_barrier")
        for n in range(4 * gq, 4 * gq + 4):
            a(f"ds_read_b64_tr_b16 {vr(JW+4*n,2)}, v19 offset:{n*1024}")
            a(f"ds_read_b64_tr_b16 {vr(JW+4*n+2,2)}, v19 offset:{n*1024+128}")
    def mm(gq):
        for n in range(4 * gq, 4 * gq + 4):
            A, B = (JX, JW) if isv else (JW, JX)
            a(f"v_mfma_f32_16x16x32_bf16 {vr(JA,4)}, {vr(A+4*n,4)}, {vr(B+4*n,4)}, {'0' if n == 0 else vr(JA,4)}")
        for n in {0: range(0, 8), 1: range(8, 16)}.get(gq, []):
            a(f"v_mfma_f32_16x16x32_bf16 {vr(JA+4,4)}, {vr(JG+4*n,4)}, {vr(JX+4*n,4)}, {'0' if n == 0 else vr(JA+4,4)}")
        if gq == 3:
            d = JA + 4
            a(f"v_mul_f32 v{d}, {hex(LOG2E | 0x80000000)}, v{d}\nv_exp_f32 v{d}, v{d}\nv_add_f32 v{d}, 1.0, v{d}\nv_rcp_f32 v{d}, v{d}")
    grp(0)
    for gq in range(4):
        if gq < 3: grp(gq + 1); a("s_waitcnt lgkmcnt(8)")
        elif NOACK: a("s_waitcnt lgkmcnt(0)")
        else: a(f"buffer_load_dword v{aNON}, off, {sr(sDBG,4)}, 0 sc1\ns_waitcnt lgkmcnt(0)")
        mm(gq)
    sw = "v_permlane16_swap_b32" if isv else "v_permlane32_swap_b32"
    a(f"""v_cvt_pk_bf16_f32 v20, v{JA}, v{JA+1}
    v_cvt_pk_bf16_f32 v21, v{JA+2}, v{JA+3}
    v_min_u32 v20, -2, v20
    v_min_u32 v{JA+4}, -2, v{JA+4}
    {sw} v20, v22
    {sw} v21, v23""")
    a("s_mov_b32 exec_lo, 0xffff\ns_mov_b32 exec_hi, 0xffff" if isv else "s_mov_b32 exec_hi, 0")
job(False)
a("s_branch L_job_st\nL_job_v:")
job(True)
a("L_job_st:")
if NOACK: a("s_waitcnt vmcnt(0)")
STAT = E("STAT", 0)
def job_store():
    a(f"""buffer_store_dwordx4 v[20:23], v17, {sr(sWS,4)}, s{t4} offen sc1
    s_mov_b64 exec, 0xffff
    buffer_store_dword v{JA+4}, v26, {sr(sWS,4)}, s{t3} offen sc1
    s_mov_b64 exec, -1""")
    stamp(8)
if STAT: a(f"s_mov_b64 s[{sRET}:{sRET+1}], exec\ns_mov_b64 exec, -1")
else: job_store()
if HAT == 4: a("s_barrier")
def job_flag():
    lp, dn = a.lab("np"), a.lab("npd")
    if FST == 4:
        a(f"""s_lshl_b32 s{t0}, s{sRB}, 7
        s_lshl_b32 s{t1}, s{sHG}, 2
        s_add_u32 s{t0}, s{t0}, s{t1}
        s_add_u32 s{t0}, s{t0}, {WS_F}""")
    else: a(f"s_mul_i32 s{t0}, s{sL}, {FST}\ns_add_u32 s{t0}, s{t0}, {WS_F}")
    if "nn" in YST: a("s_waitcnt vmcnt(1)"); ys("nn")
    if not NOACK: a("s_waitcnt vmcnt(0)")
    ys("ack")
    a(f"""v_cmp_eq_u32 vcc, 0, v{aNON}
    s_cbranch_vccnz {lp}
    {dn}:
    s_mov_b32 exec_lo, {hex((1 << (FST // 4)) - 1)}
    s_mov_b32 exec_hi, 0
    buffer_store_dword v{aNON}, v26, {sr(sWS,4)}, s{t0} offen sc1
    s_mov_b64 exec, -1""")
    a(f"v_mov_b32 v13, {NONCE}\nds_write_b32 v13, v{aNON}\ns_waitcnt lgkmcnt(0)")
    stamp(9)
    def slow():
        a(f"{lp}:"); budget(dn)
        a(f"""buffer_load_dword v{aNON}, off, {sr(sDBG,4)}, 0 sc1
        s_waitcnt vmcnt(0)
        v_cmp_eq_u32 vcc, 0, v{aNON}
        s_cbranch_vccnz {lp}
        s_branch {dn}""")
    cold.append(slow)
def aw_poll():
    if FST > 4: a(f"s_mul_i32 s{t1}, s{sW}, {64*FST}\nv_mul_u32_u24 v11, {FST}, v0\nv_add_u32 v11, s{t1}, v11")
    else: a(f"s_lshl_b32 s{t1}, s{sW}, 10\nv_lshrrev_b32 v11, 3, v0\nv_lshl_add_u32 v11, v11, 7, s{t1}\nv_and_b32 v14, 7, v0\nv_lshl_add_u32 v11, v14, 2, v11")
    poll_issue(11, S1, F_KV)
def aw_wait(word, target, nap=0, also=""):
    lp, dn = a.lab("aw"), a.lab("awd")
    a(f"""{lp}:
    ds_read_b32 v14, v9 offset:{SYNC - NONCE + 4*word}
    {also}
    s_waitcnt lgkmcnt(0)
    v_cmp_gt_u32 vcc, {target}, v14
    s_cbranch_vccz {dn}""")
    budget(dn)
    if nap: a(f"s_sleep {nap}")
    a(f"s_branch {lp}\n{dn}:")
def aw_signal(word):
    a(f"s_mov_b64 exec, 1\nds_add_u32 v9, v{vCV} offset:{SYNC - NONCE + 4*word}\ns_mov_b64 exec, -1")
if NOACK: FLAG1 = 1
if FLAG1 and not STAT: job_flag()
if not PAIRB:
    a("s_barrier")
    stamp(1)
if not FLAG1: job_flag()
a("s_branch L_aw03")

if E("ALN2", 1): a(".p2align 12")
a("L_aw12:")
ids()
wq_setup()
a(f"""s_mul_i32 s{sP}, s{sS}, 3
s_lshl_b32 s{t0}, s{t5}, 1
s_add_u32 s{sP}, s{sP}, s{t0}
s_add_u32 s{sP}, s{sP}, 2
v_mov_b32 v9, {NONCE}
v_mov_b32 v{vCV}, 1
s_waitcnt lgkmcnt(0)""")
srd(sX, pX, 0x200000); srd(sWQ, pWQ, 0x80000); srd(sWS, pWS, WS_SIZE)
vconst()
AV = Cnt(63)
for gq in range(3):
    a(f"""s_add_u32 s{t0}, s{sP}, {gq}
    s_and_b32 s{t0}, s{t0}, 7
    s_lshl_b32 s{sD1}, s{sRB}, 16
    s_lshl_b32 s{t2}, s{t0}, 13
    s_add_u32 s{sD1}, s{sD1}, s{t2}
    s_mul_i32 s{sD0}, s{t0}, {8*XS}""")
    if gq == 0:
        a("s_barrier")
        stamp(0)
    xrows(8)
def ld_wq(g):
    for n in range(8):
        a(f"s_add_u32 m0, s{sI}, {WQB + ((g + 1) % 4)*16384 + n*1024}\ns_add_u32 s{t1}, s{sJ}, {g*131072 + n*8192}")
        a(f"buffer_load_dwordx4 v11, {sr(sWQ,4)}, s{t1} offen lds")
    AV.issue(g, 8)
for g_ in range(WQE): ld_wq(g_)
ys("j0")
a(f"s_waitcnt vmcnt({AV.need(0) if G0H else 8*WQE})")
ys("xl")
a("s_barrier")
stamp(1)
if PAIRB:
    assert WQE == 2 and not G0H
    for b in range(2):
        a(f"s_waitcnt vmcnt({AV.need(b)})"); aw_signal(W_G + b); ys(f"l{b}")
    if POLLAT > 1: aw_wait(W_G + POLLAT, E("PCNT", 1), nap=1)
    if EPOLL: aw_poll()
else:
    for g_ in range(WQE, 2): ld_wq(g_)
    for b in range(4):
        if not LATE and max(WQE, 2) + b < 4: ld_wq(max(WQE, 2) + b)
        if not (G0H and b == 0):
            a(f"s_waitcnt vmcnt({AV.need(b)})")
            aw_signal(W_G + b)
        ys(f"l{b}")
        if LATE and max(WQE, 2) + b < 4: ld_wq(max(WQE, 2) + b)
a("s_branch L_aw_all")

a("L_aw3b:")
if PAIRB: wq_setup(); srd(sWQ, pWQ, 0x80000)
ids()
srd(sWS, pWS, WS_SIZE)
stamp(0)
a(f"""v_mov_b32 v24, 0
v_mov_b32 v25, 0
v_mov_b32 v26, 0
v_mov_b32 v27, 0
v_add_u32 v13, {LT}, v10""")
for n in range(4): a(f"ds_write_b128 v13, v[24:27] offset:{n*1024}")
a(f"""v_lshlrev_b32 v13, 2, v0
v_add_u32 v13, {MISC}, v13
v_lshrrev_b32 v14, 2, v0
v_cmp_eq_u32 vcc, 1, v14
v_cndmask_b32 v14, 0, v14, vcc
ds_write_b32 v13, v14""")
a("s_waitcnt lgkmcnt(0)\ns_barrier")
if PAIRB:
    if E("ALN", 1): a("s_branch L_aw_visit\nL_aw_back:")
    a("s_waitcnt vmcnt(0)\nL_aw03:\ns_barrier")
    stamp(1)
    AV.clear()
    def late_store():
        l_ = a.lab("ls")
        a(f"s_cmp_lg_u32 s{sW}, 0\ns_cbranch_scc1 {l_}\ns_mov_b64 exec, s[{sRET}:{sRET+1}]")
        job_store(); job_flag(); a(f"{l_}:")
    if STAT == 1: late_store()
    ld_wq(2)
    if STAT == 2: late_store()
    ld_wq(3)
    a(f"v_mov_b32 v9, {NONCE}\nv_mov_b32 v{vCV}, 1")
    vconst()
    if EPOLL and POLLAT == 1: aw_poll(); AV.issue("p")
    for b in (2, 3):
        a(f"s_waitcnt vmcnt({AV.need(b)})"); aw_signal(W_G + b); ys(f"l{b}")
        if EPOLL and b == POLLAT: aw_poll(); AV.issue("p")
else:
    a("s_waitcnt vmcnt(0)\ns_barrier")
    stamp(1)
    if E("ALN", 1): a("s_branch L_aw_visit\nL_aw_back:")
    a("L_aw03:")
    vconst()
    a(f"v_mov_b32 v9, {NONCE}\nv_mov_b32 v{vCV}, 1")
    if PKS < 0: aw_wait(W_G + POLLAT, 2, nap=2)
a("L_aw_all:")
if PKS >= 0: aw_wait(W_P, 1, nap=1)
if not EPOLL: aw_poll()
stamp(2)
aw_wait((NONCE - SYNC) // 4, 1)
a(f"s_lshl_b32 s{t4}, s{sW}, 15")
if FORCE_RD: a(f"s_mov_b32 s{sPF}, 0")
if ROT: a(f"s_lshr_b32 s{t2}, s2, 3\ns_and_b32 s{t2}, s{t2}, 7\ns_lshl_b32 s{t2}, s{t2}, 12\ns_add_u32 s{t4}, s{t4}, s{t2}")
a(f"v_readfirstlane_b32 s{sNON}, v14\ns_waitcnt vmcnt(0)")
poll_check(11, S1, F_KV, nap=E('ANAP', 2))
stamp(3)
kvn = [0]
KC = Cnt(63)
def kvload(k):
    if VMASK:
        for _ in range(k // 4):
            t = kvn[0] // 2
            if t == 16: return
            a(f"s_xor_b32 s{t3}, s{t4}, {t*2048}")
            for u in range(2):
                a(f"buffer_load_dwordx4 {vr(KR+4*(t+u),4)}, v10, {sr(sWS,4)}, s{t3} offen offset:{u*2048} sc1"); KC.issue(("k", t + u))
            a(f"s_mov_b64 exec, s[{sL2E}:{sL2E+1}]")
            for u in range(4):
                a(f"buffer_load_dwordx4 {vr(VR+8*t+4*u,4)}, v10, {sr(sWS,4)}, s{t3} offen offset:{(u//2)*2048 + 1024 + (u%2)*256} sc1"); KC.issue(("v", t + u // 2))
            a("s_mov_b64 exec, -1")
            kvn[0] += 4
        return
    for _ in range(k):
        n = kvn[0]; t = n // 2
        if n == 32: return
        if n % 4 == 0: a(f"s_xor_b32 s{t3}, s{t4}, {t*2048}")
        a(f"buffer_load_dwordx4 {vr(VR+8*t if n % 2 else KR+4*t,4)}, v10, {sr(sWS,4)}, s{t3} offen offset:{(n%4)*1024} sc1")
        KC.issue(("v" if n % 2 else "k", t))
        kvn[0] += 1
def kvwait(*tags):
    n = [x for x in (KC.need(t) for t in tags) if x is not None]
    if n: a(f"s_waitcnt vmcnt({min(n)})")
if VMASK: a(f"s_mov_b32 s{sL2E}, 0xffff\ns_mov_b32 s{sL2E+1}, 0xffff")
a("L_aw_kv:")
kvload(2 * PRE)
if NOACK: a("v_mov_b32 v11, 0")
a(f"""s_lshl_b32 s{t0}, s{sW}, 11
s_add_u32 s{t0}, s{t0}, {OP}
v_add_u32 v{vPA}, s{t0}, v10
v_add_u32 v{vQA}, {Q}, v10
s_lshl_b32 s{t0}, s{sW}, 8
s_add_u32 s{t0}, s{t0}, {LT}
v_lshl_add_u32 v{vLA}, v0, 2, s{t0}
v_mov_b32 v{vCA}, {CONS}
v_mov_b32 v{vIDX}, 0xdddd
v_mov_b32 v{vZ}, 0
v_mov_b32 v{vZ+1}, 0
s_movk_i32 s{t0}, 0x3f80
v_writelane_b32 v{vZ}, s{t0}, 20""")
a(f"""s_lshr_b32 s{sD0}, s{sW}, 1
s_lshl_b32 s{sD0}, s{sD0}, 10
s_and_b32 s{t0}, s{sW}, 1
s_lshl_b32 s{t0}, s{t0}, 3
s_add_u32 s{sD0}, s{sD0}, s{t0}""" if QFIN else f"s_mov_b32 s{sD0}, 0")
a(f"""s_add_u32 s{sD0}, s{sD0}, {OP + 3*8192}
s_lshl_b32 s{t0}, s{sRB}, 7
s_lshl_b32 s{t1}, s{sHG}, 2
s_add_u32 s{t0}, s{t0}, s{t1}
s_lshl_b32 s{sD1}, s{t0}, 10
s_add_u32 s{sD1}, s{sD1}, {WS_O + 67*1024}
s_mov_b32 s{t1}, {Q + 8*1024}""")
def redo():
    a("L_aw_redo:"); budget("L_aw_go")
    a("s_nop 15\ns_nop 15")
    vconst()
    a(f"v_mov_b32 v{vCV}, 0\ns_mov_b32 s{sPF}, 1\ns_branch L_aw_kv")
if NOACK: assert not VMASK; cold.append(redo)
def vfix(t):
    if NOACK: a(f"v_max3_u32 v11, v11, v{KR+4*t}, v{VR+8*t}")
    for r in range(4): a(f"v_permlane16_swap_b32 v{VR+8*t+r}, v{VR+8*t+4+r}")
for t in range(PSW):
    kvwait(("v", t)); ys(f"v{t}"); vfix(t); kvload(E("LPP", 2))
if E("QF", 1):
    a(f"v_mfma_f32_32x32x8_bf16 {vr(O_,16)}, {vr(vZ,2)}, {vr(vZ,2)}, 0\ns_mov_b32 s{sJ}, {7 if UNR else 0}")
if E("ALN", 1):
    a("s_branch L_aw_pg")
    emit_cold()
    a(".p2align 12\nL_aw_visit:\ns_branch " + ("L_aw_visit2" if UNR else "L_aw_back") + "\nL_aw_pg:")
def zero_o(): a(f"v_mfma_f32_32x32x8_bf16 {vr(O_,16)}, {vr(vZ,2)}, {vr(vZ,2)}, 0")
QF = E("QF", 1)
if QF:
    aw_wait(W_Q, 4, nap=E("QNAP", 1), also=f"ds_read_b128 {vr(QR,4)}, v{vQA}")
    a("s_setprio 1")
else:
    aw_wait(W_Q, 4, nap=E("QNAP", 1))
    a(f"ds_read_b128 {vr(QR,4)}, v{vQA}\ns_setprio 1")
stamp(4)
def qk(t, S): a(f"v_mfma_f32_32x32x16_bf16 {vr(S,16)}, {vr(KR+4*t,4)}, {vr(QR,4)}, 0")
def pv(t, s, S): a(f"v_smfmac_f32_32x32x32_bf16 {vr(O_,16)}, {vr(VR+8*t+4*s,4)}, {vr(S+8*s,8)}, v{vIDX}")
def flush_parts(j=None):
    so = 0 if j is None else j & 3
    co = 0 if j is None else 4 * j
    chk = j is None or j >= 4
    lp, dn = a.lab("cw"), a.lab("cwd")
    def slow():
        a(f"{lp}:"); budget(dn)
        a(f"""s_sleep 1
        ds_read_b32 v{vCV}, v{vCA} offset:{co}
        s_waitcnt lgkmcnt(0)
        v_cmp_eq_u32 vcc, 0, v{vCV}
        s_cbranch_vccnz {lp}
        s_branch {dn}""")
    if chk: cold.append(slow)
    return (f"v_cmp_eq_u32 vcc, 0, v{vCV}" if chk else "",
            (f"s_cbranch_vccnz {lp}\n{dn}:\n" if chk else "") + f"ds_write_b128 v{vPA}, {vr(O_,4)} offset:{so*8192}",
            f"ds_write_b128 v{vPA}, {vr(O_+4,4)} offset:{so*8192 + 1024}",
            f"ds_write_b32 v{vLA}, v{O_+8} offset:{so*1024}")
def flush(j=None):
    for x in flush_parts(j): a(x)
def apass(first, j=None):
    fl = None if first else flush_parts(None if j is None else j - 1)
    pos = (6, 11, 13, 15) if (j is None or j >= 5 or a.tr2) else (6, 13, 14, 15)
    for t in range(16):
        S, Sn = (S0, S1) if t % 2 == 0 else (S1, S0)
        if first: ys(f"t{t}")
        d = 3 if (t == 1 and not first) else 0
        for e in range(16):
            if t == 0 and not first and e in pos:
                a(fl[pos.index(e)])
                if e == 15: zero_o()
            if d and e == d - 1: pv(0, 0, Sn)
            if e == 2 + d and not (first and t == 0): pv((t - 1) % 16, 1, Sn)
            if e == 5 + d:
                if first and t < 15: assert kvn[0] > 2*(t+1); kvwait(("k", t + 1), ("v", t))
                if t == 15: a("s_waitcnt lgkmcnt(0)" if not first else "s_waitcnt vmcnt(0) lgkmcnt(0)")
                if not (j == 7 and t == 15): qk((t + 1) % 16, Sn)
                if t == 14 and j is None:
                    a(f"v_add_u32 v{vQA}, 1024, v{vQA}\nds_read_b128 {vr(QR,4)}, v{vQA}\nds_read_b32 v{vCV}, v{vCA}")
                if t == 14 and j is not None:
                    if j < 7: a(f"ds_read_b128 {vr(QR,4)}, v{vQA} offset:{(j + 1)*1024}")
                    if j >= 4: a(f"ds_read_b32 v{vCV}, v{vCA} offset:{4*j}")
                if d and j is None:
                    a(f"""s_add_u32 s{sJ}, s{sJ}, 1
                    s_cmp_eq_u32 s{sJ}, 4
                    s_cselect_b32 s{t0}, -3, 1
                    v_lshl_add_u32 v{vPA}, s{t0}, 13, v{vPA}
                    v_lshl_add_u32 v{vLA}, s{t0}, 10, v{vLA}
                    v_add_u32 v{vCA}, 4, v{vCA}""")
            if first and LSP and e in (6, 10, 14, 1)[:LPT]: kvload(1)
            if e == 8 and first:
                if t >= PSW: vfix(t)
                if not LSP: kvload(LPT)
                if SPF == 3 and t == E("SPT", 0): aw_signal(W_P)
                if t == SIGT: aw_signal(W_KV)
            if first and NOACK and t == 15:
                if e == 10: a("v_cmp_eq_u32 vcc, -1, v11" if not FORCE_RD else f"v_cmp_eq_u32 vcc, s{sPF}, v{vZ+1}")
                if e == 14: a("s_cbranch_vccnz L_aw_redo\nL_aw_go:")
            if e == 15 and not (t == 0 and not first): pv(t, 0, S)
            a(f"v_exp_f32 v{S+e}, v{S+e}")
if not QF:
    zero_o()
    a(f"s_mov_b32 s{sJ}, 0\ns_waitcnt lgkmcnt(0)")
kvwait(("k", 0))
qk(0, S0)
stamp(5)
apass(True, 0 if UNR else None)
stamp(6)
if DIAG and not YST: a(f"s_memtime s[96:97]\ns_mov_b32 s31, s{sBUD}")
if UNR:
    for j in range(1, 8):
        if j % 2 == 0:
            a(f"s_branch L_aw_pg{j}")
            emit_cold()
            a(f".p2align 12\nL_aw_visit{j}:\ns_branch {'L_aw_visit%d' % (j + 2) if j < 6 else 'L_aw_back'}\ns_nop 0\nL_aw_pg{j}:")
        apass(False, j)
else:
    a(".p2align 4\nL_aloop:")
    apass(False)
    if DIAG and os.environ.get("PASSST"):
        for n, sl in zip(range(1, 7), (0, 1, 2, 3, 4, 11)):
            l = a.lab("st")
            a(f"s_cmp_lg_u32 s{sJ}, {n}\ns_cbranch_scc1 {l}"); stamp(sl); a(f"{l}:")
    a(f"s_cmp_lt_u32 s{sJ}, 7\ns_cbranch_scc1 L_aloop")
pv(15, 1, S1)
if not NOB:
    a(f"""v_lshlrev_b32 v251, 2, v0
    v_add_u32 v13, {G1}, v251
    ds_read_b64 v[18:19], v9 offset:{SYNC - NONCE + 4*W_OB}
    ds_read_b32 v233, v13
    v_and_b32 v14, 3, v0
    v_lshlrev_b32 v14, 8, v14
    v_add_u32 v14, {LT + 3*1024}, v14
    v_and_b32 v15, 124, v251
    v_add_u32 v15, {LT + 3*1024}, v15
    v_add_u32 v140, s{sD0}, v10""")
else: a("s_nop 9")
flush(7 if UNR else None)
stamp(7)
if DIAG and not YST: a("s_memtime s[98:99]\ns_waitcnt lgkmcnt(0)\ns_sub_u32 s30, s98, s96\ns_sub_u32 s31, s31, s77")
if not NOB:
    lp, dn = a.lab("ob"), a.lab("obd")
    a(f"s_setprio 3\ns_mov_b32 s{t4}, s{sD1}")
    if not QFIN: a(f"s_cmp_lg_u32 s{sW}, 3\ns_cbranch_scc1 L_aw_end")
    a(f"""s_waitcnt lgkmcnt(3)
    v_cmp_gt_u32 vcc, 4, v18
    s_cbranch_vccnz {lp}
    {dn}:
    v_readfirstlane_b32 s{sFAR}, v19
    s_lshl_b32 s{sFAR}, s{sFAR}, 6""")
    if not QFIN: fin_body(False, "L_aw_fb", 0)
    else:
        l1, d1 = a.lab("fw"), a.lab("fwd")
        a(f"v_lshl_add_u32 v16, s{sW}, 2, v10\n{l1}:\nds_read_b32 v3, v14 offset:208\ns_waitcnt lgkmcnt(0)\nv_cmp_eq_u32 vcc, 0, v3\ns_cbranch_vccz {d1}")
        budget(d1)
        a(f"s_branch {l1}\n{d1}:")
        a("ds_read2st64_b32 v[20:21], v15 offset0:0 offset1:1\nds_read2st64_b32 v[22:23], v15 offset0:2 offset1:3")
        for w_ in range(4): a(f"ds_read_b64 v[{24+2*w_}:{25+2*w_}], v140 offset:{w_*2048}")
        a(f"""s_waitcnt lgkmcnt(4)
        v_add_f32 v20, v20, v22
        v_add_f32 v21, v21, v23
        v_add_f32 v20, v20, v21
        v_rcp_f32 v21, v20
        s_waitcnt lgkmcnt(0)
        v_add_f32 v24, v24, v26
        v_add_f32 v28, v28, v30
        v_add_f32 v25, v25, v27
        v_add_f32 v29, v29, v31
        v_mul_f32 v21, v21, v233
        v_add_f32 v24, v24, v28
        v_add_f32 v25, v25, v29
        v_fma_f32 v20, v24, 0, v20
        v_fma_f32 v20, v25, 0, v20
        v_mul_f32 v24, v24, v21
        v_mul_f32 v25, v25, v21
        v_subrev_u32 v20, {hex((127-40)<<23)}, v20
        v_cmp_lt_u32 vcc, {hex(100<<23)}, v20
        v_cvt_pk_bf16_f32 v24, v24, v25
        s_cbranch_vccnz L_aw_fb""")
        if FORCE_FB: a("s_branch L_aw_fb")
        a(f"""v_min_u32 v24, -2, v24
        s_cmp_ge_u32 s{sJ}, s{sFAR}
        s_cbranch_scc0 L_aw_far
        buffer_store_dword v24, v16, {sr(sWS,4)}, s{t4} offen""")
        cold.append(lambda: a(f"L_aw_far:\nbuffer_store_dword v24, v16, {sr(sWS,4)}, s{t4} offen sc1\ns_endpgm"))
    a("L_aw_end:")
    cold.append(lambda: a(f"L_aw_fb:\ns_call_b64 s[{sRET}:{sRET+1}], L_fb\ns_endpgm"))
    def slow():
        a(f"{lp}:"); budget(dn)
        a(f"""s_sleep 2
        ds_read_b64 v[18:19], v9 offset:{SYNC - NONCE + 4*W_OB}
        ds_read_b32 v233, v13
        s_waitcnt lgkmcnt(0)
        v_cmp_gt_u32 vcc, 4, v18
        s_cbranch_vccnz {lp}
        s_branch {dn}""")
    cold.append(slow)
    stamp(10)
diag_dump(8)
hold()
a("s_endpgm")
emit_cold()

role[0] = "S"
vONE, vSY, vT = 1, 2, 3
vXA, vWX, vWO, vWOA, vD3, vD1, vL16, vGI, vGO = 4, 5, 6, 7, 8, 9, 10, 11, 12
WPH, PHQ, ACC, AC2, WB0, TMP = 16, 24, 40, 56, 72, 104
vNON, vGF, vLI, vPF = 232, 233, 234, 235
vSW, vSR, vSR2, vSV, vSVR = 236, 240, 241, 242, 243
FOUT = 244
vPO, vT2, vL4, vWP, vPR, vPC, vKS = 248, 249, 251, 252, 253, 254, 255
XF = TMP; WR = WB0
VM, LG = Cnt(63), Cnt(15)
def wait(vm=None, lg=None):
    if isinstance(vm, tuple) and vm[0] == "st": assert (vm[1], 3) in issued, vm
    v = VM.need(vm) if vm is not None else None
    l = LG.need(lg) if lg is not None else None
    t = ([f"vmcnt({v})"] if v is not None else []) + ([f"lgkmcnt({l})"] if l is not None else [])
    if t: a("s_waitcnt " + " ".join(t))
def newword():
    nword[0] += 1; assert nword[0] <= 48; return nword[0] - 1
def arrive(w=None):
    w = newword() if w is None else w
    a(f"s_mov_b64 exec, 1\nds_add_u32 v{vSY}, v{vONE} offset:{4*w}\ns_mov_b64 exec, -1")
    LG.issue("arr")
    return w
def chk_read(w):
    a(f"ds_read_b32 v{vT}, v{vSY} offset:{4*w}"); LG.issue("chk")
def chk_test(w, target=4, lowprio=False, nap=0, near=False):
    dn, rt = a.lab("sbd"), a.lab("sbr")
    if near:
        wait(lg="chk")
        a(f"{rt}:\nv_readfirstlane_b32 s{t0}, v{vT}\ns_cmp_ge_u32 s{t0}, {target}\ns_cbranch_scc1 {dn}")
        budget(dn)
        a(f"ds_read_b32 v{vT}, v{vSY} offset:{4*w}\ns_waitcnt lgkmcnt(0)\ns_branch {rt}\n{dn}:")
        return
    if lowprio: a("s_setprio 2")
    wait(lg="chk")
    a(f"v_readfirstlane_b32 s{t0}, v{vT}\ns_cmp_lt_u32 s{t0}, {target}\ns_cbranch_scc1 {rt}\n{dn}:")
    if lowprio: a("s_setprio 0")
    def slow():
        a(f"{rt}:"); budget(dn)
        if nap: a(f"s_sleep {nap}")
        a(f"""ds_read_b32 v{vT}, v{vSY} offset:{4*w}
        s_waitcnt lgkmcnt(0)
        v_readfirstlane_b32 s{t0}, v{vT}
        s_cmp_lt_u32 s{t0}, {target}
        s_cbranch_scc1 {rt}
        s_branch {dn}""")
    cold.append(slow)
def check(w, target=4, nap=0): chk_read(w); chk_test(w, target, nap=nap)
class only:
    def __init__(s, reg, val): s.reg, s.val = reg, val
    def __enter__(s):
        s.l = a.lab("only"); a(f"s_cmp_lg_u32 s{s.reg}, {s.val}\ns_cbranch_scc1 {s.l}")
        s.sv = (list(VM.q), list(LG.q))
    def __exit__(s, *e):
        a(f"{s.l}:"); VM.q, LG.q = s.sv
def flag(plane): a(f"s_add_u32 s{t0}, s{sFL}, {plane*FP}"); put_flag(t0, vNON, vL4)
def call_fin(greg):
    a(f"v_mov_b32 v{vGF}, v{greg}\ns_call_b64 s[{sRET}:{sRET+1}], L_fin\ns_nop 1")
def dma_base(kind):
    a(f"s_lshl_b32 s{t1}, s{sHG}, 7")
    if kind == "kv":
        a(f"s_mul_i32 s{sD1}, s{sP}, {32*3072}\ns_add_u32 s{sD1}, s{sD1}, s{t1}\ns_lshl_b32 s{t1}, s{sI}, 10\ns_add_u32 s{sD1}, s{sD1}, s{t1}\ns_add_u32 s{sD1}, s{sD1}, 1024")
    elif kind == "q":
        a(f"s_mul_i32 s{sD1}, s{sS}, {32*3072}\ns_add_u32 s{sD1}, s{sD1}, s{t1}")
    else:
        a(f"s_lshl_b32 s{sD1}, s{sS}, 15\ns_add_u32 s{sD1}, s{sD1}, s{t1}")
def dma_one(c, n):
    if n == 0 and c in (8, 12): dma_base("q" if c == 8 else "o")
    if c < 8:   srdw, vo, base, step = sWB, vD3, c * 64 * 3072, 8 * 3072
    elif c < 12: srdw, vo, base, step = sWB, vD3, (c - 8) * 128 * 3072, 8 * 3072
    else:       srdw, vo, base, step = sWOB if c < 16 else sWOA, vD1, (c % 4) * 128 * 1024, 8 * 1024
    a(f"s_add_u32 m0, s{sD0}, {STG[c] + n*1024}\ns_add_u32 s{t1}, s{sD1}, {base + n*step}")
    a(f"buffer_load_dwordx4 v{vo}, {sr(srdw,4)}, s{t1} offen lds")
    VM.issue(("st", c)); issued.add((c, n))
issued = set()
def dma_stage(c):
    for n in range(4): dma_one(c, n)
def rd_w(dst, vaddr, off, second, tag=None):
    a(f"ds_read_b64_tr_b16 {vr(dst,2)}, v{vaddr} offset:{off}\nds_read_b64_tr_b16 {vr(dst+2,2)}, v{vaddr} offset:{off+second}")
    LG.issue(tag, 2)
def rd_stage(dst, c, k, tag):
    if STG[c] < OP: rd_w(dst, vWX, STG[c] + k * 2048, 512, tag)
    else: rd_w(dst, vWP, STG[c] - WQB + k * 2048, 512, tag)

a(".p2align 6\nL_sw:")
ids()
a(f"""s_setprio 2
s_and_b32 s{sS}, s{sW}, 3
s_lshr_b32 s{sI}, s{sS}, 1
s_and_b32 s{sP}, s{sS}, 1""")
dma_lane_addrs()
SCP = R1
SCV = R2
assert SCP % 64 == 0 and X == 0
a(f"""v_and_b32 v11, 31, v0
s_lshl_b32 s{t0}, s{sI}, 5
v_add_u32 v13, s{t0}, v11
v_mul_u32_u24 v{vXA}, {XS}, v13
v_lshrrev_b32 v12, 5, v0
v_lshl_add_u32 v{vXA}, v12, 4, v{vXA}
v_and_b32 v13, 15, v0
v_lshrrev_b32 v16, 2, v13
v_lshlrev_b32 v14, 7, v16
v_lshrrev_b32 v15, 3, v13
v_xor_b32 v15, s{sP}, v15
v_lshl_add_u32 v14, v15, 6, v14
v_bfe_u32 v17, v0, 4, 1
v_lshl_add_u32 v14, v17, 5, v14
v_and_b32 v18, 3, v0
v_lshl_add_u32 v14, v18, 3, v14
v_lshl_add_u32 v{vWX}, v12, 10, v14
v_lshl_add_u32 v{vWOA}, v12, 9, v14
v_add_u32 v{vWP}, {WQB}, v{vWX}
v_add_u32 v{vWO}, {RING}, v{vWOA}
v_mov_b32 v{vONE}, 1
v_mov_b32 v250, 0
v_mov_b32 v{vSY}, {SYNC}
v_lshlrev_b32 v{vL4}, 2, v0
v_min_u32 v15, 16, v11
v_mad_u32_u24 v{vLI}, v12, 20, v15
v_lshlrev_b32 v{vLI}, 4, v{vLI}
v_mul_u32_u24 v15, {32*PREC}, v12
v_lshl_add_u32 v{vPR}, v11, 4, v15
v_lshl_add_u32 v{vKS}, v12, 7, v{vL4}
s_lshl_b32 s{t0}, s{sRB}, 10
v_and_b32 v{vPF}, 7, v0
v_lshlrev_b32 v{vPF}, 7, v{vPF}
v_add_u32 v{vPF}, s{t0}, v{vPF}
s_lshl_b32 s{t0}, s{sHG}, 7
v_lshlrev_b32 v{vPC}, 10, v11
v_add_u32 v{vPC}, s{t0}, v{vPC}
v_bfe_u32 v14, v0, 1, 3
v_xor_b32 v14, v14, v12
v_lshlrev_b32 v14, 3, v14
v_lshl_add_u32 v14, v11, 6, v14
s_lshl_b32 s{t0}, s{sI}, 11
s_lshl_b32 s{t1}, s{sP}, 13
s_add_u32 s{t0}, s{t0}, s{t1}
s_add_u32 s{t0}, s{t0}, {SCP}
v_add_u32 v{vSW}, s{t0}, v14
v_xor_b32 v{vSW+1}, 16, v{vSW}
v_xor_b32 v{vSW+2}, 32, v{vSW}
v_xor_b32 v{vSW+3}, 48, v{vSW}
v_lshl_add_u32 v15, v12, 2, v16
v_lshrrev_b32 v14, 1, v15
v_lshl_add_u32 v19, v17, 2, v18
v_xor_b32 v14, v14, v19
v_lshlrev_b32 v14, 3, v14
v_lshl_add_u32 v15, v15, 6, v14
s_lshl_b32 s{t3}, s{sP}, 1
s_add_u32 s{t3}, s{t3}, s{sI}
s_lshl_b32 s{t0}, s{t3}, 12
s_add_u32 s{t0}, s{t0}, {SCP}
v_add_u32 v{vSR}, s{t0}, v15
v_xor_b32 v{vSR2}, 32, v{vSR}
s_lshl_b32 s{t0}, s{sS}, 11
s_add_u32 s{t0}, s{t0}, {SCV}
v_add_u32 v{vSV}, s{t0}, v{vL16}
v_lshlrev_b32 v14, 4, v13
v_lshl_add_u32 v14, v12, 9, v14
s_lshl_b32 s{t0}, s{sP}, 11
s_lshl_b32 s{t1}, s{sI}, 8
s_add_u32 s{t0}, s{t0}, s{t1}
s_add_u32 s{t0}, s{t0}, {SCV}
v_add_u32 v{vSVR}, s{t0}, v14
v_lshrrev_b32 v14, 1, v18
v_lshl_add_u32 v14, v17, 1, v14
v_lshlrev_b32 v14, 3, v14
v_lshl_add_u32 v{FOUT}, v16, 5, v14
v_lshl_add_u32 v{FOUT}, v12, 7, v{FOUT}
s_lshl_b32 s{t0}, s{sP}, 10
s_add_u32 s{t0}, s{t0}, {WPHI}
v_add_u32 v{FOUT}, s{t0}, v{FOUT}
v_lshlrev_b32 v{FOUT+1}, 31, v16
v_or_b32 v{FOUT+1}, {hex(LOG2E)}, v{FOUT+1}
s_lshl_b32 s{t0}, s{sS}, 11
s_add_u32 s{t0}, s{t0}, {Q}
v_add_u32 v{FOUT+2}, s{t0}, v{vL16}
s_lshl_b32 s{sD0}, s{sS}, 12""")
a("s_waitcnt lgkmcnt(0)")
srd(sWS, pWS, WS_SIZE); srd(sWB, pWQKV, 0x180000); srd(sWOA, pWOA, 0x80000); srd(sWOB, pWOB, 0x80000); srd(sOUT, pOUT, 0x200000)
dma_base("kv")
if SPF:
    a(f"""s_lshr_b32 s{t0}, s2, 2
    s_mul_i32 s{t0}, s{t0}, 3072
    s_and_b32 s{t1}, s2, 3
    s_lshl_b32 s{t1}, s{t1}, 2
    s_add_u32 s{t1}, s{t1}, s{sS}
    s_lshl_b32 s{t1}, s{t1}, 7
    s_add_u32 s{t0}, s{t0}, s{t1}
    s_add_u32 s{t0}, s{t0}, 1024
    s_add_u32 s{sSM}, s{pWQKV}, s{t0}
    s_addc_u32 s{sSM+1}, s{pWQKV+1}, 0
    s_add_u32 s{sSM+2}, s{sSM}, {4*64*3072}
    s_addc_u32 s{sSM+3}, s{sSM+1}, 0""")
SWQ = os.environ.get("SWQ", "")
def swq(groups):
    for g_ in groups:
        for n in range(16): a(f"s_load_dword s96, s[{sWKV}:{sWKV+1}], {int(g_)*131072 + (n//2)*1024 + (n%2)*64}")
if SWQ:
    assert MAP == 1
    a(f"""s_and_b32 s{t0}, s{sRB}, 3
    s_lshl_b32 s{t0}, s{t0}, 2
    s_add_u32 s{t0}, s{t0}, s{sS}
    s_lshl_b32 s{t0}, s{t0}, 13
    s_lshl_b32 s{t1}, s{sHG}, 7
    s_add_u32 s{t0}, s{t0}, s{t1}
    s_add_u32 s{sWKV}, s{pWQ}, s{t0}
    s_addc_u32 s{sWKV+1}, s{pWQ+1}, 0""")
    swq(SWQ.split("/")[0])
stamp(0)
a("s_barrier")
if SWQ: swq(SWQ.split("/")[1])
def spf(k):
    for n in range(k): a(f"s_load_dword s96, s[{sSM + 2*(n//8)}:{sSM + 2*(n//8) + 1}], {((n//2) % 4)*64*3072 + 64*(n%2)}")
if SPF == 1: spf(15)
a("s_barrier")
stamp(1)
xn = [0]
def xread(k):
    for _ in range(k):
        if xn[0] < 32:
            a(f"ds_read_b128 {vr(XF+4*xn[0],4)}, v{vXA} offset:{xn[0]*32}"); LG.issue("x"); xn[0] += 1
assert not XJ
for hh in range(2): rd_w(WPH + 4 * hh, FOUT, hh * 512, 256, "ph")
xread(8); wait(lg="ph")
for r in range(8):
    a(f"v_lshlrev_b32 v14, 16, v{WPH+r}\nv_and_b32 v15, 0xffff0000, v{WPH+r}"); xread(1)
    a(f"v_mul_f32 v14, v14, v{FOUT+1}\nv_mul_f32 v15, v15, v{FOUT+1}"); xread(1)
    a(f"v_cvt_pk_bf16_f32 v{WPH+r}, v14, v15"); xread(1)
qcold = []
def qtest(g, part):
    if part == 0: wait(lg="chk"); a(f"v_readfirstlane_b32 s{t0}, v{vT}")
    else:
        rt, dn = a.lab("qr"), a.lab("qd")
        a(f"s_cmp_lt_u32 s{t0}, 2\ns_cbranch_scc1 {rt}\n{dn}:")
        def slow():
            a(f"{rt}:"); budget(dn)
            a(f"ds_read_b32 v{vT}, v{vSY} offset:{4*(W_G+g)}\ns_waitcnt lgkmcnt(0)\nv_readfirstlane_b32 s{t0}, v{vT}\ns_cmp_lt_u32 s{t0}, 2\ns_cbranch_scc1 {rt}\ns_branch {dn}")
        qcold.append(slow)
def qreads(ks):
    if ks == 0: chk_read(W_G); chk_test(W_G, 2, near=True)
    elif ks % 8 == 0: qtest(ks // 8, 1)
    rd_w(WR + 4 * (ks % 8), vWP, ((ks + 8) % 32) * 2048, 512, ("w", ks))
    if ks % 8 == 5 and ks < 24: chk_read(W_G + ks // 8 + 1)
    if ks % 8 == 7 and ks < 24: qtest(ks // 8 + 1, 0)
for ks in range(DQ): qreads(ks)
for ks in range(32):
    xread(XJ)
    if ks + DQ < 32: qreads(ks + DQ)
    wait(lg=("w", ks))
    a(f"v_mfma_f32_32x32x16_bf16 {vr(ACC,16)}, {vr(WR+4*(ks%8),4)}, {vr(XF+4*ks,4)}, {'0' if ks == 0 else vr(ACC,16)}")
    if ks == PKS: arrive(W_P)
    xs(f"q{ks}")
a(f"s_mov_b32 s{t1}, {hex(QSCALE)}\ns_mov_b32 s{t2}, {hex(QSCALE)}")
for hh in range(2):
    for r in range(8 * hh, 8 * hh + 8, 2): a(f"v_pk_mul_f32 {vr(ACC+r,2)}, {vr(ACC+r,2)}, s[{t1}:{t2}]")
    for r in range(4 * hh, 4 * hh + 4): a(f"v_cvt_pk_bf16_f32 v{PHQ+r}, v{ACC+2*r}, v{ACC+2*r+1}")
    a(f"ds_write_b128 v{FOUT+2}, {vr(PHQ+4*hh,4)} offset:{1024*hh}")
arrive(W_Q)
stamp(2)
a("s_branch L_sw_q")
for f_ in qcold: f_()
a("L_sw_q:")
for r in range(4): a(f"v_mov_b32 v{FOUT+r}, -1")
LG.clear()
if SPF == 2: spf(16)
if SPF == 3:
    check(W_P, E("SPN", 4), nap=2); spf(16)
if SP2:
    a(f"""s_lshl_b32 s{t0}, s2, 2
    s_add_u32 s{t0}, s{t0}, s{sS}
    s_lshl_b32 s{t0}, s{t0}, 9
    s_lshr_b32 s{t1}, s{t0}, 10
    s_lshl_b32 s{t1}, s{t1}, 11
    s_add_u32 s{t1}, s{t1}, s{t0}""")
    for (q_, o_) in ((sWB, t1), (sWOB, t0), (sWOA, t0))[:SP2]:
        a(f"s_add_u32 s{sX}, s{q_}, s{o_}\ns_addc_u32 s{sX+1}, s{q_+1}, 0")
        for n in range(8): a(f"s_load_dword s96, s[{sX}:{sX+1}], {64*n}")
DA = 2
def rd_a(n):
    rd_stage(WR + 8 * (n % 4), n // 4, n % 4, ("w", n)); rd_stage(WR + 8 * (n % 4) + 4, n // 4, 4 + n % 4, ("w", n))
def wgemm(items, slots, ahead, events=None, pre=None, extra=None, primed=0):
    N = len(items); events = events or {}; pre = pre or {}
    def rd(i):
        for f in pre.get(i, []): f()
        if items[i][0]: items[i][0](slots[i % len(slots)], ("w", i))
    assert ahead + PW <= len(slots)
    for i in range(primed, min(ahead, N)): rd(i)
    a("s_setprio 0")
    for g0 in range(0, N, PW):
        grp = list(range(g0, min(g0 + PW, N)))
        lgs = [i for i in grp if items[i][0]]
        wait(vm=items[grp[-1]][2], lg=("w", lgs[-1]) if lgs else None)
        for i in grp:
            t = items[i][1](slots[i % len(slots)])
            if PUSH and i == g0 + 2: a(f"s_setprio 2\n{t}\ns_setprio 0")
            else: a(t)
        for i in grp:
            if i + ahead < N: rd(i + ahead)
        for i in grp:
            if extra: extra(i)
            for f in events.get(i, []): f()
    a("s_setprio 2")
def mm_a(n, mid=None):
    wait(lg=("w", n))
    w = WR + 8 * (n % 4)
    em = a
    em(f"v_mfma_f32_32x32x16_bf16 {vr(ACC,16)}, {vr(w,4)}, {vr(XF+4*n,4)}, {'0' if n == 0 else vr(ACC,16)}")
    if mid: mid()
    em(f"v_mfma_f32_32x32x16_bf16 {vr(AC2,16)}, {vr(XF+4*n,4)}, {vr(w+4,4)}, {'0' if n == 0 else vr(AC2,16)}")
a(f"""v_and_b32 v13, 124, v{vL4}
s_lshl_b32 s{t2}, s{sRB}, 9
s_add_u32 s{t2}, s{t2}, {WS_G}
s_lshl_b32 s{t1}, s{sI}, 7
s_add_u32 s{t2}, s{t2}, s{t1}
s_xor_b32 s{t3}, s{t2}, 128""")
check(W_KV, 4, nap=2)
xs("a13")
if ST0 and not NOB: dma_stage(0)
a(f"""v_mov_b32 v14, {NONCE}
ds_read_b32 v{vNON}, v14
buffer_load_dword v{vGI}, v13, {sr(sWS,4)}, s{t2} offen sc1
buffer_load_dword v{vGO}, v13, {sr(sWS,4)}, s{t3} offen sc1""")
VM.issue("g", 2)
def gates(): pass
if NOB:
    wait(vm="g"); gates()
    a(f"s_mov_b32 s{sJ}, s{sS}"); call_fin(vGI)
    stamp(4)
    a(f"s_add_u32 s{sJ}, s{sS}, 4"); call_fin(vGI)
    stamp(5)
    diag_dump(13)
    a("s_endpgm")
NST = 0; N1 = 0
for c in range(ST0, 3): dma_stage(c)
a("v_lshlrev_b32 v13, 7, v0")
def wot():
    if SP2 == 3: return
    a(f"""s_lshl_b32 s{t0}, s2, 2
    s_add_u32 s{t0}, s{t0}, s{sS}
    s_lshl_b32 s{t0}, s{t0}, 9
    s_mov_b64 exec, 15
    buffer_load_dword v{vT2}, v13, {sr(sWOA,4)}, s{t0} offen""")
    if SP2 < 2: a(f"buffer_load_dword v{vT2}, v13, {sr(sWOB,4)}, s{t0} offen")
    if SP2 < 1: a(f"""s_lshr_b32 s{t1}, s{t0}, 10
    s_lshl_b32 s{t1}, s{t1}, 11
    s_add_u32 s{t0}, s{t0}, s{t1}
    buffer_load_dword v{vT2}, v13, {sr(sWB,4)}, s{t0} offen""")
    a("s_mov_b64 exec, -1")
    VM.issue("wot", 3 - SP2)
wait(vm=("st", NST)); w = arrive()
wait(vm="g")
if NOACK:
    lp_, dn_ = a.lab("gl"), a.lab("gld")
    a(f"v_max_u32 v{vT}, v{vGI}, v{vGO}\nv_cmp_eq_u32 vcc, -1, v{vT}\ns_cbranch_vccnz {lp_}\n{dn_}:")
    def gslow():
        a(f"{lp_}:"); budget(dn_)
        a(f"""v_and_b32 v14, 124, v{vL4}
        buffer_load_dword v{vGI}, v14, {sr(sWS,4)}, s{t2} offen sc1
        buffer_load_dword v{vGO}, v14, {sr(sWS,4)}, s{t3} offen sc1
        s_waitcnt vmcnt(0)
        v_max_u32 v{vT}, v{vGI}, v{vGO}
        v_cmp_eq_u32 vcc, -1, v{vT}
        s_cbranch_vccnz {lp_}
        s_branch {dn_}""")
    cold.append(gslow)
gates()
check(w)
a(f"""v_readfirstlane_b32 s{sNON}, v{vNON}
s_getreg_b32 s{sL2E}, hwreg(HW_REG_XCC_ID)
s_mov_b32 s{sFAR}, 64
v_writelane_b32 v{vNON}, s{sL2E}, 1""")
stamp(3)
FIL = FOUT
def kvf_addr():
    a(f"""s_and_b32 s{t0}, s{sRB}, 3
    s_lshl_b32 s{t1}, s{sHG}, 2
    s_add_u32 s{t0}, s{t0}, s{t1}
    s_lshl_b32 s{t0}, s{t0}, 2
    s_lshr_b32 s{t1}, s{sRB}, 3
    s_add_u32 s{t0}, s{t0}, s{t1}
    s_lshl_b32 s{t0}, s{t0}, 9
    s_and_b32 s{t1}, s{sRB}, 4
    s_lshl_b32 s{t1}, s{t1}, 5
    s_add_u32 s{t0}, s{t0}, s{t1}
    s_add_u32 s{t0}, s{t0}, {WS_KVF}""")
a(f"""s_lshl_b32 s{sPF}, s{sRB}, 2
s_add_u32 s{sPF}, s{sPF}, s{sS}
s_lshl_b32 s{sPF}, s{sPF}, 15
s_lshl_b32 s{t1}, s{sHG}, 12
s_add_u32 s{sPF}, s{sPF}, s{t1}
s_add_u32 s{sPF}, s{sPF}, {WS_O}""")
def filler(r):
    if r < 4: a(f"buffer_store_dwordx4 {vr(FIL,4)}, v{vL16}, {sr(sWS,4)}, s{sPF} offen offset:{r*1024} sc1"); VM.issue("fil")
    else:
        with only(sS, 2):
            kvf_addr()
            a(f"buffer_store_dword v{FIL}, v{vKS}, {sr(sWS,4)}, s{t0} offen sc1")
SL = [WR + 4 * n for n in range(8)] + [PHQ + 4 * n for n in range(4)]
AH = 6
its = []
for n in range(N1, 32):
    its.append((lambda d, tg, n=n: rd_stage(d, n // 4, n % 4, tg), lambda w_, n=n: f"v_mfma_f32_32x32x16_bf16 {vr(ACC,16)}, {vr(w_,4)}, {vr(XF+4*n,4)}, {vr(ACC,16) if n else 0}", None))
    its.append((lambda d, tg, n=n: rd_stage(d, n // 4, 4 + n % 4, tg), lambda w_, n=n: f"v_mfma_f32_32x32x16_bf16 {vr(AC2,16)}, {vr(XF+4*n,4)}, {vr(w_,4)}, {vr(AC2,16) if n else 0}", None))
pre, tested = {}, set(range(NST))
cur = {}
for c in range(NST + 1, 9):
    i0_ = 8 * (c - NST)
    def arr(c=c):
        if c < 8: wait(vm=("st", c + 1 if (G2 and c >= 2) else c))
        cur[c] = arrive()
    def tst(c=c): chk_test(cur[c], lowprio=True); tested.update((c - 2, c - 3))
    if c < 8 and not (G2 and c >= 3 and c % 2):
        pre.setdefault(max(i0_ - PW - 2, AH), []).append(arr)
        pre.setdefault(max(i0_ - 2, AH), []).append(lambda c=c: chk_read(cur[c]))
        pre.setdefault(i0_, []).append(tst)
dq = [(c, n) for c in range(NST + 3, 12) for n in range(4)]
def dma_next(i):
    if dq:
        prev = [k for k in range(dq[0][0]) if STG[k] == STG[dq[0][0]]]
        if not prev or prev[-1] in tested: dma_one(*dq.pop(0))
ev = {len(its) - AH - 1: [arr]}
if WOT: ev.setdefault(WOTAT, []).append(wot)
if FILE_:
    for r in range(5): ev.setdefault(FILE_ + E("FILS", 8) * r, []).append(lambda r=r: filler(r))
wgemm(its, SL, AH, pre=pre, extra=lambda i: dma_next(i) if (i % 3 != 2 or G2) else None, events=ev)
assert not dq
w = cur[8]
stamp(4)

far = []
def features(B, W, out, D, tm):
    def mm(): a(f"v_mfma_f32_32x32x16_bf16 {vr(D,16)}, {vr(W,4)}, {vr(B,4)}, 0")
    def shift():
        a(f"v_max_f32 v{tm}, v{D}, v{D+1}")
        for r in range(2, 16, 2): a(f"v_max3_f32 v{tm}, v{tm}, v{D+r}, v{D+r+1}")
        for r in range(0, 16, 2): a(f"v_pk_add_f32 {vr(D+r,2)}, {vr(D+r,2)}, {vr(tm,2)} op_sel_hi:[1,0] neg_lo:[0,1] neg_hi:[0,1]")
    def expsum():
        for r in range(16): a(f"v_exp_f32 v{D+r}, v{D+r}")
        a(f"v_pk_add_f32 {vr(tm,2)}, {vr(D,2)}, {vr(D+2,2)}\nv_pk_add_f32 {vr(tm+2,2)}, {vr(D+4,2)}, {vr(D+6,2)}")
        for r in range(8, 16, 2): a(f"v_pk_add_f32 {vr(tm+r%4,2)}, {vr(tm+r%4,2)}, {vr(D+r,2)}")
        a(f"v_pk_add_f32 {vr(tm,2)}, {vr(tm,2)}, {vr(tm+2,2)}\nv_add_f32 v{tm}, v{tm}, v{tm+1}")
    mm()
    if not NOMAX: shift()
    expsum()
    if NOMAX:
        fb, bk = a.lab("ff"), a.lab("ffb")
        a(f"v_subrev_u32 v{tm+1}, {hex((127-40)<<23)}, v{tm}\nv_cmp_lt_u32 vcc, {hex(100<<23)}, v{tm+1}\ns_cbranch_vccnz {fb}")
        if FORCE_FF: a(f"s_branch {fb}")
        a(f"{bk}:")
        def slow():
            a(f"{fb}:"); mm(); shift(); expsum(); a(f"s_branch {bk}")
        far.append(slow)
    a(f"v_rcp_f32 v{tm}, v{tm}")
    for r in range(0, 16, 2): a(f"v_pk_mul_f32 {vr(D+r,2)}, {vr(D+r,2)}, {vr(tm,2)} op_sel_hi:[1,0]")
    for r in range(8): a(f"v_cvt_pk_bf16_f32 v{out+r}, v{D+2*r}, v{D+2*r+1}")

KB, VB, DD, TM, PH = PHQ, PHQ + 8, WR, WR + 16, WR + 24
chk_read(w)
a(f"""s_lshl_b32 s{t3}, s{sP}, 1
s_add_u32 s{t3}, s{t3}, s{sI}
s_lshl_b32 s{t2}, s{sHG}, 2
s_add_u32 s{t2}, s{t2}, s{t3}
s_lshl_b32 s{t2}, s{t2}, 8
s_add_u32 s{t2}, s{t2}, s{sRB}
s_mul_i32 s{t4}, s{t2}, {PREC}
s_add_u32 s{t4}, s{t4}, {WS_PART}""")
for r in range(8): a(f"v_cvt_pk_bf16_f32 v{KB+r}, v{ACC+2*r}, v{ACC+2*r+1}")
for r in range(8): a(f"v_cvt_pk_bf16_f32 v{VB+r}, v{AC2+2*r}, v{AC2+2*r+1}")
chk_test(w)
xs("k1")
a(f"ds_write_b128 v{vSV}, {vr(VB,4)}\nds_write_b128 v{vSV}, {vr(VB+4,4)} offset:1024")
dma_stage(12)
for hh in range(2):
    features(KB + 4 * hh, WPH + 4 * hh, PH, DD, TM)
    for aa in range(4): a(f"ds_write_b64 v{vSW+aa}, {vr(PH+2*aa,2)} offset:{hh*4096}")
    xs(f"k3{hh}")
wait(vm=("st", 12)); w = arrive()
KA, KBv, KD = WR, AC2, ACC
a(f"s_mov_b32 s{t1}, {hex(ONES)}\ns_mov_b32 s{t2}, {hex(ONES)}")
for r in range(0, 16, 2): a(f"v_mov_b64 {vr(KBv+r,2)}, s[{t1}:{t2}]")
check(w)
xs("k4")
for u in range(4):
    a(f"ds_read_b64_tr_b16 {vr(KA+4*u,2)}, v{vSR} offset:{u*1024}\nds_read_b64_tr_b16 {vr(KA+4*u+2,2)}, v{vSR2} offset:{u*1024+512}")
a(f"s_mov_b32 exec_lo, 0xffff\ns_mov_b32 exec_hi, 0xffff")
for u in range(4):
    a(f"ds_read_b128 {vr(KBv+4*u,4)}, v{vSVR} offset:{(u//2)*4096 + (u%2)*1024}")
a("s_mov_b64 exec, -1")
LG.issue("kv", 12)
SL = [WR + 16 + 4 * n for n in range(4)] + [PHQ + 4 * n for n in range(4)] + [WR + 4 * n for n in range(4)]
wait(lg="kv")
for u in range(4):
    a(f"v_mfma_f32_32x32x16_bf16 {vr(KD,16)}, {vr(KA+4*u,4)}, {vr(KBv+4*u,4)}, {'0' if u == 0 else vr(KD,16)}")
if not FILE_:
    for r in range(5): filler(r)
a(f"s_mov_b32 exec_lo, 0xfffff\ns_mov_b32 exec_hi, 0xfffff")
for e in range(4):
    a(f"buffer_store_dwordx4 {vr(KD+4*e,4)}, v{vPR}, {sr(sWS,4)}, s{t4} offen sc1"); VM.issue("part")
    if e < 3: a(f"s_add_u32 s{t4}, s{t4}, {64*PREC}")
a("s_mov_b64 exec, -1")
stamp(5)
dq = [(c, n) for c in (13, 14, 17, 18, 19)[:2 + EARLYA] for n in range(4)]
its = [(lambda d, tg, n=n: rd_stage(d, 8 + n // 8, n % 8, tg),
        lambda w_, n=n: f"v_mfma_f32_32x32x16_bf16 {vr(AC2,16)}, {vr(w_,4)}, {vr(XF+4*n,4)}, {'0' if n == 0 else vr(AC2,16)}", None) for n in range(32)]
def e1(): wait(vm="part"); cur["p"] = arrive()
def e2():
    chk_read(cur["p"]); chk_test(cur["p"], lowprio=True)
    with only(sS, 2): flag(F_F2)
def e5():
    if WAT:
        a(f"""s_and_b32 s{t0}, s{sRB}, 3
        s_lshl_b32 s{t0}, s{t0}, 2
        s_add_u32 s{t0}, s{t0}, s{sS}
        s_lshl_b32 s{t0}, s{t0}, 15
        s_mov_b32 exec_hi, 0
        buffer_load_dword v250, v{vPC}, {sr(sWOA,4)}, s{t0} offen
        s_mov_b32 exec_hi, -1""")
        VM.issue("wat")
def e3():
    with only(sS, 2): poll_issue(vPC, vT2, F_F2)
    with only(sS, 0): poll_issue(vPF, vPO, F_F2, 2)
def fin(j, g): a(f"s_mov_b32 s{sJ}, {j}"); call_fin(g)
def fins012():
    with only(sI, 0): fin(f"s{sP}", vGI)
    with only(sS, 3): fin(2, vGO)
FMID = E("FMID", 1)
def e4():
    if FMID: a("s_setprio 2"); fins012(); a("s_setprio 0")
RD = TMP + (16 if RAT else 64)
def red_loads():
    with only(sS, 2):
        if RAT: a("s_setprio 2")
        a("s_waitcnt vmcnt(0)")
        poll_check(vPC, vT2, F_F2)
        xs("r1")
        if RAT: a("s_setprio 0")
        a(f"""s_and_b32 s{t3}, s{sRB}, 3
        s_lshl_b32 s{t0}, s{sHG}, 2
        s_add_u32 s{t3}, s{t0}, s{t3}
        s_lshl_b32 s{t0}, s{t3}, 3
        s_lshr_b32 s{t2}, s{sRB}, 2
        s_add_u32 s{t0}, s{t0}, s{t2}
        s_mul_i32 s{t0}, s{t0}, {32*PREC}
        s_add_u32 s{t0}, s{t0}, {WS_PART}""")
        for n in range(16):
            if n and n % 4 == 0: a(f"s_add_u32 s{t0}, s{t0}, {8*PREC}")
            a(f"buffer_load_dwordx4 {vr(RD+4*n,4)}, v{vLI}, {sr(sWS,4)}, s{t0} offen offset:{(n%4)*2*PREC} sc1")
ok19 = []
def e6(): cur["x3"] = arrive()
def e7(): chk_read(cur["x3"]); chk_test(cur["x3"], lowprio=True); ok19.append(1)
def dma_b(i):
    for _ in range(2 if len(dq) > 31 - i else 1):
        if i > 13 and dq and (dq[0][0] != 19 or ok19): dma_one(*dq.pop(0))
ev = {E('E1', 9): [e1], E('E2', 12): [e2], 15: [e4], (RAT - 5 if RAT else 27): [e3]}
if RAT:
    assert RED1 and RAT >= 21; ev[RAT] = [red_loads]
if EARLYA == 3: ev[17] = [e6]; ev[28] = [e7]
wgemm(its, SL, AH, events=ev, extra=dma_b)
assert not dq
vWA0, vWA1, vWB0, vWB1 = vXA, vWX, vWO, vWP
a(f"""s_lshl_b32 s{t0}, s{sP}, 13
v_add_u32 v{vWA0}, s{t0}, v{vWOA}
v_xor_b32 v{vWA1}, 64, v{vWA0}
v_add_u32 v{vWB0}, s{t0}, v{vWO}
v_xor_b32 v{vWB1}, 64, v{vWB0}""")
assert RING % 128 == 0 and STG[12] == 0
for k in range(8): rd_w(WB0 + 4 * k, (vWA0, vWA1)[k % 2], (k // 2) * 2048, 1024, "wb0")
stamp(6)
KB, DD, TM = TMP, TMP + 16, TMP + 32
if not RAT: red_loads()
xs("r2")
if not FMID: fins012()
for r in range(8): a(f"v_cvt_pk_bf16_f32 v{KB+r}, v{AC2+2*r}, v{AC2+2*r+1}")
if not RED1: features(KB, WPH, PHQ, DD, TM)
with only(sS, 2):
    kvf_addr()
    a("s_waitcnt vmcnt(0)")
    st = 16
    while st >= 2:
        for n in range(st):
            if st >= NPK: a(f"v_pk_add_f32 {vr(RD+2*n,2)}, {vr(RD+2*n,2)}, {vr(RD+2*(n+st),2)}")
            else: a(f"v_add_f32 v{RD+2*n}, v{RD+2*n}, v{RD+2*(n+st)}\nv_add_f32 v{RD+2*n+1}, v{RD+2*n+1}, v{RD+2*(n+st)+1}")
        st //= 2
    a(f"""v_permlane32_swap_b32 v{RD}, v{RD+2}
    v_permlane32_swap_b32 v{RD+1}, v{RD+3}
    v_add_f32 v{RD}, v{RD}, v{RD+2}
    v_add_f32 v{RD+1}, v{RD+1}, v{RD+3}
    v_cvt_pk_bf16_f32 v15, v{RD}, v{RD+1}
    v_min_u32 v15, -2, v15
    buffer_store_dword v15, v{vKS}, {sr(sWS,4)}, s{t0} offen sc1""")
xs("r3")
if RED1: features(KB, WPH, PHQ, DD, TM)
with only(sS, 0):
    a("s_waitcnt vmcnt(0)"); poll_check(vPF, vPO, F_F2, n=2)
    l_ = a.lab("near")
    a(f"v_cmp_ne_u32 vcc, s{sL2E}, v{vPO+1}\ns_cbranch_vccz {l_}"); arrive(W_FAR); a(f"{l_}:")
w = arrive()
features(KB + 4, WPH + 4, PHQ + 8, DD, TM)
stamp(7)
with only(sS, 3): fin(3, vGO)
with only(sS, 2): a(f"v_add_u32 v13, {G1}, v{vL4}\nds_write_b32 v13, v{vGI}")
xs("l1")
check(w, nap=1)
xs("l2")
chk_read(W_FAR)
dma_stage(15)
wait(lg="chk")
a(f"v_readfirstlane_b32 s{t0}, v{vT}\ns_cmp_eq_u32 s{t0}, 0\ns_cselect_b32 s{sFAR}, {NEARJ}, 64")
def woa_dma():
    for c in range(16, 20):
        if (c, 0) not in issued: dma_stage(c)
assert not DMAAT
if not DMAAT: woa_dma()
xs("l3")
if not F4L:
    with only(sS, 1): fin(4, vGO)
def take(loads, regs, nap, issued=False, before=None, landed=False):
    lp, dn, l2 = a.lab("tk"), a.lab("tkd"), a.lab("tkw")
    if issued: a(f"s_branch {l2}")
    a(f"{lp}:")
    if before: before()
    loads()
    a(f"s_waitcnt vmcnt(0)\n{l2}:" if landed else f"{l2}:\ns_waitcnt vmcnt(0)")
    a(f"v_max_u32 v{vT}, v{regs[0]}, v{regs[1]}")
    for k in range(2, len(regs), 2): a(f"v_max3_u32 v{vT}, v{vT}, v{regs[k]}, v{regs[k+1]}")
    a(f"v_cmp_eq_u32 vcc, -1, v{vT}\ns_cbranch_vccz {dn}")
    budget(dn)
    if nap: a(f"s_sleep {nap}")
    a(f"s_branch {lp}\n{dn}:")
a(f"""s_lshl_b32 s{t3}, s{sHG}, 2
s_lshl_b32 s{t1}, s{sP}, 1
s_add_u32 s{t3}, s{t3}, s{t1}
s_mul_i32 s{t4}, s{t3}, {KVF_STRIDE}
s_add_u32 s{t4}, s{t4}, {WS_KVF}
s_lshl_b32 s{sPF}, s{sRB}, 1
s_add_u32 s{sPF}, s{sPF}, s{sI}
s_lshl_b32 s{sPF}, s{sPF}, 16
s_add_u32 s{sPF}, s{sPF}, {WS_O}
s_lshl_b32 s{t3}, s{t3}, 10
s_add_u32 s{t3}, s{t3}, s{sPF}
s_add_u32 s{t3}, s{t3}, 32768
v_sub_f32 v15, 1.0, v{vGI}""")
def steps_a(hs, reg): return [(h * 1024, ((vWA0, vWA1), h * 2048), reg + 4 * k) for k, h in enumerate(hs)]
def steps_b(reg):
    o = []
    for k, h in enumerate(8 * m + r for m in range(4) for r in range(4)):
        o.append((32768 + h * 1024, WB0 + 8 * k if k < 4 else ((vWB0, vWB1), STG[12 + h // 8] - RING + (h % 8) * 2048), reg + 4 * k))
    return o
def rec_loads(steps, base):
    for k, (ro, _, reg) in enumerate(steps):
        hi, lo = ro & ~4095, ro & 4095
        if k == 0 or hi != (steps[k-1][0] & ~4095): a(f"s_add_u32 s{t1}, s{base}, {hi}")
        a(f"buffer_load_dwordx4 {vr(reg,4)}, v{vL16}, {sr(sWS,4)}, s{t1} offen offset:{lo} sc1")
OBT = TMP + 64
a(f"s_mov_b32 s{sD0}, s{sPF}\ns_lshl_b32 s{t0}, s{sP}, 12\ns_add_u32 s{sD1}, s{sD0}, s{t0}")
sa = steps_a([8 * m + r for m in range(4) for r in range(4)], TMP)
if SAE:
    with only(sI, 0): rec_loads(sa, sD1)
def kvf_loads():
    for r in range(16): a(f"buffer_load_dword v{OBT+r}, v{vL4}, {sr(sWS,4)}, s{t4} offen offset:{r*256} sc1")
take(kvf_loads, list(range(OBT, OBT + 16)), E("KNAP", 6))
if not DMAAT: arrive(W_OB)
stamp(8)
for hh in range(2):
    D = OBT + 16 + 16 * hh
    a(f"v_mfma_f32_32x32x16_bf16 {vr(D,16)}, {vr(OBT+8*hh,4)}, {vr(PHQ+8*hh,4)}, 0")
    a(f"v_mfma_f32_32x32x16_bf16 {vr(D,16)}, {vr(OBT+8*hh+4,4)}, {vr(PHQ+8*hh+4,4)}, {vr(D,16)}")
for hh in range(2):
    D = OBT + 16 + 16 * hh
    a(f"v_add_f32 v{D+8}, 0x358637bd, v{D+8}\nv_rcp_f32 v{D+8}, v{D+8}\nv_mul_f32 v{D+8}, v{D+8}, v15")
    for r in range(0, 8, 2): a(f"v_pk_mul_f32 {vr(D+r,2)}, {vr(D+r,2)}, {vr(D+8,2)} op_sel_hi:[1,0]")
    for r in range(4): a(f"v_cvt_pk_bf16_f32 v{D+12+r}, v{D+2*r}, v{D+2*r+1}")
    a(f"v_min_u32 v{D+12}, -2, v{D+12}")
    if NEARB:
        l1, l2 = a.lab("st"), a.lab("st")
        a(f"s_cmp_lt_u32 s{sFAR}, 64\ns_cbranch_scc1 {l1}")
    a(f"buffer_store_dwordx4 {vr(D+12,4)}, v{vL16}, {sr(sWS,4)}, s{t3} offen offset:{hh*1024} sc1")
    if NEARB: a(f"s_branch {l2}\n{l1}:\nbuffer_store_dwordx4 {vr(D+12,4)}, v{vL16}, {sr(sWS,4)}, s{t3} offen offset:{hh*1024}\n{l2}:")
wo = arrive()
a(f"""v_bfe_u32 v13, v0, 2, 2
v_and_b32 v14, 3, v0
v_lshl_add_u32 v13, v13, 3, v14
v_lshlrev_b32 v{vPO}, 10, v13""")
stamp(9)
if DMAAT:
    check(wo, nap=1)
    woa_dma()
def probe(off, va=None):
    lp, dn = a.lab("pb"), a.lab("pbd")
    a(f"""s_add_u32 s{t1}, s{sD1}, {off}
    {lp}:
    buffer_load_dword v{vT2}, v{va or vPO}, {sr(sWS,4)}, s{t1} offen offset:1008 sc1
    s_waitcnt vmcnt(0)
    v_cmp_eq_u32 vcc, -1, v{vT2}
    s_cbranch_vccz {dn}""")
    budget(dn)
    a(f"s_sleep {RNAP}\ns_branch {lp}\n{dn}:")

OTR = os.environ.get("OTR", "-,-").split(",")
def out_addr(half):
    if OTR[half] == "-":
        a(f"""v_and_b32 v14, 31, v0
        v_lshlrev_b32 v14, 10, v14
        v_lshrrev_b32 v15, 5, v0
        v_lshl_add_u32 v14, v15, 4, v14""")
    else:
        a(f"""s_xor_b32 s{t0}, s{sS}, 1
        s_lshl_b32 s{t0}, s{t0}, 12
        s_add_u32 s{t0}, s{t0}, {OP}
        v_and_b32 v14, 31, v0
        v_lshrrev_b32 v15, 5, v0
        v_mul_u32_u24 v14, 80, v14
        v_lshl_add_u32 v14, v15, 3, v14
        v_add_u32 v{vGI}, s{t0}, v14
        v_lshrrev_b32 v14, 2, v0
        v_and_b32 v15, 48, v{vL16}
        v_mul_u32_u24 v{vGO}, 80, v14
        v_add3_u32 v{vGO}, v{vGO}, v15, s{t0}
        v_lshl_add_u32 v14, v14, 10, v15""")
    a(f"""s_lshl_b32 s{t4}, s{sRB}, 16
    s_lshl_b32 s{t1}, s{sI}, 15
    s_add_u32 s{t4}, s{t4}, s{t1}
    s_lshl_b32 s{t1}, s{sHG}, 7
    s_add_u32 s{t4}, s{t4}, s{t1}
    s_lshl_b32 s{t1}, s{sP}, 6
    s_add_u32 s{t4}, s{t4}, s{t1}
    s_add_u32 s{t3}, s{t4}, 16384""")
def store_out(half, D7, pre=None):
    if OTR[half] == "-":
        for r in range(0, 16, 2): a(f"v_pk_add_f32 {vr(ACC+r,2)}, {vr(ACC+r,2)}, {vr(D7+r,2)}")
        for r in range(8): a(f"v_cvt_pk_bf16_f32 v{PHQ+r}, v{ACC+2*r}, v{ACC+2*r+1}")
        for kk in range(2):
            b = PHQ + 4 * kk
            a(f"v_permlane32_swap_b32 v{b}, v{b+2}\nv_permlane32_swap_b32 v{b+1}, v{b+3}")
            if pre and kk == 0: pre()
            a(f"buffer_store_dwordx4 {vr(b,4)}, v14, {sr(sOUT,4)}, s{t4} offen offset:{kk*32} {OUTF}")
        return
    for q4 in range(4):
        for r in (4 * q4, 4 * q4 + 2): a(f"v_pk_add_f32 {vr(ACC+r,2)}, {vr(ACC+r,2)}, {vr(D7+r,2)}")
        for r in (2 * q4, 2 * q4 + 1): a(f"v_cvt_pk_bf16_f32 v{PHQ+r}, v{ACC+2*r}, v{ACC+2*r+1}")
        a(f"ds_write_b64 v{vGI}, {vr(PHQ+2*q4,2)} offset:{16*q4}")
    a(f"ds_read_b128 {vr(PHQ+8,4)}, v{vGO}\nds_read_b128 {vr(PHQ+12,4)}, v{vGO} offset:1280")
    if pre: pre()
    pol = OTR[half].replace("+", " ").replace("p", "")
    a(f"""s_waitcnt lgkmcnt(1)
    buffer_store_dwordx4 {vr(PHQ+8,4)}, v14, {sr(sOUT,4)}, s{t4} offen {pol}
    s_waitcnt lgkmcnt(0)
    buffer_store_dwordx4 {vr(PHQ+12,4)}, v14, {sr(sOUT,4)}, s{t3} offen {pol}""")

TS = [WPH + 4 * n for n in range(6)] + [vSW, vSW + 4]
assert vSW == 236
def run_items(its, first, windows, hooks=None, prime_only=None):
    hooks = hooks or {}
    slot = {}; cnt = [0]
    def rd(n):
        w_, _, c = its[n]
        if isinstance(w_, int): slot[n] = w_ + 4 * c
        else:
            slot[n] = TS[cnt[0] % 8]; cnt[0] += 1
            rd_w(slot[n], w_[0][c], w_[1], 1024, ("w", n))
    LG.clear()
    nr = 0
    while nr < len(its) and cnt[0] < 6: rd(nr); nr += 1
    if prime_only: prime_only()
    if windows: a("s_setprio 0")
    seen = set()
    step = 2 if windows else 1
    for g0 in range(0, len(its), step):
        grp = range(g0, min(g0 + step, len(its)))
        for n in grp:
            for f in hooks.get(n, []): f()
        wait(lg=("w", grp[-1]))
        for n in grp:
            acc = (ACC, AC2)[its[n][2]]
            wait(lg=("w", n))
            a(f"v_mfma_f32_32x32x16_bf16 {vr(acc,16)}, {vr(slot[n],4)}, {vr(its[n][1],4)}, {0 if first and acc not in seen else vr(acc,16)}")
            seen.add(acc)
        for n in grp:
            if not isinstance(its[n][0], int):
                while nr < len(its):
                    rd(nr); nr += 1
                    if not isinstance(its[nr-1][0], int): break
    assert nr == len(its)
    if windows: a("s_setprio 2")
after = []
HOLD0 = E('HOLD0', 0); w7 = newword()
items = lambda steps: [(w_, reg, c) for (_, w_, reg) in steps for c in range(2)]
def tail(its, late, last, LW=TMP):
    n0 = len(its)
    its = its + items(late)
    k = len(its)
    its = its[:-k] + [x for x in its[-k:] if x[2] == 1] + [x for x in its[-k:] if x[2] == 0]
    def gate():
        out_addr(1 if last else 0)
        lp, dn = a.lab("tw"), a.lab("twd")
        a(f"""s_lshl_b32 s{t2}, s{sS}, 12
        s_add_u32 s{t0}, s{t2}, {OP}
        v_add_u32 v{vPC}, s{t0}, v{vL16}
        s_xor_b32 s{t2}, s{t2}, 4096
        s_add_u32 s{t0}, s{t2}, {OP}
        v_add_u32 v{vPR}, s{t0}, v{vL16}
        s_lshl_b32 s{t0}, s{sS}, 8
        s_add_u32 s{t0}, s{t0}, {LT + 3*1024 + 208}
        v_mov_b32 v13, s{t0}""")
        if last:
            for q_, (_, w_, _) in enumerate(last): rd_w(LW + 4 * q_, vWOA, w_, 1024, "lw")
            if E("PW7", 0):
                a(f"s_lshl_b32 s{t0}, s{sHG}, 12\ns_add_u32 s{t0}, s{t0}, s{sD0}\nbuffer_load_dword v{vT2}, v{vL16}, {sr(sWS,4)}, s{t0} offen offset:3072 sc1")
        xs("t0")
        if E("ALN", 1): a(f"s_branch {lp}\n.p2align 12, , {1800 if last else 1100}")
        a(f"""{lp}:
        ds_read_b32 v{vT}, v13
        s_waitcnt lgkmcnt(0)
        v_cmp_eq_u32 vcc, 0, v{vT}
        s_cbranch_vccz {dn}""")
        budget(dn)
        a(f"s_sleep 1\ns_branch {lp}\n{dn}:")
        LG.clear()
        stamp(11)
        if late: rec_loads(late, sD1)
    hooks = {}
    if late:
        lr = [reg for (_, _, reg) in late]
        nl = min(n for n, x in enumerate(its) if x[1] in lr)
        hooks.setdefault(nl, []).append(lambda: (take(lambda: rec_loads(late, sD1), list(range(lr[0], lr[0] + 4 * len(lr))), 0, issued=True), xs("n6")))
    if last:
        for q_ in range(4): hooks.setdefault(len(its) - R7AT + q_, []).append(lambda q_=q_: rec_loads(last[2*q_:2*q_+2], sD0))
    ww = newword()
    def x1():
        for q4 in range(4): a(f"ds_write_b128 v{vPC}, {vr(AC2+4*q4,4)} offset:{q4*1024}")
        LG.issue("xw", 4); arrive(ww)
    hooks.setdefault(len(its) - k // 2 + 2, []).append(x1)
    hooks.setdefault(len(its) - 5, []).append(lambda: chk_read(ww))
    def x2():
        chk_test(ww, 2, near=True)
        for q4 in range(4): a(f"ds_read_b128 {vr(AC2+4*q4,4)}, v{vPR} offset:{q4*1024}")
        LG.issue("xr", 4)
    hooks.setdefault(len(its) - 3, []).append(x2)
    run_items(its, False, False, hooks, gate)
    xs("t1")
    if last:
        D7 = TMP + 32
        l2, rt, d2 = a.lab("r7"), a.lab("r7r"), a.lab("r7d")
        R = last[0][2]
        def again():
            a(f"{rt}:"); budget(d2)
            rec_loads(last, sD0)
            if E("CK7", 0):
                a(f"s_waitcnt vmcnt(4)\nv_max_u32 v{vT}, v{R}, v{R+1}")
                for r in range(2, 32, 2):
                    if r == 16: a("s_waitcnt vmcnt(0)")
                    a(f"v_max3_u32 v{vT}, v{vT}, v{R+r}, v{R+r+1}")
                a(f"v_cmp_eq_u32 vcc, -1, v{vT}\ns_cbranch_vccnz {rt}")
            a(f"s_branch {l2}")
        after.append(again)
        a(f"s_waitcnt lgkmcnt(0)\n{l2}:")
        xs("u0")
        for q_, (_, _, reg) in enumerate(last):
            a(f"s_waitcnt vmcnt({7 - q_})")
            if q_ == 0: xs("u1")
            a(f"v_mfma_f32_32x32x16_bf16 {vr(D7,16)}, {vr(LW+4*q_,4)}, {vr(reg,4)}, {vr(D7 if q_ else AC2,16)}")
            a(f"v_max_u32 v{vT}, v{reg}, v{reg+1}" if q_ == 0 else f"v_max3_u32 v{vT}, v{vT}, v{reg}, v{reg+1}")
            a(f"v_max3_u32 v{vT}, v{vT}, v{reg+2}, v{reg+3}")
            if q_ in (3, 7): a(f"v_cmp_eq_u32 vcc, -1, v{vT}\ns_cbranch_vccnz {rt}")
        a(f"{d2}:")
        if HOLD0: arrive(w7)
        xs("n7")
    else:
        D7 = AC2
        a("s_waitcnt lgkmcnt(0)")
    store_out(1 if last else 0, D7, (lambda: (chk_read(w7), chk_test(w7, 2, near=True))) if HOLD0 and not last else None)
def slot_free(j):
    lp, dn = a.lab("cf"), a.lab("cfd")
    a(f"v_mov_b32 v13, {CONS + 16 + 4*j}\n{lp}:\nds_read_b32 v{vT}, v13\ns_waitcnt lgkmcnt(0)\nv_cmp_eq_u32 vcc, 0, v{vT}\ns_cbranch_vccz {dn}")
    budget(dn)
    a(f"s_sleep 2\ns_branch {lp}\n{dn}:")

a(f"s_cmp_eq_u32 s{sI}, 1\ns_cbranch_scc1 L_half1")
sa, sb = steps_a([8 * m + r for m in range(4) for r in range(4)], TMP), steps_b(TMP + 64)
first_words = lambda st: [reg for (_, _, reg) in st]
assert (24 <= PRET <= 40 if A1ST else 16 <= PRET <= 32) and PRET % 2 == 0
if F4L:
    with only(sS, 1): fin(4, vGO)
take(lambda: rec_loads(sa, sD1), first_words(sa), RNAP, issued=bool(SAE), landed=bool(SAE))
if DMAAT: arrive(W_OB)
check(W_OB, nap=2)
xs("m0")
run_items(items(sa), True, True, hooks={22: [lambda: rec_loads(sb, sD1)]})
xs("m2")
with only(sS, 0): fin(6, vGO)
take(lambda: rec_loads(sb, sD1), first_words(sb), 0, issued=True, before=lambda: probe(32768))
stamp(10)
slot_free(4)
tail(items(sb), [], None)
stamp(12)
diag_dump(13)
a("s_endpgm")
a("L_half1:")
LG.clear(); VM.clear()
sb = steps_b(TMP)
with only(sS, 2): fin(5, vGI)
if A1ST:
    s7 = [((4*k + 3) * 1024, (4*k + 3) * 2048, WB0 + 4 * k) for k in range(8)]
    s45, s6 = steps_a([8 * m + r for m in range(4) for r in range(2)], TMP + 64), steps_a([8 * m + 2 for m in range(4)], TMP + 96)
    vP2 = vLI
    def probe2(mask, add):
        a(f"v_and_b32 v{vP2}, {hex(mask)}, v{vPO}")
        if add: a(f"v_add_u32 v{vP2}, {add}, v{vP2}")
        probe(0, vP2)
    xs("p0")
    check(wo, nap=2)
    slot_free(5)
    xs("p1")
    take(lambda: rec_loads(s45, sD1), first_words(s45), E("N45", 3))
    xs("p2")
    run_items(items(s45), True, True, hooks={E("SBAT", 4): [lambda: rec_loads(sb, sD1)]})
    take(lambda: rec_loads(sb, sD1), first_words(sb), 0, issued=True, before=lambda: probe(32768))
    xs("m0")
    run_items(items(sb)[:PRET - 16], False, True, hooks={PRET - 22: [lambda: rec_loads(s6, sD1)]})
    xs("m2")
    take(lambda: rec_loads(s6, sD1), first_words(s6), E("N45", 3), issued=True, before=lambda: slot_free(6))
    stamp(10)
    tail(items(sb)[PRET - 16:] + items(s6), [], s7, TMP + 64)
else:
    xs("p0")
    if DMAAT:
        a("s_waitcnt vmcnt(0)"); arrive(W_OB)
        xs("p1")
        rec_loads(sb, sD1)
        take(lambda: rec_loads(sb, sD1), first_words(sb), 0, issued=True, before=lambda: probe(32768))
    else:
        check(wo, nap=2)
        xs("p1")
        probe(32768)
        xs("p2")
        take(lambda: rec_loads(sb, sD1), first_words(sb), RNAP)
    xs("m0")
    s456 = steps_a([8 * m + r for m in range(4) for r in range(3)], TMP + 64)
    slot_free(5)
    run_items(items(sb)[:PRET], True, True, hooks={PRET - E("L6AT", 6): [lambda: rec_loads(s456, sD1)]})
    xs("m2")
    def wait6():
        a(f"v_bfe_u32 v13, v0, 2, 2\nv_lshlrev_b32 v13, 13, v13\nv_add_u32 v{vPO}, 2048, v13")
        slot_free(6); probe(0)
    take(lambda: rec_loads(s456, sD1), first_words(s456), 0, issued=True, before=wait6)
    if DMAAT: check(W_OB, nap=1)
    stamp(10)
    tail(items(sb)[PRET:] + items(s456), [], [((4*k + 3) * 1024, (4*k + 3) * 2048, WB0 + 4 * k) for k in range(8)])
stamp(12)
if DIAG or HOLDAT:
    a("s_branch L_dd")
    for f_ in after: f_()
    after = []
    a("L_dd:")
diag_dump(13)
hold()
a("L_exit:\ns_endpgm")
for f_ in after: f_()

FO = TMP
FL = TMP + 32
a("L_fin:\ns_nop 1")
a(f"""s_and_b32 s{t2}, s{sJ}, 3
s_lshl_b32 s{t0}, s{t2}, 10
s_add_u32 s{t0}, s{t0}, {LT}
v_and_b32 v14, 3, v0
v_lshl_add_u32 v14, v14, 8, s{t0}
v_and_b32 v15, 124, v{vL4}
v_add_u32 v15, s{t0}, v15
s_lshl_b32 s{t1}, s{sJ}, 10
s_add_u32 s{t1}, s{t1}, {Q + 1024}
s_lshl_b32 s{t2}, s{t2}, 13
s_add_u32 s{t2}, s{t2}, {OP}
v_add_u32 v{FL+4}, s{t2}, v{vL16}
s_lshl_b32 s{t0}, s{sJ}, 2
s_add_u32 s{t0}, s{t0}, {CONS + 16}
v_mov_b32 v13, s{t0}
s_lshr_b32 s{t0}, s{sJ}, 2
s_lshl_b32 s{t2}, s{sRB}, 1
s_add_u32 s{t0}, s{t0}, s{t2}
s_lshl_b32 s{t0}, s{t0}, 6
s_lshl_b32 s{t2}, s{sHG}, 2
s_add_u32 s{t0}, s{t0}, s{t2}
s_and_b32 s{t2}, s{sJ}, 3
s_add_u32 s{t0}, s{t0}, s{t2}
s_lshl_b32 s{t4}, s{t0}, 10
s_add_u32 s{t4}, s{t4}, {WS_O}
""")
assert FP == 1 << 15 and CONS + 16 + 32 <= SYNC and (TMP, vGF, vL4, vONE, vL16, vT, FOUT) == (104, 233, 251, 1, 10, 3, 244)
fin_body(True, "L_fb", FNAP)
if DIAG: a("s_waitcnt lgkmcnt(0)")
a(f"s_setpc_b64 s[{sRET}:{sRET+1}]")
emit_cold()
a("CODE_END:")
for f_ in far: f_()
BS, BC, BK, BV, BQ, BM = TMP + 16, TMP + 32, TMP + 48, TMP + 52, TMP + 60, FOUT
a(f"""L_fb:
s_sub_u32 s{t1}, s{t1}, 1024
v_add_u32 v14, s{t1}, v{vL16}
ds_read_b128 {vr(BQ,4)}, v14
v_mov_b32 v{BM}, 0xff800000
s_mov_b32 s{t0}, 0
s_waitcnt lgkmcnt(0)
L_fb1:
buffer_load_dwordx4 {vr(BK,4)}, v{vL16}, {sr(sWS,4)}, s{t0} offen sc1
s_waitcnt vmcnt(0)
v_mfma_f32_32x32x16_bf16 {vr(BS,16)}, {vr(BK,4)}, {vr(BQ,4)}, 0""")
for r in range(0, 16, 2): a(f"v_max3_f32 v{BM}, v{BM}, v{BS+r}, v{BS+r+1}")
a(f"""s_add_u32 s{t0}, s{t0}, 2048
s_cmp_lt_u32 s{t0}, 131072
s_cbranch_scc1 L_fb1
v_mov_b32 v{BM+1}, v{BM}
v_permlane32_swap_b32 v{BM}, v{BM+1}
v_max_f32 v{BM}, v{BM}, v{BM+1}""")
for r in range(16): a(f"v_sub_f32 v{BC+r}, 0, v{BM}\nv_mov_b32 v{FO+r}, 0")
a(f"""v_mov_b32 v15, 0xdddd
s_mov_b32 s{t0}, 0
L_fb2:
buffer_load_dwordx4 {vr(BK,4)}, v{vL16}, {sr(sWS,4)}, s{t0} offen sc1
buffer_load_dwordx4 {vr(BV,4)}, v{vL16}, {sr(sWS,4)}, s{t0} offen offset:1024 sc1""")
for r in range(4): a(f"v_mov_b32 v{BV+4+r}, {hex(ONES)}")
a(f"""s_waitcnt vmcnt(0)
v_mfma_f32_32x32x16_bf16 {vr(BS,16)}, {vr(BK,4)}, {vr(BQ,4)}, {vr(BC,16)}""")
for r in range(4): a(f"v_permlane16_swap_b32 v{BV+r}, v{BV+4+r}")
for r in range(16): a(f"v_exp_f32 v{BS+r}, v{BS+r}")
a(f"""v_smfmac_f32_32x32x32_bf16 {vr(FO,16)}, {vr(BV,4)}, {vr(BS,8)}, v15
v_smfmac_f32_32x32x32_bf16 {vr(FO,16)}, {vr(BV+4,4)}, {vr(BS+8,8)}, v15
s_add_u32 s{t0}, s{t0}, 2048
s_cmp_lt_u32 s{t0}, 131072
s_cbranch_scc1 L_fb2
s_nop 9
s_branch L_fin_norm""")

body = a.finish(verbose=bool(os.environ.get("VERBOSE")))
ref = open("cdna_kernels/" + NAME + ".s.ref").read().split("\n")
hdr = [l for l in ref if l.startswith(";") and "@launch" not in l and "Override" not in l and "grid=ceil" not in l]
out = "\n".join(hdr) + f"""
; @launch grid=(256,1,1) block=(512,1,1) lds={LDS_BYTES}
.amdgcn_target "amdgcn-amd-amdhsa--gfx950"
.text
.p2align 12
.fill {PAD // 4}, 4, 0xbf810000
.globl {NAME}_kernel
.p2align 8
.type {NAME}_kernel,@function
{NAME}_kernel:
{body}.section .rodata,"a"
.p2align 6
.amdhsa_kernel {NAME}_kernel
  .amdhsa_next_free_vgpr 256
  .amdhsa_next_free_sgpr 102
  .amdhsa_accum_offset 256
  .amdhsa_group_segment_fixed_size 0
  .amdhsa_kernarg_size 104
  .amdhsa_user_sgpr_count 2
  .amdhsa_user_sgpr_kernarg_segment_ptr 1
  .amdhsa_system_sgpr_workgroup_id_x 1
.end_amdhsa_kernel
"""
dst = sys.argv[1] if len(sys.argv) > 1 else "cdna_kernels/" + NAME + ".s"
open(dst, "w").write(out)
print("wrote", dst, len(a.lines), "lines,", len(a.inserted), "nops inserted, words", nword[0])
```

```python
import sys, os
from asmlib import Asm, Cnt, vr, sr

NAME = "gated_mix__grouped_kv_mqa__linear_kernel_hedgehog__prompt"
E = lambda k, d: int(os.environ.get(k, d))
DIAG = E("DIAG", 0); FORCE_FB = E("FORCE_FB", 0); TOUCH = E("TOUCH", 0); NOB = E("NOB", 0); PRE = E("PRE", 4)
FNAP = E("FNAP", 2); SIGT = E("SIGT", 6); QFIN = E("QFIN", 1); NEARJ = E("NEARJ", 0); NEARB = E("NEARB", 1); NEARF = E("NEARF", 0); SAE = E("SAE", 0); DMAAT = E("DMAAT", 0); WAT = E("WAT", 0); RED1 = E("RED1", 0); EARLYA = E("EARLYA", 2); JE2 = E("JE2", 0); POLLAT = E("POLLAT", 2); NST = E("NST", 2); MAP = E("MAP", 1); PW = E("PW", 2); PRET = E("PRET", 32); WOTAT = E("WOTAT", 30); SP2 = E("SP2", 0); FILE_ = E("FILE", 0); G2 = E("G2", 1); RAT = E("RAT", 0); F4L = E("F4L", 1); A1ST = E("A1ST", 1); ST0 = E("ST0", 1); NOACK = E("NOACK", 1); PAIRB = E("PAIRB", 1); DQ = E("DQ", 3); PSW = E("PSW", 0); EPOLL = E("EPOLL", 1); LSP = E("LSP", 0); UNR = E("UNR", 1); FORCE_RD = E("FORCE_RD", 0); NPK = E("NPK", 4); R7AT = E("R7AT", 4); RNAP = E("RNAP", 8); DEFER = E("DEFER", 1); ROT = E("ROT", 1); PUSH = E("PUSH", 1); WQE = E("WQE", 2); CPF = E("CPF", 1); WQT = E("WQT", 1); SPF = E("SPF", 2); HAT = E("HAT", -2); WOT = E("WOT", 1); XJ = E("XJ", 0); XNT = E("XNT", 1); G0H = E("G0H", 0); PKS = E("PKS", -1); FST = E("FST", 4); FLAG1 = E("FLAG1", 0); LPT = E("LPT", 4); LATE = E("LATE", 1); VMASK = E("VMASK", 0); PAD = E("PAD", 0xd00); NOMAX = E("NOMAX", 1); FORCE_FF = E("FORCE_FF", 0)
OUTF = os.environ.get("OUTF", ""); NFF = os.environ.get("NFF", ""); NRF = os.environ.get("NRF", "nt").replace("+", " ")
HOLDAT = os.environ.get("HOLDAT")

X = 0; XS = 1040
Q = 66560
OP = 74752
RING = 107520
LT = 156672
MISC = 160768
WKV = OP; WQB = OP + 16384
GATE = Q
NONCE = MISC; CONS = MISC + 16; SYNC = MISC + 64
WPHI = MISC + 1024
LDS_BYTES = 163840
WS_KV = 0; WS_KVF = 0x20000; WS_G = 0x30000; WS_DIAG = 0x40000; WS_F = 0x80000
WS_PART = 0x100000; WS_O = 0x400000; WS_SIZE = 0x800000
KVF_STRIDE = 2048; PREC = 320
F_KV, F_F2, F_F3, F_OB, F_OA = 0, 1, 2, 3, 4
FP = 0x8000
pX, pWQ, pWK, pWV, pWOA, pBX, pWQKV, pWPHI, pWOB, pGATE, pOUT, pDBG, pWS = [4 + 2 * i for i in range(13)]
sX, sWQ, sWKV, sWB, sWOA, sWOB, sWS, sOUT, sDBG, sSM = [32 + 4 * i for i in range(10)]
sW, sRB, sHG, sL, sNON, sBUD, sS, sI, sP = 72, 73, 74, 75, 76, 77, 78, 79, 80
t0, t1, t2, t3, t4, t5 = 81, 82, 83, 84, 85, 86
sJ = 87; sRET = 88
sL2E = 90
sFL = 92
sD0, sD1 = 93, 94
sPF = 95
sFAR = 91
sST = 4
LOG2E = 0x3fb8aa3b
QSCALE = 0x3eb8aa3b
ONES = 0x3f803f80

a = Asm()
a.tr2 = bool(E('TR2', 1))
role = ["E"]
XST = os.environ.get("XST", "").split(",") if os.environ.get("XST") else []
def xs(name):
    if DIAG and "b" + name in XST: a(f"s_mov_b32 s{sST + 2 * XST.index('b' + name)}, s{sBUD}")
    if os.environ.get("MARK"): a(f"; @@ {name}")
    if DIAG and name in XST: a(f"s_memrealtime {sr(sST + 2 * XST.index(name), 2)}")
    if DIAG and "c" + name in XST: a(f"s_memtime {sr(sST + 2 * XST.index('c' + name), 2)}")
YST = os.environ.get("YST", "").split(",") if os.environ.get("YST") else []
YB = 48
YREG = [48, 50, 52, 54, 60, 62, 88, 90, 96, 98]
def ys(name):
    if DIAG and name in YST: a(f"s_memrealtime {sr(YREG[YST.index(name)], 2)}")
    if DIAG and "c" + name in YST: a(f"s_memtime {sr(YREG[YST.index('c' + name)], 2)}")
def stamp(n):
    if os.environ.get("MARK"): a(f"; @@ s{n}")
    if DIAG and YST and role[0] == "A": ys(f"a{n}")
    elif DIAG and XST and role[0] == "S": xs(f"s{n}")
    elif DIAG: a(f"s_memrealtime {sr(sST + 2 * n, 2)}")
    if HOLDAT == f"{role[0]}{n}": a("s_memrealtime s[100:101]")
def hold():
    if HOLDAT and (HOLDAT[0] == role[0] or (HOLDAT[0] == "E" and role[0] == "S")):
        l = a.lab("hold")
        a(f"{l}:\ns_memrealtime s[96:97]\ns_waitcnt lgkmcnt(0)\ns_sub_u32 s96, s96, s100\ns_cmp_lt_u32 s96, 4000\ns_cbranch_scc1 {l}")
def srd(d, p, size):
    a(f"s_mov_b32 s{d}, s{p}\ns_mov_b32 s{d+1}, s{p+1}\ns_mov_b32 s{d+2}, {hex(size)}\ns_mov_b32 s{d+3}, 0x20000")
def budget(done):
    a(f"s_cmp_eq_u32 s{sBUD}, 0\ns_cbranch_scc1 {done}\ns_sub_u32 s{sBUD}, s{sBUD}, 1")
cold = []
def emit_cold():
    while cold: cold.pop(0)()
def poll_issue(vaddr, vtmp, plane, n=1):
    a(f"s_mov_b32 s{t0}, {WS_F + plane*FP}\nbuffer_load_dword{'x2' if n == 2 else ''} {vr(vtmp,n)}, v{vaddr}, {sr(sWS,4)}, s{t0} offen sc1")
def poll_check(vaddr, vtmp, plane, nap=4, n=1):
    lp, dn = a.lab("pf"), a.lab("pfd")
    a(f"v_cmp_ne_u32 vcc, s{sNON}, v{vtmp}\ns_cbranch_vccnz {lp}\n{dn}:")
    def slow():
        a(f"{lp}:"); budget(dn)
        if nap: a(f"s_sleep {nap}")
        a("s_mov_b64 exec, vcc")
        poll_issue(vaddr, vtmp, plane, n)
        a(f"s_mov_b64 exec, -1\ns_waitcnt vmcnt(0)\nv_cmp_ne_u32 vcc, s{sNON}, v{vtmp}\ns_cbranch_vccnz {lp}\ns_branch {dn}")
    cold.append(slow)
def put_flag(soff, vnon, vl4):
    a(f"s_mov_b32 exec_hi, 0\nbuffer_store_dword v{vnon}, v{vl4}, {sr(sWS,4)}, s{soff} offen sc1\ns_mov_b32 exec_hi, -1")
def diag_dump(n):
    if not DIAG: return
    a("s_sleep 80\ns_waitcnt lgkmcnt(0)")
    a(f"s_lshl_b32 s{t0}, s{sL}, 3\ns_add_u32 s{t0}, s{t0}, s{sW}\ns_lshl_b32 s{t0}, s{t0}, 6\ns_add_u32 s{t0}, s{t0}, {WS_DIAG}")
    a("v_mov_b32 v8, 0")
    for i in range(14):
        a(f"v_writelane_b32 v8, s{YREG[i] if (YST and role[0] == 'A' and i < len(YST)) else sST+2*i}, {i}")
    a("v_writelane_b32 v8, s100, 14\nv_writelane_b32 v8, s31, 15")
    a(f"""v_mbcnt_lo_u32_b32 v9, -1, 0
    v_mbcnt_hi_u32_b32 v9, -1, v9
    v_lshlrev_b32 v9, 2, v9
    s_mov_b64 exec, 0xffff
    buffer_store_dword v8, v9, {sr(sWS,4)}, s{t0} offen
    s_mov_b64 exec, -1""")
def dma_lane_addrs():
    a(f"""v_lshrrev_b32 v11, 3, v0
    v_and_b32 v12, 7, v0
    v_lshrrev_b32 v13, 2, v0
    v_and_b32 v13, 4, v13
    v_xor_b32 v12, v12, v13
    v_lshlrev_b32 v12, 4, v12
    v_lshl_add_u32 v9, v11, 10, v12
    v_mul_u32_u24 v8, 3072, v11
    v_add_u32 v8, v8, v12""")
def xrows(n, mod=""):
    for r in range(n):
        a(f"s_add_u32 m0, s{sD0}, {X + (r//4)*4*XS + (r%4)*16}")
        if r % 4 == 0 and r: a(f"s_add_u32 s{sD1}, s{sD1}, 4096")
        a(f"buffer_load_dwordx4 v10, {sr(sX,4)}, s{sD1} offen offset:{(r%4)*1024} {mod} lds")
X0, X1, X2, X3 = X, X + 16384, X + 32768, X + 49152
R0, R1, R2 = RING, RING + 16384, RING + 32768
STG = [X0, X1, X2, X3, R0, R1, R2, X0,   X1, X2, X3, R0,   X0, R1, R2, R0,   X0, X1, X2, X3]
W_KV, W_Q, W_G, W_OB, W_FAR, W_P = 0, 1, 2, 6, 7, 8
nword = [9]
G1 = MISC + 512

def fin_body(pk, fb, nap):
    FO, FL, vT, vONE, vGF, FOUT, vL16 = 104, 136, 3, 1, 233, 244, 10
    lp, dn = a.lab("fw"), a.lab("fwd")
    a(f"{lp}:\nds_read_b32 v{vT}, v14 offset:208\ns_waitcnt lgkmcnt(0)\nv_cmp_eq_u32 vcc, 0, v{vT}\ns_cbranch_vccz {dn}")
    budget(dn)
    if nap: a(f"s_sleep {nap}")
    a(f"s_branch {lp}\n{dn}:")
    xs("f0")
    for w in range(4):
        a(f"ds_read_b128 {vr(FO+8*w,4)}, v{FL+4} offset:{w*2048}\nds_read_b128 {vr(FO+8*w+4,4)}, v{FL+4} offset:{w*2048+1024}\nds_read_b32 v{FL+w}, v15 offset:{w*256}")
    def add2(d, x, y):
        if pk: a(f"v_pk_add_f32 {vr(d,2)}, {vr(x,2)}, {vr(y,2)}")
        else: a(f"v_add_f32 v{d}, v{x}, v{y}\nv_add_f32 v{d+1}, v{x+1}, v{y+1}")
    if pk:
        a(f"ds_write_b32 v14, v250 offset:208\nds_write_b32 v13, v{vONE}\ns_waitcnt lgkmcnt(2)")
        xs("f1")
        for r in range(0, 8, 2): add2(FO + r, FO + r, FO + 8 + r); add2(FO + 16 + r, FO + 16 + r, FO + 24 + r)
    else:
        a("s_waitcnt lgkmcnt(6)")
        for r in range(0, 8, 2): add2(FO + r, FO + r, FO + 8 + r)
        a("s_waitcnt lgkmcnt(0)")
        for r in range(0, 8, 2): add2(FO + 16 + r, FO + 16 + r, FO + 24 + r)
    add2(FL, FL, FL + 2)
    for r in range(0, 8, 2): add2(FO + r, FO + r, FO + 16 + r)
    a(f"v_add_f32 v{FO+8}, v{FL}, v{FL+1}")
    if pk:
        a(f"""v_pk_mul_f32 {vr(FO+10,2)}, {vr(FO,2)}, 0 op_sel_hi:[1,0]
        v_pk_fma_f32 {vr(FO+10,2)}, {vr(FO+2,2)}, 0, {vr(FO+10,2)} op_sel_hi:[1,0,1]
        v_pk_fma_f32 {vr(FO+10,2)}, {vr(FO+4,2)}, 0, {vr(FO+10,2)} op_sel_hi:[1,0,1]
        v_pk_fma_f32 {vr(FO+10,2)}, {vr(FO+6,2)}, 0, {vr(FO+10,2)} op_sel_hi:[1,0,1]
        v_add_f32 v{FO+10}, v{FO+10}, v{FO+11}
        v_add_f32 v{FO+10}, v{FO+10}, v{FO+8}""")
    else:
        a(f"v_fma_f32 v{FO+10}, v{FO}, 0, v{FO+8}")
        for r in range(1, 8): a(f"v_fma_f32 v{FO+10}, v{FO+r}, 0, v{FO+10}")
    a(f"""v_cmp_nle_f32 vcc, {hex((127-40)<<23)}, v{FO+10}
    s_cbranch_vccnz {fb}
    v_cmp_nge_f32 vcc, {hex((127+100)<<23)}, v{FO+10}
    s_cbranch_vccnz {fb}""")
    if FORCE_FB: a(f"s_branch {fb}")
    if pk: a("L_fin_norm:")
    a(f"v_rcp_f32 v{FO+8}, v{FO+8}\nv_mul_f32 v{FO+8}, v{FO+8}, v{vGF}")
    for r in range(0, 8, 2):
        if pk: a(f"v_pk_mul_f32 {vr(FO+r,2)}, {vr(FO+r,2)}, {vr(FO+8,2)} op_sel_hi:[1,0]")
        else: a(f"v_mul_f32 v{FO+r}, v{FO+r}, v{FO+8}\nv_mul_f32 v{FO+r+1}, v{FO+r+1}, v{FO+8}")
    for r in range(4): a(f"v_cvt_pk_bf16_f32 v{FOUT+r}, v{FO+2*r}, v{FO+2*r+1}")
    l0 = a.lab("mn")
    a(f"v_min_u32 v{FOUT}, -2, v{FOUT}\ns_cmp_lg_u32 s{sJ}, 7\ns_cbranch_scc1 {l0}")
    for r in range(1, 4): a(f"v_min_u32 v{FOUT+r}, -2, v{FOUT+r}")
    a(f"{l0}:")
    xs("f2")
    l1, l2 = a.lab("st"), a.lab("st")
    a(f"""s_cmp_ge_u32 s{sJ}, s{sFAR}
    s_cbranch_scc1 {l1}
    buffer_store_dwordx4 {vr(FOUT,4)}, v{vL16}, {sr(sWS,4)}, s{t4} offen sc1
    s_branch {l2}
    {l1}:
    buffer_store_dwordx4 {vr(FOUT,4)}, v{vL16}, {sr(sWS,4)}, s{t4} offen {NRF}
    {l2}:""")
    xs("f3")

if HOLDAT or DIAG: a("s_memrealtime s[100:101]")
a(f"""s_cmp_ge_u32 s2, 256
s_cbranch_scc1 L_exit
s_load_dwordx16 s[4:19], s[0:1], 0
s_load_dwordx8 s[20:27], s[0:1], 64
s_load_dwordx2 s[28:29], s[0:1], 96
v_lshrrev_b32 v1, 6, v0
v_and_b32 v0, 63, v0
v_readfirstlane_b32 s{sW}, v1""")
a(f"""s_and_b32 s{t0}, s2, 7
s_lshr_b32 s{t1}, s2, 3""")
if MAP == 0:
    a(f"""s_lshr_b32 s{t2}, s{t0}, 1
    s_lshl_b32 s{t2}, s{t2}, 3
    s_lshr_b32 s{t3}, s{t1}, 2
    s_add_u32 s{sRB}, s{t2}, s{t3}
    s_and_b32 s{t2}, s{t0}, 1
    s_lshl_b32 s{t2}, s{t2}, 2
    s_and_b32 s{t5}, s{t1}, 3
    s_add_u32 s{sHG}, s{t2}, s{t5}""")
else:
    a(f"""s_lshl_b32 s{t2}, s{t0}, 2
    s_lshr_b32 s{t3}, s{t1}, 3
    s_add_u32 s{sRB}, s{t2}, s{t3}
    s_and_b32 s{sHG}, s{t1}, 7
    s_and_b32 s{t5}, s{t1}, 3""")
def ids():
    a(f"""s_lshl_b32 s{sL}, s{sRB}, 3
    s_add_u32 s{sL}, s{sL}, s{sHG}
    s_mov_b32 s{sBUD}, 400000
    s_lshl_b32 s{sFL}, s{sL}, 7
    s_add_u32 s{sFL}, s{sFL}, {WS_F}""")
a(f"""v_lshlrev_b32 v10, 4, v0
s_cmp_lg_u32 s{sW}, 0
s_cbranch_scc1 L_w17""")
def others():
    a(f"L_w17:\ns_cmp_eq_u32 s{sW}, 3\ns_cbranch_scc1 L_aw3\ns_cmp_lt_u32 s{sW}, 3\ns_cbranch_scc1 L_aw12")
    if CPF:
        a(f"""s_getpc_b64 s[{sSM}:{sSM+1}]
        L_pc:
        s_lshl_b32 s{t0}, s{t1}, 2
        s_add_u32 s{t0}, s{t0}, s{sW}
        s_sub_u32 s{t0}, s{t0}, 3
        s_mul_i32 s{t0}, s{t0}, {384 if UNR else 256}
        s_min_u32 s{t0}, s{t0}, CODE_END - L_pc - 384
        s_add_u32 s{sSM}, s{sSM}, s{t0}
        s_addc_u32 s{sSM+1}, s{sSM+1}, 0
        s_load_dword s96, s[{sSM}:{sSM+1}], 0
        s_load_dword s97, s[{sSM}:{sSM+1}], 64
        s_load_dword s98, s[{sSM}:{sSM+1}], 128
        s_load_dword s99, s[{sSM}:{sSM+1}], 192""")
        if UNR: a(f"s_load_dword s98, s[{sSM}:{sSM+1}], 256\ns_load_dword s99, s[{sSM}:{sSM+1}], 320")
    a("s_branch L_sw")
    a(f"""L_aw3:
    s_cmp_lg_u32 s2, 0
    s_cbranch_scc1 L_nononce
    s_memrealtime s[{t1}:{t2}]
    v_mov_b32 v13, 0
    s_waitcnt lgkmcnt(0)
    s_or_b32 s{t1}, s{t1}, 1
    v_mov_b32 v14, s{t1}
    s_mov_b64 exec, 1
    global_store_dword v13, v14, s[{pDBG}:{pDBG+1}] sc1
    s_mov_b64 exec, -1
    L_nononce:
    s_lshl_b32 s{t0}, s{sHG}, 11
    v_add_u32 v11, s{t0}, v10
    s_lshl_b32 s{t0}, s2, 11
    v_lshl_add_u32 v12, v0, 7, s{t0}
    s_lshl_b32 s{t0}, s{sRB}, 7
    s_add_u32 s{t0}, s{t0}, {WS_F}
    v_mov_b32 v13, s{t0}
    s_waitcnt lgkmcnt(0)
    s_mov_b32 m0, {WPHI}
    s_mov_b64 exec, 0xffff""")
    if WQT == 1: a(f"global_load_dword v20, v12, s[{pWQ}:{pWQ+1}]")
    a(f"""s_mov_b64 exec, 1
    global_load_dword v21, v13, s[{pWS}:{pWS+1}]
    s_mov_b64 exec, -1
    global_load_lds_dwordx4 v11, s[{pWPHI}:{pWPHI+1}]
    global_load_lds_dwordx4 v11, s[{pWPHI}:{pWPHI+1}] offset:1024
    s_branch L_aw3b""")
role[0] = "A"
S0, S1, O_, QR, KR, VR = 12, 28, 44, 60, 64, 128
vIDX, vZ, vQA, vPA, vLA, vCA, vCV = 1, 2, 4, 5, 6, 7, 8
JX, JW, JA = KR, KR + 64, O_
aNON = O_ + 8
def wq_setup():
    dma_lane_addrs()
    a(f"""v_mov_b32 v11, v9
    s_lshr_b32 s{sS}, s{sW}, 1
    s_lshl_b32 s{sI}, s{sS}, 13
    s_lshl_b32 s{sJ}, s{sS}, 16
    s_lshl_b32 s{t2}, s{sHG}, 7
    s_add_u32 s{sJ}, s{sJ}, s{t2}""")
def vconst():
    a(f"""v_and_b32 v12, 15, v0
    v_cmp_eq_u32 vcc, 0, v12
    v_mov_b32 v13, {hex(ONES)}
    v_cndmask_b32 v12, 0, v13, vcc
    v_cndmask_b32 v13, 0, v13, vcc""")
    for t in range(16):
        a(f"v_mov_b64 {vr(VR+8*t+4,2)}, v[12:13]\nv_mov_b64 {vr(VR+8*t+6,2)}, v[12:13]")
        if VMASK: a(f"v_mov_b64 {vr(VR+8*t,2)}, v[12:13]\nv_mov_b64 {vr(VR+8*t+2,2)}, v[12:13]")
a(f"""s_mul_i32 s{sD0}, s{t5}, {16*XS}
s_lshl_b32 s{sD1}, s{sRB}, 16
s_lshl_b32 s{t2}, s{t5}, 14
s_add_u32 s{sD1}, s{sD1}, s{t2}
s_mov_b32 m0, {GATE}
s_waitcnt lgkmcnt(0)""")
ys("ka")
a(f"global_load_lds_dwordx4 v10, s[{pGATE}:{pGATE+1}]")
srd(sX, pX, 0x200000)
xrows(16, "nt" if XNT else "")
ys("xi")
a(f"s_bitcmp1_b32 s{sHG}, 2\ns_cselect_b32 s{sWKV}, s{pWV}, s{pWK}\ns_cselect_b32 s{sWKV+1}, s{pWV+1}, s{pWK+1}\ns_mov_b32 s{sWKV+2}, 0x4000\ns_mov_b32 s{sWKV+3}, 0x20000")
for n in range(16):
    if n % 4 == 0: a(f"s_mov_b32 m0, {WKV + n*1024}\ns_mov_b32 s{t1}, {n*1024}")
    a(f"buffer_load_dwordx4 v10, {sr(sWKV,4)}, s{t1} offen offset:{(n%4)*1024} lds")
NTQ = 0
if WQT == 2:
    NTQ = 2 if MAP else 1
    a(f"""s_and_b32 s{t0}, s{sRB}, {3 if MAP else 7}
    s_lshl_b32 s{t0}, s{t0}, {17 if MAP else 16}
    s_lshl_b32 s{t1}, s{sHG}, 7
    s_add_u32 s{t0}, s{t0}, s{t1}
    v_lshl_add_u32 v12, v0, 10, s{t0}
    global_load_dword v24, v12, s[{pWQ}:{pWQ+1}]""")
    if MAP: a(f"v_add_u32 v12, 0x10000, v12\nglobal_load_dword v24, v12, s[{pWQ}:{pWQ+1}]")
a("s_branch L_aw0b")
others()
a("L_aw0b:")
if PAIRB: wq_setup(); srd(sWQ, pWQ, 0x80000)
ids()
srd(sWS, pWS, WS_SIZE); srd(sDBG, pDBG, 256)
stamp(0)
a(f"""v_and_b32 v16, 15, v0
v_lshrrev_b32 v14, 4, v0
s_lshl_b32 s{t0}, s{t5}, 4
v_add_u32 v13, s{t0}, v16
v_mul_u32_u24 v15, {XS}, v13
v_lshl_add_u32 v15, v14, 4, v15
v_lshlrev_b32 v19, 3, v16
v_lshl_add_u32 v19, v14, 8, v19
v_add_u32 v19, {WKV}, v19
s_lshr_b32 s{t0}, s{t5}, 1
s_lshl_b32 s{t1}, s{sRB}, 1
s_add_u32 s{t0}, s{t0}, s{t1}
s_lshl_b32 s{t0}, s{t0}, 11
s_and_b32 s{t1}, s{t5}, 1
s_lshl_b32 s{t1}, s{t1}, 8
s_add_u32 s{t4}, s{t0}, s{t1}
v_and_b32 v17, 1, v14
v_lshrrev_b32 v18, 1, v14
v_lshlrev_b32 v25, 4, v14
v_add_u32 v25, {GATE}, v25
v_lshlrev_b32 v26, 2, v0
s_lshl_b32 s{t3}, s{sL}, 6
s_add_u32 s{t3}, s{t3}, {WS_G}
""")
if NOACK:
    NTQ += 2
    a(f"""s_bitcmp1_b32 s{sHG}, 2
    s_cselect_b32 s{t0}, 1024, 0
    s_add_u32 s{t0}, s{t0}, s{t4}
    v_lshlrev_b32 v27, 9, v14
    v_lshl_add_u32 v27, v16, 4, v27
    v_mov_b32 v28, -1
    v_mov_b32 v29, -1
    v_mov_b32 v30, -1
    v_mov_b32 v31, -1
    s_mov_b32 exec_hi, 0
    buffer_store_dwordx4 v[28:31], v27, {sr(sWS,4)}, s{t0} offen sc1
    s_mov_b32 exec_lo, 0xffff
    buffer_store_dword v28, v26, {sr(sWS,4)}, s{t3} offen sc1
    s_mov_b64 exec, -1""")
if HAT == -3: a("s_barrier")
a(f"s_waitcnt vmcnt({32 + NTQ})")
NE = E("NE", 0)
if NE: a(f"buffer_load_dword v{aNON}, off, {sr(sDBG,4)}, 0 sc1"); NTQ += 1
if HAT == -2: a("s_barrier")
assert FST == 4
a(f"s_getreg_b32 s{t0}, hwreg(HW_REG_XCC_ID)\nv_mov_b32 v{aNON+1}, s{t0}")
JG = KR + 128
for n in range(16): a(f"ds_read_b128 {vr(JG+4*n,4)}, v25 offset:{n*64}")
a(f"s_bitcmp1_b32 s{sHG}, 2\ns_cbranch_scc1 L_job_v")
def job(isv):
    a(f"v_lshlrev_b32 v20, 9, v{18 if isv else 17}\nv_lshl_add_u32 v17, v16, 4, v20")
    if isv: a(f"s_add_u32 s{t4}, s{t4}, 1024")
    ys("j0")
    a(f"s_waitcnt vmcnt({16 + NTQ})")
    if NOACK and not NE: a(f"buffer_load_dword v{aNON}, off, {sr(sDBG,4)}, 0 sc1")
    ys("xl")
    if HAT == -1: a("s_barrier")
    for n in range(16): a(f"ds_read_b128 {vr(JX+4*n,4)}, v15 offset:{n*64}")
    def grp(gq):
        a(f"s_waitcnt vmcnt({12 - 4*gq + NTQ + NOACK - NE})")
        if gq == 3: ys("wl")
        if gq == HAT: a("s_barrier")
        for n in range(4 * gq, 4 * gq + 4):
            a(f"ds_read_b64_tr_b16 {vr(JW+4*n,2)}, v19 offset:{n*1024}")
            a(f"ds_read_b64_tr_b16 {vr(JW+4*n+2,2)}, v19 offset:{n*1024+128}")
    def mm(gq):
        for n in range(4 * gq, 4 * gq + 4):
            A, B = (JX, JW) if isv else (JW, JX)
            a(f"v_mfma_f32_16x16x32_bf16 {vr(JA,4)}, {vr(A+4*n,4)}, {vr(B+4*n,4)}, {'0' if n == 0 else vr(JA,4)}")
        for n in {0: range(0, 8), 1: range(8, 16)}.get(gq, []):
            a(f"v_mfma_f32_16x16x32_bf16 {vr(JA+4,4)}, {vr(JG+4*n,4)}, {vr(JX+4*n,4)}, {'0' if n == 0 else vr(JA+4,4)}")
        if gq == 3:
            d = JA + 4
            a(f"v_mul_f32 v{d}, {hex(LOG2E | 0x80000000)}, v{d}\nv_exp_f32 v{d}, v{d}\nv_add_f32 v{d}, 1.0, v{d}\nv_rcp_f32 v{d}, v{d}")
    grp(0)
    for gq in range(4):
        if gq < 3: grp(gq + 1); a("s_waitcnt lgkmcnt(8)")
        elif NOACK: a("s_waitcnt lgkmcnt(0)")
        else: a(f"buffer_load_dword v{aNON}, off, {sr(sDBG,4)}, 0 sc1\ns_waitcnt lgkmcnt(0)")
        mm(gq)
    sw = "v_permlane16_swap_b32" if isv else "v_permlane32_swap_b32"
    a(f"""v_cvt_pk_bf16_f32 v20, v{JA}, v{JA+1}
    v_cvt_pk_bf16_f32 v21, v{JA+2}, v{JA+3}
    v_min_u32 v20, -2, v20
    v_min_u32 v{JA+4}, -2, v{JA+4}
    {sw} v20, v22
    {sw} v21, v23""")
    a("s_mov_b32 exec_lo, 0xffff\ns_mov_b32 exec_hi, 0xffff" if isv else "s_mov_b32 exec_hi, 0")
job(False)
a("s_branch L_job_st\nL_job_v:")
job(True)
a("L_job_st:")
if NOACK: a("s_waitcnt vmcnt(0)")
STAT = E("STAT", 0)
def job_store():
    a(f"""buffer_store_dwordx4 v[20:23], v17, {sr(sWS,4)}, s{t4} offen sc1
    s_mov_b64 exec, 0xffff
    buffer_store_dword v{JA+4}, v26, {sr(sWS,4)}, s{t3} offen sc1
    s_mov_b64 exec, -1""")
    stamp(8)
if STAT: a(f"s_mov_b64 s[{sRET}:{sRET+1}], exec\ns_mov_b64 exec, -1")
else: job_store()
if HAT == 4: a("s_barrier")
def job_flag():
    lp, dn = a.lab("np"), a.lab("npd")
    if FST == 4:
        a(f"""s_lshl_b32 s{t0}, s{sRB}, 7
        s_lshl_b32 s{t1}, s{sHG}, 3
        s_add_u32 s{t0}, s{t0}, s{t1}
        s_add_u32 s{t0}, s{t0}, {WS_F}""")
    else: a(f"s_mul_i32 s{t0}, s{sL}, {FST}\ns_add_u32 s{t0}, s{t0}, {WS_F}")
    if "nn" in YST: a("s_waitcnt vmcnt(1)"); ys("nn")
    if not NOACK: a("s_waitcnt vmcnt(0)")
    ys("ack")
    a(f"""v_cmp_eq_u32 vcc, 0, v{aNON}
    s_cbranch_vccnz {lp}
    {dn}:
    s_mov_b32 exec_lo, {hex((1 << (FST // 4)) - 1)}
    s_mov_b32 exec_hi, 0
    buffer_store_dwordx2 {vr(aNON,2)}, v26, {sr(sWS,4)}, s{t0} offen sc1
    s_mov_b64 exec, -1""")
    a(f"v_mov_b32 v13, {NONCE}\nds_write_b32 v13, v{aNON}\ns_waitcnt lgkmcnt(0)")
    stamp(9)
    def slow():
        a(f"{lp}:"); budget(dn)
        a(f"""buffer_load_dword v{aNON}, off, {sr(sDBG,4)}, 0 sc1
        s_waitcnt vmcnt(0)
        v_cmp_eq_u32 vcc, 0, v{aNON}
        s_cbranch_vccnz {lp}
        s_branch {dn}""")
    cold.append(slow)
def aw_poll():
    if FST > 4: a(f"s_mul_i32 s{t1}, s{sW}, {64*FST}\nv_mul_u32_u24 v11, {FST}, v0\nv_add_u32 v11, s{t1}, v11")
    else: a(f"s_lshl_b32 s{t1}, s{sW}, 10\nv_lshrrev_b32 v11, 3, v0\nv_lshl_add_u32 v11, v11, 7, s{t1}\nv_and_b32 v14, 7, v0\nv_lshl_add_u32 v11, v14, 3, v11")
    poll_issue(11, S1, F_KV)
def aw_wait(word, target, nap=0, also=""):
    lp, dn = a.lab("aw"), a.lab("awd")
    a(f"""{lp}:
    ds_read_b32 v14, v9 offset:{SYNC - NONCE + 4*word}
    {also}
    s_waitcnt lgkmcnt(0)
    v_cmp_gt_u32 vcc, {target}, v14
    s_cbranch_vccz {dn}""")
    budget(dn)
    if nap: a(f"s_sleep {nap}")
    a(f"s_branch {lp}\n{dn}:")
def aw_signal(word):
    a(f"s_mov_b64 exec, 1\nds_add_u32 v9, v{vCV} offset:{SYNC - NONCE + 4*word}\ns_mov_b64 exec, -1")
if NOACK: FLAG1 = 1
if FLAG1 and not STAT: job_flag()
if not PAIRB:
    a("s_barrier")
    stamp(1)
if not FLAG1: job_flag()
a("s_branch L_aw03")

a('; ---- waves 1, 2: rest of the x tile and first half of the wq slice -> LDS')
if E("ALN2", 1): a(".p2align 12")
a("L_aw12:")
ids()
wq_setup()
a(f"""s_mul_i32 s{sP}, s{sS}, 3
s_lshl_b32 s{t0}, s{t5}, 1
s_add_u32 s{sP}, s{sP}, s{t0}
s_add_u32 s{sP}, s{sP}, 2
v_mov_b32 v9, {NONCE}
v_mov_b32 v{vCV}, 1
s_waitcnt lgkmcnt(0)""")
srd(sX, pX, 0x200000); srd(sWQ, pWQ, 0x80000); srd(sWS, pWS, WS_SIZE)
vconst()
AV = Cnt(63)
for gq in range(3):
    a(f"""s_add_u32 s{t0}, s{sP}, {gq}
    s_and_b32 s{t0}, s{t0}, 7
    s_lshl_b32 s{sD1}, s{sRB}, 16
    s_lshl_b32 s{t2}, s{t0}, 13
    s_add_u32 s{sD1}, s{sD1}, s{t2}
    s_mul_i32 s{sD0}, s{t0}, {8*XS}""")
    if gq == 0:
        a("s_barrier")
        stamp(0)
    xrows(8)
def ld_wq(g):
    for n in range(8):
        a(f"s_add_u32 m0, s{sI}, {WQB + ((g + 1) % 4)*16384 + n*1024}\ns_add_u32 s{t1}, s{sJ}, {g*131072 + n*8192}")
        a(f"buffer_load_dwordx4 v11, {sr(sWQ,4)}, s{t1} offen lds")
    AV.issue(g, 8)
for g_ in range(WQE): ld_wq(g_)
ys("j0")
a(f"s_waitcnt vmcnt({AV.need(0) if G0H else 8*WQE})")
ys("xl")
a("s_barrier")
stamp(1)
if PAIRB:
    assert WQE == 2 and not G0H
    for b in range(2):
        a(f"s_waitcnt vmcnt({AV.need(b)})"); aw_signal(W_G + b); ys(f"l{b}")
    if POLLAT > 1: aw_wait(W_G + POLLAT, E("PCNT", 1), nap=1)
    if EPOLL: aw_poll()
else:
    for g_ in range(WQE, 2): ld_wq(g_)
    for b in range(4):
        if not LATE and max(WQE, 2) + b < 4: ld_wq(max(WQE, 2) + b)
        if not (G0H and b == 0):
            a(f"s_waitcnt vmcnt({AV.need(b)})")
            aw_signal(W_G + b)
        ys(f"l{b}")
        if LATE and max(WQE, 2) + b < 4: ld_wq(max(WQE, 2) + b)
a("s_branch L_aw_all")

a("L_aw3b:")
if PAIRB: wq_setup(); srd(sWQ, pWQ, 0x80000)
ids()
srd(sWS, pWS, WS_SIZE)
stamp(0)
a(f"""v_mov_b32 v24, 0
v_mov_b32 v25, 0
v_mov_b32 v26, 0
v_mov_b32 v27, 0
v_add_u32 v13, {LT}, v10""")
for n in range(4): a(f"ds_write_b128 v13, v[24:27] offset:{n*1024}")
a(f"""v_lshlrev_b32 v13, 2, v0
v_add_u32 v13, {MISC}, v13
v_lshrrev_b32 v14, 2, v0
v_cmp_eq_u32 vcc, 1, v14
v_cndmask_b32 v14, 0, v14, vcc
ds_write_b32 v13, v14""")
a("s_waitcnt lgkmcnt(0)\ns_barrier")
if PAIRB:
    if E("ALN", 1): a("s_branch L_aw_visit\nL_aw_back:")
    a("s_waitcnt vmcnt(0)\nL_aw03:\ns_barrier")
    stamp(1)
    AV.clear()
    def late_store():
        l_ = a.lab("ls")
        a(f"s_cmp_lg_u32 s{sW}, 0\ns_cbranch_scc1 {l_}\ns_mov_b64 exec, s[{sRET}:{sRET+1}]")
        job_store(); job_flag(); a(f"{l_}:")
    if STAT == 1: late_store()
    ld_wq(2)
    if STAT == 2: late_store()
    ld_wq(3)
    a(f"v_mov_b32 v9, {NONCE}\nv_mov_b32 v{vCV}, 1")
    vconst()
    if EPOLL and POLLAT == 1: aw_poll(); AV.issue("p")
    for b in (2, 3):
        a(f"s_waitcnt vmcnt({AV.need(b)})"); aw_signal(W_G + b); ys(f"l{b}")
        if EPOLL and b == POLLAT: aw_poll(); AV.issue("p")
else:
    a("s_waitcnt vmcnt(0)\ns_barrier")
    stamp(1)
    if E("ALN", 1): a("s_branch L_aw_visit\nL_aw_back:")
    a("L_aw03:")
    vconst()
    a(f"v_mov_b32 v9, {NONCE}\nv_mov_b32 v{vCV}, 1")
    if PKS < 0: aw_wait(W_G + POLLAT, 2, nap=2)
a('; ---- attention waves: wait for the key/value flags, pull 512 keys into registers')
a("L_aw_all:")
if PKS >= 0: aw_wait(W_P, 1, nap=1)
if not EPOLL: aw_poll()
stamp(2)
aw_wait((NONCE - SYNC) // 4, 1)
a(f"s_lshl_b32 s{t4}, s{sW}, 15")
if FORCE_RD: a(f"s_mov_b32 s{sPF}, 0")
if ROT: a(f"s_lshr_b32 s{t2}, s2, 3\ns_and_b32 s{t2}, s{t2}, 7\ns_lshl_b32 s{t2}, s{t2}, 12\ns_add_u32 s{t4}, s{t4}, s{t2}")
a(f"v_readfirstlane_b32 s{sNON}, v14\ns_waitcnt vmcnt(0)")
poll_check(11, S1, F_KV, nap=E('ANAP', 2))
stamp(3)
kvn = [0]
KC = Cnt(63)
def kvload(k):
    if VMASK:
        for _ in range(k // 4):
            t = kvn[0] // 2
            if t == 16: return
            a(f"s_xor_b32 s{t3}, s{t4}, {t*2048}")
            for u in range(2):
                a(f"buffer_load_dwordx4 {vr(KR+4*(t+u),4)}, v10, {sr(sWS,4)}, s{t3} offen offset:{u*2048} sc1"); KC.issue(("k", t + u))
            a(f"s_mov_b64 exec, s[{sL2E}:{sL2E+1}]")
            for u in range(4):
                a(f"buffer_load_dwordx4 {vr(VR+8*t+4*u,4)}, v10, {sr(sWS,4)}, s{t3} offen offset:{(u//2)*2048 + 1024 + (u%2)*256} sc1"); KC.issue(("v", t + u // 2))
            a("s_mov_b64 exec, -1")
            kvn[0] += 4
        return
    for _ in range(k):
        n = kvn[0]; t = n // 2
        if n == 32: return
        if n % 4 == 0: a(f"s_xor_b32 s{t3}, s{t4}, {t*2048}")
        a(f"buffer_load_dwordx4 {vr(VR+8*t if n % 2 else KR+4*t,4)}, v10, {sr(sWS,4)}, s{t3} offen offset:{(n%4)*1024} sc1")
        KC.issue(("v" if n % 2 else "k", t))
        kvn[0] += 1
def kvwait(*tags):
    n = [x for x in (KC.need(t) for t in tags) if x is not None]
    if n: a(f"s_waitcnt vmcnt({min(n)})")
if VMASK: a(f"s_mov_b32 s{sL2E}, 0xffff\ns_mov_b32 s{sL2E+1}, 0xffff")
a("L_aw_kv:")
kvload(2 * PRE)
if NOACK: a("v_mov_b32 v11, 0")
a(f"""s_lshl_b32 s{t0}, s{sW}, 11
s_add_u32 s{t0}, s{t0}, {OP}
v_add_u32 v{vPA}, s{t0}, v10
v_add_u32 v{vQA}, {Q}, v10
s_lshl_b32 s{t0}, s{sW}, 8
s_add_u32 s{t0}, s{t0}, {LT}
v_lshl_add_u32 v{vLA}, v0, 2, s{t0}
v_mov_b32 v{vCA}, {CONS}
v_mov_b32 v{vIDX}, 0xdddd
v_mov_b32 v{vZ}, 0
v_mov_b32 v{vZ+1}, 0
s_movk_i32 s{t0}, 0x3f80
v_writelane_b32 v{vZ}, s{t0}, 20""")
a(f"""s_lshr_b32 s{sD0}, s{sW}, 1
s_lshl_b32 s{sD0}, s{sD0}, 10
s_and_b32 s{t0}, s{sW}, 1
s_lshl_b32 s{t0}, s{t0}, 3
s_add_u32 s{sD0}, s{sD0}, s{t0}""" if QFIN else f"s_mov_b32 s{sD0}, 0")
a(f"""s_add_u32 s{sD0}, s{sD0}, {OP + 3*8192}
s_lshl_b32 s{t0}, s{sRB}, 7
s_lshl_b32 s{t1}, s{sHG}, 2
s_add_u32 s{t0}, s{t0}, s{t1}
s_lshl_b32 s{sD1}, s{t0}, 10
s_add_u32 s{sD1}, s{sD1}, {WS_O + 67*1024}
s_mov_b32 s{t1}, {Q + 8*1024}""")
def redo():
    a("L_aw_redo:"); budget("L_aw_go")
    a("s_nop 15\ns_nop 15")
    vconst()
    a(f"v_mov_b32 v{vCV}, 0\ns_mov_b32 s{sPF}, 1\ns_branch L_aw_kv")
if NOACK: assert not VMASK; cold.append(redo)
def vfix(t):
    if NOACK: a(f"v_max3_u32 v11, v11, v{KR+4*t}, v{VR+8*t}")
    for r in range(4): a(f"v_permlane16_swap_b32 v{VR+8*t+r}, v{VR+8*t+4+r}")
for t in range(PSW):
    kvwait(("v", t)); ys(f"v{t}"); vfix(t); kvload(E("LPP", 2))
if E("QF", 1):
    a(f"v_mfma_f32_32x32x8_bf16 {vr(O_,16)}, {vr(vZ,2)}, {vr(vZ,2)}, 0\ns_mov_b32 s{sJ}, {7 if UNR else 0}")
if E("ALN", 1):
    a("s_branch L_aw_pg")
    emit_cold()
    a(".p2align 12\nL_aw_visit:\ns_branch " + ("L_aw_visit2" if UNR else "L_aw_back") + "\nL_aw_pg:")
def zero_o(): a(f"v_mfma_f32_32x32x8_bf16 {vr(O_,16)}, {vr(vZ,2)}, {vr(vZ,2)}, 0")
QF = E("QF", 1)
if QF:
    aw_wait(W_Q, 4, nap=E("QNAP", 1), also=f"ds_read_b128 {vr(QR,4)}, v{vQA}")
    a("s_setprio 1")
else:
    aw_wait(W_Q, 4, nap=E("QNAP", 1))
    a(f"ds_read_b128 {vr(QR,4)}, v{vQA}\ns_setprio 1")
stamp(4)
def qk(t, S): a(f"v_mfma_f32_32x32x16_bf16 {vr(S,16)}, {vr(KR+4*t,4)}, {vr(QR,4)}, 0")
def pv(t, s, S): a(f"v_smfmac_f32_32x32x32_bf16 {vr(O_,16)}, {vr(VR+8*t+4*s,4)}, {vr(S+8*s,8)}, v{vIDX}")
def flush_parts(j=None):
    so = 0 if j is None else j & 3
    co = 0 if j is None else 4 * j
    chk = j is None or j >= 4
    lp, dn = a.lab("cw"), a.lab("cwd")
    def slow():
        a(f"{lp}:"); budget(dn)
        a(f"""s_sleep 1
        ds_read_b32 v{vCV}, v{vCA} offset:{co}
        s_waitcnt lgkmcnt(0)
        v_cmp_eq_u32 vcc, 0, v{vCV}
        s_cbranch_vccnz {lp}
        s_branch {dn}""")
    if chk: cold.append(slow)
    return (f"v_cmp_eq_u32 vcc, 0, v{vCV}" if chk else "",
            (f"s_cbranch_vccnz {lp}\n{dn}:\n" if chk else "") + f"ds_write_b128 v{vPA}, {vr(O_,4)} offset:{so*8192}",
            f"ds_write_b128 v{vPA}, {vr(O_+4,4)} offset:{so*8192 + 1024}",
            f"ds_write_b32 v{vLA}, v{O_+8} offset:{so*1024}")
def flush(j=None):
    for x in flush_parts(j): a(x)
def apass(first, j=None):
    fl = None if first else flush_parts(None if j is None else j - 1)
    pos = (6, 11, 13, 15) if (j is None or j >= 5 or a.tr2) else (6, 13, 14, 15)
    for t in range(16):
        S, Sn = (S0, S1) if t % 2 == 0 else (S1, S0)
        if first: ys(f"t{t}")
        d = 3 if (t == 1 and not first) else 0
        for e in range(16):
            if t == 0 and not first and e in pos:
                a(fl[pos.index(e)])
                if e == 15: zero_o()
            if d and e == d - 1: pv(0, 0, Sn)
            if e == 2 + d and not (first and t == 0): pv((t - 1) % 16, 1, Sn)
            if e == 5 + d:
                if first and t < 15: assert kvn[0] > 2*(t+1); kvwait(*([("v", 15)] if t == E("WALL", 99) else [("k", t + 1), ("v", t)]))
                if t == 15: a("s_waitcnt lgkmcnt(0)" if not first else "s_waitcnt vmcnt(0) lgkmcnt(0)")
                if not (j == 7 and t == 15): qk((t + 1) % 16, Sn)
                if t == 14 and j is None:
                    a(f"v_add_u32 v{vQA}, 1024, v{vQA}\nds_read_b128 {vr(QR,4)}, v{vQA}\nds_read_b32 v{vCV}, v{vCA}")
                if t == 14 and j is not None:
                    if j < 7: a(f"ds_read_b128 {vr(QR,4)}, v{vQA} offset:{(j + 1)*1024}")
                    if j >= 4: a(f"ds_read_b32 v{vCV}, v{vCA} offset:{4*j}")
                if d and j is None:
                    a(f"""s_add_u32 s{sJ}, s{sJ}, 1
                    s_cmp_eq_u32 s{sJ}, 4
                    s_cselect_b32 s{t0}, -3, 1
                    v_lshl_add_u32 v{vPA}, s{t0}, 13, v{vPA}
                    v_lshl_add_u32 v{vLA}, s{t0}, 10, v{vLA}
                    v_add_u32 v{vCA}, 4, v{vCA}""")
            if first and LSP and e in (6, 10, 14, 1)[:LPT]: kvload(1)
            if e == 8 and first:
                if t >= PSW: vfix(t)
                if not LSP: kvload(LPT)
                if SPF == 3 and t == E("SPT", 0): aw_signal(W_P)
                if t == SIGT: aw_signal(W_KV)
            if first and NOACK and t == 15:
                if e == 10: a("v_cmp_eq_u32 vcc, -1, v11" if not FORCE_RD else f"v_cmp_eq_u32 vcc, s{sPF}, v{vZ+1}")
                if e == 14: a("s_cbranch_vccnz L_aw_redo\nL_aw_go:")
            if e == 15 and not (t == 0 and not first): pv(t, 0, S)
            a(f"v_exp_f32 v{S+e}, v{S+e}")
if not QF:
    zero_o()
    a(f"s_mov_b32 s{sJ}, 0\ns_waitcnt lgkmcnt(0)")
kvwait(("k", 0))
qk(0, S0)
stamp(5)
a(';      O^T += [V^T; ones] P through the 2:4 sparse MFMA, whose index picks the high halves of the f32 P registers.')
apass(True, 0 if UNR else None)
stamp(6)
if DIAG and not YST: a(f"s_memtime s[96:97]\ns_mov_b32 s31, s{sBUD}")
if UNR:
    for j in range(1, 8):
        if j % 2 == 0:
            a(f"s_branch L_aw_pg{j}")
            emit_cold()
            a(f".p2align 12\nL_aw_visit{j}:\ns_branch {'L_aw_visit%d' % (j + 2) if j < 6 else 'L_aw_back'}\ns_nop 0\nL_aw_pg{j}:")
        apass(False, j)
else:
    a(".p2align 4\nL_aloop:")
    apass(False)
    if DIAG and os.environ.get("PASSST"):
        for n, sl in zip(range(1, 7), (0, 1, 2, 3, 4, 11)):
            l = a.lab("st")
            a(f"s_cmp_lg_u32 s{sJ}, {n}\ns_cbranch_scc1 {l}"); stamp(sl); a(f"{l}:")
    a(f"s_cmp_lt_u32 s{sJ}, 7\ns_cbranch_scc1 L_aloop")
a('; ---- last q tile: each attention wave finalizes a quarter of the record (same range check, same fallback)')
pv(15, 1, S1)
if not NOB:
    a(f"""v_lshlrev_b32 v251, 2, v0
    v_add_u32 v13, {G1}, v251
    ds_read_b64 v[18:19], v9 offset:{SYNC - NONCE + 4*W_OB}
    ds_read_b32 v233, v13
    v_and_b32 v14, 3, v0
    v_lshlrev_b32 v14, 8, v14
    v_add_u32 v14, {LT + 3*1024}, v14
    v_and_b32 v15, 124, v251
    v_add_u32 v15, {LT + 3*1024}, v15
    v_add_u32 v140, s{sD0}, v10""")
else: a("s_nop 9")
flush(7 if UNR else None)
stamp(7)
if DIAG and not YST: a("s_memtime s[98:99]\ns_waitcnt lgkmcnt(0)\ns_sub_u32 s30, s98, s96\ns_sub_u32 s31, s31, s77")
if not NOB:
    lp, dn = a.lab("ob"), a.lab("obd")
    a(f"s_setprio 3\ns_mov_b32 s{t4}, s{sD1}")
    if not QFIN: a(f"s_cmp_lg_u32 s{sW}, 3\ns_cbranch_scc1 L_aw_end")
    a(f"""s_waitcnt lgkmcnt(3)
    v_cmp_gt_u32 vcc, 4, v18
    s_cbranch_vccnz {lp}
    {dn}:
    v_readfirstlane_b32 s{sFAR}, v19
    s_lshl_b32 s{sFAR}, s{sFAR}, 6""")
    if not QFIN: fin_body(False, "L_aw_fb", 0)
    else:
        l1, d1 = a.lab("fw"), a.lab("fwd")
        a(f"v_lshl_add_u32 v16, s{sW}, 2, v10\n{l1}:\nds_read_b32 v3, v14 offset:208\ns_waitcnt lgkmcnt(0)\nv_cmp_eq_u32 vcc, 0, v3\ns_cbranch_vccz {d1}")
        budget(d1)
        a(f"s_branch {l1}\n{d1}:")
        a("ds_read2st64_b32 v[20:21], v15 offset0:0 offset1:1\nds_read2st64_b32 v[22:23], v15 offset0:2 offset1:3")
        for w_ in range(4): a(f"ds_read_b64 v[{24+2*w_}:{25+2*w_}], v140 offset:{w_*2048}")
        a(f"""s_waitcnt lgkmcnt(4)
        v_add_f32 v20, v20, v22
        v_add_f32 v21, v21, v23
        v_add_f32 v20, v20, v21
        v_rcp_f32 v21, v20
        s_waitcnt lgkmcnt(0)
        v_add_f32 v24, v24, v26
        v_add_f32 v28, v28, v30
        v_add_f32 v25, v25, v27
        v_add_f32 v29, v29, v31
        v_mul_f32 v21, v21, v233
        v_add_f32 v24, v24, v28
        v_add_f32 v25, v25, v29
        v_fma_f32 v20, v24, 0, v20
        v_fma_f32 v20, v25, 0, v20
        v_mul_f32 v24, v24, v21
        v_mul_f32 v25, v25, v21
        v_subrev_u32 v20, {hex((127-40)<<23)}, v20
        v_cmp_lt_u32 vcc, {hex(120<<23)}, v20
        v_cvt_pk_bf16_f32 v24, v24, v25
        s_cbranch_vccnz L_aw_fb""")
        if FORCE_FB: a("s_branch L_aw_fb")
        a(f"""v_min_u32 v24, -2, v24
        s_cmp_ge_u32 s{sJ}, s{sFAR}
        s_cbranch_scc0 L_aw_far
        buffer_store_dword v24, v16, {sr(sWS,4)}, s{t4} offen""")
        cold.append(lambda: a(f"L_aw_far:\nbuffer_store_dword v24, v16, {sr(sWS,4)}, s{t4} offen sc1\ns_endpgm"))
    a("L_aw_end:")
    cold.append(lambda: a(f"L_aw_fb:\ns_call_b64 s[{sRET}:{sRET+1}], L_fb\ns_endpgm"))
    def slow():
        a(f"{lp}:"); budget(dn)
        a(f"""s_sleep 2
        ds_read_b64 v[18:19], v9 offset:{SYNC - NONCE + 4*W_OB}
        ds_read_b32 v233, v13
        s_waitcnt lgkmcnt(0)
        v_cmp_gt_u32 vcc, 4, v18
        s_cbranch_vccnz {lp}
        s_branch {dn}""")
    cold.append(slow)
    stamp(10)
diag_dump(8)
hold()
a("s_endpgm")
emit_cold()

role[0] = "S"
vONE, vSY, vT = 1, 2, 3
vXA, vWX, vWO, vWOA, vD3, vD1, vL16, vGI, vGO = 4, 5, 6, 7, 8, 9, 10, 11, 12
WPH, PHQ, ACC, AC2, WB0, TMP = 16, 24, 40, 56, 72, 104
vNON, vGF, vLI, vPF = 232, 233, 234, 235
vSW, vSR, vSR2, vSV, vSVR = 236, 240, 241, 242, 243
FOUT = 244
vPO, vT2, vL4, vWP, vPR, vPC, vKS = 248, 249, 251, 252, 253, 254, 255
XF = TMP; WR = WB0
VM, LG = Cnt(63), Cnt(15)
def wait(vm=None, lg=None):
    if isinstance(vm, tuple) and vm[0] == "st": assert (vm[1], 3) in issued, vm
    v = VM.need(vm) if vm is not None else None
    l = LG.need(lg) if lg is not None else None
    t = ([f"vmcnt({v})"] if v is not None else []) + ([f"lgkmcnt({l})"] if l is not None else [])
    if t: a("s_waitcnt " + " ".join(t))
def newword():
    nword[0] += 1; assert nword[0] <= 48; return nword[0] - 1
def arrive(w=None):
    w = newword() if w is None else w
    a(f"s_mov_b64 exec, 1\nds_add_u32 v{vSY}, v{vONE} offset:{4*w}\ns_mov_b64 exec, -1")
    LG.issue("arr")
    return w
def chk_read(w):
    a(f"ds_read_b32 v{vT}, v{vSY} offset:{4*w}"); LG.issue("chk")
def chk_test(w, target=4, lowprio=False, nap=0, near=False):
    dn, rt = a.lab("sbd"), a.lab("sbr")
    if near:
        wait(lg="chk")
        a(f"{rt}:\nv_readfirstlane_b32 s{t0}, v{vT}\ns_cmp_ge_u32 s{t0}, {target}\ns_cbranch_scc1 {dn}")
        budget(dn)
        a(f"ds_read_b32 v{vT}, v{vSY} offset:{4*w}\ns_waitcnt lgkmcnt(0)\ns_branch {rt}\n{dn}:")
        return
    if lowprio: a("s_setprio 2")
    wait(lg="chk")
    a(f"v_readfirstlane_b32 s{t0}, v{vT}\ns_cmp_lt_u32 s{t0}, {target}\ns_cbranch_scc1 {rt}\n{dn}:")
    if lowprio: a("s_setprio 0")
    def slow():
        a(f"{rt}:"); budget(dn)
        if nap: a(f"s_sleep {nap}")
        a(f"""ds_read_b32 v{vT}, v{vSY} offset:{4*w}
        s_waitcnt lgkmcnt(0)
        v_readfirstlane_b32 s{t0}, v{vT}
        s_cmp_lt_u32 s{t0}, {target}
        s_cbranch_scc1 {rt}
        s_branch {dn}""")
    cold.append(slow)
def check(w, target=4, nap=0): chk_read(w); chk_test(w, target, nap=nap)
class only:
    def __init__(s, reg, val): s.reg, s.val = reg, val
    def __enter__(s):
        s.l = a.lab("only"); a(f"s_cmp_lg_u32 s{s.reg}, {s.val}\ns_cbranch_scc1 {s.l}")
        s.sv = (list(VM.q), list(LG.q))
    def __exit__(s, *e):
        a(f"{s.l}:"); VM.q, LG.q = s.sv
def flag(plane): a(f"s_add_u32 s{t0}, s{sFL}, {plane*FP}"); put_flag(t0, vNON, vL4)
def call_fin(greg):
    a(f"v_mov_b32 v{vGF}, v{greg}\ns_call_b64 s[{sRET}:{sRET+1}], L_fin\ns_nop 1")
def dma_base(kind):
    a(f"s_lshl_b32 s{t1}, s{sHG}, 7")
    if kind == "kv":
        a(f"s_mul_i32 s{sD1}, s{sP}, {32*3072}\ns_add_u32 s{sD1}, s{sD1}, s{t1}\ns_lshl_b32 s{t1}, s{sI}, 10\ns_add_u32 s{sD1}, s{sD1}, s{t1}\ns_add_u32 s{sD1}, s{sD1}, 1024")
    elif kind == "q":
        a(f"s_mul_i32 s{sD1}, s{sS}, {32*3072}\ns_add_u32 s{sD1}, s{sD1}, s{t1}")
    else:
        a(f"s_lshl_b32 s{sD1}, s{sS}, 15\ns_add_u32 s{sD1}, s{sD1}, s{t1}")
def dma_one(c, n):
    if n == 0 and c in (8, 12): dma_base("q" if c == 8 else "o")
    if c < 8:   srdw, vo, base, step = sWB, vD3, c * 64 * 3072, 8 * 3072
    elif c < 12: srdw, vo, base, step = sWB, vD3, (c - 8) * 128 * 3072, 8 * 3072
    else:       srdw, vo, base, step = sWOB if c < 16 else sWOA, vD1, (c % 4) * 128 * 1024, 8 * 1024
    a(f"s_add_u32 m0, s{sD0}, {STG[c] + n*1024}\ns_add_u32 s{t1}, s{sD1}, {base + n*step}")
    a(f"buffer_load_dwordx4 v{vo}, {sr(srdw,4)}, s{t1} offen lds")
    VM.issue(("st", c)); issued.add((c, n))
issued = set()
def dma_stage(c):
    for n in range(4): dma_one(c, n)
def rd_w(dst, vaddr, off, second, tag=None):
    a(f"ds_read_b64_tr_b16 {vr(dst,2)}, v{vaddr} offset:{off}\nds_read_b64_tr_b16 {vr(dst+2,2)}, v{vaddr} offset:{off+second}")
    LG.issue(tag, 2)
def rd_stage(dst, c, k, tag):
    if STG[c] < OP: rd_w(dst, vWX, STG[c] + k * 2048, 512, tag)
    else: rd_w(dst, vWP, STG[c] - WQB + k * 2048, 512, tag)

a(".p2align 6\nL_sw:")
ids()
a(f"""s_setprio 2
s_and_b32 s{sS}, s{sW}, 3
s_lshr_b32 s{sI}, s{sS}, 1
s_and_b32 s{sP}, s{sS}, 1""")
dma_lane_addrs()
SCP = R1
SCV = R2
assert SCP % 64 == 0 and X == 0
a(f"""v_and_b32 v11, 31, v0
s_lshl_b32 s{t0}, s{sI}, 5
v_add_u32 v13, s{t0}, v11
v_mul_u32_u24 v{vXA}, {XS}, v13
v_lshrrev_b32 v12, 5, v0
v_lshl_add_u32 v{vXA}, v12, 4, v{vXA}
v_and_b32 v13, 15, v0
v_lshrrev_b32 v16, 2, v13
v_lshlrev_b32 v14, 7, v16
v_lshrrev_b32 v15, 3, v13
v_xor_b32 v15, s{sP}, v15
v_lshl_add_u32 v14, v15, 6, v14
v_bfe_u32 v17, v0, 4, 1
v_lshl_add_u32 v14, v17, 5, v14
v_and_b32 v18, 3, v0
v_lshl_add_u32 v14, v18, 3, v14
v_lshl_add_u32 v{vWX}, v12, 10, v14
v_lshl_add_u32 v{vWOA}, v12, 9, v14
v_add_u32 v{vWP}, {WQB}, v{vWX}
v_add_u32 v{vWO}, {RING}, v{vWOA}
v_mov_b32 v{vONE}, 1
v_mov_b32 v250, 0
v_mov_b32 v{vSY}, {SYNC}
v_lshlrev_b32 v{vL4}, 2, v0
v_min_u32 v15, 16, v11
v_mad_u32_u24 v{vLI}, v12, 20, v15
v_lshlrev_b32 v{vLI}, 4, v{vLI}
v_mul_u32_u24 v15, {32*PREC}, v12
v_lshl_add_u32 v{vPR}, v11, 4, v15
v_lshl_add_u32 v{vKS}, v12, 7, v{vL4}
s_lshl_b32 s{t0}, s{sRB}, 10
v_and_b32 v{vPF}, 7, v0
v_lshlrev_b32 v{vPF}, 7, v{vPF}
v_add_u32 v{vPF}, s{t0}, v{vPF}
s_lshl_b32 s{t0}, s{sHG}, 7
v_lshlrev_b32 v{vPC}, 10, v11
v_add_u32 v{vPC}, s{t0}, v{vPC}
v_bfe_u32 v14, v0, 1, 3
v_xor_b32 v14, v14, v12
v_lshlrev_b32 v14, 3, v14
v_lshl_add_u32 v14, v11, 6, v14
s_lshl_b32 s{t0}, s{sI}, 11
s_lshl_b32 s{t1}, s{sP}, 13
s_add_u32 s{t0}, s{t0}, s{t1}
s_add_u32 s{t0}, s{t0}, {SCP}
v_add_u32 v{vSW}, s{t0}, v14
v_xor_b32 v{vSW+1}, 16, v{vSW}
v_xor_b32 v{vSW+2}, 32, v{vSW}
v_xor_b32 v{vSW+3}, 48, v{vSW}
v_lshl_add_u32 v15, v12, 2, v16
v_lshrrev_b32 v14, 1, v15
v_lshl_add_u32 v19, v17, 2, v18
v_xor_b32 v14, v14, v19
v_lshlrev_b32 v14, 3, v14
v_lshl_add_u32 v15, v15, 6, v14
s_lshl_b32 s{t3}, s{sP}, 1
s_add_u32 s{t3}, s{t3}, s{sI}
s_lshl_b32 s{t0}, s{t3}, 12
s_add_u32 s{t0}, s{t0}, {SCP}
v_add_u32 v{vSR}, s{t0}, v15
v_xor_b32 v{vSR2}, 32, v{vSR}
s_lshl_b32 s{t0}, s{sS}, 11
s_add_u32 s{t0}, s{t0}, {SCV}
v_add_u32 v{vSV}, s{t0}, v{vL16}
v_lshlrev_b32 v14, 4, v13
v_lshl_add_u32 v14, v12, 9, v14
s_lshl_b32 s{t0}, s{sP}, 11
s_lshl_b32 s{t1}, s{sI}, 8
s_add_u32 s{t0}, s{t0}, s{t1}
s_add_u32 s{t0}, s{t0}, {SCV}
v_add_u32 v{vSVR}, s{t0}, v14
v_lshrrev_b32 v14, 1, v18
v_lshl_add_u32 v14, v17, 1, v14
v_lshlrev_b32 v14, 3, v14
v_lshl_add_u32 v{FOUT}, v16, 5, v14
v_lshl_add_u32 v{FOUT}, v12, 7, v{FOUT}
s_lshl_b32 s{t0}, s{sP}, 10
s_add_u32 s{t0}, s{t0}, {WPHI}
v_add_u32 v{FOUT}, s{t0}, v{FOUT}
v_lshlrev_b32 v{FOUT+1}, 31, v16
v_or_b32 v{FOUT+1}, {hex(LOG2E)}, v{FOUT+1}
s_lshl_b32 s{t0}, s{sS}, 11
s_add_u32 s{t0}, s{t0}, {Q}
v_add_u32 v{FOUT+2}, s{t0}, v{vL16}
s_lshl_b32 s{sD0}, s{sS}, 12""")
a("s_waitcnt lgkmcnt(0)")
srd(sWS, pWS, WS_SIZE); srd(sWB, pWQKV, 0x180000); srd(sWOA, pWOA, 0x80000); srd(sWOB, pWOB, 0x80000); srd(sOUT, pOUT, 0x200000)
dma_base("kv")
if SPF:
    a(f"""s_lshr_b32 s{t0}, s2, 2
    s_mul_i32 s{t0}, s{t0}, 3072
    s_and_b32 s{t1}, s2, 3
    s_lshl_b32 s{t1}, s{t1}, 2
    s_add_u32 s{t1}, s{t1}, s{sS}
    s_lshl_b32 s{t1}, s{t1}, 7
    s_add_u32 s{t0}, s{t0}, s{t1}
    s_add_u32 s{t0}, s{t0}, 1024
    s_add_u32 s{sSM}, s{pWQKV}, s{t0}
    s_addc_u32 s{sSM+1}, s{pWQKV+1}, 0
    s_add_u32 s{sSM+2}, s{sSM}, {4*64*3072}
    s_addc_u32 s{sSM+3}, s{sSM+1}, 0""")
SWQ = os.environ.get("SWQ", "")
def swq(groups):
    for g_ in groups:
        for n in range(16): a(f"s_load_dword s96, s[{sWKV}:{sWKV+1}], {int(g_)*131072 + (n//2)*1024 + (n%2)*64}")
if SWQ:
    assert MAP == 1
    a(f"""s_and_b32 s{t0}, s{sRB}, 3
    s_lshl_b32 s{t0}, s{t0}, 2
    s_add_u32 s{t0}, s{t0}, s{sS}
    s_lshl_b32 s{t0}, s{t0}, 13
    s_lshl_b32 s{t1}, s{sHG}, 7
    s_add_u32 s{t0}, s{t0}, s{t1}
    s_add_u32 s{sWKV}, s{pWQ}, s{t0}
    s_addc_u32 s{sWKV+1}, s{pWQ+1}, 0""")
    swq(SWQ.split("/")[0])
stamp(0)
a("s_barrier")
if SWQ: swq(SWQ.split("/")[1])
def spf(k):
    for n in range(k): a(f"s_load_dword s96, s[{sSM + 2*(n//8)}:{sSM + 2*(n//8) + 1}], {((n//2) % 4)*64*3072 + 64*(n%2)}")
if SPF == 1: spf(15)
a("s_barrier")
stamp(1)
xn = [0]
def xread(k):
    for _ in range(k):
        if xn[0] < 32:
            a(f"ds_read_b128 {vr(XF+4*xn[0],4)}, v{vXA} offset:{xn[0]*32}"); LG.issue("x"); xn[0] += 1
assert not XJ
for hh in range(2): rd_w(WPH + 4 * hh, FOUT, hh * 512, 256, "ph")
xread(8); wait(lg="ph")
for r in range(8):
    a(f"v_lshlrev_b32 v14, 16, v{WPH+r}\nv_and_b32 v15, 0xffff0000, v{WPH+r}"); xread(1)
    a(f"v_mul_f32 v14, v14, v{FOUT+1}\nv_mul_f32 v15, v15, v{FOUT+1}"); xread(1)
    a(f"v_cvt_pk_bf16_f32 v{WPH+r}, v14, v15"); xread(1)
a('; ---- Q^T = wq^T x^T')
qcold = []
def qtest(g, part):
    if part == 0: wait(lg="chk"); a(f"v_readfirstlane_b32 s{t0}, v{vT}")
    else:
        rt, dn = a.lab("qr"), a.lab("qd")
        a(f"s_cmp_lt_u32 s{t0}, 2\ns_cbranch_scc1 {rt}\n{dn}:")
        def slow():
            a(f"{rt}:"); budget(dn)
            a(f"ds_read_b32 v{vT}, v{vSY} offset:{4*(W_G+g)}\ns_waitcnt lgkmcnt(0)\nv_readfirstlane_b32 s{t0}, v{vT}\ns_cmp_lt_u32 s{t0}, 2\ns_cbranch_scc1 {rt}\ns_branch {dn}")
        qcold.append(slow)
def qreads(ks):
    if ks == 0: chk_read(W_G); chk_test(W_G, 2, near=True)
    elif ks % 8 == 0: qtest(ks // 8, 1)
    rd_w(WR + 4 * (ks % 8), vWP, ((ks + 8) % 32) * 2048, 512, ("w", ks))
    if ks % 8 == 5 and ks < 24: chk_read(W_G + ks // 8 + 1)
    if ks % 8 == 7 and ks < 24: qtest(ks // 8 + 1, 0)
for ks in range(DQ): qreads(ks)
for ks in range(32):
    xread(XJ)
    if ks + DQ < 32: qreads(ks + DQ)
    wait(lg=("w", ks))
    a(f"v_mfma_f32_32x32x16_bf16 {vr(ACC,16)}, {vr(WR+4*(ks%8),4)}, {vr(XF+4*ks,4)}, {'0' if ks == 0 else vr(ACC,16)}")
    if ks == PKS: arrive(W_P)
    xs(f"q{ks}")
a(f"s_mov_b32 s{t1}, {hex(QSCALE)}\ns_mov_b32 s{t2}, {hex(QSCALE)}")
for hh in range(2):
    for r in range(8 * hh, 8 * hh + 8, 2): a(f"v_pk_mul_f32 {vr(ACC+r,2)}, {vr(ACC+r,2)}, s[{t1}:{t2}]")
    for r in range(4 * hh, 4 * hh + 4): a(f"v_cvt_pk_bf16_f32 v{PHQ+r}, v{ACC+2*r}, v{ACC+2*r+1}")
    a(f"ds_write_b128 v{FOUT+2}, {vr(PHQ+4*hh,4)} offset:{1024*hh}")
arrive(W_Q)
stamp(2)
a("s_branch L_sw_q")
for f_ in qcold: f_()
a("L_sw_q:")
for r in range(4): a(f"v_mov_b32 v{FOUT+r}, -1")
LG.clear()
if SPF == 2: spf(16)
if SPF == 3:
    check(W_P, E("SPN", 4), nap=2); spf(16)
if SP2:
    a(f"""s_lshl_b32 s{t0}, s2, 2
    s_add_u32 s{t0}, s{t0}, s{sS}
    s_lshl_b32 s{t0}, s{t0}, 9
    s_lshr_b32 s{t1}, s{t0}, 10
    s_lshl_b32 s{t1}, s{t1}, 11
    s_add_u32 s{t1}, s{t1}, s{t0}""")
    for (q_, o_) in ((sWB, t1), (sWOB, t0), (sWOA, t0))[:SP2]:
        a(f"s_add_u32 s{sX}, s{q_}, s{o_}\ns_addc_u32 s{sX+1}, s{q_+1}, 0")
        for n in range(8): a(f"s_load_dword s96, s[{sX}:{sX+1}], {64*n}")
DA = 2
def rd_a(n):
    rd_stage(WR + 8 * (n % 4), n // 4, n % 4, ("w", n)); rd_stage(WR + 8 * (n % 4) + 4, n // 4, 4 + n % 4, ("w", n))
def wgemm(items, slots, ahead, events=None, pre=None, extra=None, primed=0):
    N = len(items); events = events or {}; pre = pre or {}
    def rd(i):
        for f in pre.get(i, []): f()
        if items[i][0]: items[i][0](slots[i % len(slots)], ("w", i))
    assert ahead + PW <= len(slots)
    for i in range(primed, min(ahead, N)): rd(i)
    a("s_setprio 0")
    for g0 in range(0, N, PW):
        grp = list(range(g0, min(g0 + PW, N)))
        lgs = [i for i in grp if items[i][0]]
        wait(vm=items[grp[-1]][2], lg=("w", lgs[-1]) if lgs else None)
        for i in grp:
            t = items[i][1](slots[i % len(slots)])
            if PUSH and i == g0 + 2: a(f"s_setprio 2\n{t}\ns_setprio 0")
            else: a(t)
        for i in grp:
            if i + ahead < N: rd(i + ahead)
        for i in grp:
            if extra: extra(i)
            for f in events.get(i, []): f()
    a("s_setprio 2")
def mm_a(n, mid=None):
    wait(lg=("w", n))
    w = WR + 8 * (n % 4)
    em = a
    em(f"v_mfma_f32_32x32x16_bf16 {vr(ACC,16)}, {vr(w,4)}, {vr(XF+4*n,4)}, {'0' if n == 0 else vr(ACC,16)}")
    if mid: mid()
    em(f"v_mfma_f32_32x32x16_bf16 {vr(AC2,16)}, {vr(XF+4*n,4)}, {vr(w+4,4)}, {'0' if n == 0 else vr(AC2,16)}")
a(f"""v_and_b32 v13, 124, v{vL4}
s_lshl_b32 s{t2}, s{sRB}, 9
s_add_u32 s{t2}, s{t2}, {WS_G}
s_lshl_b32 s{t1}, s{sI}, 7
s_add_u32 s{t2}, s{t2}, s{t1}
s_xor_b32 s{t3}, s{t2}, 128""")
a(f"""v_and_b32 v15, 7, v0
v_lshlrev_b32 v15, 3, v15
s_lshl_b32 s{t4}, s{sRB}, 7
s_add_u32 s{t4}, s{t4}, {WS_F}
s_getreg_b32 s{sL2E}, hwreg(HW_REG_XCC_ID)""")
check(W_KV, 4, nap=2)
xs("a13")
if ST0 and not NOB: dma_stage(0)
a(f"""v_mov_b32 v14, {NONCE}
ds_read_b32 v{vNON}, v14
buffer_load_dword v{vGI}, v13, {sr(sWS,4)}, s{t2} offen sc1
buffer_load_dword v{vGO}, v13, {sr(sWS,4)}, s{t3} offen sc1
buffer_load_dword v{vT2}, v15, {sr(sWS,4)}, s{t4} offen offset:4 sc1""")
VM.issue("g", 3)
def gates(): pass
if NOB:
    wait(vm="g"); gates()
    a(f"s_mov_b32 s{sJ}, s{sS}"); call_fin(vGI)
    stamp(4)
    a(f"s_add_u32 s{sJ}, s{sS}, 4"); call_fin(vGI)
    stamp(5)
    diag_dump(13)
    a("s_endpgm")
NST = 0; N1 = 0
NPRE = E('NPRE', 3)
for c in range(ST0, NPRE): dma_stage(c)
a("v_lshlrev_b32 v13, 7, v0")
def wot():
    if SP2 == 3: return
    a(f"""s_lshl_b32 s{t0}, s2, 2
    s_add_u32 s{t0}, s{t0}, s{sS}
    s_lshl_b32 s{t0}, s{t0}, 9
    s_mov_b64 exec, 15
    buffer_load_dword v{vT2}, v13, {sr(sWOA,4)}, s{t0} offen""")
    if SP2 < 2: a(f"buffer_load_dword v{vT2}, v13, {sr(sWOB,4)}, s{t0} offen")
    if SP2 < 1: a(f"""s_lshr_b32 s{t1}, s{t0}, 10
    s_lshl_b32 s{t1}, s{t1}, 11
    s_add_u32 s{t0}, s{t0}, s{t1}
    buffer_load_dword v{vT2}, v13, {sr(sWB,4)}, s{t0} offen""")
    a("s_mov_b64 exec, -1")
    VM.issue("wot", 3 - SP2)
def outt():
    a(f"""s_lshl_b32 s{t0}, s{sRB}, 2
    s_add_u32 s{t0}, s{t0}, s{sS}
    s_lshl_b32 s{t0}, s{t0}, 14
    s_mov_b64 exec, 0xffff
    buffer_load_dword v{vGF}, v{vPC}, {sr(sOUT,4)}, s{t0} offen {os.environ.get("OTF", "")}
    s_mov_b64 exec, -1""")
    VM.issue("wot")
wait(vm=("st", NST)); w = arrive()
wait(vm="g")
if NOACK:
    lp_, dn_ = a.lab("gl"), a.lab("gld")
    a(f"v_max_u32 v{vT}, v{vGI}, v{vGO}\nv_cmp_eq_u32 vcc, -1, v{vT}\ns_cbranch_vccnz {lp_}\n{dn_}:")
    def gslow():
        a(f"{lp_}:"); budget(dn_)
        a(f"""v_and_b32 v14, 124, v{vL4}
        buffer_load_dword v{vGI}, v14, {sr(sWS,4)}, s{t2} offen sc1
        buffer_load_dword v{vGO}, v14, {sr(sWS,4)}, s{t3} offen sc1
        s_waitcnt vmcnt(0)
        v_max_u32 v{vT}, v{vGI}, v{vGO}
        v_cmp_eq_u32 vcc, -1, v{vT}
        s_cbranch_vccnz {lp_}
        s_branch {dn_}""")
    cold.append(gslow)
gates()
check(w)
a(f"""v_readfirstlane_b32 s{sNON}, v{vNON}
v_cmp_ne_u32 vcc, s{sL2E}, v{vT2}
s_cmp_eq_u64 vcc, 0
s_cselect_b32 s{sFAR}, {NEARJ}, 64""")
l_ = a.lab("near")
a(f"s_cbranch_scc1 {l_}"); sv_ = list(LG.q); arrive(W_FAR); LG.q = sv_; a(f"{l_}:")
stamp(3)
FIL = FOUT
def kvf_addr():
    a(f"""s_and_b32 s{t0}, s{sRB}, 3
    s_lshl_b32 s{t1}, s{sHG}, 2
    s_add_u32 s{t0}, s{t0}, s{t1}
    s_lshl_b32 s{t0}, s{t0}, 2
    s_lshr_b32 s{t1}, s{sRB}, 3
    s_add_u32 s{t0}, s{t0}, s{t1}
    s_lshl_b32 s{t0}, s{t0}, 9
    s_and_b32 s{t1}, s{sRB}, 4
    s_lshl_b32 s{t1}, s{t1}, 5
    s_add_u32 s{t0}, s{t0}, s{t1}
    s_add_u32 s{t0}, s{t0}, {WS_KVF}""")
a(f"""s_lshl_b32 s{sPF}, s{sRB}, 2
s_add_u32 s{sPF}, s{sPF}, s{sS}
s_lshl_b32 s{sPF}, s{sPF}, 15
s_lshl_b32 s{t1}, s{sHG}, 12
s_add_u32 s{sPF}, s{sPF}, s{t1}
s_add_u32 s{sPF}, s{sPF}, {WS_O}""")
def filler(r):
    if r < 4:
        st_ = f"buffer_store_dwordx4 {vr(FIL,4)}, v{vL16}, {sr(sWS,4)}, s{sPF} offen offset:{r*1024}"
        if NEARF:
            l1, l2 = a.lab("st"), a.lab("st")
            a(f"s_cmp_lt_u32 s{sFAR}, 64\ns_cbranch_scc0 {l1}\n{st_} {NFF}\n{l2}:")
            cold.append(lambda: a(f"{l1}:\n{st_} sc1\ns_branch {l2}"))
        else: a(st_ + " sc1")
        VM.issue("fil")
    else:
        with only(sS, 2):
            kvf_addr()
            a(f"buffer_store_dword v{FIL}, v{vKS}, {sr(sWS,4)}, s{t0} offen sc1")
SL = [WR + 4 * n for n in range(8)] + [PHQ + 4 * n for n in range(4)]
AH = 6
its = []
for n in range(N1, 32):
    its.append((lambda d, tg, n=n: rd_stage(d, n // 4, n % 4, tg), lambda w_, n=n: f"v_mfma_f32_32x32x16_bf16 {vr(ACC,16)}, {vr(w_,4)}, {vr(XF+4*n,4)}, {vr(ACC,16) if n else 0}", None))
    its.append((lambda d, tg, n=n: rd_stage(d, n // 4, 4 + n % 4, tg), lambda w_, n=n: f"v_mfma_f32_32x32x16_bf16 {vr(AC2,16)}, {vr(XF+4*n,4)}, {vr(w_,4)}, {vr(AC2,16) if n else 0}", None))
pre, tested = {}, set(range(NST))
cur = {}
for c in range(NST + 1, 9):
    i0_ = 8 * (c - NST)
    def arr(c=c):
        if c < 8: wait(vm=("st", c + 1 if (G2 and c >= 2) else c))
        cur[c] = arrive()
    def tst(c=c): chk_test(cur[c], lowprio=True); tested.update((c - 2, c - 3))
    if c < 8 and not (G2 and c >= 3 and c % 2):
        pre.setdefault(max(i0_ - PW - 2, AH), []).append(arr)
        pre.setdefault(max(i0_ - 2, AH), []).append(lambda c=c: chk_read(cur[c]))
        pre.setdefault(i0_, []).append(tst)
dq = [(c, n) for c in range(NPRE, 12) for n in range(4)]
def dma_next(i):
    if dq:
        prev = [k for k in range(dq[0][0]) if STG[k] == STG[dq[0][0]]]
        if not prev or prev[-1] in tested: dma_one(*dq.pop(0))
ev = {len(its) - AH - 1: [arr]}
if WOT: ev.setdefault(WOTAT, []).append(wot)
if E('OUTT', 0): ev.setdefault(E('OUTT', 0), []).append(outt)
if FILE_:
    for r in range(5): ev.setdefault(FILE_ + E("FILS", 8) * r, []).append(lambda r=r: filler(r))
DPG = E("DPG", 0)
def dma_a(i):
    if DPG == 0: go = (i % 3 != 2 or G2)
    elif DPG == 1: go = (i % 2 == 0 or i >= 56)
    else: go = (i % 2 == 0 or i % 8 == 1)
    if go: dma_next(i)
wgemm(its, SL, AH, pre=pre, extra=dma_a, events=ev)
assert not dq
w = cur[8]
stamp(4)

far = []
LOWM = E('LOWM', 1)
def lowprio(f):
    if LOWM: a('s_setprio 0')
    f()
    if LOWM: a('s_setprio 2')
def features(B, W, out, D, tm, done=False):
    def mm(): a(f"v_mfma_f32_32x32x16_bf16 {vr(D,16)}, {vr(W,4)}, {vr(B,4)}, 0")
    def shift():
        a(f"v_max_f32 v{tm}, v{D}, v{D+1}")
        for r in range(2, 16, 2): a(f"v_max3_f32 v{tm}, v{tm}, v{D+r}, v{D+r+1}")
        for r in range(0, 16, 2): a(f"v_pk_add_f32 {vr(D+r,2)}, {vr(D+r,2)}, {vr(tm,2)} op_sel_hi:[1,0] neg_lo:[0,1] neg_hi:[0,1]")
    def expsum():
        for r in range(16): a(f"v_exp_f32 v{D+r}, v{D+r}")
        a(f"v_pk_add_f32 {vr(tm,2)}, {vr(D,2)}, {vr(D+2,2)}\nv_pk_add_f32 {vr(tm+2,2)}, {vr(D+4,2)}, {vr(D+6,2)}")
        for r in range(8, 16, 2): a(f"v_pk_add_f32 {vr(tm+r%4,2)}, {vr(tm+r%4,2)}, {vr(D+r,2)}")
        a(f"v_pk_add_f32 {vr(tm,2)}, {vr(tm,2)}, {vr(tm+2,2)}\nv_add_f32 v{tm}, v{tm}, v{tm+1}")
    if not done: mm()
    if not NOMAX: shift()
    expsum()
    if NOMAX:
        fb, bk = a.lab("ff"), a.lab("ffb")
        a(f"v_subrev_u32 v{tm+1}, {hex((127-40)<<23)}, v{tm}\nv_cmp_lt_u32 vcc, {hex(120<<23)}, v{tm+1}\ns_cbranch_vccnz {fb}")
        if FORCE_FF: a(f"s_branch {fb}")
        a(f"{bk}:")
        def slow():
            a(f"{fb}:"); mm(); shift(); expsum(); a(f"s_branch {bk}")
        far.append(slow)
    a(f"v_rcp_f32 v{tm}, v{tm}")
    for r in range(0, 16, 2): a(f"v_pk_mul_f32 {vr(D+r,2)}, {vr(D+r,2)}, {vr(tm,2)} op_sel_hi:[1,0]")
    for r in range(8): a(f"v_cvt_pk_bf16_f32 v{out+r}, v{D+2*r}, v{D+2*r+1}")

a("; ---- phi_k, then this row block's share of kv = phi_k^T [v | 1]")
KB, VB, DD, TM, PH = PHQ, PHQ + 8, WR, WR + 16, WR + 24
chk_read(w)
a(f"""s_lshl_b32 s{t3}, s{sP}, 1
s_add_u32 s{t3}, s{t3}, s{sI}
s_lshl_b32 s{t2}, s{sHG}, 2
s_add_u32 s{t2}, s{t2}, s{t3}
s_lshl_b32 s{t2}, s{t2}, 8
s_add_u32 s{t2}, s{t2}, s{sRB}
s_mul_i32 s{t4}, s{t2}, {PREC}
s_add_u32 s{t4}, s{t4}, {WS_PART}""")
for r in range(8): a(f"v_cvt_pk_bf16_f32 v{KB+r}, v{ACC+2*r}, v{ACC+2*r+1}")
for r in range(8): a(f"v_cvt_pk_bf16_f32 v{VB+r}, v{AC2+2*r}, v{AC2+2*r+1}")
chk_test(w)
xs("k1")
a(f"ds_write_b128 v{vSV}, {vr(VB,4)}\nds_write_b128 v{vSV}, {vr(VB+4,4)} offset:1024")
dma_stage(12)
def pq2(B, D0, D1):
    for hh, D in enumerate((D0, D1)): a(f"v_mfma_f32_32x32x16_bf16 {vr(D,16)}, {vr(WPH+4*hh,4)}, {vr(B+4*hh,4)}, 0")
if LOWM: lowprio(lambda: pq2(KB, DD, ACC))
for hh in range(2):
    features(KB + 4 * hh, WPH + 4 * hh, PH, ACC if (LOWM and hh) else DD, TM, done=bool(LOWM))
    for aa in range(4): a(f"ds_write_b64 v{vSW+aa}, {vr(PH+2*aa,2)} offset:{hh*4096}")
    xs(f"k3{hh}")
wait(vm=("st", 12)); w = arrive()
KA, KBv, KD = WR, AC2, ACC
a(f"s_mov_b32 s{t1}, {hex(ONES)}\ns_mov_b32 s{t2}, {hex(ONES)}")
for r in range(0, 16, 2): a(f"v_mov_b64 {vr(KBv+r,2)}, s[{t1}:{t2}]")
check(w)
xs("k4")
for u in range(4):
    a(f"ds_read_b64_tr_b16 {vr(KA+4*u,2)}, v{vSR} offset:{u*1024}\nds_read_b64_tr_b16 {vr(KA+4*u+2,2)}, v{vSR2} offset:{u*1024+512}")
a(f"s_mov_b32 exec_lo, 0xffff\ns_mov_b32 exec_hi, 0xffff")
for u in range(4):
    a(f"ds_read_b128 {vr(KBv+4*u,4)}, v{vSVR} offset:{(u//2)*4096 + (u%2)*1024}")
a("s_mov_b64 exec, -1")
LG.issue("kv", 12)
SL = [WR + 16 + 4 * n for n in range(4)] + [PHQ + 4 * n for n in range(4)] + [WR + 4 * n for n in range(4)]
wait(lg="kv")
lowprio(lambda: [a(f"v_mfma_f32_32x32x16_bf16 {vr(KD,16)}, {vr(KA+4*u,4)}, {vr(KBv+4*u,4)}, {'0' if u == 0 else vr(KD,16)}") for u in range(4)])
if not FILE_:
    for r in range(5): filler(r)
a(f"s_mov_b32 exec_lo, 0xfffff\ns_mov_b32 exec_hi, 0xfffff")
for e in range(4):
    a(f"buffer_store_dwordx4 {vr(KD+4*e,4)}, v{vPR}, {sr(sWS,4)}, s{t4} offen sc1"); VM.issue("part")
    if e < 3: a(f"s_add_u32 s{t4}, s{t4}, {64*PREC}")
a("s_mov_b64 exec, -1")
stamp(5)
dq = [(c, n) for c in (13, 14, 17, 18, 19)[:2 + EARLYA] for n in range(4)]
its = [(lambda d, tg, n=n: rd_stage(d, 8 + n // 8, n % 8, tg),
        lambda w_, n=n: f"v_mfma_f32_32x32x16_bf16 {vr(AC2,16)}, {vr(w_,4)}, {vr(XF+4*n,4)}, {'0' if n == 0 else vr(AC2,16)}", None) for n in range(32)]
def e1(): wait(vm="part"); cur["p"] = arrive()
def e2():
    chk_read(cur["p"]); chk_test(cur["p"], lowprio=True)
    with only(sS, 2): flag(F_F2)
def e5():
    if WAT:
        a(f"""s_and_b32 s{t0}, s{sRB}, 3
        s_lshl_b32 s{t0}, s{t0}, 2
        s_add_u32 s{t0}, s{t0}, s{sS}
        s_lshl_b32 s{t0}, s{t0}, 15
        s_mov_b32 exec_hi, 0
        buffer_load_dword v250, v{vPC}, {sr(sWOA,4)}, s{t0} offen
        s_mov_b32 exec_hi, -1""")
        VM.issue("wat")
def e3():
    with only(sS, 2): poll_issue(vPC, vT2, F_F2)
    with only(sS, 0): poll_issue(vPF, vT2, F_F2)
def fin(j, g): a(f"s_mov_b32 s{sJ}, {j}"); call_fin(g)
def fins012():
    with only(sI, 0): fin(f"s{sP}", vGI)
    with only(sS, 3): fin(2, vGO)
FMID = E("FMID", 1)
def e4():
    if FMID: a("s_setprio 2"); fins012(); a("s_setprio 0")
RD = TMP + (16 if RAT else 64)
def red_loads():
    with only(sS, 2):
        if RAT: a("s_setprio 2")
        a("s_waitcnt vmcnt(0)")
        poll_check(vPC, vT2, F_F2)
        xs("r1")
        if RAT: a("s_setprio 0")
        a(f"""s_and_b32 s{t3}, s{sRB}, 3
        s_lshl_b32 s{t0}, s{sHG}, 2
        s_add_u32 s{t3}, s{t0}, s{t3}
        s_lshl_b32 s{t0}, s{t3}, 3
        s_lshr_b32 s{t2}, s{sRB}, 2
        s_add_u32 s{t0}, s{t0}, s{t2}
        s_mul_i32 s{t0}, s{t0}, {32*PREC}
        s_add_u32 s{t0}, s{t0}, {WS_PART}""")
        for n in range(16):
            if n and n % 4 == 0: a(f"s_add_u32 s{t0}, s{t0}, {8*PREC}")
            a(f"buffer_load_dwordx4 {vr(RD+4*n,4)}, v{vLI}, {sr(sWS,4)}, s{t0} offen offset:{(n%4)*2*PREC} sc1")
ok19 = []
def e6(): cur["x3"] = arrive()
def e7(): chk_read(cur["x3"]); chk_test(cur["x3"], lowprio=True); ok19.append(1)
def dma_b(i):
    for _ in range(2 if len(dq) > 31 - i else 1):
        if i > 13 and dq and (dq[0][0] != 19 or ok19): dma_one(*dq.pop(0))
ev = {E('E1', 9): [e1], E('E2', 12): [e2], 15: [e4], (RAT - 5 if RAT else 27): [e3]}
if RAT:
    assert RED1 and RAT >= 21; ev[RAT] = [red_loads]
if EARLYA == 3: ev[17] = [e6]; ev[28] = [e7]
wgemm(its, SL, AH, events=ev, extra=dma_b)
assert not dq
vWA0, vWA1, vWB0, vWB1 = vXA, vWX, vWO, vWP
a(f"""s_lshl_b32 s{t0}, s{sP}, 13
v_add_u32 v{vWA0}, s{t0}, v{vWOA}
v_xor_b32 v{vWA1}, 64, v{vWA0}
v_add_u32 v{vWB0}, s{t0}, v{vWO}
v_xor_b32 v{vWB1}, 64, v{vWB0}""")
assert RING % 128 == 0 and STG[12] == 0
for k in range(8): rd_w(WB0 + 4 * k, (vWA0, vWA1)[k % 2], (k // 2) * 2048, 1024, "wb0")
stamp(6)
KB, DD, TM = TMP, TMP + 16, TMP + 32
a('; ---- sum of the kv shares over the row blocks (a slice per workgroup), phi_q')
if not RAT and JE2 != 1: red_loads()
xs("r2")
if not FMID: fins012()
for r in range(8): a(f"v_cvt_pk_bf16_f32 v{KB+r}, v{AC2+2*r}, v{AC2+2*r+1}")
DQ2 = TMP + 40 if LOWM else DD
if LOWM: assert not RAT; lowprio(lambda: pq2(KB, DD, DQ2))
if not RED1: features(KB, WPH, PHQ, DD, TM, done=bool(LOWM))
if JE2 == 1: red_loads(); features(KB + 4, WPH + 4, PHQ + 8, DQ2, TM, done=bool(LOWM))
with only(sS, 2):
    kvf_addr()
    a("s_waitcnt vmcnt(0)")
    st = 16
    while st >= 2:
        for n in range(st):
            if st >= NPK: a(f"v_pk_add_f32 {vr(RD+2*n,2)}, {vr(RD+2*n,2)}, {vr(RD+2*(n+st),2)}")
            else: a(f"v_add_f32 v{RD+2*n}, v{RD+2*n}, v{RD+2*(n+st)}\nv_add_f32 v{RD+2*n+1}, v{RD+2*n+1}, v{RD+2*(n+st)+1}")
        st //= 2
    a(f"""v_permlane32_swap_b32 v{RD}, v{RD+2}
    v_permlane32_swap_b32 v{RD+1}, v{RD+3}
    v_add_f32 v{RD}, v{RD}, v{RD+2}
    v_add_f32 v{RD+1}, v{RD+1}, v{RD+3}
    v_cvt_pk_bf16_f32 v15, v{RD}, v{RD+1}
    v_min_u32 v15, -2, v15
    buffer_store_dword v15, v{vKS}, {sr(sWS,4)}, s{t0} offen sc1""")
xs("r3")
JE = E("JE", 0)
if RED1 and not JE: features(KB, WPH, PHQ, DD, TM, done=bool(LOWM))
with only(sS, 0):
    a("s_waitcnt vmcnt(0)"); poll_check(vPF, vT2, F_F2)
w = arrive()
if RED1 and JE: features(KB, WPH, PHQ, DD, TM, done=bool(LOWM))
if JE2 != 1: features(KB + 4, WPH + 4, PHQ + 8, DQ2, TM, done=bool(LOWM))
stamp(7)
with only(sS, 3): fin(3, vGO)
with only(sS, 2): a(f"v_add_u32 v13, {G1}, v{vL4}\nds_write_b32 v13, v{vGI}")
xs("l1")
check(w, nap=1)
xs("l2")
dma_stage(15)
def woa_dma():
    for c in range(16, 20):
        if (c, 0) not in issued: dma_stage(c)
assert not DMAAT
if not DMAAT: woa_dma()
xs("l3")
if not F4L:
    with only(sS, 1): fin(4, vGO)
def take(loads, regs, nap, issued=False, before=None, landed=False):
    lp, dn, l2 = a.lab("tk"), a.lab("tkd"), a.lab("tkw")
    if issued: a(f"s_branch {l2}")
    a(f"{lp}:")
    if before: before()
    loads()
    a(f"s_waitcnt vmcnt(0)\n{l2}:" if landed else f"{l2}:\ns_waitcnt vmcnt(0)")
    a(f"v_max_u32 v{vT}, v{regs[0]}, v{regs[1]}")
    for k in range(2, len(regs), 2): a(f"v_max3_u32 v{vT}, v{vT}, v{regs[k]}, v{regs[k+1]}")
    a(f"v_cmp_eq_u32 vcc, -1, v{vT}\ns_cbranch_vccz {dn}")
    budget(dn)
    if nap: a(f"s_sleep {nap}")
    a(f"s_branch {lp}\n{dn}:")
a(f"""s_lshl_b32 s{t3}, s{sHG}, 2
s_lshl_b32 s{t1}, s{sP}, 1
s_add_u32 s{t3}, s{t3}, s{t1}
s_mul_i32 s{t4}, s{t3}, {KVF_STRIDE}
s_add_u32 s{t4}, s{t4}, {WS_KVF}
s_lshl_b32 s{sPF}, s{sRB}, 1
s_add_u32 s{sPF}, s{sPF}, s{sI}
s_lshl_b32 s{sPF}, s{sPF}, 16
s_add_u32 s{sPF}, s{sPF}, {WS_O}
s_lshl_b32 s{t3}, s{t3}, 10
s_add_u32 s{t3}, s{t3}, s{sPF}
s_add_u32 s{t3}, s{t3}, 32768
v_sub_f32 v15, 1.0, v{vGI}""")
def steps_a(hs, reg): return [(h * 1024, ((vWA0, vWA1), h * 2048), reg + 4 * k) for k, h in enumerate(hs)]
def steps_b(reg):
    o = []
    for k, h in enumerate(8 * m + r for m in range(4) for r in range(4)):
        o.append((32768 + h * 1024, WB0 + 8 * k if k < 4 else ((vWB0, vWB1), STG[12 + h // 8] - RING + (h % 8) * 2048), reg + 4 * k))
    return o
def rec_loads(steps, base):
    for k, (ro, _, reg) in enumerate(steps):
        hi, lo = ro & ~4095, ro & 4095
        if k == 0 or hi != (steps[k-1][0] & ~4095): a(f"s_add_u32 s{t1}, s{base}, {hi}")
        a(f"buffer_load_dwordx4 {vr(reg,4)}, v{vL16}, {sr(sWS,4)}, s{t1} offen offset:{lo} sc1")
OBT = TMP + 64
a(f"s_mov_b32 s{sD0}, s{sPF}\ns_lshl_b32 s{t0}, s{sP}, 12\ns_add_u32 s{sD1}, s{sD0}, s{t0}")
sa = steps_a([8 * m + r for m in range(4) for r in range(4)], TMP)
if SAE:
    with only(sI, 0): rec_loads(sa, sD1)
def kvf_loads():
    for r in range(16): a(f"buffer_load_dword v{OBT+r}, v{vL4}, {sr(sWS,4)}, s{t4} offen offset:{r*256} sc1")
a('; ---- o_b = (1-g) * phi_q kv / (phi_q z + 1e-6)')
take(kvf_loads, list(range(OBT, OBT + 16)), E("KNAP", 6))
if not DMAAT: arrive(W_OB)
stamp(8)
def obm():
    for hh in range(2):
        D = OBT + 16 + 16 * hh
        a(f"v_mfma_f32_32x32x16_bf16 {vr(D,16)}, {vr(OBT+8*hh,4)}, {vr(PHQ+8*hh,4)}, 0")
        a(f"v_mfma_f32_32x32x16_bf16 {vr(D,16)}, {vr(OBT+8*hh+4,4)}, {vr(PHQ+8*hh+4,4)}, {vr(D,16)}")
lowprio(obm)
for hh in range(2):
    D = OBT + 16 + 16 * hh
    a(f"v_add_f32 v{D+8}, 0x358637bd, v{D+8}\nv_rcp_f32 v{D+8}, v{D+8}\nv_mul_f32 v{D+8}, v{D+8}, v15")
    for r in range(0, 8, 2): a(f"v_pk_mul_f32 {vr(D+r,2)}, {vr(D+r,2)}, {vr(D+8,2)} op_sel_hi:[1,0]")
    for r in range(4): a(f"v_cvt_pk_bf16_f32 v{D+12+r}, v{D+2*r}, v{D+2*r+1}")
    a(f"v_min_u32 v{D+12}, -2, v{D+12}")
    if NEARB:
        l1, l2 = a.lab("st"), a.lab("st")
        a(f"s_cmp_lt_u32 s{sFAR}, 64\ns_cbranch_scc1 {l1}")
    a(f"buffer_store_dwordx4 {vr(D+12,4)}, v{vL16}, {sr(sWS,4)}, s{t3} offen offset:{hh*1024} sc1")
    if NEARB: a(f"s_branch {l2}\n{l1}:\nbuffer_store_dwordx4 {vr(D+12,4)}, v{vL16}, {sr(sWS,4)}, s{t3} offen offset:{hh*1024} {NRF}\n{l2}:")
wo = arrive()
a(f"""v_bfe_u32 v13, v0, 2, 2
v_and_b32 v14, 3, v0
v_lshl_add_u32 v13, v13, 3, v14
v_lshlrev_b32 v{vPO}, 10, v13""")
stamp(9)
if DMAAT:
    check(wo, nap=1)
    woa_dma()
def probe(off, va=None):
    lp, dn = a.lab("pb"), a.lab("pbd")
    a(f"""s_add_u32 s{t1}, s{sD1}, {off}
    {lp}:
    buffer_load_dword v{vT2}, v{va or vPO}, {sr(sWS,4)}, s{t1} offen offset:1008 sc1
    s_waitcnt vmcnt(0)
    v_cmp_eq_u32 vcc, -1, v{vT2}
    s_cbranch_vccz {dn}""")
    budget(dn)
    a(f"s_sleep {RNAP}\ns_branch {lp}\n{dn}:")

OTR = os.environ.get("OTR", "-,-").split(",")
def out_addr(half):
    if OTR[half] == "-":
        a(f"""v_and_b32 v14, 31, v0
        v_lshlrev_b32 v14, 10, v14
        v_lshrrev_b32 v15, 5, v0
        v_lshl_add_u32 v14, v15, 4, v14""")
    else:
        a(f"""s_xor_b32 s{t0}, s{sS}, 1
        s_lshl_b32 s{t0}, s{t0}, 12
        s_add_u32 s{t0}, s{t0}, {OP}
        v_and_b32 v14, 31, v0
        v_lshrrev_b32 v15, 5, v0
        v_mul_u32_u24 v14, 80, v14
        v_lshl_add_u32 v14, v15, 3, v14
        v_add_u32 v{vGI}, s{t0}, v14
        v_lshrrev_b32 v14, 2, v0
        v_and_b32 v15, 48, v{vL16}
        v_mul_u32_u24 v{vGO}, 80, v14
        v_add3_u32 v{vGO}, v{vGO}, v15, s{t0}
        v_lshl_add_u32 v14, v14, 10, v15""")
    a(f"""s_lshl_b32 s{t4}, s{sRB}, 16
    s_lshl_b32 s{t1}, s{sI}, 15
    s_add_u32 s{t4}, s{t4}, s{t1}
    s_lshl_b32 s{t1}, s{sHG}, 7
    s_add_u32 s{t4}, s{t4}, s{t1}
    s_lshl_b32 s{t1}, s{sP}, 6
    s_add_u32 s{t4}, s{t4}, s{t1}
    s_add_u32 s{t3}, s{t4}, 16384""")
def store_out(half, D7, pre=None):
    if OTR[half] == "-":
        for r in range(0, 16, 2): a(f"v_pk_add_f32 {vr(ACC+r,2)}, {vr(ACC+r,2)}, {vr(D7+r,2)}")
        for r in range(8): a(f"v_cvt_pk_bf16_f32 v{PHQ+r}, v{ACC+2*r}, v{ACC+2*r+1}")
        for kk in range(2):
            b = PHQ + 4 * kk
            a(f"v_permlane32_swap_b32 v{b}, v{b+2}\nv_permlane32_swap_b32 v{b+1}, v{b+3}")
            if pre and kk == 0: pre()
            a(f"buffer_store_dwordx4 {vr(b,4)}, v14, {sr(sOUT,4)}, s{t4} offen offset:{kk*32} {OUTF}")
        return
    for q4 in range(4):
        for r in (4 * q4, 4 * q4 + 2): a(f"v_pk_add_f32 {vr(ACC+r,2)}, {vr(ACC+r,2)}, {vr(D7+r,2)}")
        for r in (2 * q4, 2 * q4 + 1): a(f"v_cvt_pk_bf16_f32 v{PHQ+r}, v{ACC+2*r}, v{ACC+2*r+1}")
        a(f"ds_write_b64 v{vGI}, {vr(PHQ+2*q4,2)} offset:{16*q4}")
    a(f"ds_read_b128 {vr(PHQ+8,4)}, v{vGO}\nds_read_b128 {vr(PHQ+12,4)}, v{vGO} offset:1280")
    if pre: pre()
    pol = OTR[half].replace("+", " ").replace("p", "")
    a(f"""s_waitcnt lgkmcnt(1)
    buffer_store_dwordx4 {vr(PHQ+8,4)}, v14, {sr(sOUT,4)}, s{t4} offen {pol}
    s_waitcnt lgkmcnt(0)
    buffer_store_dwordx4 {vr(PHQ+12,4)}, v14, {sr(sOUT,4)}, s{t3} offen {pol}""")

TS = [WPH + 4 * n for n in range(6)] + [vSW, vSW + 4]
assert vSW == 236
def run_items(its, first, windows, hooks=None, prime_only=None):
    hooks = hooks or {}
    slot = {}; cnt = [0]
    def rd(n):
        w_, _, c = its[n]
        if isinstance(w_, int): slot[n] = w_ + 4 * c
        else:
            slot[n] = TS[cnt[0] % 8]; cnt[0] += 1
            rd_w(slot[n], w_[0][c], w_[1], 1024, ("w", n))
    LG.clear()
    nr = 0
    while nr < len(its) and cnt[0] < 6: rd(nr); nr += 1
    if prime_only: prime_only()
    if windows: a("s_setprio 0")
    seen = set()
    step = 2 if windows else 1
    for g0 in range(0, len(its), step):
        grp = range(g0, min(g0 + step, len(its)))
        for n in grp:
            for f in hooks.get(n, []): f()
        wait(lg=("w", grp[-1]))
        for n in grp:
            acc = (ACC, AC2)[its[n][2]]
            wait(lg=("w", n))
            a(f"v_mfma_f32_32x32x16_bf16 {vr(acc,16)}, {vr(slot[n],4)}, {vr(its[n][1],4)}, {0 if first and acc not in seen else vr(acc,16)}")
            seen.add(acc)
        for n in grp:
            if not isinstance(its[n][0], int):
                while nr < len(its):
                    rd(nr); nr += 1
                    if not isinstance(its[nr-1][0], int): break
    assert nr == len(its)
    if windows: a("s_setprio 2")
after = []; R6P = E('R6P', 1)
HOLD0 = E('HOLD0', 0); w7 = newword()
items = lambda steps: [(w_, reg, c) for (_, w_, reg) in steps for c in range(2)]
def tail(its, late, last, LW=TMP, D7=TMP + 32):
    n0 = len(its)
    nf = len(its) // 2
    its = [x for x in its if x[2] == 1] + [x for x in its if x[2] == 0] + [(w_, reg, 0) for (_, w_, reg) in late]
    def gate():
        out_addr(1 if last else 0)
        lp, dn = a.lab("tw"), a.lab("twd")
        a(f"""s_lshl_b32 s{t2}, s{sS}, 12
        s_add_u32 s{t0}, s{t2}, {OP}
        v_add_u32 v{vPC}, s{t0}, v{vL16}
        s_xor_b32 s{t2}, s{t2}, 4096
        s_add_u32 s{t0}, s{t2}, {OP}
        v_add_u32 v{vPR}, s{t0}, v{vL16}
        s_lshl_b32 s{t0}, s{sS}, 8
        s_add_u32 s{t0}, s{t0}, {LT + 3*1024 + 208}
        v_mov_b32 v13, s{t0}""")
        if last:
            for q_, (_, w_, _) in enumerate(last): rd_w(LW + 4 * q_, vWOA, w_, 1024, "lw")
            if E("PW7", 0):
                a(f"s_lshl_b32 s{t0}, s{sHG}, 12\ns_add_u32 s{t0}, s{t0}, s{sD0}\nbuffer_load_dword v{vT2}, v{vL16}, {sr(sWS,4)}, s{t0} offen offset:3072 sc1")
        xs("t0")
        if late and R6P:
            lr = [reg for (_, _, reg) in late]
            l6 = a.lab("g6")
            a(f"{l6}:\nds_read_b32 v{vT}, v13")
            rec_loads(late, sD0)
            a(f"s_waitcnt lgkmcnt(0)\nv_cmp_eq_u32 vcc, 0, v{vT}\ns_cbranch_vccz {lp}")
            a(f"s_waitcnt vmcnt(0)\nv_max_u32 v{vT2}, v{lr[0]}, v{lr[1]}")
            for q_ in range(2, 8, 2): a(f"v_max3_u32 v{vT2}, v{vT2}, v{lr[q_]}, v{lr[q_+1]}")
            a(f"v_cmp_eq_u32 vcc, -1, v{vT2}\ns_cbranch_vccz {lp}")
            budget(lp)
            a(f"s_branch {l6}")
        if E("ALN", 1): a(f"s_branch {lp}\n.p2align 12, , {2200 if last else 1100}")
        a(f"""{lp}:
        ds_read_b32 v{vT}, v13
        s_waitcnt lgkmcnt(0)
        v_cmp_eq_u32 vcc, 0, v{vT}
        s_cbranch_vccz {dn}""")
        budget(dn)
        a(f"s_sleep 1\ns_branch {lp}\n{dn}:")
        LG.clear()
        stamp(11)
    hooks = {}
    if late:
        lr = [reg for (_, _, reg) in late]
        nl = min(n for n, x in enumerate(its) if x[1] in lr)
        for q_ in range(0 if R6P else 4): hooks.setdefault(E("R6AT", 0) + q_, []).append(lambda q_=q_: rec_loads(late[2*q_:2*q_+2], sD0))
        def tk6():
            rt, dn = a.lab("r6"), a.lab("r6d")
            def chk():
                a(f"s_waitcnt vmcnt(0)\nv_max_u32 v{vT2}, v{lr[0]}, v{lr[1]}")
                for q_ in range(2, 8, 2): a(f"v_max3_u32 v{vT2}, v{vT2}, v{lr[q_]}, v{lr[q_+1]}")
                a(f"v_cmp_eq_u32 vcc, -1, v{vT2}\ns_cbranch_vccnz {rt}")
            chk(); a(f"{dn}:"); xs("n6")
            def again6():
                a(f"{rt}:"); budget(dn); rec_loads(late, sD0); chk(); a(f"s_branch {dn}")
            after.append(again6)
        hooks.setdefault(nl - 1, []).append(tk6)
    if last:
        for q_ in range(4): hooks.setdefault(len(its) - R7AT + q_, []).append(lambda q_=q_: rec_loads(last[2*q_:2*q_+2], sD0))
    ww = newword()
    def x1():
        for q4 in range(4): a(f"ds_write_b128 v{vPC}, {vr(AC2+4*q4,4)} offset:{q4*1024}")
        LG.issue("xw", 4); arrive(ww)
    hooks.setdefault(nf + E('X1AT', 2), []).append(x1)
    hooks.setdefault(len(its) - E('X2AT', 3) - 2, []).append(lambda: chk_read(ww))
    def x2():
        chk_test(ww, 2, near=True)
        for q4 in range(4): a(f"ds_read_b128 {vr(AC2+4*q4,4)}, v{vPR} offset:{q4*1024}")
        LG.issue("xr", 4)
    hooks.setdefault(len(its) - E('X2AT', 3), []).append(x2)
    run_items(its, False, False, hooks, gate)
    xs("t1")
    if last:
        l2, rt, d2 = a.lab("r7"), a.lab("r7r"), a.lab("r7d")
        R = last[0][2]
        def again():
            a(f"{rt}:"); budget(d2)
            rec_loads(last, sD0)
            if E("CK7", 0):
                a(f"s_waitcnt vmcnt(4)\nv_max_u32 v{vT}, v{R}, v{R+1}")
                for r in range(2, 32, 2):
                    if r == 16: a("s_waitcnt vmcnt(0)")
                    a(f"v_max3_u32 v{vT}, v{vT}, v{R+r}, v{R+r+1}")
                a(f"v_cmp_eq_u32 vcc, -1, v{vT}\ns_cbranch_vccnz {rt}")
            a(f"s_branch {l2}")
        after.append(again)
        a(f"s_waitcnt lgkmcnt(0)\n{l2}:")
        xs("u0")
        for q_, (_, _, reg) in enumerate(last):
            a(f"s_waitcnt vmcnt({7 - q_})")
            if q_ == 0: xs("u1")
            a(f"v_mfma_f32_32x32x16_bf16 {vr(D7,16)}, {vr(LW+4*q_,4)}, {vr(reg,4)}, {vr(D7 if q_ else AC2,16)}")
            a(f"v_max_u32 v{vT}, v{reg}, v{reg+1}" if q_ == 0 else f"v_max3_u32 v{vT}, v{vT}, v{reg}, v{reg+1}")
            a(f"v_max3_u32 v{vT}, v{vT}, v{reg+2}, v{reg+3}")
            if q_ in (3, 7): a(f"v_cmp_eq_u32 vcc, -1, v{vT}\ns_cbranch_vccnz {rt}")
        a(f"{d2}:")
        if HOLD0: arrive(w7)
        xs("n7")
    else:
        D7 = AC2
        a("s_waitcnt lgkmcnt(0)")
    store_out(1 if last else 0, D7, (lambda: (chk_read(w7), chk_test(w7, 2, near=True))) if HOLD0 and not last else None)
def slot_free(j):
    lp, dn = a.lab("cf"), a.lab("cfd")
    a(f"v_mov_b32 v13, {CONS + 16 + 4*j}\n{lp}:\nds_read_b32 v{vT}, v13\ns_waitcnt lgkmcnt(0)\nv_cmp_eq_u32 vcc, 0, v{vT}\ns_cbranch_vccz {dn}")
    budget(dn)
    a(f"s_sleep 2\ns_branch {lp}\n{dn}:")

a(f"s_cmp_eq_u32 s{sI}, 1\ns_cbranch_scc1 L_half1")
sa, sb = steps_a([8 * m + r for m in range(4) for r in range(4)], TMP), steps_b(TMP + 64)
first_words = lambda st: [reg for (_, _, reg) in st]
assert (24 <= PRET <= 40 if A1ST else 16 <= PRET <= 32) and PRET % 2 == 0
if F4L:
    with only(sS, 1): fin(4, vGO)
take(lambda: rec_loads(sa, sD1), first_words(sa), RNAP, issued=bool(SAE), landed=bool(SAE))
if DMAAT: arrive(W_OB)
check(W_OB, nap=2)
xs("m0")
run_items(items(sa), True, True, hooks={22: [lambda: rec_loads(sb, sD1)]})
xs("m2")
with only(sS, 0): fin(6, vGO)
take(lambda: rec_loads(sb, sD1), first_words(sb), 0, issued=True, before=lambda: probe(32768))
stamp(10)
P0X = E("P0X", 0)
if P0X: run_items(items(sb)[:P0X], False, True)
slot_free(4)
tail(items(sb)[P0X:], [], None)
stamp(12)
diag_dump(13)
a("s_endpgm")
a("L_half1:")
LG.clear(); VM.clear()
sb = steps_b(TMP)
if A1ST != 2:
    with only(sS, 2): fin(5, vGI)
if A1ST == 2:
    sb = steps_b(TMP + 64)
    s7 = [((4*k + 3) * 1024, (4*k + 3) * 2048, WB0 + 4 * k) for k in range(8)]
    s45, s6 = steps_a([8 * m + r for m in range(4) for r in range(2)], TMP), steps_a([8 * m + 2 for m in range(4)], TMP + 32)
    if E("F5F", 1):
        with only(sS, 2): fin(5, vGI)
    check(wo, nap=2)
    rec_loads(sb, sD1)
    if not E("F5F", 1):
        with only(sS, 2): fin(5, vGI)
    xs("p2")
    take(lambda: rec_loads(sb, sD1), first_words(sb), 0, issued=True, before=lambda: probe(32768))
    xs("m0")
    run_items(items(sb), True, True, hooks={20: [lambda: rec_loads(s45, sD1)]})
    xs("m2")
    take(lambda: rec_loads(s45, sD1), first_words(s45), E("N45", 3), issued=True)
    slot_free(5)
    if R6P: slot_free(6)
    stamp(10)
    s6 = [((4*k + 2) * 1024, ((vWOA, vWOA), (4*k + 2) * 2048), TMP + 32 + 4 * k) for k in range(8)]
    tail(items(s45), s6, s7, TMP + 64, TMP + 96)
elif A1ST:
    s7 = [((4*k + 3) * 1024, (4*k + 3) * 2048, WB0 + 4 * k) for k in range(8)]
    s45, s6 = steps_a([8 * m + r for m in range(4) for r in range(2)], TMP + 64), steps_a([8 * m + 2 for m in range(4)], TMP + 96)
    vP2 = vLI
    def probe2(mask, add):
        a(f"v_and_b32 v{vP2}, {hex(mask)}, v{vPO}")
        if add: a(f"v_add_u32 v{vP2}, {add}, v{vP2}")
        probe(0, vP2)
    xs("p0")
    check(wo, nap=2)
    slot_free(5)
    xs("p1")
    take(lambda: rec_loads(s45, sD1), first_words(s45), E("N45", 3))
    xs("p2")
    run_items(items(s45), True, True, hooks={E("SBAT", 4): [lambda: rec_loads(sb, sD1)]})
    take(lambda: rec_loads(sb, sD1), first_words(sb), 0, issued=True, before=lambda: probe(32768))
    xs("m0")
    run_items(items(sb)[:PRET - 16], False, True, hooks={PRET - 22: [lambda: rec_loads(s6, sD1)]})
    xs("m2")
    take(lambda: rec_loads(s6, sD1), first_words(s6), E("N45", 3), issued=True, before=lambda: slot_free(6))
    stamp(10)
    tail(items(sb)[PRET - 16:] + items(s6), [], s7, TMP + 64)
else:
    xs("p0")
    if DMAAT:
        a("s_waitcnt vmcnt(0)"); arrive(W_OB)
        xs("p1")
        rec_loads(sb, sD1)
        take(lambda: rec_loads(sb, sD1), first_words(sb), 0, issued=True, before=lambda: probe(32768))
    else:
        check(wo, nap=2)
        xs("p1")
        probe(32768)
        xs("p2")
        take(lambda: rec_loads(sb, sD1), first_words(sb), RNAP)
    xs("m0")
    s456 = steps_a([8 * m + r for m in range(4) for r in range(3)], TMP + 64)
    slot_free(5)
    run_items(items(sb)[:PRET], True, True, hooks={PRET - E("L6AT", 6): [lambda: rec_loads(s456, sD1)]})
    xs("m2")
    def wait6():
        a(f"v_bfe_u32 v13, v0, 2, 2\nv_lshlrev_b32 v13, 13, v13\nv_add_u32 v{vPO}, 2048, v13")
        slot_free(6); probe(0)
    take(lambda: rec_loads(s456, sD1), first_words(s456), 0, issued=True, before=wait6)
    if DMAAT: check(W_OB, nap=1)
    stamp(10)
    tail(items(sb)[PRET:] + items(s456), [], [((4*k + 3) * 1024, (4*k + 3) * 2048, WB0 + 4 * k) for k in range(8)])
stamp(12)
if DIAG or HOLDAT:
    a("s_branch L_dd")
    for f_ in after: f_()
    after = []
    a("L_dd:")
diag_dump(13)
hold()
a("L_exit:\ns_endpgm")
for f_ in after: f_()

FO = TMP
FL = TMP + 32
a("L_fin:\ns_nop 1")
a(f"""s_and_b32 s{t2}, s{sJ}, 3
s_lshl_b32 s{t0}, s{t2}, 10
s_add_u32 s{t0}, s{t0}, {LT}
v_and_b32 v14, 3, v0
v_lshl_add_u32 v14, v14, 8, s{t0}
v_and_b32 v15, 124, v{vL4}
v_add_u32 v15, s{t0}, v15
s_lshl_b32 s{t1}, s{sJ}, 10
s_add_u32 s{t1}, s{t1}, {Q + 1024}
s_lshl_b32 s{t2}, s{t2}, 13
s_add_u32 s{t2}, s{t2}, {OP}
v_add_u32 v{FL+4}, s{t2}, v{vL16}
s_lshl_b32 s{t0}, s{sJ}, 2
s_add_u32 s{t0}, s{t0}, {CONS + 16}
v_mov_b32 v13, s{t0}
s_lshr_b32 s{t0}, s{sJ}, 2
s_lshl_b32 s{t2}, s{sRB}, 1
s_add_u32 s{t0}, s{t0}, s{t2}
s_lshl_b32 s{t0}, s{t0}, 6
s_lshl_b32 s{t2}, s{sHG}, 2
s_add_u32 s{t0}, s{t0}, s{t2}
s_and_b32 s{t2}, s{sJ}, 3
s_add_u32 s{t0}, s{t0}, s{t2}
s_lshl_b32 s{t4}, s{t0}, 10
s_add_u32 s{t4}, s{t4}, {WS_O}
""")
assert FP == 1 << 15 and CONS + 16 + 32 <= SYNC and (TMP, vGF, vL4, vONE, vL16, vT, FOUT) == (104, 233, 251, 1, 10, 3, 244)
fin_body(True, "L_fb", FNAP)
if DIAG: a("s_waitcnt lgkmcnt(0)")
a(f"s_setpc_b64 s[{sRET}:{sRET+1}]")
emit_cold()
a("CODE_END:")
for f_ in far: f_()
BS, BC, BK, BV, BQ, BM = TMP + 16, TMP + 32, TMP + 48, TMP + 52, TMP + 60, FOUT
a(f"""L_fb:
s_sub_u32 s{t1}, s{t1}, 1024
v_add_u32 v14, s{t1}, v{vL16}
ds_read_b128 {vr(BQ,4)}, v14
v_mov_b32 v{BM}, 0xff800000
s_mov_b32 s{t0}, 0
s_waitcnt lgkmcnt(0)
L_fb1:
buffer_load_dwordx4 {vr(BK,4)}, v{vL16}, {sr(sWS,4)}, s{t0} offen sc1
s_waitcnt vmcnt(0)
v_mfma_f32_32x32x16_bf16 {vr(BS,16)}, {vr(BK,4)}, {vr(BQ,4)}, 0""")
for r in range(0, 16, 2): a(f"v_max3_f32 v{BM}, v{BM}, v{BS+r}, v{BS+r+1}")
a(f"""s_add_u32 s{t0}, s{t0}, 2048
s_cmp_lt_u32 s{t0}, 131072
s_cbranch_scc1 L_fb1
v_mov_b32 v{BM+1}, v{BM}
v_permlane32_swap_b32 v{BM}, v{BM+1}
v_max_f32 v{BM}, v{BM}, v{BM+1}""")
for r in range(16): a(f"v_sub_f32 v{BC+r}, 0, v{BM}\nv_mov_b32 v{FO+r}, 0")
a(f"""v_mov_b32 v15, 0xdddd
s_mov_b32 s{t0}, 0
L_fb2:
buffer_load_dwordx4 {vr(BK,4)}, v{vL16}, {sr(sWS,4)}, s{t0} offen sc1
buffer_load_dwordx4 {vr(BV,4)}, v{vL16}, {sr(sWS,4)}, s{t0} offen offset:1024 sc1""")
for r in range(4): a(f"v_mov_b32 v{BV+4+r}, {hex(ONES)}")
a(f"""s_waitcnt vmcnt(0)
v_mfma_f32_32x32x16_bf16 {vr(BS,16)}, {vr(BK,4)}, {vr(BQ,4)}, {vr(BC,16)}""")
for r in range(4): a(f"v_permlane16_swap_b32 v{BV+r}, v{BV+4+r}")
for r in range(16): a(f"v_exp_f32 v{BS+r}, v{BS+r}")
a(f"""v_smfmac_f32_32x32x32_bf16 {vr(FO,16)}, {vr(BV,4)}, {vr(BS,8)}, v15
v_smfmac_f32_32x32x32_bf16 {vr(FO,16)}, {vr(BV+4,4)}, {vr(BS+8,8)}, v15
s_add_u32 s{t0}, s{t0}, 2048
s_cmp_lt_u32 s{t0}, 131072
s_cbranch_scc1 L_fb2
s_nop 9
s_branch L_fin_norm""")

body = a.finish(verbose=bool(os.environ.get("VERBOSE")))
ref = open("cdna_kernels/" + NAME + ".s.ref").read().split("\n")
hdr = [l for l in ref if l.startswith(";") and "@launch" not in l and "Override" not in l and "grid=ceil" not in l]
hdr += """;
; One persistent launch, 256 workgroups (one per CU), workgroup = 64 rows x 4 heads; generated by my own script.
;   waves 0-3: MQA attention, 512 keys each in registers;  waves 4-7: all projections and the hedgehog branch beside it.
; Hand-offs between workgroups go through d_ws: flags carry a per-launch nonce; later records sit in slots that were
; filled with all-ones words first (ordered by such a flag) and are taken once no filler is left.  Stores are written
; through unless every reader was seen to share the writer's L2.  Every wait loop is bounded.
; Softmax guard: exponentials are taken un-shifted, the row sums are range-checked at run time, and a tile outside
; the safe range is recomputed with the true row maximum.""".split("\n")
out = "\n".join(hdr) + f"""
; @launch grid=(256,1,1) block=(512,1,1) lds={LDS_BYTES}
.amdgcn_target "amdgcn-amd-amdhsa--gfx950"
.text
.p2align 12
.fill {PAD // 4}, 4, 0xbf810000
.globl {NAME}_kernel
.p2align 8
.type {NAME}_kernel,@function
{NAME}_kernel:
{body}.section .rodata,"a"
.p2align 6
.amdhsa_kernel {NAME}_kernel
  .amdhsa_next_free_vgpr 256
  .amdhsa_next_free_sgpr 102
  .amdhsa_accum_offset 256
  .amdhsa_group_segment_fixed_size 0
  .amdhsa_kernarg_size 104
  .amdhsa_user_sgpr_count 2
  .amdhsa_user_sgpr_kernarg_segment_ptr 1
  .amdhsa_system_sgpr_workgroup_id_x 1
.end_amdhsa_kernel
"""
dst = sys.argv[1] if len(sys.argv) > 1 else "cdna_kernels/" + NAME + ".s"
open(dst, "w").write(out)
print("wrote", dst, len(a.lines), "lines,", len(a.inserted), "nops inserted, words", nword[0])
```
